```python
import torch

def _softmax(x, axis=-1):
    return torch.softmax(x, dim=axis)

def _gelu(x):
    return torch.nn.functional.gelu(x, approximate='tanh')

def _silu(x):
    return torch.nn.functional.silu(x)

def _sigmoid(x):
    return torch.sigmoid(x)

def _layernorm(x, axis=-1, eps=1e-05):
    m = x.mean(dim=axis, keepdim=True)
    v = x.var(dim=axis, keepdim=True, unbiased=False)
    return (x - m) / torch.sqrt(v + eps)

def _scatter_add(tgt, idx, src, axis=0):
    return tgt.clone().index_add_(axis, idx, src)

def _segment_sum(src, seg, n):
    out = torch.zeros((n,) + src.shape[1:], dtype=src.dtype)
    return out.index_add_(0, seg, src)

def _pad(x, pw):
    flat = tuple((v for pair in reversed(pw) for v in pair))
    return torch.nn.functional.pad(x, flat)
kernel_name = 'adaLN_cond__gqa_block_cached__mixer_channel_mlp__decode'

def setup_inputs():

    _w = lambda a: (lambda t: t.to(torch.bfloat16) if t.is_floating_point() else t)(torch.as_tensor(a))

    def _A_setup():
        B, Sq, D = (2, 1, 512)
        Hq, Hkv, Sk, Dh = (32, 8, 8192, 128)
        assert Hq % Hkv == 0, (Hq, Hkv)
        return {'x': _w((lambda *s: torch.randn(*s, dtype=torch.bfloat16) * 0.1)(B, Sq, D)), 'k_cache': _w((lambda *s: torch.randn(*s, dtype=torch.bfloat16) * 0.8)(B, Hkv, Sk, Dh)), 'v_cache': _w((lambda *s: torch.randn(*s, dtype=torch.bfloat16) * 0.8)(B, Hkv, Sk, Dh)), 'wq': _w((lambda *s: torch.randn(*s, dtype=torch.bfloat16) * 0.8)(D, Hq * Dh) * D ** (-0.5)), 'wo': _w((lambda *s: torch.randn(*s, dtype=torch.bfloat16) * 0.8)(Hq * Dh, D) * (Hq * Dh) ** (-0.5))}
    _A_in = _A_setup()

    def _B_setup():
        B, S, D, F = (2, 1, 512, 1792)
        return {'x': _w((lambda *s: torch.randn(*s, dtype=torch.bfloat16) * 0.1)(B, S, D)), 'w1': _w((lambda *s: torch.randn(*s, dtype=torch.bfloat16) * 3.2)(D, F) * D ** (-0.5)), 'b1': _w((lambda *s: torch.randn(*s, dtype=torch.bfloat16) * 3.2)(F)), 'w2': _w((lambda *s: torch.randn(*s, dtype=torch.bfloat16) * 3.2)(F, D) * F ** (-0.5)), 'b2': _w((lambda *s: torch.randn(*s, dtype=torch.bfloat16) * 3.2)(D))}
    _B_in = _B_setup()
    return {'A_x': _A_in['x'], 'A_k_cache': _A_in['k_cache'], 'A_v_cache': _A_in['v_cache'], 'A_wq': _A_in['wq'], 'A_wo': _A_in['wo'], 'B_x': _B_in['x'], 'B_w1': _B_in['w1'], 'B_b1': _B_in['b1'], 'B_w2': _B_in['w2'], 'B_b2': _B_in['b2'], 'c': _w((lambda *s: torch.randn(*s, dtype=torch.bfloat16) * 0.4)(2, 512) * 8.0), 'w_mod': _w((lambda *s: torch.randn(*s, dtype=torch.bfloat16) * 0.4)(512, 6 * 512) * 512 ** (-0.5) * 8.0)}

def reference(A_x, A_k_cache, A_v_cache, A_wq, A_wo, B_x, B_w1, B_b1, B_w2, B_b2, c, w_mod):

    def _A_ref(x, k_cache, v_cache, wq, wo):
        B, Sq, D = x.shape
        Hq, Dh = (32, 128)
        Hkv = k_cache.shape[1]
        rep = Hq // Hkv
        q = (lambda x, *d: x.permute(*d))((x @ wq).reshape(B, Sq, Hq, Dh), 0, 2, 1, 3)
        k = (lambda x, n, axis: torch.repeat_interleave(x, n, dim=axis))(k_cache, rep, axis=1)
        v = (lambda x, n, axis: torch.repeat_interleave(x, n, dim=axis))(v_cache, rep, axis=1)
        scores = torch.einsum('bhqd,bhkd->bhqk', q, k) * Dh ** (-0.5)
        p = _softmax(scores, axis=-1)
        o = torch.einsum('bhqk,bhkd->bhqd', p, v)
        return (lambda x, *d: x.permute(*d))(o, 0, 2, 1, 3).reshape(B, Sq, Hq * Dh) @ wo

    def _B_ref(x, w1, b1, w2, b2):
        y = _layernorm(x, axis=-1)
        h = _gelu(torch.einsum('bsd,df->bsf', y, w1) + b1)
        return torch.einsum('bsf,fd->bsd', h, w2) + b2
    x = A_x
    mod = (_silu(c) @ w_mod).reshape(c.shape[0], 6, 1, -1)
    sa, ca, ga, sb, cb, gb = (mod[:, 0].clone(), mod[:, 1].clone(), mod[:, 2].clone(), mod[:, 3].clone(), mod[:, 4].clone(), mod[:, 5].clone())
    h = _layernorm(x, axis=-1) * (1 + ca) + sa
    x = x + ga * _A_ref(h, A_k_cache, A_v_cache, A_wq, A_wo)
    h = _layernorm(x, axis=-1) * (1 + cb) + sb
    x = x + gb * _B_ref(h, B_w1, B_b1, B_w2, B_b2)
    return x
```

```python
import re

TRANS = ('v_exp_f32', 'v_log_f32', 'v_rcp_f32', 'v_rsq_f32', 'v_sqrt_f32', 'v_sin_f32', 'v_cos_f32')

def _regs(tok):
    tok = tok.strip()
    tok = tok.lstrip('-')
    if tok.startswith('abs(') or tok.startswith('|'):
        tok = tok.replace('abs(', '').replace(')', '').replace('|', '')
    m = re.fullmatch(r'([vsa])(\d+)', tok)
    if m: return {tok}
    m = re.fullmatch(r'([vsa])\[(\d+):(\d+)\]', tok)
    if m: return {f'{m.group(1)}{i}' for i in range(int(m.group(2)), int(m.group(3)) + 1)}
    if tok in ('vcc', 'vcc_lo', 'vcc_hi'): return {'vcc'}
    if tok in ('exec', 'exec_lo', 'exec_hi'): return {'exec'}
    if tok == 'm0': return {'m0'}
    return set()

class I:
    def __init__(self, text):
        self.text = text
        t = text.split(';')[0].strip()
        self.label = None; self.op = None; self.ops = []; self.mods = ''
        if t.endswith(':'):
            self.label = t[:-1]; return
        if not t or t.startswith('.'):
            self.op = None; return
        parts = t.split(None, 1)
        self.op = parts[0]
        rest = parts[1] if len(parts) > 1 else ''
        ops = []; cur = ''; d = 0
        for ch in rest:
            if ch in '[(': d += 1
            if ch in '])': d -= 1
            if ch == ',' and d == 0: ops.append(cur.strip()); cur = ''
            else: cur += ch
        if cur.strip(): ops.append(cur.strip())
        if ops:
            last = ops[-1].split(None, 1)
            ops[-1] = last[0]
            self.mods = last[1] if len(last) > 1 else ''
        self.ops = ops
        op = self.op
        self.mfma = op.startswith('v_mfma')
        self.valu = op.startswith('v_') and not self.mfma
        self.salu = op.startswith('s_')
        self.vmem = op.startswith(('buffer_', 'global_'))
        self.ds = op.startswith('ds_')
        self.dpp = '_dpp' in op or 'row_' in self.mods or 'quad_perm' in self.mods
        self.trans = op.replace('_e32', '').replace('_e64', '') in TRANS
        self.perml = op.startswith('v_permlane')
        self.rdlane = op.startswith(('v_readfirstlane', 'v_readlane'))
        W = set(); R = set()
        allr = [_regs(o) for o in ops]
        if self.mfma:
            W = allr[0]; R = allr[1] | allr[2] | allr[3]; self.A = allr[1] | allr[2]; self.C = allr[3]
        elif self.valu:
            if self.perml:
                W = allr[0] | allr[1]; R = set(W)
            elif op.startswith('v_cmp'):
                W = allr[0]; R = set().union(*allr[1:])
            elif op.startswith(('v_add_co', 'v_sub_co', 'v_addc_co', 'v_subb_co', 'v_div_scale')):
                W = allr[0] | allr[1]; R = set().union(*allr[2:])
            else:
                W = allr[0]; R = set().union(*allr[1:]) if len(allr) > 1 else set()
                if op.startswith(('v_fmac', 'v_dot2c', 'v_writelane')) or self.dpp: R |= allr[0]
                if op.startswith('v_cndmask') and len(ops) == 3: R |= {'vcc'}
                if op.startswith('v_div_fmas'): R |= {'vcc'}
        elif self.vmem:
            if 'load' in op and ' lds' not in (' ' + self.mods) :
                W = allr[0]; R = set().union(*allr[1:])
            elif 'load' in op:
                R = set().union(*allr) | {'m0'}; self.ldsdma = True
            elif 'atomic' in op:
                R = set().union(*allr); W = allr[0] if 'sc0' in self.mods else set()
            elif op.startswith(('buffer_wbl2', 'buffer_inv')):
                pass
            else:
                R = set().union(*allr)
                self.stdata = allr[0] if op.startswith('buffer_') else allr[1]
                self.wide = op.endswith(('x3', 'x4'))
        elif self.ds:
            if op.startswith(('ds_read', 'ds_bpermute', 'ds_permute', 'ds_swizzle')) or '_rtn' in op:
                W = allr[0]; R = set().union(*allr[1:])
            else:
                R = set().union(*allr)
        elif self.salu:
            if op.startswith(('s_cmp', 's_bitcmp', 's_waitcnt', 's_nop', 's_barrier', 's_branch', 's_cbranch', 's_endpgm', 's_sleep', 's_setprio')):
                R = set().union(*allr) if allr else set()
            else:
                W = allr[0] if allr else set(); R = set().union(*allr[1:]) if len(allr) > 1 else set()
                if 'saveexec' in op: W |= {'exec'}
        self.W = W; self.R = R
    def states(self):
        if self.op is None: return 0
        if self.op == 's_nop': return int(self.ops[0], 0) + 1
        return 1

def need(p, c):
    n = 0
    isv = lambda s: {r for r in s if r[0] in 'va' and r not in ('vcc',)}
    iss = lambda s: {r for r in s if r[0] == 's' or r == 'vcc'}
    if p.mfma:
        D = p.W
        if c.mfma:
            if c.A & D: n = max(n, 8)
            if c.C & D and c.C != D: n = max(n, 6)
            if c.W & D and c.C != D: n = max(n, 6)
        elif c.valu or c.vmem or c.ds:
            if (c.R | c.W) & D: n = max(n, 8)
        if c.valu and (c.W & isv(p.C)): n = max(n, 3)
    if p.valu:
        pv = isv(p.W); ps = iss(p.W)
        if c.mfma and c.R & pv: n = max(n, 2)
        if c.valu and c.dpp and c.R & pv: n = max(n, 2)
        if c.valu and c.perml and c.R & pv: n = max(n, 2)
        if c.valu and c.rdlane and c.R & pv: n = max(n, 1)
        if p.trans and (c.valu or c.vmem or c.ds) and c.R & pv: n = max(n, 1)
        if ps:
            if c.valu and c.R & ps: n = max(n, 4 if c.op.startswith(('v_readlane', 'v_writelane', 'v_div_fmas')) else 2)
            if c.vmem and c.R & ps: n = max(n, 5)
            if c.salu and c.R & ps: n = max(n, 1)
    if p.salu and 'm0' in p.W and getattr(c, 'ldsdma', False): n = max(n, 1)
    if p.vmem and getattr(p, 'wide', False) and (c.W & p.stdata): n = max(n, 2)
    return n

class Asm:
    def __init__(self): self.L = []
    def __call__(self, s):
        for line in s.split('\n'):
            line = line.strip()
            if line: self.L.append(line)
    def fix(self):
        ins = [I(t) for t in self.L]
        total = 0
        def maps():
            labels = {x.label: k for k, x in enumerate(ins) if x.label}
            brs = {}
            for k, x in enumerate(ins):
                if x.op and x.op.startswith(('s_branch', 's_cbranch')):
                    brs.setdefault(labels[x.ops[0]], []).append(k)
            return brs
        changed = True
        while changed:
            changed = False
            brs = maps()
            k = 0
            while k < len(ins):
                c = ins[k]
                if c.op is None or c.op == 's_nop':
                    k += 1; continue
                worst = 0
                stack = [(k - 1, 0, True)]
                seen = set()
                while stack:
                    j, dist, fall = stack.pop()
                    if j < 0 or dist >= 9 or (j, dist) in seen: continue
                    seen.add((j, dist))
                    p = ins[j]
                    if p.label is not None:
                        for b in brs.get(j, []): stack.append((b, dist, False))
                        stack.append((j - 1, dist, True)); continue
                    if p.op is None:
                        stack.append((j - 1, dist, True)); continue
                    if fall and p.op in ('s_branch', 's_endpgm'): continue
                    nd = need(p, c)
                    if nd > dist: worst = max(worst, nd - dist)
                    stack.append((j - 1, dist + p.states(), True))
                if worst:
                    ins.insert(k, I(f's_nop {worst - 1}')); total += worst
                    changed = True
                    brs = maps()
                    k += 1
                k += 1
        self.L = [x.text for x in ins]
        return total
    def text(self): return '\n'.join(self.L) + '\n'
```

```python
import sys
from asmlib import Asm
KNAME = 'adaLN_cond__gqa_block_cached__mixer_channel_mlp__decode_kernel'

AUXREG = 0x10000
ASTR = 97 * 128
A_OFF, P2_OFF, MC_OFF, MR_OFF, Q_OFF, X1_OFF, ST_OFF = 0, 4096, 8192, 9216, 10240, 10752, 10880
MO_BASE = 0x80000
TS_BASE = 0x200000
WS_NREC = 0x400000
L0 = 65536
H_, LNX, QP, MP, RP, IMA, IMS, YB, QT, OB, ZR, HB, SMALL, CNT = [L0 + x for x in
    (0, 2048, 6144, 14336, 18432, 22528, 26624, 30720, 32768, 33280, 33792, 34048, 34304, 34816)]
C_MODE, C_CLR, C_LN, C_MC, C_H, C_Q, C_MR, C_W1 = [4 * i for i in range(8)]
LDS_BYTES = L0 + 34880
QL, MX, SM, PART = 0, 1024, 1088, 2048
K_, V_, WS, DBG, X_, WQ, WO, W1, B1, W2, B2, C_, WM, OUT = [f's[{8+4*i}:{11+4*i}]' for i in range(14)]
SRDN = dict(K=8, V=12, WS=16, DBG=20, X=24, WQ=28, WO=32, W1=36, B1=40, W2=44, B2=48, C=52, WM=56, OUT=60)
KOFF = dict(X=0, K=8, V=16, WQ=24, WO=32, W1=48, B1=56, W2=64, B2=72, C=80, WM=88, OUT=96, DBG=104, WS=112)
NREC = dict(X=2048, K=0x2000000, V=0x2000000, WQ=0x400000, WO=0x400000, W1=1835008, B1=3584, W2=1835008, B2=1024,
            C=2048, WM=3145728, OUT=2048, DBG=256, WS=WS_NREC)
BM = [f's[{64+2*u}:{65+2*u}]' for u in range(4)]
ML2 = 's[72:73]'
SEL = ['s74', 's75']
HIM = 's76'
LOG2E = 's77'
SMODE = 's78'
STMP = 's79'
POLLC = 's98'
POLL_MAX = 40000
LOG2E_F = 0x3fb8aa3b

def v(b, n=1): return f'v{b}' if n == 1 else f'v[{b}:{b+n-1}]'

class Gen:
    def __init__(self, dbg=False, thr=3, vpre=8, vextra=4, force_slow=False, wpol='nt', kvpol='nt', dq=6, dwo=4, dl=4):
        self.a = Asm(); self.n = 0; self.dbg = dbg; self.thr = thr; self.vpre = vpre; self.vextra = vextra
        self.dq = dq; self.dwo = dwo; self.dl = dl; self.force_slow = force_slow; self.wpol = wpol; self.kvpol = kvpol
    def lab(self, p='L'):
        self.n += 1; return f'{p}_{self.n}'
    def srd(self, names):
        a = self.a
        for nm in names: a(f's_load_dwordx2 s[{SRDN[nm]}:{SRDN[nm]+1}], s[0:1], {KOFF[nm]}')
        for nm in names:
            a(f's_mov_b32 s{SRDN[nm]+2}, {NREC[nm]:#x}'); a(f's_mov_b32 s{SRDN[nm]+3}, 0x20000')
    def consts(self):
        a = self.a
        for u in range(4):
            m = 0x000f000f << (4 * u)
            a(f's_mov_b32 s{64+2*u}, {m:#x}'); a(f's_mov_b32 s{65+2*u}, {m:#x}')
        a('s_mov_b32 s72, 0xcccccccc'); a('s_mov_b32 s73, 0xcccccccc')
        a('s_mov_b32 s74, 0x05040100'); a('s_mov_b32 s75, 0x07060302')
        a('s_mov_b32 s76, 0xffff0000'); a(f's_mov_b32 s77, {LOG2E_F:#x}')
    def stamp(self, i):
        if not self.dbg: return
        self.a(f's_memrealtime s[100:101]\ns_waitcnt lgkmcnt(0)\nv_writelane_b32 v0, s100, {i}')
    def stamp_init(self):
        if not self.dbg: return
        self.a('v_mov_b32 v0, 0')
        self.stamp(0)
    def end(self):
        a = self.a
        if self.dbg:
            self.stamp(15)
            a('s_mov_b64 exec, 0xffff')
            a('s_mul_i32 s5, s2, 12'); a('s_add_u32 s5, s5, s3'); a('s_lshl_b32 s5, s5, 6'); a(f's_add_u32 s5, s5, {TS_BASE}')
            a('v_lshlrev_b32 v2, 2, v1')
            a(f'buffer_store_dword v0, v2, {WS}, s5 offen')
        a('s_endpgm')
    def poll(self, loads, regs, tmp, zero=False, sleep=0, pre=None):
        a = self.a; lp = self.lab('LP'); ld = self.lab('LD')
        a(f's_mov_b32 {POLLC}, 0'); a(f'{lp}:')
        for s in loads: a(s)
        a('s_waitcnt vmcnt(0)')
        op = 'min' if zero else 'max'
        rs = list(regs)
        if len(rs) == 1: src = rs[0]
        else:
            src = tmp
            if len(rs) % 2 == 0: a(f'v_{op}_u32 v{tmp}, v{rs[0]}, v{rs[1]}'); rs = rs[2:]
            else: a(f'v_{op}3_u32 v{tmp}, v{rs[0]}, v{rs[1]}, v{rs[2]}'); rs = rs[3:]
            while rs: a(f'v_{op}3_u32 v{tmp}, v{tmp}, v{rs[0]}, v{rs[1]}'); rs = rs[2:]
        a(f'v_cmp_eq_u32 vcc, {0 if zero else -1}, v{src}')
        a(f's_cbranch_vccz {ld}')
        if sleep: a(f's_sleep {sleep}')
        a(f's_add_u32 {POLLC}, {POLLC}, 1'); a(f's_cmp_lt_u32 {POLLC}, {POLL_MAX}'); a(f's_cbranch_scc1 {lp}')
        a(f'{ld}:')
    def spoll(self, base, offs, zero=False, sleep=2, ge=None):
        a = self.a; lp = self.lab('LS'); ld = self.lab('LT')
        a(f's_mov_b32 {POLLC}, 0'); a(f'{lp}:')
        for i, o in enumerate(offs): a(f's_load_dword s{88+i}, {base}, {o:#x} glc')
        a('s_waitcnt lgkmcnt(0)')
        if ge is not None:
            a('s_and_b32 s89, s88, 0x3f'); a(f's_cmp_ge_u32 s89, {ge}')
        else:
            for i in range(1, len(offs)): a(f's_{"min" if zero else "max"}_u32 s88, s88, s{88+i}')
            a(f's_cmp_lg_u32 s88, {0 if zero else -1}')
        a(f's_cbranch_scc1 {ld}')
        if sleep: a(f's_sleep {sleep}')
        a(f's_add_u32 {POLLC}, {POLLC}, 1'); a(f's_cmp_lt_u32 {POLLC}, {POLL_MAX}'); a(f's_cbranch_scc1 {lp}')
        a(f'{ld}:')
    def arrive(self, c, t0, t1, val=1):
        a = self.a
        a(f'v_mov_b32 v{t0}, {CNT + c}'); a(f'v_mov_b32 v{t1}, {val}' if isinstance(val, int) else f'v_mov_b32 v{t1}, {val}')
        a('s_mov_b64 exec, 1'); a(f'ds_add_u32 v{t0}, v{t1}'); a('s_mov_b64 exec, -1')
    def waitc(self, c, target, t0, t1, dst=STMP):
        a = self.a; lp = self.lab('LW'); ld = self.lab('LX')
        a(f'v_mov_b32 v{t0}, {CNT + c}'); a(f's_mov_b32 {POLLC}, 0'); a(f'{lp}:')
        a(f'ds_read_b32 v{t1}, v{t0}'); a('s_waitcnt lgkmcnt(0)'); a(f'v_readfirstlane_b32 {dst}, v{t1}')
        a(f's_cmp_ge_u32 {dst}, {target}'); a(f's_cbranch_scc1 {ld}')
        a('s_sleep 1'); a(f's_add_u32 {POLLC}, {POLLC}, 1'); a(f's_cmp_lt_u32 {POLLC}, {POLL_MAX*8}'); a(f's_cbranch_scc1 {lp}')
        a(f'{ld}:')
    def pub(self, ins):
        a = self.a; lf = self.lab('LF'); ld = self.lab('LG')
        a(f's_cmp_eq_u32 {SMODE}, 2'); a(f's_cbranch_scc1 {lf}')
        a(ins + ' sc1'); a(f's_branch {ld}'); a(f'{lf}:'); a(ins); a(f'{ld}:')
    def rnd2(self, x, y, t):
        a = self.a
        a(f'v_cvt_pk_bf16_f32 v{t}, v{x}, v{y}'); a(f'v_lshlrev_b32 v{x}, 16, v{t}'); a(f'v_and_b32 v{y}, {HIM}, v{t}')
    def rowsum(self, x, op='add'):
        for n in (8, 4, 2, 1): self.a(f'v_{op}_f32_dpp v{x}, v{x}, v{x} row_ror:{n} row_mask:0xf bank_mask:0xf')
    def xrows(self, x, t, op='add'):
        a = self.a
        a(f'v_mov_b32 v{t}, v{x}'); a(f'v_permlane16_swap_b32 v{x}, v{t}'); a(f'v_{op}_f32 v{x}, v{x}, v{t}')
        a(f'v_mov_b32 v{t}, v{x}'); a(f'v_permlane32_swap_b32 v{x}, v{t}'); a(f'v_{op}_f32 v{x}, v{x}, v{t}')
    def wavesum(self, x, t): self.rowsum(x); self.xrows(x, t)
    def red4rows(self, o):
        a = self.a
        a(f'v_permlane32_swap_b32 v{o}, v{o+2}'); a(f'v_permlane32_swap_b32 v{o+1}, v{o+3}')
        a(f'v_add_f32 v{o}, v{o}, v{o+2}'); a(f'v_add_f32 v{o+1}, v{o+1}, v{o+3}')
        a(f'v_permlane16_swap_b32 v{o}, v{o+1}'); a(f'v_add_f32 v{o}, v{o}, v{o+1}')
    def silu4(self, r, t):
        a = self.a
        a('s_mov_b32 s99, 0x7e800000')
        for i in range(4):
            lo, hi, e0, e1 = t, t + 1, t + 2, t + 3
            a(f'v_lshlrev_b32 v{lo}, 16, v{r+i}'); a(f'v_and_b32 v{hi}, {HIM}, v{r+i}')
            a(f'v_mul_f32 v{e0}, {LOG2E}, v{lo}'); a(f'v_mul_f32 v{e1}, {LOG2E}, v{hi}')
            a(f'v_exp_f32 v{e0}, -v{e0}'); a(f'v_exp_f32 v{e1}, -v{e1}')
            a(f'v_add_f32 v{e0}, 1.0, v{e0}'); a(f'v_add_f32 v{e1}, 1.0, v{e1}')
            r0, r1, q0, q1 = t + 4, t + 5, t + 6, t + 7
            a(f'v_rcp_f32 v{r0}, v{e0}'); a(f'v_rcp_f32 v{r1}, v{e1}')
            a(f'v_mul_f32 v{q0}, v{lo}, v{r0}'); a(f'v_mul_f32 v{q1}, v{hi}, v{r1}')
            a(f'v_cmp_gt_f32 vcc, s99, v{e0}'); a(f'v_fma_f32 v{lo}, -v{q0}, v{e0}, v{lo}'); a(f'v_fma_f32 v{lo}, v{lo}, v{r0}, v{q0}')
            a(f'v_cndmask_b32 v{lo}, v{q0}, v{lo}, vcc')
            a(f'v_cmp_gt_f32 vcc, s99, v{e1}'); a(f'v_fma_f32 v{hi}, -v{q1}, v{e1}, v{hi}'); a(f'v_fma_f32 v{hi}, v{hi}, v{r1}, v{q1}')
            a(f'v_cndmask_b32 v{hi}, v{q1}, v{hi}, vcc')
            a(f'v_cvt_pk_bf16_f32 v{r+i}, v{lo}, v{hi}')
    def transpose(self, raw, dst, jjs=range(4)):
        for jj in jjs:
            for m in range(8):
                self.a(f'v_perm_b32 v{dst+4*m+jj}, v{raw+4*(2*jj+1)+(m>>1)}, v{raw+4*(2*jj)+(m>>1)}, {SEL[m&1]}')
    def gemv_fly(self, raw, xrep, first, xv=8, T=12, acc=20):
        a = self.a
        for u in range(4):
            for i in range(4): a(f'v_cndmask_b32 v{xv+i}, 0, v{xrep+i}, {BM[u]}')
            for e in range(2):
                for jj in range(4):
                    a(f'v_perm_b32 v{T+4*e+jj}, v{raw+4*(2*jj+1)+u}, v{raw+4*(2*jj)+u}, {SEL[e]}')
            for e in range(2):
                c = '0' if (first and u == 0) else v(acc + 4 * e, 4)
                a(f'v_mfma_f32_16x16x32_bf16 {v(acc+4*e,4)}, {v(T+4*e,4)}, {v(xv,4)}, {c}')
    def merge(self, acc):
        for r in range(4): self.a(f'v_cndmask_b32 v{acc+r}, v{acc+r}, v{acc+4+r}, {ML2}')
    def sanitize(self, r, n):
        for i in range(n): self.a(f'v_min_u32 v{r+i}, -2, v{r+i}')
    def unit_loads(self, raw, voff, srd, sbase, rs, rows=None, pol=None, depth=None, prior=99):
        a = self.a; pol = self.wpol if pol is None else pol
        for j in range(8):
            off = (rows[j] if rows else j) * rs
            if depth and prior + j >= depth: a(f's_waitcnt vmcnt({depth-1})')
            if off < 4096: a(f'buffer_load_dwordx4 {v(raw+4*j,4)}, v{voff}, {srd}, {sbase} offen offset:{off} {pol}')
            else:
                a(f's_add_u32 s7, {sbase}, {off}')
                a(f'buffer_load_dwordx4 {v(raw+4*j,4)}, v{voff}, {srd}, s7 offen {pol}')
    def wvoff(self, dst, rs, t):
        a = self.a
        a(f'v_lshrrev_b32 v{dst}, 4, v1'); a(f'v_mul_u32_u24 v{dst}, {8*rs}, v{dst}')
        a(f'v_and_b32 v{t}, 15, v1'); a(f'v_lshl_add_u32 v{dst}, v{t}, 4, v{dst}')
    def xvoff(self, dst, bstride, base, t):
        a = self.a
        a(f'v_and_b32 v{dst}, 1, v1'); a(f'v_mul_u32_u24 v{dst}, {bstride}, v{dst}')
        a(f'v_lshrrev_b32 v{t}, 4, v1'); a(f'v_lshl_add_u32 v{dst}, v{t}, 4, v{dst}')
        if base: a(f'v_add_u32 v{dst}, {base}, v{dst}')

    def attention(self):
        a = self.a
        a('s_mov_b32 s5, 0x12492493'); a('s_mul_hi_u32 s80, s4, s5')
        a('s_mul_i32 s5, s80, 14'); a('s_sub_u32 s81, s4, s5')
        a('s_cmp_lt_u32 s81, 2'); a('s_cselect_b32 s82, 10, 9')
        a('s_cmp_ge_u32 s3, 10'); a('s_cbranch_scc1 L_att_ctl')
        a('s_cmp_ge_u32 s3, s82'); a('s_cbranch_scc1 L_exit')
        a('s_min_u32 s5, s81, 2'); a('s_mul_i32 s6, s81, 9'); a('s_add_u32 s5, s5, s6'); a('s_lshl_b32 s5, s5, 14')
        a('s_lshl_b32 s6, s80, 21'); a('s_add_u32 s5, s5, s6'); a('s_lshl_b32 s6, s3, 10'); a('s_add_u32 s83, s5, s6')
        a('s_lshl_b32 s84, s82, 10')
        a('v_bfe_u32 v3, v1, 2, 2'); a('v_lshlrev_b32 v3, 8, v3'); a('v_lshrrev_b32 v4, 4, v1'); a('v_lshl_add_u32 v3, v4, 6, v3')
        a('v_and_b32 v4, 3, v1'); a('v_lshl_add_u32 v3, v4, 4, v3')
        a('v_lshlrev_b32 v2, 4, v1')
        a('s_mov_b32 s85, s83')
        a('s_waitcnt lgkmcnt(0)')
        KB, VB = 32, 96
        issued = [0]
        def thr(d):
            if issued[0] >= d: a(f's_waitcnt vmcnt({d-1})')
        for t in range(16):
            thr(self.thr)
            a(f'buffer_load_dwordx4 {v(KB+4*t,4)}, v3, {K_}, s85 offen {self.kvpol}')
            if t < 15: a('s_add_u32 s85, s85, s84')
            issued[0] += 1
        vorder = [8 * bk + x for bk in range(2) for x in (0, 4, 1, 5, 2, 6, 3, 7)]
        def vload(i, throttle):
            t = vorder[i]
            if throttle: thr(self.thr)
            a(f's_mul_i32 s85, s84, {t}'); a('s_add_u32 s85, s85, s83')
            a(f'buffer_load_dwordx4 {v(VB+4*i,4)}, v2, {V_}, s85 offen {self.kvpol}')
            issued[0] += 1
        nv = 0
        for i in range(self.vpre): vload(i, True); nv += 1
        for i in range(self.vextra): vload(nv, False); nv += 1
        self.consts()
        a('v_and_b32 v28, 3, v1'); a('v_lshlrev_b32 v29, 8, v28'); a('v_lshrrev_b32 v30, 2, v1'); a('v_lshl_add_u32 v29, v30, 4, v29')
        a('v_lshlrev_b32 v28, 2, v28')
        a('s_mov_b32 s86, 0x3db504f3')
        self.stamp(1)
        a('s_barrier')
        self.stamp(2)
        a(f'ds_read_b128 v[4:7], v29 offset:{QL}')
        a(f's_waitcnt vmcnt({nv}) lgkmcnt(0)')
        def adds(t):
            u = t & 3; R = 8 + (t >> 2); D = 12 + 4 * (t & 3)
            for k in (1, 2, 3):
                r = (u + k) & 3
                s1 = f'v{D+u}' if k == 1 else f'v{R}'
                a(f'v_add_f32_dpp v{R}, v{D+r}, {s1} row_ror:{(4*(u-r))%16} row_mask:0xf bank_mask:{1<<u:#x}')
        for t in range(16):
            if t >= 4: adds(t - 4)
            a(f'v_mfma_f32_16x16x32_bf16 {v(12+4*(t&3),4)}, {v(KB+4*t,4)}, v[4:7], 0')
        for i in range(32): a(f'v_mov_b32 v{KB+i}, 0')
        for t in range(12, 16): adds(t)
        rest = 16 - nv
        per = -(-rest // 2)
        for _ in range(min(per, 16 - nv)): vload(nv, False); nv += 1
        self.rnd2(8, 9, 12); self.rnd2(10, 11, 13)
        for i in range(4): a(f'v_mul_f32 v{8+i}, s86, v{8+i}')
        self.rnd2(8, 9, 12); self.rnd2(10, 11, 13)
        a('v_max3_f32 v12, v8, v9, v10'); a('v_max_f32 v12, v12, v11')
        a(f'ds_max_f32 v28, v12 offset:{MX}')
        a('s_waitcnt lgkmcnt(0)'); a('s_barrier')
        a(f'ds_read_b32 v12, v28 offset:{MX}')
        while nv < 16: vload(nv, False); nv += 1
        a('v_lshrrev_b32 v13, 4, v1'); a('v_lshl_add_u32 v13, v13, 4, v28'); a('s_lshl_b32 s5, s3, 6'); a('v_add_u32 v13, s5, v13')
        a('s_waitcnt lgkmcnt(0)')
        a(f'v_mul_f32 v12, {LOG2E}, v12')
        for i in range(4): a(f'v_fma_f32 v{8+i}, v{8+i}, {LOG2E}, -v12')
        for i in range(4): a(f'v_exp_f32 v{8+i}, v{8+i}')
        a('v_add_f32 v14, v8, v9'); a('v_add_f32 v15, v10, v11'); a('v_add_f32 v14, v14, v15')
        a('v_cvt_pk_bf16_f32 v16, v8, v9'); a('v_cvt_pk_bf16_f32 v17, v10, v11')
        a('v_add_f32_dpp v14, v14, v14 row_ror:4 row_mask:0xf bank_mask:0xf')
        a('v_add_f32_dpp v14, v14, v14 row_ror:8 row_mask:0xf bank_mask:0xf')
        a(f'ds_write_b32 v13, v14 offset:{SM}')
        for bk in range(2):
            for u in range(4):
                for jj in range(4):
                    n = (4 * (u - jj)) % 16
                    c = f'row_ror:{n}' if n else 'quad_perm:[0,1,2,3]'
                    a(f'v_mov_b32_dpp v{KB+16*bk+4*u+jj}, v{16+bk} {c} row_mask:0xf bank_mask:{1<<u:#x}')
        a('s_waitcnt lgkmcnt(0)'); a('s_barrier')
        self.stamp(3)
        a('s_lshl_b32 s5, s3, 11'); a(f's_add_u32 s5, s5, {PART}'); a('v_add_u32 v3, s5, v2')
        for bk in range(2):
            raw = VB + 32 * bk; T = 64 if bk == 0 else 96
            for jj in range(4):
                a(f's_waitcnt vmcnt({16 - 8*bk - 2*jj - 2})')
                self.transpose(raw, T, [jj])
            if bk == 1: self.stamp(4)
            for m in range(8):
                c = '0' if (bk == 0 and m < 2) else v(160 + 4 * (m & 1), 4)
                a(f'v_mfma_f32_16x16x32_bf16 {v(160+4*(m&1),4)}, {v(T+4*m,4)}, {v(KB+16*bk+4*(m>>1),4)}, {c}')
        a('ds_write_b128 v3, v[160:163]'); a('ds_write_b128 v3, v[164:167] offset:1024')
        a('s_waitcnt lgkmcnt(0)'); a('s_barrier')
        self.end()
        a('L_att_ctl:')
        a('v_lshlrev_b32 v2, 4, v1')
        a('s_lshl_b32 s83, s4, 11'); a(f's_add_u32 s83, s83, {MO_BASE}')
        a('s_and_b32 s84, s80, 7'); a('s_lshl_b32 s84, s84, 2'); a(f's_mul_i32 s84, s84, {ASTR}'); a(f's_add_u32 s84, s84, {AUXREG}')
        a('s_lshr_b32 s85, s80, 3')
        a('v_and_b32 v3, 3, v1'); a('v_lshlrev_b32 v4, 9, v3'); a('v_lshrrev_b32 v5, 2, v1'); a('v_lshl_add_u32 v4, v5, 4, v4')
        a('s_sub_u32 s86, s3, 10'); a('s_lshl_b32 s5, s86, 8'); a('v_add_u32 v4, s5, v4')
        a('s_lshl_b32 s5, s86, 10'); a(f's_add_u32 s5, s5, {PART}'); a('v_add_u32 v5, s5, v2')
        for i in range(4): a(f'v_mov_b32 v{8+i}, -1'); a(f'v_mov_b32 v{12+i}, 0')
        a('s_waitcnt lgkmcnt(0)')
        a('s_cmp_eq_u32 s3, 11'); a('s_cbranch_scc1 L_att_w11')
        a(f'buffer_store_dwordx4 v[8:11], v2, {WS}, s83 offen sc1'); a(f'buffer_store_dwordx4 v[8:11], v2, {WS}, s83 offen offset:1024 sc1')
        a('v_mov_b32 v16, 0xff800000'); a('v_lshlrev_b32 v6, 2, v3'); a(f'ds_write_b32 v6, v16 offset:{MX}')
        self.spoll('s[20:21]', [128], zero=True, sleep=8)
        self.stamp(1)
        a('v_lshrrev_b32 v7, 4, v1'); a(f'v_mul_u32_u24 v7, {ASTR}, v7'); a('v_and_b32 v16, 15, v1'); a('v_lshl_add_u32 v7, v16, 4, v7')
        a('s_lshl_b32 s5, s85, 8'); a('s_add_u32 s87, s84, s5'); a(f's_add_u32 s87, s87, {Q_OFF}')
        a('s_add_u32 s96, s16, s87'); a('s_addc_u32 s97, s17, 0')
        self.spoll('s[96:97]', [h * ASTR for h in range(4)], sleep=4)
        self.stamp(6)
        self.poll([f'buffer_load_dwordx4 v[16:19], v7, {WS}, s87 offen sc1'], [16, 17, 18, 19], 20, sleep=1)
        a(f'ds_write_b128 v2, v[16:19] offset:{QL}')
        self.stamp(2)
        a('s_waitcnt lgkmcnt(0)'); a('s_barrier'); a('s_barrier'); a('s_barrier')
        a('v_lshlrev_b32 v7, 2, v1')
        for k in range(3): a(f'ds_read_b32 v{17+k}, v7 offset:{SM+256*k}')
        a(f'ds_read_b32 v16, v6 offset:{MX}')
        a(f'v_mul_u32_u24 v7, {ASTR}, v3')
        a('s_mul_i32 s5, s85, 14'); a('s_add_u32 s5, s5, s81'); a('s_lshl_b32 s5, s5, 3'); a('s_add_u32 s5, s5, s84'); a(f's_add_u32 s87, s5, {ST_OFF}')
        a('s_waitcnt lgkmcnt(0)')
        a('v_add_f32 v17, v17, v18'); a('v_add_f32 v17, v17, v19')
        a('v_add_f32_dpp v17, v17, v17 row_ror:4 row_mask:0xf bank_mask:0xf')
        a('v_add_f32_dpp v17, v17, v17 row_ror:8 row_mask:0xf bank_mask:0xf')
        self.xrows(17, 18)
        self.sanitize(16, 2)
        a('s_mov_b64 exec, 0xf'); a(f'buffer_store_dwordx2 v[16:17], v7, {WS}, s87 offen sc1'); a('s_mov_b64 exec, -1')
        self.stamp(3)
        a('s_branch L_att_red')
        a('L_att_w11:')
        a(f'ds_write_b128 v2, v[12:15] offset:{PART+9*2048}'); a(f'ds_write_b128 v2, v[12:15] offset:{PART+9*2048+1024}')
        a('s_mov_b64 exec, 0xfff'); a(f'ds_write_b128 v2, v[12:15] offset:{SM+36*16}'); a('s_mov_b64 exec, -1')
        a('s_waitcnt lgkmcnt(0)'); a('s_barrier'); a('s_barrier'); a('s_barrier')
        a('L_att_red:')
        a('s_barrier')
        self.stamp(4)
        for w in range(10): a(f'ds_read_b128 {v(16+4*w,4)}, v5 offset:{2048*w}')
        for w in range(1, 10):
            a(f's_waitcnt lgkmcnt({9-w})')
            for r in range(4): a(f'v_add_f32 v{16+r}, v{16+r}, v{16+4*w+r}')
        self.sanitize(16, 4)
        a(f'buffer_store_dwordx4 v[16:19], v4, {WS}, s83 offen sc1')
        self.stamp(5)
        if self.dbg: a('s_waitcnt vmcnt(0)')
        self.end()

    def aux(self):
        a = self.a
        a(f's_mul_i32 s80, s4, {ASTR}'); a(f's_add_u32 s80, s80, {AUXREG}')
        a('v_lshlrev_b32 v2, 4, v1')
        a('s_cmp_ge_u32 s3, 8'); a('s_cbranch_scc1 L_aux_c')
        a('s_cmp_ge_u32 s3, 4'); a('s_cbranch_scc1 L_aux_b')
        self.aux_a(); self.aux_b(); self.aux_c()

    def aux_a(self):
        a = self.a
        self.srd(['X', 'WO', 'OUT']); self.consts()
        a('s_waitcnt lgkmcnt(0)')
        a('s_cmp_eq_u32 s3, 0'); a('s_cbranch_scc1 L_a0'); a('s_cmp_eq_u32 s3, 3'); a('s_cbranch_scc1 L_a3')
        a('s_sub_u32 s5, s3, 1'); a('s_lshl_b32 s81, s5, 10')
        a(f'buffer_load_dwordx4 v[8:11], v2, {X_}, s81 offen')
        a('s_barrier')
        a('s_waitcnt vmcnt(0)')
        for i in range(4): a(f'v_lshlrev_b32 v{12+2*i}, 16, v{8+i}'); a(f'v_and_b32 v{13+2*i}, {HIM}, v{8+i}')
        a('v_add_f32 v20, v12, v13')
        for i in range(2, 8): a(f'v_add_f32 v20, v20, v{12+i}')
        self.wavesum(20, 21)
        a('v_mul_f32 v20, 0x3b000000, v20')
        a('v_mov_b32 v22, 0')
        for i in range(8): a(f'v_sub_f32 v21, v{12+i}, v20'); a('v_fmac_f32 v22, v21, v21')
        self.wavesum(22, 21)
        a('v_mul_f32 v22, 0x3b000000, v22')
        self.rnd2(20, 22, 21)
        a('v_add_f32 v22, 0x3727c5ac, v22'); self.rnd2(22, 23, 21)
        a('v_sqrt_f32 v22, v22'); self.rnd2(22, 23, 21)
        a('v_rcp_f32 v23, v22')
        for i in range(8): a(f'v_sub_f32 v{12+i}, v{12+i}, v20')
        for i in range(4): self.rnd2(12 + 2 * i, 13 + 2 * i, 21)
        for i in range(8):
            a(f'v_mul_f32 v24, v{12+i}, v23'); a(f'v_fma_f32 v25, -v24, v22, v{12+i}'); a(f'v_fma_f32 v{12+i}, v25, v23, v24')
        for i in range(4): self.rnd2(12 + 2 * i, 13 + 2 * i, 21)
        a('v_lshlrev_b32 v21, 5, v1'); a('s_lshl_b32 s5, s81, 1'); a(f's_add_u32 s5, s5, {LNX}'); a('v_add_u32 v21, s5, v21')
        a('ds_write_b128 v21, v[12:15]'); a('ds_write_b128 v21, v[16:19] offset:16')
        self.arrive(C_LN, 8, 9)
        a('s_branch L_a_h1')
        a('L_a3:')
        a('v_mov_b32 v8, 0'); a('v_lshlrev_b32 v9, 2, v1'); a(f'v_add_u32 v10, {ZR}, v9'); a('ds_write_b32 v10, v8')
        a(f'v_add_u32 v10, {CNT}, v9'); a('s_mov_b64 exec, 0xffff'); a('ds_write_b32 v10, v8'); a('s_mov_b64 exec, -1')
        a('s_waitcnt lgkmcnt(0)'); a('s_barrier')
        a('s_branch L_a_h1')
        a('L_a0:')
        for i in range(4): a(f'v_mov_b32 v{8+i}, -1')
        for i in range(11):
            if i % 4 == 0: a(f's_add_u32 s5, s80, {i*1024}')
            a(f'buffer_store_dwordx4 v[8:11], v2, {WS}, s5 offen offset:{(i%4)*1024} sc1')
        a('s_barrier')
        a('s_getreg_b32 s5, hwreg(HW_REG_XCC_ID)'); a('s_and_b32 s5, s5, 7')
        a('s_mul_i32 s6, s5, s5'); a('s_lshl_b32 s6, s6, 16'); a('s_lshl_b32 s5, s5, 8'); a('s_add_u32 s5, s5, s6'); a('s_add_u32 s81, s5, 1')
        a('v_mov_b32 v12, s81'); a('v_mov_b32 v13, 0'); a('v_mov_b32 v14, 1')
        a('s_waitcnt vmcnt(0)')
        a('s_mov_b64 exec, 1'); a(f'buffer_atomic_add v12, v13, {DBG}, 0 offen sc1'); a('s_mov_b64 exec, -1')
        self.arrive(C_CLR, 8, 9)
        self.stamp(1)
        self.spoll('s[20:21]', [0], ge=32, sleep=1)
        a('s_cmp_lg_u32 s4, 0'); a('s_cbranch_scc1 L_a0b')
        a('s_mov_b64 exec, 1'); a(f'buffer_store_dword v14, v13, {DBG}, 0 offen offset:128 sc1'); a('s_mov_b64 exec, -1')
        a('L_a0b:')
        a('s_lshl_b32 s81, s81, 5'); a('s_cmp_eq_u32 s81, s88'); a(f's_cselect_b32 s5, {1 if self.force_slow else 2}, 1')
        self.arrive(C_MODE, 8, 9, 's5')
        self.stamp(2)
        a('L_a_h1:')
        self.waitc(C_MODE, 1, 8, 9, SMODE)
        a('s_lshl_b32 s5, s3, 2'); a(f's_mul_i32 s5, s5, {ASTR}'); a(f's_add_u32 s5, s5, {AUXREG+MC_OFF}')
        loads = []
        for q in range(2):
            for ks in range(4):
                loads.append(f's_add_u32 s6, s5, {(16*q+ks)*ASTR}')
                loads.append(f'buffer_load_dwordx4 {v(32+16*q+4*ks,4)}, v2, {WS}, s6 offen sc1')
        a('s_add_u32 s96, s16, s5'); a('s_addc_u32 s97, s17, 0')
        self.spoll('s[96:97]', [(16*q+ks)*ASTR for q in range(2) for ks in range(4)], sleep=1)
        self.stamp(10)
        self.poll(loads, range(32, 64), 8, sleep=1)
        self.stamp(3)
        for q in range(2):
            for ks in range(1, 4):
                for r in range(4): a(f'v_add_f32 v{32+16*q+r}, v{32+16*q+r}, v{32+16*q+4*ks+r}')
        self.waitc(C_LN, 2, 8, 9)
        a('v_lshrrev_b32 v10, 4, v1'); a('v_lshlrev_b32 v10, 5, v10'); a('v_bfe_u32 v11, v1, 1, 3'); a('v_add_u32 v10, v10, v11')
        a('s_lshl_b32 s5, s3, 7'); a('v_add_u32 v10, s5, v10'); a('v_and_b32 v11, 1, v1'); a('v_lshl_add_u32 v10, v11, 9, v10')
        a(f'v_lshlrev_b32 v11, 2, v10'); a(f'v_add_u32 v11, {LNX}, v11')
        for r in range(4): a(f'ds_read_b32 v{12+r}, v11 offset:{32*r}')
        a(f'v_lshlrev_b32 v10, 1, v10'); a(f'v_add_u32 v10, {H_}, v10')
        for p in range(2):
            self.rnd2(32 + 2 * p, 33 + 2 * p, 8); self.rnd2(48 + 2 * p, 49 + 2 * p, 8)
        for r in range(4): a(f'v_add_f32 v{48+r}, 1.0, v{48+r}')
        self.rnd2(48, 49, 8); self.rnd2(50, 51, 8)
        a('s_waitcnt lgkmcnt(0)')
        for r in range(4): a(f'v_mul_f32 v{12+r}, v{12+r}, v{48+r}')
        self.rnd2(12, 13, 8); self.rnd2(14, 15, 8)
        for r in range(4): a(f'v_add_f32 v{12+r}, v{12+r}, v{32+r}')
        a('v_cvt_pk_bf16_f32 v12, v12, v13'); a('v_cvt_pk_bf16_f32 v14, v14, v15')
        a('ds_write_b16 v10, v12'); a('ds_write_b16_d16_hi v10, v12 offset:16')
        a('ds_write_b16 v10, v14 offset:32'); a('ds_write_b16_d16_hi v10, v14 offset:48')
        self.arrive(C_H, 8, 9)
        self.stamp(4)
        a('v_lshrrev_b32 v3, 5, v1'); a('v_lshlrev_b32 v3, 15, v3'); a('v_bfe_u32 v4, v1, 4, 1'); a('v_lshl_add_u32 v3, v4, 12, v3')
        a('v_and_b32 v4, 15, v1'); a('v_lshl_add_u32 v3, v4, 4, v3')
        a('s_lshl_b32 s5, s4, 17'); a('s_lshl_b32 s6, s3, 8'); a('s_add_u32 s81, s5, s6')
        rows = [8 * (j & 3) + 2 * (j >> 2) for j in range(8)]
        for kb in range(4):
            a(f's_add_u32 s82, s81, {(64*(kb&1) + (kb>>1))*1024}')
            self.unit_loads(40 + 32 * kb, 3, WO, 's82', 1024, rows, depth=self.dwo if kb == 0 else self.dl, prior=8 * kb)
        for kb in range(4):
            if kb == 3: a('s_waitcnt vmcnt(0)')
            self.transpose(40 + 32 * kb, 8 + 32 * kb)
        self.xvoff(164, 256, OB, 165)
        a(f'v_mov_b32 v165, {ZR}')
        for u in range(4): a(f'v_cndmask_b32 v{160+u}, v165, v164, {BM[u]}')
        a('s_lshl_b32 s5, s3, 10'); a('s_add_u32 s81, s80, s5')
        a('v_lshrrev_b32 v3, 3, v1'); a(f'v_mul_u32_u24 v3, {ASTR}, v3'); a('v_and_b32 v4, 7, v1'); a('v_lshl_add_u32 v3, v4, 4, v3')
        a('v_lshrrev_b32 v5, 4, v1'); a('v_lshlrev_b32 v5, 2, v5'); a('v_lshl_add_u32 v4, v4, 4, v5')
        a('v_lshrrev_b32 v5, 2, v1'); a(f'v_mul_u32_u24 v5, {ASTR}, v5'); a('v_and_b32 v6, 3, v1'); a('v_lshl_add_u32 v5, v6, 5, v5')
        a('s_sub_u32 s5, s3, 1'); a('s_lshl_b32 s5, s5, 4'); a('v_add_u32 v5, s5, v5')
        a('v_lshlrev_b32 v6, 5, v1'); a('v_add_u32 v6, s5, v6')
        a('s_lshl_b32 s82, s4, 7'); a(f's_add_u32 s82, s82, {AUXREG}')
        self.stamp(5)
        a('s_barrier')
        self.stamp(9)
        X = [136, 8, 24, 40]
        def xread(kb):
            for u in range(4): a(f'ds_read_b128 {v(X[kb]+4*u,4)}, v{160+u} offset:{64*kb}')
        xread(0)
        for kb in range(4):
            a(f's_waitcnt lgkmcnt({0 if kb in (0,3) else 4})')
            for m in range(8):
                c = '0' if (kb == 0 and m < 2) else v(152 + 4 * (m & 1), 4)
                a(f'v_mfma_f32_16x16x32_bf16 {v(152+4*(m&1),4)}, {v(8+32*kb+4*m,4)}, {v(X[kb]+4*(m>>1),4)}, {c}')
                if kb == 0 and m == 3: xread(1)
                if kb == 0 and m == 7: xread(2)
                if kb == 1 and m == 3: xread(3)
        self.merge(152); self.sanitize(152, 4)
        self.pub(f'buffer_store_dwordx4 v[152:155], v2, {WS}, s81 offen')
        self.stamp(6)
        a('s_cmp_eq_u32 s3, 3'); a('s_cbranch_scc1 L_a_end')
        a('s_cmp_lg_u32 s3, 0'); a('s_cbranch_scc1 L_a_ln')
        a(f'v_add_u32 v7, {SMALL}, v4')
        for k in range(4): a(f'ds_read_b32 v{40+k}, v7 offset:{128*k}')
        def rs(off, last_half):
            loads = []
            for i in range(4):
                loads.append(f's_add_u32 s6, s82, {8*i*ASTR + off}')
                if i == 3 and last_half: loads.append('s_mov_b32 exec_hi, 0')
                loads.append(f'buffer_load_dwordx4 {v(8+4*i,4)}, v3, {WS}, s6 offen sc1')
                if i == 3 and last_half: loads.append('s_mov_b64 exec, -1')
            self.poll(loads, range(8, 24), 24)
            for r in range(4): a(f'v_add_f32 v{8+r}, v{8+r}, v{12+r}'); a(f'v_add_f32 v{16+r}, v{16+r}, v{20+r}')
            for r in range(4): a(f'v_add_f32 v{8+r}, v{8+r}, v{16+r}')
            self.red4rows(8)
            a('v_add_f32_dpp v8, v8, v8 row_ror:8 row_mask:0xf bank_mask:0xf')
        rs(A_OFF, False)
        a('s_waitcnt lgkmcnt(0)')
        a('v_fma_f32 v44, v40, v8, v41')
        a('v_min_u32 v45, -2, v44')
        a(f's_add_u32 s6, s80, {X1_OFF}')
        a('s_mov_b32 exec_lo, 0x00ff00ff'); a('s_mov_b32 exec_hi, 0x00ff00ff')
        self.pub(f'buffer_store_dword v45, v4, {WS}, s6 offen')
        a('s_mov_b64 exec, -1')
        self.stamp(7)
        a('s_lshr_b32 s5, s4, 1'); a('s_lshl_b32 s5, s5, 5'); a('s_and_b32 s6, s4, 1'); a('s_lshl_b32 s6, s6, 2'); a('s_add_u32 s5, s5, s6'); a('s_lshl_b32 s83, s5, 1')
        a('v_lshrrev_b32 v46, 4, v1'); a('v_lshlrev_b32 v46, 3, v46'); a('v_bfe_u32 v47, v1, 1, 2'); a('v_add_u32 v46, v46, v47')
        a('v_and_b32 v47, 1, v1'); a('v_lshl_add_u32 v46, v47, 9, v46'); a('v_lshlrev_b32 v46, 1, v46')
        for r in range(4): a(f'v_mov_b32 v{20+r}, 0')
        a('s_barrier'); a('s_barrier')
        self.stamp(8)
        rs(P2_OFF, True)
        a('v_add_f32 v8, v8, v43'); a('v_fma_f32 v8, v42, v8, v44'); a('v_cvt_pk_bf16_f32 v8, v8, v8')
        a('s_mov_b32 exec_lo, 0x00ff00ff'); a('s_mov_b32 exec_hi, 0x00ff00ff')
        a(f'buffer_store_short v8, v46, {OUT}, s83 offen')
        a('s_mov_b64 exec, -1')
        a('L_a_end:')
        self.end()
        a('L_a_ln:')
        a('s_cmp_ge_u32 s4, 28'); a('s_cbranch_scc1 L_a_end')
        a(f'v_add_u32 v7, {IMA}, v6')
        a('ds_read_b128 v[16:19], v7'); a('ds_read_b128 v[20:23], v7 offset:2048')
        a(f'ds_read_b128 v[24:27], v7 offset:{IMS-IMA}'); a(f'ds_read_b128 v[28:31], v7 offset:{IMS-IMA+2048}')
        a(f's_mov_b32 s82, {AUXREG+X1_OFF}'); a(f's_mov_b32 s83, {AUXREG+X1_OFF+16*ASTR}')
        a('v_lshlrev_b32 v7, 3, v1'); a('s_sub_u32 s5, s3, 1'); a('s_lshl_b32 s5, s5, 10'); a(f's_add_u32 s5, s5, {YB}'); a('v_add_u32 v7, s5, v7')
        self.poll([f'buffer_load_dwordx4 v[8:11], v5, {WS}, s82 offen sc1', f'buffer_load_dwordx4 v[12:15], v5, {WS}, s83 offen sc1'], range(8, 16), 32)
        self.stamp(7)
        def stats(center):
            a('v_add_f32 v32, v8, v9'); a('v_mul_f32 v33, v8, v8')
            for i in range(2, 8): a(f'v_add_f32 v32, v32, v{8+i}'); a(f'v_fmac_f32 v33, v{8+i-1}, v{8+i-1}')
            a('v_fmac_f32 v33, v15, v15')
            a('v_permlane32_swap_b32 v32, v33'); a('v_add_f32 v32, v32, v33')
            a('v_mov_b32 v33, v32'); a('v_permlane16_swap_b32 v32, v33'); a('v_add_f32 v32, v32, v33')
            self.rowsum(32)
            a('v_readlane_b32 s5, v32, 0'); a('v_readlane_b32 s6, v32, 32')
            a('v_mov_b32 v33, 0x3b000000')
            a('v_mul_f32 v35, s5, v33'); a('v_mul_f32 v34, s6, v33')
            a('v_fma_f32 v34, -v35, v35, v34'); a('v_max_f32 v34, 0, v34'); a('v_add_f32 v34, 0x3727c5ac, v34')
            a('v_rsq_f32 v34, v34'); a('v_mul_f32 v35, -v35, v34')
        a('v_readfirstlane_b32 s5, v8')
        for i in range(8): a(f'v_subrev_f32 v{8+i}, s5, v{8+i}')
        stats(True)
        a('s_waitcnt lgkmcnt(0)')
        for i in range(8): a(f'v_fma_f32 v{8+i}, v{8+i}, v34, v35')
        for i in range(8): a(f'v_fma_f32 v{8+i}, v{8+i}, v{16+i}, v{24+i}')
        stats(False)
        for i in range(8): a(f'v_fma_f32 v{8+i}, v{8+i}, v34, v35')
        for i in range(4): a(f'v_cvt_pk_bf16_f32 v{8+i}, v{8+2*i}, v{9+2*i}')
        a('ds_write_b64 v7, v[8:9]'); a('ds_write_b64 v7, v[10:11] offset:512')
        a('s_waitcnt lgkmcnt(0)')
        self.stamp(8)
        a('s_barrier')
        self.end()

    def q_part(self):
        a = self.a
        self.waitc(C_H, 4, 8, 9)
        self.xvoff(28, 1024, H_, 29)
        a('s_sub_u32 s5, s3, 4'); a('s_lshl_b32 s6, s5, 7'); a('v_add_u32 v28, s6, v28')
        a('ds_read_b128 v[4:7], v28'); a('ds_read_b128 v[28:31], v28 offset:64')
        a('s_lshl_b32 s5, s5, 10'); a(f's_add_u32 s5, s5, {QP}'); a('v_add_u32 v3, s5, v2')

    def aux_b(self):
        a = self.a
        a('L_aux_b:')
        self.srd(['WQ', 'WM', 'C', 'W2']); self.consts()
        self.wvoff(3, 8192, 4); self.wvoff(5, 6144, 4); self.xvoff(6, 1024, 0, 4)
        a('s_sub_u32 s81, s3, 4')
        a('s_lshl_b32 s5, s81, 19'); a('s_lshl_b32 s6, s4, 8'); a('s_add_u32 s82, s5, s6')
        a('s_and_b32 s5, s4, 1'); a('s_lshl_b32 s5, s5, 8'); a('s_lshl_b32 s6, s81, 6'); a('s_add_u32 s83, s5, s6')
        a('s_mul_i32 s5, s83, 6144'); a('s_lshr_b32 s6, s4, 1'); a('s_lshl_b32 s6, s6, 8'); a('s_add_u32 s84, s5, s6'); a('s_add_u32 s84, s84, 2048')
        a('s_lshl_b32 s83, s83, 1')
        a('s_waitcnt lgkmcnt(0)')
        a('s_barrier')
        self.stamp(8)
        a(f'buffer_load_dwordx4 v[160:163], v6, {C_}, s83 offen'); a(f'buffer_load_dwordx4 v[164:167], v6, {C_}, s83 offen offset:64')
        self.unit_loads(32, 3, WQ, 's82', 8192, depth=self.dq, prior=2)
        a(f's_add_u32 s82, s82, {32*8192}'); self.unit_loads(64, 3, WQ, 's82', 8192, depth=self.dq)
        self.stamp(9)
        self.silu4(160, 8); self.silu4(164, 8)
        a('v_mov_b32 v159, v5')
        self.q_part()
        a('s_waitcnt vmcnt(0) lgkmcnt(0)')
        self.stamp(1)
        self.gemv_fly(32, 4, True); self.gemv_fly(64, 28, False)
        self.merge(20); a('ds_write_b128 v3, v[20:23]')
        self.arrive(C_Q, 8, 9)
        self.stamp(2)
        a('v_mov_b32 v5, v159')
        self.unit_loads(96, 5, WM, 's84', 6144, depth=self.dl, prior=0)
        a(f's_add_u32 s84, s84, {32*6144}'); self.unit_loads(128, 5, WM, 's84', 6144, depth=self.dl)
        a('s_cmp_ge_u32 s4, 28'); a('s_cbranch_scc1 L_b_now2')
        self.wvoff(3, 1024, 4)
        a('s_lshl_b32 s5, s4, 16'); a('s_lshl_b32 s6, s81, 8'); a('s_add_u32 s82, s5, s6')
        self.unit_loads(32, 3, W2, 's82', 1024, depth=self.dl)
        a('s_branch L_b_mr')
        a('L_b_now2:'); a('s_waitcnt vmcnt(0)')
        a('L_b_mr:')
        self.gemv_fly(96, 160, True); self.gemv_fly(128, 164, False)
        a('s_lshl_b32 s5, s81, 10'); a(f's_add_u32 s5, s5, {RP}'); a('v_add_u32 v3, s5, v2')
        self.merge(20); a('ds_write_b128 v3, v[20:23]')
        self.arrive(C_MR, 8, 9)
        self.stamp(10)
        a('s_cmp_ge_u32 s4, 28'); a('s_cbranch_scc1 L_b_now2b')
        self.wvoff(3, 1024, 4)
        a(f's_add_u32 s82, s82, {32*1024}'); self.unit_loads(64, 3, W2, 's82', 1024, depth=self.dl)
        a('L_b_now2b:')
        a('s_waitcnt vmcnt(0)')
        self.transpose(32, 96); self.transpose(64, 128)
        self.stamp(3)
        self.waitc(C_MODE, 1, 8, 9, SMODE)
        a('s_lshr_b32 s82, s81, 1')
        a('v_lshrrev_b32 v4, 4, v1')
        for i in range(4):
            a(f'v_add_u32 v{8+i}, {4*i}, v4')
        a('v_min_u32 v11, 13, v11')
        for i in range(4): a(f'v_lshlrev_b32 v{12+i}, 3, v{8+i}')
        a('s_mul_i32 s5, s82, 112'); a('s_add_u32 s83, s80, s5'); a(f's_add_u32 s83, s83, {ST_OFF}')
        self.poll([f'buffer_load_dwordx2 {v(32+2*i,2)}, v{12+i}, {WS}, s83 offen sc1' for i in range(4)], range(32, 40), 16, sleep=8)
        self.stamp(4)
        a('v_max3_f32 v16, v32, v34, v36'); a('v_max_f32 v16, v16, v38'); self.xrows(16, 17, 'max')
        for i in range(4): a(f'v_sub_f32 v{48+i}, v{32+2*i}, v16')
        for i in range(4): a(f'v_mul_f32 v{48+i}, {LOG2E}, v{48+i}')
        for i in range(4): a(f'v_exp_f32 v{48+i}, v{48+i}')
        a('s_mov_b32 exec_lo, 0'); a('v_mov_b32 v51, 0'); a('s_mov_b32 exec_lo, -1')
        a('v_mul_f32 v16, v48, v33')
        for i in range(1, 4): a(f'v_fmac_f32 v16, v{48+i}, v{33+2*i}')
        self.xrows(16, 17)
        a('v_rcp_f32 v16, v16')
        for i in range(4): a(f'v_mul_f32 v{48+i}, v{48+i}, v16')
        a('v_and_b32 v5, 15, v1')
        for i in range(4): a(f'v_lshlrev_b32 v{12+i}, 11, v{8+i}'); a(f'v_lshl_add_u32 v{12+i}, v5, 4, v{12+i}')
        a('s_lshl_b32 s5, s82, 3'); a('s_lshr_b32 s6, s4, 2'); a('s_add_u32 s5, s5, s6'); a(f's_mul_i32 s5, s5, {14*2048}')
        a('s_and_b32 s6, s4, 3'); a('s_lshl_b32 s6, s6, 9'); a('s_add_u32 s5, s5, s6')
        a('s_and_b32 s6, s81, 1'); a('s_lshl_b32 s6, s6, 8'); a('s_add_u32 s5, s5, s6'); a(f's_add_u32 s83, s5, {MO_BASE}')
        a('v_lshl_add_u32 v6, v5, 2, v4'); a('v_lshlrev_b32 v6, 1, v6'); a('s_lshl_b32 s5, s81, 7'); a(f's_add_u32 s5, s5, {OB}'); a('v_add_u32 v6, s5, v6')
        self.xvoff(20, 128, HB, 21); a(f'v_mov_b32 v21, {ZR}')
        for u in range(4): a(f'v_cndmask_b32 v{24+u}, v21, v20, {BM[u]}')
        a('s_lshl_b32 s5, s81, 10'); a('s_add_u32 s84, s80, s5'); a(f's_add_u32 s84, s84, {P2_OFF}')
        self.poll([f'buffer_load_dwordx4 {v(32+4*i,4)}, v{12+i}, {WS}, s83 offen sc1' for i in range(4)], range(32, 48), 16)
        self.stamp(5)
        for r in range(4): a(f'v_mul_f32 v{32+r}, v{32+r}, v48')
        for i in range(1, 4):
            for r in range(4): a(f'v_fmac_f32 v{32+r}, v{32+4*i+r}, v{48+i}')
        self.red4rows(32)
        a('v_cvt_pk_bf16_f32 v32, v32, v32'); a('ds_write_b16 v6, v32')
        a('s_waitcnt lgkmcnt(0)'); a('s_barrier')
        a('s_cmp_ge_u32 s4, 28'); a('s_cbranch_scc1 L_b_end')
        a('s_barrier'); a('s_barrier')
        for kb in range(2):
            for u in range(4): a(f'ds_read_b128 {v(52+16*kb+4*u,4)}, v{24+u} offset:{64*kb}')
        for kb in range(2):
            a(f's_waitcnt lgkmcnt({4 if kb == 0 else 0})')
            for m in range(8):
                c = '0' if (kb == 0 and m < 2) else v(84 + 4 * (m & 1), 4)
                a(f'v_mfma_f32_16x16x32_bf16 {v(84+4*(m&1),4)}, {v(96+32*kb+4*m,4)}, {v(52+16*kb+4*(m>>1),4)}, {c}')
        self.merge(84); self.sanitize(84, 4)
        self.pub(f'buffer_store_dwordx4 v[84:87], v2, {WS}, s84 offen')
        self.stamp(6)
        a('L_b_end:')
        self.end()

    def reduce_parts(self, base, n):
        a = self.a
        a(f'v_add_u32 v3, {base}, v2')
        for w in range(n): a(f'ds_read_b128 {v(96+4*w,4)}, v3 offset:{1024*w}')
        a('s_waitcnt lgkmcnt(0)')
        for w in range(1, n):
            for r in range(4): a(f'v_add_f32 v{96+r}, v{96+r}, v{96+4*w+r}')

    def aux_c(self):
        a = self.a
        a('L_aux_c:')
        self.srd(['WQ', 'WM', 'C', 'W1', 'B1', 'X', 'B2']); self.consts()
        self.wvoff(3, 8192, 4); self.wvoff(5, 6144, 4); self.xvoff(6, 1024, 0, 4)
        a('s_sub_u32 s81, s3, 8')
        a('s_sub_u32 s5, s3, 4'); a('s_lshl_b32 s5, s5, 19'); a('s_lshl_b32 s6, s4, 8'); a('s_add_u32 s82, s5, s6')
        a('s_and_b32 s5, s4, 3'); a('s_lshl_b32 s5, s5, 7'); a('s_lshl_b32 s6, s81, 5'); a('s_add_u32 s83, s5, s6')
        a('s_mul_i32 s5, s83, 6144'); a('s_lshr_b32 s6, s4, 2'); a('s_lshl_b32 s6, s6, 8'); a('s_add_u32 s84, s5, s6')
        a('s_lshl_b32 s83, s83, 1')
        a('s_waitcnt lgkmcnt(0)')
        a(f'buffer_load_dwordx4 v[160:163], v6, {C_}, s83 offen')
        self.unit_loads(96, 5, WM, 's84', 6144)
        self.stamp(8)
        a('s_barrier')
        a('s_waitcnt vmcnt(8)')
        self.silu4(160, 8)
        a('s_waitcnt vmcnt(0)')
        self.stamp(1)
        self.gemv_fly(96, 160, True)
        a('s_lshl_b32 s5, s81, 10'); a(f's_add_u32 s5, s5, {MP}'); a('v_add_u32 v4, s5, v2')
        self.merge(20); a('ds_write_b128 v4, v[20:23]')
        self.arrive(C_MC, 8, 9)
        a('s_cmp_lg_u32 s3, 8'); a('s_cbranch_scc1 L_c_q')
        a('v_mov_b32 v159, v3')
        self.waitc(C_MC, 4, 8, 9); self.reduce_parts(MP, 4); self.sanitize(96, 4)
        self.waitc(C_CLR, 1, 8, 9)
        a(f's_add_u32 s5, s80, {MC_OFF}'); a(f'buffer_store_dwordx4 v[96:99], v2, {WS}, s5 offen sc1')
        a('v_mov_b32 v3, v159')
        self.stamp(2)
        a('L_c_q:')
        self.unit_loads(32, 3, WQ, 's82', 8192, depth=self.dq, prior=1)
        a(f's_add_u32 s82, s82, {32*8192}'); self.unit_loads(64, 3, WQ, 's82', 8192, depth=self.dq)
        self.stamp(9)
        self.q_part()
        a('s_waitcnt vmcnt(0) lgkmcnt(0)')
        self.stamp(3)
        self.gemv_fly(32, 4, True); self.gemv_fly(64, 28, False)
        self.merge(20); a('ds_write_b128 v3, v[20:23]')
        self.arrive(C_Q, 8, 9)
        a('s_cmp_lg_u32 s3, 8'); a('s_cbranch_scc1 L_c_w1')
        self.waitc(C_Q, 8, 8, 9); self.reduce_parts(QP, 8)
        a('v_lshrrev_b32 v10, 4, v1'); a('v_lshlrev_b32 v10, 5, v10'); a('v_bfe_u32 v11, v1, 1, 3'); a('v_add_u32 v10, v10, v11')
        a('v_and_b32 v11, 1, v1'); a('v_lshl_add_u32 v10, v11, 7, v10'); a('v_lshlrev_b32 v10, 1, v10'); a(f'v_add_u32 v10, {QT}, v10')
        a('v_cvt_pk_bf16_f32 v96, v96, v97'); a('v_cvt_pk_bf16_f32 v98, v98, v99')
        a('ds_write_b16 v10, v96'); a('ds_write_b16_d16_hi v10, v96 offset:16')
        a('ds_write_b16 v10, v98 offset:32'); a('ds_write_b16_d16_hi v10, v98 offset:48')
        a('v_and_b32 v11, 0x1ff, v2'); a(f'v_add_u32 v10, {QT}, v11')
        a('s_waitcnt lgkmcnt(0)'); a('ds_read_b128 v[96:99], v10'); a('s_waitcnt lgkmcnt(0)')
        self.sanitize(96, 4)
        a(f's_add_u32 s5, s80, {Q_OFF}')
        a('s_mov_b32 exec_hi, 0'); a(f'buffer_store_dwordx4 v[96:99], v2, {WS}, s5 offen sc1'); a('s_mov_b64 exec, -1')
        self.stamp(4)
        a('L_c_w1:')
        a('s_cmp_ge_u32 s4, 28'); a('s_cbranch_scc1 L_c_prep')
        a('v_bfe_u32 v3, v1, 3, 2'); a('v_lshlrev_b32 v3, 3, v3'); a('v_lshrrev_b32 v4, 5, v1'); a('v_add_u32 v3, v3, v4')
        a('v_mul_u32_u24 v3, 3584, v3'); a('v_and_b32 v4, 7, v1'); a('v_lshl_add_u32 v3, v4, 4, v3')
        a(f's_mul_i32 s5, s81, {128*3584}'); a('s_lshl_b32 s6, s4, 7'); a('s_add_u32 s82, s5, s6'); a('s_lshl_b32 s83, s81, 14')
        for i in range(16):
            a(f's_add_u32 s5, s82, {(32*(i>>2) + 2*(i&3))*3584}'); a(f's_add_u32 m0, s83, {1024*i}')
            if i >= self.dl: a(f's_waitcnt vmcnt({self.dl-1})')
            a(f'buffer_load_dwordx4 v3, {W1}, s5 offen {self.wpol} lds')
        a('v_lshrrev_b32 v4, 4, v1'); a('v_lshlrev_b32 v4, 3, v4'); a('s_lshl_b32 s5, s4, 7'); a('s_lshl_b32 s6, s81, 5'); a('s_add_u32 s5, s5, s6')
        a(f'buffer_load_dwordx2 v[28:29], v4, {B1}, s5 offen')
        a('L_c_prep:')
        self.waitc(C_MODE, 1, 8, 9, SMODE)
        a('s_cmp_eq_u32 s3, 8'); a('s_cbranch_scc1 L_c_tr')
        a('s_cmp_lg_u32 s3, 9'); a('s_cbranch_scc1 L_c_img')
        self.waitc(C_MR, 4, 8, 9); self.reduce_parts(RP, 4); self.sanitize(96, 4)
        a(f's_add_u32 s5, s80, {MR_OFF}'); a(f'buffer_store_dwordx4 v[96:99], v2, {WS}, s5 offen sc1')
        a('v_and_b32 v4, 7, v1'); a('v_lshlrev_b32 v5, 4, v4')
        a('s_lshr_b32 s5, s4, 1'); a('s_lshl_b32 s5, s5, 5'); a('s_and_b32 s6, s4, 1'); a('s_lshl_b32 s6, s6, 2'); a('s_add_u32 s5, s5, s6'); a('s_lshl_b32 s84, s5, 1')
        a('v_and_b32 v6, 6, v4'); a('v_and_b32 v7, 1, v4'); a('v_lshl_add_u32 v7, v7, 10, v6')
        for r in range(4):
            a(f'buffer_load_ushort v{116+r}, v7, {X_}, s84 offen offset:{16*r}')
            a(f'buffer_load_ushort v{124+r}, v6, {B2}, s84 offen offset:{16*r}')
        a('s_lshr_b32 s5, s4, 3'); a('s_lshl_b32 s5, s5, 1'); a(f's_mul_i32 s5, s5, {ASTR}'); a('s_and_b32 s6, s4, 7'); a('s_lshl_b32 s6, s6, 7')
        a('s_add_u32 s5, s5, s6'); a(f's_add_u32 s85, s5, {AUXREG+MR_OFF}')
        loads = []
        for q in range(2):
            for ks in range(2):
                loads.append(f's_add_u32 s6, s85, {(24*q+ks)*ASTR}')
                loads.append(f'buffer_load_dwordx4 {v(96+8*q+4*ks,4)}, v5, {WS}, s6 offen sc1')
        self.poll(loads, range(96, 112), 8, sleep=16)
        for r in range(4): a(f'v_add_f32 v{112+r}, v{96+r}, v{100+r}'); a(f'v_add_f32 v{120+r}, v{104+r}, v{108+r}')
        for p in (112, 114, 120, 122): self.rnd2(p, p + 1, 8)
        for r in range(4): a(f'v_lshlrev_b32 v{116+r}, 16, v{116+r}'); a(f'v_lshlrev_b32 v{124+r}, 16, v{124+r}')
        a(f'v_add_u32 v5, {SMALL}, v5')
        for k in range(4): a(f'ds_write_b128 v5, {v(112+4*k,4)} offset:{128*k}')
        a('s_branch L_c_tr')
        a('L_c_img:')
        a('s_sub_u32 s5, s3, 10'); a('s_lshl_b32 s5, s5, 4')
        a('v_and_b32 v4, 31, v1'); a('v_lshlrev_b32 v4, 5, v4'); a('v_lshrrev_b32 v5, 5, v1'); a(f'v_mul_u32_u24 v5, {2*ASTR}, v5'); a('v_add_u32 v4, v4, v5'); a('v_add_u32 v4, s5, v4')
        a('v_lshlrev_b32 v5, 5, v1'); a('v_add_u32 v5, s5, v5'); a(f'v_add_u32 v5, {IMA}, v5')
        loads = []
        for q in range(2):
            for i in range(2):
                for ks in range(2):
                    loads.append(f's_mov_b32 s6, {AUXREG + MR_OFF + ((4+4*q+2*i)*2+ks)*ASTR}')
                    loads.append(f'buffer_load_dwordx4 {v(96+16*q+8*i+4*ks,4)}, v4, {WS}, s6 offen sc1')
        self.poll(loads, range(96, 128), 8, sleep=16)
        for q in range(2):
            for i in range(2):
                for r in range(4): a(f'v_add_f32 v{128+8*q+4*i+r}, v{96+16*q+8*i+r}, v{100+16*q+8*i+r}')
        for p in range(128, 144, 2): self.rnd2(p, p + 1, 8)
        for i in range(8): a(f'v_add_f32 v{136+i}, 1.0, v{136+i}')
        for p in range(136, 144, 2): self.rnd2(p, p + 1, 8)
        a('v_add_f32 v10, v128, v129')
        for i in range(2, 8): a(f'v_add_f32 v10, v10, v{128+i}')
        self.wavesum(10, 11); a('v_mul_f32 v10, 0x3b000000, v10')
        for i in range(8): a(f'v_sub_f32 v{128+i}, v{128+i}, v10')
        a('ds_write_b128 v5, v[136:139]'); a('ds_write_b128 v5, v[140:143] offset:2048')
        a(f'ds_write_b128 v5, v[128:131] offset:{IMS-IMA}'); a(f'ds_write_b128 v5, v[132:135] offset:{IMS-IMA+2048}')
        a('L_c_tr:')
        a('s_cmp_ge_u32 s4, 28'); a('s_cbranch_scc1 L_c_last')
        a('s_waitcnt vmcnt(0)')
        self.arrive(C_W1, 8, 9); self.waitc(C_W1, 4, 8, 9)
        a('v_lshrrev_b32 v3, 4, v1'); a('v_lshlrev_b32 v3, 10, v3'); a('v_bfe_u32 v4, v1, 2, 2'); a('v_lshl_add_u32 v3, v4, 7, v3')
        a('v_and_b32 v4, 3, v1'); a('v_lshl_add_u32 v3, v4, 3, v3'); a('s_lshl_b32 s5, s81, 5'); a('v_add_u32 v3, s5, v3')
        for kb in range(16):
            a(f'ds_read_b64_tr_b16 {v(32+4*kb,2)}, v3 offset:{4096*kb}'); a(f'ds_read_b64_tr_b16 {v(34+4*kb,2)}, v3 offset:{4096*kb+512}')
            if kb % 4 == 3: a('s_waitcnt lgkmcnt(0)')
        a(f'v_lshlrev_b32 v24, 16, v28'); a(f'v_and_b32 v25, {HIM}, v28'); a('v_lshlrev_b32 v26, 16, v29'); a(f'v_and_b32 v27, {HIM}, v29')
        self.xvoff(3, 1024, YB, 4)
        a('v_and_b32 v4, 1, v1'); a('v_lshlrev_b32 v4, 7, v4'); a('v_lshrrev_b32 v5, 4, v1'); a('v_lshl_add_u32 v4, v5, 3, v4')
        a('s_lshl_b32 s5, s81, 5'); a(f's_add_u32 s5, s5, {HB}'); a('v_add_u32 v4, s5, v4')
        c0 = -2.0 * 1.4426950408889634 * 0.7978845608028654
        import struct
        f2u = lambda x: struct.unpack('<I', struct.pack('<f', x))[0]
        a(f's_mov_b32 s82, {f2u(c0):#x}'); a(f'v_mov_b32 v5, {f2u(c0*0.044715):#x}')
        self.stamp(5)
        a('s_barrier'); a('s_barrier')
        for kb in range(16): a(f'ds_read_b128 {v(96+4*kb,4)}, v3 offset:{64*kb}')
        for kb in range(16):
            a(f's_waitcnt lgkmcnt({15-kb})')
            a(f'v_mfma_f32_16x16x32_bf16 v[20:23], {v(32+4*kb,4)}, {v(96+4*kb,4)}, {"0" if kb == 0 else "v[20:23]"}')
        for r in range(4): a(f'v_add_f32 v{20+r}, v{20+r}, v{24+r}')
        for r in range(4): a(f'v_mul_f32 v{8+r}, v{20+r}, v{20+r}')
        for r in range(4): a(f'v_fma_f32 v{8+r}, v{8+r}, v5, s82')
        for r in range(4): a(f'v_mul_f32 v{8+r}, v{8+r}, v{20+r}')
        for r in range(4): a(f'v_exp_f32 v{8+r}, v{8+r}')
        for r in range(4): a(f'v_add_f32 v{8+r}, 1.0, v{8+r}')
        for r in range(4): a(f'v_rcp_f32 v{8+r}, v{8+r}')
        for r in range(4): a(f'v_mul_f32 v{8+r}, v{8+r}, v{20+r}')
        a('v_cvt_pk_bf16_f32 v8, v8, v9'); a('v_cvt_pk_bf16_f32 v9, v10, v11')
        a('s_mov_b32 exec_lo, 0x00030003'); a('s_mov_b32 exec_hi, 0x00030003'); a('ds_write_b64 v4, v[8:9]'); a('s_mov_b64 exec, -1')
        a('s_waitcnt lgkmcnt(0)')
        self.stamp(6)
        a('s_barrier')
        self.end()
        a('L_c_last:')
        a('s_waitcnt lgkmcnt(0)'); a('s_barrier')
        self.end()

    def build(self):
        a = self.a
        a(f'; @launch grid=(256,1,1) block=(768,1,1) lds={LDS_BYTES}')
        a('.amdgcn_target "amdgcn-amd-amdhsa--gfx950"'); a('.text'); a(f'.globl {KNAME}'); a('.p2align 8'); a(f'.type {KNAME},@function'); a(f'{KNAME}:')
        a('s_cmp_ge_u32 s2, 256'); a('s_cbranch_scc1 L_exit')
        self.srd(['K', 'V', 'WS', 'DBG'])
        a('v_lshrrev_b32 v2, 6, v0'); a('v_and_b32 v1, 63, v0'); a('v_readfirstlane_b32 s3, v2')
        self.stamp_init()
        a('s_and_b32 s5, s2, 7'); a('s_lshr_b32 s4, s2, 3'); a('s_cmp_eq_u32 s5, 0'); a('s_cbranch_scc1 L_aux')
        a('s_mul_i32 s4, s4, 7'); a('s_add_u32 s4, s4, s5'); a('s_sub_u32 s4, s4, 1')
        self.attention()
        a('L_aux:')
        self.aux()
        a('L_exit:'); a('s_endpgm')
        nn = a.fix()
        a('.section .rodata,"a"'); a('.p2align 6'); a(f'.amdhsa_kernel {KNAME}')
        for l in ['next_free_vgpr 168', 'next_free_sgpr 102', 'accum_offset 168', 'group_segment_fixed_size 0', 'kernarg_size 120',
                  'user_sgpr_count 2', 'user_sgpr_kernarg_segment_ptr 1', 'system_sgpr_workgroup_id_x 1']:
            a.L.append(f'  .amdhsa_{l}')
        a('.end_amdhsa_kernel')
        return a.text(), nn

if __name__ == '__main__':
    import argparse
    p = argparse.ArgumentParser()
    p.add_argument('-o', default='k.s'); p.add_argument('--dbg', action='store_true'); p.add_argument('--slow', action='store_true')
    p.add_argument('--thr', type=int, default=3); p.add_argument('--vpre', type=int, default=8); p.add_argument('--vextra', type=int, default=4)
    p.add_argument('--dq', type=int, default=6); p.add_argument('--dwo', type=int, default=4); p.add_argument('--dl', type=int, default=4)
    p.add_argument('--wpol', default='nt'); p.add_argument('--kvpol', default='nt')
    g = p.parse_args()
    t, nn = Gen(dbg=g.dbg, thr=g.thr, vpre=g.vpre, vextra=g.vextra, force_slow=g.slow, wpol=g.wpol, kvpol=g.kvpol, dq=g.dq, dwo=g.dwo, dl=g.dl).build()
    open(g.o, 'w').write(t)
    print('wrote', g.o, 'lines', t.count('\n'), 'nop states', nn)
```

```python
import re

TRANS = ('v_exp_f32', 'v_log_f32', 'v_rcp_f32', 'v_rsq_f32', 'v_sqrt_f32', 'v_sin_f32', 'v_cos_f32')

def _regs(tok):
    tok = tok.strip()
    tok = tok.lstrip('-')
    if tok.startswith('abs(') or tok.startswith('|'):
        tok = tok.replace('abs(', '').replace(')', '').replace('|', '')
    m = re.fullmatch(r'([vsa])(\d+)', tok)
    if m: return {tok}
    m = re.fullmatch(r'([vsa])\[(\d+):(\d+)\]', tok)
    if m: return {f'{m.group(1)}{i}' for i in range(int(m.group(2)), int(m.group(3)) + 1)}
    if tok in ('vcc', 'vcc_lo', 'vcc_hi'): return {'vcc'}
    if tok in ('exec', 'exec_lo', 'exec_hi'): return {'exec'}
    if tok == 'm0': return {'m0'}
    return set()

class I:
    def __init__(self, text):
        self.text = text
        t = text.split(';')[0].strip()
        self.label = None; self.op = None; self.ops = []; self.mods = ''
        if t.endswith(':'):
            self.label = t[:-1]; return
        if not t or t.startswith('.'):
            self.op = None; return
        parts = t.split(None, 1)
        self.op = parts[0]
        rest = parts[1] if len(parts) > 1 else ''
        ops = []; cur = ''; d = 0
        for ch in rest:
            if ch in '[(': d += 1
            if ch in '])': d -= 1
            if ch == ',' and d == 0: ops.append(cur.strip()); cur = ''
            else: cur += ch
        if cur.strip(): ops.append(cur.strip())
        if ops:
            last = ops[-1].split(None, 1)
            ops[-1] = last[0]
            self.mods = last[1] if len(last) > 1 else ''
        self.ops = ops
        op = self.op
        self.mfma = op.startswith(('v_mfma', 'v_smfmac'))
        self.valu = op.startswith('v_') and not self.mfma
        self.salu = op.startswith('s_')
        self.vmem = op.startswith(('buffer_', 'global_'))
        self.ds = op.startswith('ds_')
        self.dpp = '_dpp' in op or 'row_' in self.mods or 'quad_perm' in self.mods
        self.trans = op.replace('_e32', '').replace('_e64', '') in TRANS
        self.perml = op.startswith('v_permlane')
        self.rdlane = op.startswith(('v_readfirstlane', 'v_readlane'))
        W = set(); R = set()
        allr = [_regs(o) for o in ops]
        if self.mfma:
            W = allr[0]; R = allr[1] | allr[2] | allr[3]; self.A = allr[1] | allr[2]; self.C = allr[3]
            if op.startswith('v_smfmac'): self.A = set(R); self.C = allr[0]; R = R | allr[0]
        elif self.valu:
            if self.perml:
                W = allr[0] | allr[1]; R = set(W)
            elif op.startswith('v_cmp'):
                W = allr[0]; R = set().union(*allr[1:])
            elif op.startswith(('v_add_co', 'v_sub_co', 'v_addc_co', 'v_subb_co', 'v_div_scale')):
                W = allr[0] | allr[1]; R = set().union(*allr[2:])
            else:
                W = allr[0]; R = set().union(*allr[1:]) if len(allr) > 1 else set()
                if op.startswith(('v_fmac', 'v_dot2c', 'v_writelane')) or self.dpp: R |= allr[0]
                if op.startswith('v_cndmask') and len(ops) == 3: R |= {'vcc'}
                if op.startswith('v_div_fmas'): R |= {'vcc'}
        elif self.vmem:
            if 'load' in op and ' lds' not in (' ' + self.mods) :
                W = allr[0]; R = set().union(*allr[1:])
            elif 'load' in op:
                R = set().union(*allr) | {'m0'}; self.ldsdma = True
            elif 'atomic' in op:
                R = set().union(*allr); W = allr[0] if 'sc0' in self.mods else set()
            elif op.startswith(('buffer_wbl2', 'buffer_inv')):
                pass
            else:
                R = set().union(*allr)
                self.stdata = allr[0] if op.startswith('buffer_') else allr[1]
                self.wide = op.endswith(('x3', 'x4'))
        elif self.ds:
            if op.startswith(('ds_read', 'ds_bpermute', 'ds_permute', 'ds_swizzle')) or '_rtn' in op:
                W = allr[0]; R = set().union(*allr[1:])
            else:
                R = set().union(*allr)
        elif self.salu:
            if op.startswith(('s_cmp', 's_bitcmp', 's_waitcnt', 's_nop', 's_barrier', 's_branch', 's_cbranch', 's_endpgm', 's_sleep', 's_setprio')):
                R = set().union(*allr) if allr else set()
            else:
                W = allr[0] if allr else set(); R = set().union(*allr[1:]) if len(allr) > 1 else set()
                if 'saveexec' in op: W |= {'exec'}
        self.W = W; self.R = R
    def states(self):
        if self.op is None: return 0
        if self.op == 's_nop': return int(self.ops[0], 0) + 1
        return 1

def need(p, c):
    n = 0
    isv = lambda s: {r for r in s if r[0] in 'va' and r not in ('vcc',)}
    iss = lambda s: {r for r in s if r[0] == 's' or r == 'vcc'}
    if p.mfma:
        D = p.W
        if c.mfma:
            if c.A & D: n = max(n, 8)
            if c.C & D and c.C != D: n = max(n, 6)
            if c.W & D and c.C != D: n = max(n, 6)
        elif c.valu or c.vmem or c.ds:
            if (c.R | c.W) & D: n = max(n, 8)
        if c.valu and (c.W & isv(p.C)): n = max(n, 3)
    if p.valu:
        pv = isv(p.W); ps = iss(p.W)
        if c.mfma and c.R & pv: n = max(n, 2)
        if c.valu and c.dpp and c.R & pv: n = max(n, 2)
        if c.valu and c.perml and c.R & pv: n = max(n, 2)
        if c.valu and c.rdlane and c.R & pv: n = max(n, 1)
        if p.trans and (c.valu or c.vmem or c.ds) and c.R & pv: n = max(n, 1)
        if ps:
            if c.valu and c.R & ps: n = max(n, 4 if c.op.startswith(('v_readlane', 'v_writelane', 'v_div_fmas')) else 2)
            if c.vmem and c.R & ps: n = max(n, 5)
            if c.salu and c.R & ps: n = max(n, 1)
    if p.salu and 'm0' in p.W and getattr(c, 'ldsdma', False): n = max(n, 1)
    if p.vmem and getattr(p, 'wide', False) and (c.W & p.stdata): n = max(n, 2)
    return n

class Asm:
    def __init__(self): self.L = []
    def __call__(self, s):
        for line in s.split('\n'):
            line = line.strip()
            if line: self.L.append(line)
    def fix(self):
        ins = [I(t) for t in self.L]
        total = 0
        def maps():
            labels = {x.label: k for k, x in enumerate(ins) if x.label}
            brs = {}
            for k, x in enumerate(ins):
                if x.op and x.op.startswith(('s_branch', 's_cbranch')):
                    brs.setdefault(labels[x.ops[0]], []).append(k)
                if x.op == 's_call_b64':
                    brs.setdefault(labels[x.ops[1]], []).append(k)
            brs['ret'] = [k for k, x in enumerate(ins) if x.op == 's_setpc_b64']
            return brs
        changed = True
        while changed:
            changed = False
            brs = maps()
            k = 0
            while k < len(ins):
                c = ins[k]
                if c.op is None or c.op == 's_nop':
                    k += 1; continue
                worst = 0
                stack = [(k - 1, 0, True)]
                seen = set()
                while stack:
                    j, dist, fall = stack.pop()
                    if j < 0 or dist >= 9 or (j, dist) in seen: continue
                    seen.add((j, dist))
                    p = ins[j]
                    if p.label is not None:
                        for b in brs.get(j, []): stack.append((b, dist, False))
                        stack.append((j - 1, dist, True)); continue
                    if p.op is None:
                        stack.append((j - 1, dist, True)); continue
                    if fall and p.op in ('s_branch', 's_endpgm', 's_setpc_b64'): continue
                    if fall and p.op == 's_call_b64':
                        for b in brs['ret']: stack.append((b, dist, False))
                        continue
                    nd = need(p, c)
                    if nd > dist: worst = max(worst, nd - dist)
                    stack.append((j - 1, dist + p.states(), True))
                if worst:
                    ins.insert(k, I(f's_nop {worst - 1}')); total += worst
                    changed = True
                    brs = maps()
                    k += 1
                k += 1
        self.L = [x.text for x in ins]
        return total
    def text(self): return '\n'.join(self.L) + '\n'
```

```python
import sys
from asmlib import Asm
KNAME = 'adaLN_cond__gqa_block_cached__mixer_channel_mlp__decode_kernel'

AUXREG = 0x8000
ASTR = 117 * 128
A_OFF, P2_OFF, MR_OFF, Q_OFF, X1_OFF, ST_OFF, H_OFF, MC_OFF = 0, 4096, 8192, 9216, 10240, 10368, 10624, 10752
MO_BASE = 0x80000
TS_BASE = 0x200000
WS_NREC = 0x400000
L0 = 65536
H_, LNX, QP, MP, RP, IMA, IMS, YB, QT, OB, ZR, HB, SMALL, CNT = [L0 + x for x in
    (0, 2048, 6144, 14336, 18432, 22528, 26624, 30720, 32768, 33280, 33792, 34048, 34304, 34816)]
C_MODE, C_CLR, C_LN, C_MC, C_H, C_Q, C_MR, C_W1 = [4 * i for i in range(8)]
LDS_BYTES = L0 + 34880
QL, MW, FW, AF, PART = 0, 1024, 1536, 1792, 2048
K_, V_, WS, DBG, X_, WQ, WO, W1, B1, W2, B2, C_, WM, OUT = [f's[{8+4*i}:{11+4*i}]' for i in range(14)]
SRDN = dict(K=8, V=12, WS=16, DBG=20, X=24, WQ=28, WO=32, W1=36, B1=40, W2=44, B2=48, C=52, WM=56, OUT=60)
KOFF = dict(X=0, K=8, V=16, WQ=24, WO=32, W1=48, B1=56, W2=64, B2=72, C=80, WM=88, OUT=96, DBG=104, WS=112)
NREC = dict(X=2048, K=0x2000000, V=0x2000000, WQ=0x400000, WO=0x400000, W1=1835008, B1=3584, W2=1835008, B2=1024,
            C=2048, WM=3145728, OUT=2048, DBG=256, WS=WS_NREC)
BM = [f's[{64+2*u}:{65+2*u}]' for u in range(4)]
ML2 = 's[72:73]'
SEL = ['s74', 's75']
HIM = 's76'
LOG2E = 's77'
SMODE = 's78'
STMP = 's79'
EPO = 's96'
TAG = 's97'
POLLC = 's98'
POLL_MAX = 40000
LOG2E_F = 0x3fb8aa3b

def v(b, n=1): return f'v{b}' if n == 1 else f'v[{b}:{b+n-1}]'

class Gen:
    def __init__(self, dbg=False, thr=3, vpre=8, vextra=4, force_slow=False, wpol='nt', kvpol='nt', dq=16, dwo=8, dl=4, n1=2, n2=2, qsleep=0, qdelay=0, mcpol='nt', dl0=4, wo_wait=1, thr2=3, nlast=0, early=0, dw1=16, qsets=4, hsets=2, hsleep=4, prio=1, early2=1, fakeq=0):
        self.a = Asm(); self.n = 0; self.dbg = dbg; self.thr = thr; self.vpre = vpre; self.vextra = vextra
        self.n1 = n1; self.n2 = n2; self.qsleep = qsleep; self.qdelay = qdelay; self.mcpol = mcpol; self.dl0 = dl0; self.wo_wait = wo_wait; self.thr2 = thr2; self.nlast = nlast; self.early = early; self.dw1 = dw1; self.qsets = qsets; self.hsets = hsets; self.hsleep = hsleep; self.prio = prio; self.early2 = early2; self.fakeq = fakeq; self.dq = dq; self.dwo = dwo; self.dl = dl; self.force_slow = force_slow; self.wpol = wpol; self.kvpol = kvpol
    def lab(self, p='L'):
        self.n += 1; return f'{p}_{self.n}'
    def srd(self, names):
        a = self.a
        for nm in names: a(f's_load_dwordx2 s[{SRDN[nm]}:{SRDN[nm]+1}], s[0:1], {KOFF[nm]}')
        for nm in names:
            a(f's_mov_b32 s{SRDN[nm]+2}, {NREC[nm]:#x}'); a(f's_mov_b32 s{SRDN[nm]+3}, 0x20000')
    def consts(self):
        a = self.a
        for u in range(4):
            m = 0x000f000f << (4 * u)
            a(f's_mov_b32 s{64+2*u}, {m:#x}'); a(f's_mov_b32 s{65+2*u}, {m:#x}')
        a('s_mov_b32 s72, 0xcccccccc'); a('s_mov_b32 s73, 0xcccccccc')
        a('s_mov_b32 s74, 0x05040100'); a('s_mov_b32 s75, 0x07060302')
        a('s_mov_b32 s76, 0xffff0000'); a(f's_mov_b32 s77, {LOG2E_F:#x}')
    def stamp(self, i):
        if not self.dbg: return
        self.a(f's_memrealtime s[100:101]\ns_waitcnt lgkmcnt(0)\nv_writelane_b32 v0, s100, {i}')
    def stamp_init(self):
        if not self.dbg: return
        self.a('v_mov_b32 v0, 0')
        self.stamp(0)
    def end(self):
        a = self.a
        if self.dbg:
            self.stamp(15)
            a('s_mov_b64 exec, 0xffff')
            a('s_mul_i32 s5, s2, 12'); a('s_add_u32 s5, s5, s3'); a('s_lshl_b32 s5, s5, 6'); a(f's_add_u32 s5, s5, {TS_BASE}')
            a('v_lshlrev_b32 v2, 2, v1')
            a(f'buffer_store_dword v0, v2, {WS}, s5 offen')
        a('s_endpgm')
    def poll(self, loads, regs, tmp, zero=False, sleep=0, pre=None):
        a = self.a; lp = self.lab('LP'); ld = self.lab('LD')
        a(f's_mov_b32 {POLLC}, 0'); a(f'{lp}:')
        for s in loads: a(s)
        a('s_waitcnt vmcnt(0)')
        op = 'min' if zero else 'max'
        rs = list(regs)
        if len(rs) == 1: src = rs[0]
        else:
            src = tmp
            if len(rs) % 2 == 0: a(f'v_{op}_u32 v{tmp}, v{rs[0]}, v{rs[1]}'); rs = rs[2:]
            else: a(f'v_{op}3_u32 v{tmp}, v{rs[0]}, v{rs[1]}, v{rs[2]}'); rs = rs[3:]
            while rs: a(f'v_{op}3_u32 v{tmp}, v{tmp}, v{rs[0]}, v{rs[1]}'); rs = rs[2:]
        a(f'v_cmp_eq_u32 vcc, {0 if zero else -1}, v{src}')
        a(f's_cbranch_vccz {ld}')
        if sleep: a(f's_sleep {sleep}')
        a(f's_add_u32 {POLLC}, {POLLC}, 1'); a(f's_cmp_lt_u32 {POLLC}, {POLL_MAX}'); a(f's_cbranch_scc1 {lp}')
        a(f'{ld}:')
    def spoll(self, base, offs, zero=False, sleep=2, ge=None):
        a = self.a; lp = self.lab('LS'); ld = self.lab('LT')
        a(f's_mov_b32 {POLLC}, 0'); a(f'{lp}:')
        for i, o in enumerate(offs): a(f's_load_dword s{88+i}, {base}, {o:#x} glc')
        a('s_waitcnt lgkmcnt(0)')
        if ge is not None:
            a('s_and_b32 s89, s88, 0x3f'); a(f's_cmp_ge_u32 s89, {ge}')
        else:
            for i in range(1, len(offs)): a(f's_{"min" if zero else "max"}_u32 s88, s88, s{88+i}')
            a(f's_cmp_lg_u32 s88, {0 if zero else -1}')
        a(f's_cbranch_scc1 {ld}')
        if sleep: a(f's_sleep {sleep}')
        a(f's_add_u32 {POLLC}, {POLLC}, 1'); a(f's_cmp_lt_u32 {POLLC}, {POLL_MAX}'); a(f's_cbranch_scc1 {lp}')
        a(f'{ld}:')
    def tag_load(self):
        self.a(f's_load_dword {EPO}, s[16:17], 0x0')
    def tag_make(self):
        a = self.a
        a('s_waitcnt lgkmcnt(0)'); a(f's_mul_i32 {TAG}, {EPO}, 0x9e3779b1'); a(f's_add_u32 {TAG}, {TAG}, 0x85ebca6b')
    def tpoll(self, loads, tagregs, sleep=0):
        a = self.a; lp = self.lab('LQ'); ld = self.lab('LR')
        a(f's_mov_b32 {POLLC}, 0'); a(f'{lp}:')
        for s_ in loads: a(s_)
        a('s_waitcnt vmcnt(0)')
        for i, r in enumerate(tagregs):
            if i == 0: a(f'v_cmp_ne_u32 vcc, {TAG}, v{r}')
            else: a(f'v_cmp_ne_u32 s[88:89], {TAG}, v{r}'); a('s_or_b64 vcc, vcc, s[88:89]')
        a('s_cmp_eq_u64 vcc, 0'); a(f's_cbranch_scc1 {ld}')
        if sleep: a(f's_sleep {sleep}')
        a(f's_add_u32 {POLLC}, {POLLC}, 1'); a(f's_cmp_lt_u32 {POLLC}, {POLL_MAX}'); a(f's_cbranch_scc1 {lp}')
        a(f'{ld}:')
    def tpoll_pipe(self, mk, nld, base, dst, sets, gap):
        a = self.a; lp = self.lab('LU'); ld = self.lab('LV'); outs = [self.lab('LO') for _ in range(sets)]
        for k in range(sets - 1):
            for s_ in mk(base + 4 * nld * k): a(s_)
            if gap: a(f's_sleep {gap}')
        a(f's_mov_b32 {POLLC}, 0'); a(f'{lp}:')
        for k in range(sets):
            kn = (k + sets - 1) % sets
            for s_ in mk(base + 4 * nld * kn): a(s_)
            a(f's_waitcnt vmcnt({nld * (sets - 1)})')
            b = base + 4 * nld * k
            for i in range(2 * nld):
                if i == 0: a(f'v_cmp_ne_u32 vcc, {TAG}, v{b+1}')
                else: a(f'v_cmp_ne_u32 s[88:89], {TAG}, v{b+1+2*i}'); a('s_or_b64 vcc, vcc, s[88:89]')
            a('s_cmp_eq_u64 vcc, 0'); a(f's_cbranch_scc1 {outs[k]}')
            if gap: a(f's_sleep {gap}')
        a(f's_add_u32 {POLLC}, {POLLC}, 1'); a(f's_cmp_lt_u32 {POLLC}, {POLL_MAX}'); a(f's_cbranch_scc1 {lp}')
        for k in range(sets):
            a(f'{outs[k]}:')
            b = base + 4 * nld * k
            for i in range(nld): a(f'v_mov_b32 v{dst+2*i}, v{b+4*i}'); a(f'v_mov_b32 v{dst+2*i+1}, v{b+4*i+2}')
            if k < sets - 1: a(f's_branch {ld}')
        a(f'{ld}:')
    def arrive(self, c, t0, t1, val=1):
        a = self.a
        a(f'v_mov_b32 v{t0}, {CNT + c}'); a(f'v_mov_b32 v{t1}, {val}' if isinstance(val, int) else f'v_mov_b32 v{t1}, {val}')
        a('s_mov_b64 exec, 1'); a(f'ds_add_u32 v{t0}, v{t1}'); a('s_mov_b64 exec, -1')
    def waitc(self, c, target, t0, t1, dst=STMP):
        a = self.a; lp = self.lab('LW'); ld = self.lab('LX')
        a(f'v_mov_b32 v{t0}, {CNT + c}'); a(f's_mov_b32 {POLLC}, 0'); a(f'{lp}:')
        a(f'ds_read_b32 v{t1}, v{t0}'); a('s_waitcnt lgkmcnt(0)'); a(f'v_readfirstlane_b32 {dst}, v{t1}')
        a(f's_cmp_ge_u32 {dst}, {target}'); a(f's_cbranch_scc1 {ld}')
        a('s_sleep 1'); a(f's_add_u32 {POLLC}, {POLLC}, 1'); a(f's_cmp_lt_u32 {POLLC}, {POLL_MAX*8}'); a(f's_cbranch_scc1 {lp}')
        a(f'{ld}:')
    def pub(self, ins):
        a = self.a; lf = self.lab('LF'); ld = self.lab('LG')
        a(f's_cmp_eq_u32 {SMODE}, 2'); a(f's_cbranch_scc1 {lf}')
        a(ins + ' sc1'); a(f's_branch {ld}'); a(f'{lf}:'); a(ins); a(f'{ld}:')
    def rnd2(self, x, y, t):
        a = self.a
        a(f'v_cvt_pk_bf16_f32 v{t}, v{x}, v{y}'); a(f'v_lshlrev_b32 v{x}, 16, v{t}'); a(f'v_and_b32 v{y}, {HIM}, v{t}')
    def rowsum(self, x, op='add'):
        for n in (8, 4, 2, 1): self.a(f'v_{op}_f32_dpp v{x}, v{x}, v{x} row_ror:{n} row_mask:0xf bank_mask:0xf')
    def xrows(self, x, t, op='add'):
        a = self.a
        a(f'v_mov_b32 v{t}, v{x}'); a(f'v_permlane16_swap_b32 v{x}, v{t}'); a(f'v_{op}_f32 v{x}, v{x}, v{t}')
        a(f'v_mov_b32 v{t}, v{x}'); a(f'v_permlane32_swap_b32 v{x}, v{t}'); a(f'v_{op}_f32 v{x}, v{x}, v{t}')
    def wavesum(self, x, t): self.rowsum(x); self.xrows(x, t)
    def red4rows(self, o):
        a = self.a
        a(f'v_permlane32_swap_b32 v{o}, v{o+2}'); a(f'v_permlane32_swap_b32 v{o+1}, v{o+3}')
        a(f'v_add_f32 v{o}, v{o}, v{o+2}'); a(f'v_add_f32 v{o+1}, v{o+1}, v{o+3}')
        a(f'v_permlane16_swap_b32 v{o}, v{o+1}'); a(f'v_add_f32 v{o}, v{o}, v{o+1}')
    def silu4(self, r, t):
        a = self.a
        a('s_mov_b32 s99, 0x7e800000')
        for i in range(4):
            lo, hi, e0, e1 = t, t + 1, t + 2, t + 3
            a(f'v_lshlrev_b32 v{lo}, 16, v{r+i}'); a(f'v_and_b32 v{hi}, {HIM}, v{r+i}')
            a(f'v_mul_f32 v{e0}, {LOG2E}, v{lo}'); a(f'v_mul_f32 v{e1}, {LOG2E}, v{hi}')
            a(f'v_exp_f32 v{e0}, -v{e0}'); a(f'v_exp_f32 v{e1}, -v{e1}')
            a(f'v_add_f32 v{e0}, 1.0, v{e0}'); a(f'v_add_f32 v{e1}, 1.0, v{e1}')
            r0, r1, q0, q1 = t + 4, t + 5, t + 6, t + 7
            a(f'v_rcp_f32 v{r0}, v{e0}'); a(f'v_rcp_f32 v{r1}, v{e1}')
            a(f'v_mul_f32 v{q0}, v{lo}, v{r0}'); a(f'v_mul_f32 v{q1}, v{hi}, v{r1}')
            a(f'v_cmp_gt_f32 vcc, s99, v{e0}'); a(f'v_fma_f32 v{lo}, -v{q0}, v{e0}, v{lo}'); a(f'v_fma_f32 v{lo}, v{lo}, v{r0}, v{q0}')
            a(f'v_cndmask_b32 v{lo}, v{q0}, v{lo}, vcc')
            a(f'v_cmp_gt_f32 vcc, s99, v{e1}'); a(f'v_fma_f32 v{hi}, -v{q1}, v{e1}, v{hi}'); a(f'v_fma_f32 v{hi}, v{hi}, v{r1}, v{q1}')
            a(f'v_cndmask_b32 v{hi}, v{q1}, v{hi}, vcc')
            a(f'v_cvt_pk_bf16_f32 v{r+i}, v{lo}, v{hi}')
    def transpose(self, raw, dst, jjs=range(4)):
        for jj in jjs:
            for m in range(8):
                self.a(f'v_perm_b32 v{dst+4*m+jj}, v{raw+4*(2*jj+1)+(m>>1)}, v{raw+4*(2*jj)+(m>>1)}, {SEL[m&1]}')
    def gemv_fly(self, raw, xrep, first, xv=8, T=12, acc=20):
        a = self.a
        for u in range(4):
            for i in range(4): a(f'v_cndmask_b32 v{xv+i}, 0, v{xrep+i}, {BM[u]}')
            for e in range(2):
                for jj in range(4):
                    a(f'v_perm_b32 v{T+4*e+jj}, v{raw+4*(2*jj+1)+u}, v{raw+4*(2*jj)+u}, {SEL[e]}')
            for e in range(2):
                c = '0' if (first and u == 0) else v(acc + 4 * e, 4)
                a(f'v_mfma_f32_16x16x32_bf16 {v(acc+4*e,4)}, {v(T+4*e,4)}, {v(xv,4)}, {c}')
    def merge(self, acc):
        for r in range(4): self.a(f'v_cndmask_b32 v{acc+r}, v{acc+r}, v{acc+4+r}, {ML2}')
    def sanitize(self, r, n):
        for i in range(n): self.a(f'v_min_u32 v{r+i}, -2, v{r+i}')
    def unit_loads(self, raw, voff, srd, sbase, rs, rows=None, pol=None, depth=None, prior=99):
        a = self.a; pol = self.wpol if pol is None else pol
        for j in range(8):
            off = (rows[j] if rows else j) * rs
            if depth and prior + j >= depth: a(f's_waitcnt vmcnt({depth-1})')
            if off < 4096: a(f'buffer_load_dwordx4 {v(raw+4*j,4)}, v{voff}, {srd}, {sbase} offen offset:{off} {pol}')
            else:
                a(f's_add_u32 s7, {sbase}, {off}')
                a(f'buffer_load_dwordx4 {v(raw+4*j,4)}, v{voff}, {srd}, s7 offen {pol}')
    def wvoff(self, dst, rs, t):
        a = self.a
        a(f'v_lshrrev_b32 v{dst}, 4, v1'); a(f'v_mul_u32_u24 v{dst}, {8*rs}, v{dst}')
        a(f'v_and_b32 v{t}, 15, v1'); a(f'v_lshl_add_u32 v{dst}, v{t}, 4, v{dst}')
    def xvoff(self, dst, bstride, base, t):
        a = self.a
        a(f'v_and_b32 v{dst}, 1, v1'); a(f'v_mul_u32_u24 v{dst}, {bstride}, v{dst}')
        a(f'v_lshrrev_b32 v{t}, 4, v1'); a(f'v_lshl_add_u32 v{dst}, v{t}, 4, v{dst}')
        if base: a(f'v_add_u32 v{dst}, {base}, v{dst}')

    def attention(self):
        a = self.a
        a('s_mov_b32 s5, 0x15555556'); a('s_mul_hi_u32 s80, s4, s5')
        a('s_mul_i32 s5, s80, 12'); a('s_sub_u32 s81, s4, s5')
        a('s_cmp_lt_u32 s81, 8'); a('s_cselect_b32 s82, 11, 10')
        a('s_cmp_ge_u32 s3, 11'); a('s_cbranch_scc1 L_att_ctl')
        a('s_cmp_ge_u32 s3, s82'); a('s_cbranch_scc1 L_exit')
        a('s_min_u32 s5, s81, 8'); a('s_mul_i32 s6, s81, 10'); a('s_add_u32 s5, s5, s6'); a('s_lshl_b32 s5, s5, 14')
        a('s_lshl_b32 s6, s80, 21'); a('s_add_u32 s5, s5, s6'); a('s_lshl_b32 s6, s3, 10'); a('s_add_u32 s83, s5, s6')
        a('s_lshl_b32 s84, s82, 10')
        a('v_bfe_u32 v3, v1, 2, 2'); a('v_lshlrev_b32 v3, 8, v3'); a('v_lshrrev_b32 v4, 4, v1'); a('v_lshl_add_u32 v3, v4, 6, v3')
        a('v_and_b32 v4, 3, v1'); a('v_lshl_add_u32 v3, v4, 4, v3')
        a('v_lshlrev_b32 v2, 4, v1')
        a('s_mov_b32 s85, s83')
        a('s_waitcnt lgkmcnt(0)')
        KB, VB = 32, 96
        issued = [0]
        def thr(d):
            if issued[0] >= d: a(f's_waitcnt vmcnt({d-1})')
        for t in range(16):
            thr(self.thr)
            a(f'buffer_load_dwordx4 {v(KB+4*t,4)}, v3, {K_}, s85 offen {self.kvpol}')
            if t < 15: a('s_add_u32 s85, s85, s84')
            issued[0] += 1
            if t == 7: self.stamp(7)
            if t == 15: self.stamp(8)
            if t == self.thr - 1:
                self.consts()
                a('v_and_b32 v28, 3, v1'); a('v_lshlrev_b32 v29, 8, v28'); a('v_lshrrev_b32 v30, 2, v1'); a('v_lshl_add_u32 v29, v30, 4, v29')
                a('s_lshl_b32 s5, s3, 5'); a('v_lshl_add_u32 v28, v28, 3, s5')
                a(f'v_mov_b32 v27, {AF}')
                a('s_mov_b32 s86, 0x3db504f3'); a('s_mov_b32 s92, 0')
                a('s_barrier')
        vorder = [8 * bk + x for bk in range(2) for x in (0, 4, 1, 5, 2, 6, 3, 7)]
        for i in range(16):
            l = self.lab('LV')
            a(f's_mul_i32 s85, s84, {vorder[i]}'); a('s_add_u32 s85, s85, s83')
            a('s_cmp_gt_i32 s92, 0'); a(f's_cbranch_scc1 {l}')
            a(f's_waitcnt vmcnt({(self.thr if i < 16 - self.nlast else self.thr2) - 1})')
            a(f'{l}:')
            a(f'buffer_load_dwordx4 {v(VB+4*i,4)}, v2, {V_}, s85 offen {self.kvpol}')
            if i == 7: self.stamp(9)
            if self.thr - 1 <= i < 15: a('s_call_b64 s[90:91], L_att_chk')
        self.stamp(1)
        a('s_cmp_lt_i32 s92, 0'); a('s_cbranch_scc1 L_att_pv')
        self.lspin(27, 0, 1, 26)
        a('s_call_b64 s[90:91], L_att_qk')
        a('L_att_pv:')
        a('s_lshl_b32 s5, s3, 11'); a(f's_add_u32 s5, s5, {PART}'); a('v_add_u32 v3, s5, v2')
        a('s_cmp_lg_u32 s3, 0'); a('s_cbranch_scc1 L_att_pv2')
        self.att_red_addr(0)
        self.att_factors()
        a('L_att_pv2:')
        for bk in range(2):
            raw = VB + 32 * bk; T = 64 if bk == 0 else 96
            for jj in range(4):
                a(f's_waitcnt vmcnt({16 - 8*bk - 2*jj - 2})')
                self.transpose(raw, T, [jj])
            if bk == 1: self.stamp(4)
            for m in range(8):
                c = '0' if (bk == 0 and m < 2) else v(160 + 4 * (m & 1), 4)
                a(f'v_mfma_f32_16x16x32_bf16 {v(160+4*(m&1),4)}, {v(T+4*m,4)}, {v(KB+16*bk+4*(m>>1),4)}, {c}')
        a('ds_write_b128 v3, v[160:163]'); a('ds_write_b128 v3, v[164:167] offset:1024')
        a('s_waitcnt lgkmcnt(0)')
        a('s_cmp_eq_u32 s3, 0'); a('s_cbranch_scc1 L_att_red')
        a('s_barrier')
        self.end()
        a('L_att_chk:')
        a('s_cmp_lt_i32 s92, 0'); a('s_cbranch_scc1 L_att_ret')
        a('s_cmp_gt_i32 s92, 0'); a('s_cbranch_scc1 L_att_cd')
        a('ds_read_b32 v26, v27'); a('s_waitcnt lgkmcnt(0)'); a('v_readfirstlane_b32 s5, v26')
        a('s_cmp_eq_u32 s5, 0'); a('s_cbranch_scc1 L_att_ret')
        a(f's_mov_b32 s92, {self.vextra + 1}')
        a('L_att_cd:')
        a('s_sub_u32 s92, s92, 1'); a('s_cmp_eq_u32 s92, 0'); a('s_cbranch_scc1 L_att_qk')
        a('L_att_ret:')
        a('s_setpc_b64 s[90:91]')
        a('L_att_qk:')
        self.stamp(2)
        a(f'ds_read_b128 v[4:7], v29 offset:{QL}')
        a('s_mov_b32 s92, -1')
        a('s_waitcnt lgkmcnt(0)')
        def adds(t):
            u = t & 3; R = 8 + (t >> 2); D = 12 + 4 * (t % 3)
            for k in (1, 2, 3):
                r = (u + k) & 3
                s1 = f'v{D+u}' if k == 1 else f'v{R}'
                a(f'v_add_f32_dpp v{R}, v{D+r}, {s1} row_ror:{(4*(u-r))%16} row_mask:0xf bank_mask:{1<<u:#x}')
        for t in range(16):
            if t >= 3: adds(t - 3)
            a(f'v_mfma_f32_16x16x32_bf16 {v(12+4*(t%3),4)}, {v(KB+4*t,4)}, v[4:7], 0')
        for i in range(32): a(f'v_mov_b32 v{KB+i}, 0')
        for t in range(13, 16): adds(t)
        self.rnd2(8, 9, 12); self.rnd2(10, 11, 13)
        for i in range(4): a(f'v_mul_f32 v{8+i}, s86, v{8+i}')
        self.rnd2(8, 9, 12); self.rnd2(10, 11, 13)
        a('v_max3_f32 v12, v8, v9, v10'); a('v_max_f32 v12, v12, v11')
        a('v_max_f32_dpp v12, v12, v12 row_ror:4 row_mask:0xf bank_mask:0xf')
        a('v_max_f32_dpp v12, v12, v12 row_ror:8 row_mask:0xf bank_mask:0xf')
        self.xrows(12, 13, 'max')
        a(f'v_mul_f32 v14, {LOG2E}, v12')
        for i in range(4): a(f'v_fma_f32 v{8+i}, v{8+i}, {LOG2E}, -v14')
        for i in range(4): a(f'v_exp_f32 v{8+i}, v{8+i}')
        a('v_add_f32 v13, v8, v9'); a('v_add_f32 v15, v10, v11'); a('v_add_f32 v13, v13, v15')
        a('v_cvt_pk_bf16_f32 v16, v8, v9'); a('v_cvt_pk_bf16_f32 v17, v10, v11')
        a('v_add_f32_dpp v13, v13, v13 row_ror:4 row_mask:0xf bank_mask:0xf')
        a('v_add_f32_dpp v13, v13, v13 row_ror:8 row_mask:0xf bank_mask:0xf')
        self.xrows(13, 14)
        a('v_mov_b32 v14, 1')
        a('s_mov_b64 exec, 0xf'); a(f'ds_write_b64 v28, v[12:13] offset:{MW}')
        a('s_mov_b64 exec, 1'); a('ds_add_u32 v27, v14 offset:4'); a('s_mov_b64 exec, -1')
        for bk in range(2):
            for u in range(4):
                for jj in range(4):
                    n = (4 * (u - jj)) % 16
                    c = f'row_ror:{n}' if n else 'quad_perm:[0,1,2,3]'
                    a(f'v_mov_b32_dpp v{KB+16*bk+4*u+jj}, v{16+bk} {c} row_mask:0xf bank_mask:{1<<u:#x}')
        self.stamp(3)
        a('s_setpc_b64 s[90:91]')
        a('L_att_ctl:')
        a('s_setprio 3')
        a('v_lshlrev_b32 v2, 4, v1')
        a('v_mov_b32 v16, 0xff800000'); a('v_mov_b32 v17, 0'); a('v_lshlrev_b32 v6, 3, v1'); a(f'ds_write_b64 v6, v[16:17] offset:{MW}')
        for i in range(4): a(f'v_mov_b32 v{8+i}, -1'); a(f'v_mov_b32 v{12+i}, 0')
        a(f'v_mov_b32 v27, {AF}'); a('ds_write_b128 v27, v[12:15]')
        a(f'ds_write_b128 v2, v[12:15] offset:{PART+10*2048}'); a(f'ds_write_b128 v2, v[12:15] offset:{PART+10*2048+1024}')
        a('s_waitcnt lgkmcnt(0)')
        a('s_barrier')
        self.tag_load()
        self.att_red_addr(1)
        a('s_and_b32 s84, s80, 7'); a('s_lshl_b32 s84, s84, 2'); a(f's_mul_i32 s84, s84, {ASTR}'); a(f's_add_u32 s84, s84, {AUXREG}')
        a('s_lshr_b32 s85, s80, 3')
        a(f'buffer_store_dwordx4 v[8:11], v2, {WS}, s87 offen sc1'); a(f'buffer_store_dwordx4 v[8:11], v2, {WS}, s87 offen offset:1024 sc1')
        a('v_lshrrev_b32 v7, 5, v1'); a(f'v_mul_u32_u24 v24, {ASTR}, v7'); a('v_and_b32 v16, 31, v1'); a('v_lshl_add_u32 v24, v16, 4, v24')
        a('v_lshlrev_b32 v25, 8, v7'); a('v_lshl_add_u32 v25, v16, 3, v25')
        a('s_lshl_b32 s5, s85, 9'); a('s_add_u32 s86, s84, s5'); a(f's_add_u32 s86, s86, {Q_OFF}'); a(f's_add_u32 s83, s86, {2*ASTR}')
        a(f's_mov_b32 {LOG2E}, {LOG2E_F:#x}')
        self.tag_make()
        if self.qdelay: a(f's_sleep {self.qdelay}')
        self.stamp(1)
        if not self.fakeq: self.tpoll_pipe(lambda b: [f'buffer_load_dwordx4 {v(b,4)}, v24, {WS}, s86 offen sc1', f'buffer_load_dwordx4 {v(b+4,4)}, v24, {WS}, s83 offen sc1'],
                        2, 80, 16, self.qsets, self.qsleep)
        a('v_mov_b32 v26, 1')
        a(f'ds_write_b64 v25, v[16:17] offset:{QL}'); a(f'ds_write_b64 v25, v[18:19] offset:{QL+512}')
        a('ds_write_b32 v27, v26')
        self.stamp(2)
        a('s_mov_b64 exec, 1')
        self.poll([f'buffer_load_dword v16, v12, {DBG}, 0 offen offset:128 sc1'], [16], 17, zero=True, sleep=2)
        a('s_mov_b64 exec, -1')
        a('v_and_b32 v3, 3, v1'); a(f'v_mul_u32_u24 v7, {ASTR}, v3')
        a('s_mul_i32 s5, s85, 12'); a('s_add_u32 s5, s5, s81'); a('s_lshl_b32 s5, s5, 3'); a('s_add_u32 s5, s5, s84'); a(f's_add_u32 s86, s5, {ST_OFF}')
        self.lspin(27, 4, 's82', 26)
        a(f'ds_read_b64 v[18:19], v6 offset:{MW}'); a('s_waitcnt lgkmcnt(0)')
        a('v_max_f32_dpp v16, v18, v18 row_ror:4 row_mask:0xf bank_mask:0xf')
        a('v_max_f32_dpp v16, v16, v16 row_ror:8 row_mask:0xf bank_mask:0xf')
        self.xrows(16, 17, 'max')
        a('v_sub_f32 v18, v18, v16'); a(f'v_mul_f32 v18, {LOG2E}, v18'); a('v_exp_f32 v18, v18')
        a('v_lshlrev_b32 v6, 2, v1'); a('v_mul_f32 v17, v18, v19')
        a(f'ds_write_b32 v6, v18 offset:{FW}'); a('v_mov_b32 v26, 1'); a('ds_write_b32 v27, v26 offset:8')
        a('v_add_f32_dpp v17, v17, v17 row_ror:4 row_mask:0xf bank_mask:0xf')
        a('v_add_f32_dpp v17, v17, v17 row_ror:8 row_mask:0xf bank_mask:0xf')
        self.xrows(17, 18)
        self.sanitize(16, 2)
        a('s_mov_b64 exec, 0xf'); a(f'buffer_store_dwordx2 v[16:17], v7, {WS}, s86 offen sc1'); a('s_mov_b64 exec, -1')
        self.stamp(3)
        self.att_factors()
        a('L_att_red:')
        a('s_barrier')
        self.stamp(5)
        for w in range(11): a(f'ds_read_b128 {v(32+4*w,4)}, v31 offset:{2048*w}')
        for w in range(11):
            a(f's_waitcnt lgkmcnt({10-w})')
            for r in range(4):
                if w == 0: a(f'v_mul_f32 v{32+r}, v{32+r}, v12')
                else: a(f'v_fmac_f32 v{32+r}, v{32+4*w+r}, v{12+w}')
        self.sanitize(32, 4)
        a(f'buffer_store_dwordx4 v[32:35], v30, {WS}, s87 offen sc1')
        self.stamp(6)
        if self.dbg: a('s_waitcnt vmcnt(0)')
        self.end()

    def lspin(self, va, off, target, t):
        a = self.a; lp = self.lab('LY'); ld = self.lab('LZ')
        a(f's_mov_b32 {POLLC}, 0'); a(f'{lp}:')
        a(f'ds_read_b32 v{t}, v{va} offset:{off}'); a('s_waitcnt lgkmcnt(0)'); a(f'v_readfirstlane_b32 {STMP}, v{t}')
        a(f's_cmp_ge_u32 {STMP}, {target}'); a(f's_cbranch_scc1 {ld}')
        a('s_sleep 1'); a(f's_add_u32 {POLLC}, {POLLC}, 1'); a(f's_cmp_lt_u32 {POLLC}, {POLL_MAX*8}'); a(f's_cbranch_scc1 {lp}')
        a(f'{ld}:')

    def att_factors(self):
        a = self.a
        self.lspin(27, 8, 1, 26)
        a('v_and_b32 v26, 3, v1'); a('v_lshlrev_b32 v26, 2, v26')
        for w in range(11): a(f'ds_read_b32 v{12+w}, v26 offset:{FW+16*w}')
        a('s_waitcnt lgkmcnt(0)')

    def att_red_addr(self, e):
        a = self.a
        a('s_lshl_b32 s87, s4, 11'); a(f's_add_u32 s87, s87, {MO_BASE}')
        a('v_and_b32 v30, 3, v1'); a('v_lshlrev_b32 v30, 9, v30'); a('v_lshrrev_b32 v31, 2, v1'); a('v_lshl_add_u32 v30, v31, 4, v30')
        if e: a(f'v_add_u32 v30, {256*e}, v30')
        a(f'v_add_u32 v31, {PART + 1024*e}, v2')

    def xcc_inc(self, dst):
        a = self.a
        a('s_getreg_b32 s5, hwreg(HW_REG_XCC_ID)'); a('s_and_b32 s5, s5, 7')
        a('s_mul_i32 s6, s5, s5'); a('s_lshl_b32 s6, s6, 16'); a('s_lshl_b32 s5, s5, 8'); a('s_add_u32 s5, s5, s6'); a(f's_add_u32 {dst}, s5, 1')

    def lds_init(self):
        a = self.a
        a('v_mov_b32 v8, 0'); a('v_lshlrev_b32 v9, 2, v1'); a(f'v_add_u32 v10, {ZR}, v9'); a('ds_write_b32 v10, v8')
        a(f'v_add_u32 v10, {CNT}, v9'); a('s_mov_b64 exec, 0xffff'); a('ds_write_b32 v10, v8'); a('s_mov_b64 exec, -1')

    def reduce_parts(self, base, n, dst=96):
        a = self.a
        a(f'v_add_u32 v3, {base}, v2')
        for w in range(n): a(f'ds_read_b128 {v(dst+4*w,4)}, v3 offset:{1024*w}')
        a('s_waitcnt lgkmcnt(0)')
        for w in range(1, n):
            for r in range(4): a(f'v_add_f32 v{dst+r}, v{dst+r}, v{dst+4*w+r}')

    def ln_x(self):
        a = self.a
        for i in range(4): a(f'v_lshlrev_b32 v{12+2*i}, 16, v{40+i}'); a(f'v_and_b32 v{13+2*i}, {HIM}, v{40+i}')
        a('v_add_f32 v20, v12, v13')
        for i in range(2, 8): a(f'v_add_f32 v20, v20, v{12+i}')
        self.wavesum(20, 21)
        a('v_mul_f32 v20, 0x3b000000, v20')
        a('v_mov_b32 v22, 0')
        for i in range(8): a(f'v_sub_f32 v21, v{12+i}, v20'); a('v_fmac_f32 v22, v21, v21')
        self.wavesum(22, 21)
        a('v_mul_f32 v22, 0x3b000000, v22')
        self.rnd2(20, 22, 21)
        a('v_add_f32 v22, 0x3727c5ac, v22'); self.rnd2(22, 23, 21)
        a('v_sqrt_f32 v22, v22'); self.rnd2(22, 23, 21)
        a('v_rcp_f32 v23, v22')
        for i in range(8): a(f'v_sub_f32 v{12+i}, v{12+i}, v20')
        for i in range(4): self.rnd2(12 + 2 * i, 13 + 2 * i, 21)
        for i in range(8):
            a(f'v_mul_f32 v24, v{12+i}, v23'); a(f'v_fma_f32 v25, -v24, v22, v{12+i}'); a(f'v_fma_f32 v{12+i}, v25, v23, v24')
        for i in range(4): self.rnd2(12 + 2 * i, 13 + 2 * i, 21)
        a('v_lshlrev_b32 v21, 5, v1'); a('s_lshl_b32 s5, s81, 1'); a(f's_add_u32 s5, s5, {LNX}'); a('v_add_u32 v21, s5, v21')
        a('ds_write_b128 v21, v[12:15]'); a('ds_write_b128 v21, v[16:19] offset:16')
        self.arrive(C_LN, 8, 9)

    def head(self):
        a = self.a
        a(f's_mul_i32 s80, s4, {ASTR}'); a(f's_add_u32 s80, s80, {AUXREG}')
        a('v_lshlrev_b32 v2, 4, v1')
        a('s_cmp_ge_u32 s3, 4'); a('s_cbranch_scc1 L_h_q')
        self.srd(['WM', 'C']); self.consts()
        self.wvoff(5, 6144, 4); self.xvoff(6, 1024, 0, 4)
        a('s_and_b32 s5, s4, 1'); a('s_lshl_b32 s5, s5, 8'); a('s_lshl_b32 s6, s3, 6'); a('s_add_u32 s85, s5, s6')
        a('s_mul_i32 s5, s85, 6144'); a('s_lshr_b32 s6, s4, 1'); a('s_lshl_b32 s6, s6, 8'); a('s_add_u32 s86, s5, s6'); a('s_add_u32 s86, s86, 2048')
        a('s_lshl_b32 s85, s85, 1')
        for i in range(4): a(f'v_mov_b32 v{8+i}, -1')
        a(f's_add_u32 s5, s80, {MR_OFF}')
        a('s_waitcnt lgkmcnt(0)')
        a('s_cmp_lg_u32 s3, 0'); a('s_cbranch_scc1 L_h_nc')
        a(f'buffer_store_dwordx4 v[8:11], v2, {WS}, s5 offen sc1')
        self.tag_load()
        a('L_h_nc:')
        a(f'buffer_load_dwordx4 v[160:163], v6, {C_}, s85 offen'); a(f'buffer_load_dwordx4 v[164:167], v6, {C_}, s85 offen offset:64')
        a('s_cmp_lg_u32 s3, 3'); a('s_cbranch_scc1 L_h_ni')
        self.lds_init(); a('s_waitcnt lgkmcnt(0)')
        a('L_h_ni:')
        a('s_barrier')
        a('s_cmp_lg_u32 s3, 0'); a('s_cbranch_scc1 L_h_wh')
        a('v_mov_b32 v12, 1'); a('v_mov_b32 v13, 0')
        a('v_lshrrev_b32 v3, 3, v1'); a(f'v_mul_u32_u24 v4, {ASTR}, v3'); a('v_and_b32 v7, 7, v1'); a('v_lshl_add_u32 v4, v7, 4, v4')
        a('v_lshlrev_b32 v3, 5, v3'); a('v_bfe_u32 v7, v1, 2, 1'); a('v_lshl_add_u32 v3, v7, 10, v3'); a('v_and_b32 v7, 3, v1'); a('v_lshl_add_u32 v3, v7, 3, v3')
        a(f'v_add_u32 v3, {H_}, v3')
        self.tag_make()
        a('s_waitcnt vmcnt(2)')
        a('s_mov_b64 exec, 1'); a(f'buffer_atomic_add v12, v13, {DBG}, 0 offen sc1'); a('s_mov_b64 exec, -1')
        self.stamp(1)
        for i in range(4): a(f's_mov_b32 s{81+i}, {AUXREG+H_OFF+8*i*ASTR}')
        self.tpoll_pipe(lambda b: [f'buffer_load_dwordx4 {v(b+4*i,4)}, v4, {WS}, s{81+i} offen sc1' for i in range(4)], 4, 32, 16, self.hsets, self.hsleep)
        for i in range(4): a(f'ds_write_b64 v3, {v(16+2*i,2)} offset:{256*i}')
        self.arrive(C_H, 8, 9)
        self.stamp(3)
        a('L_h_wh:')
        a('s_waitcnt vmcnt(0)')
        self.silu4(160, 8); self.silu4(164, 8)
        self.waitc(C_W1, 1, 8, 9)
        self.unit_loads(96, 5, WM, 's86', 6144, depth=self.dwo, prior=0)
        a(f's_add_u32 s86, s86, {32*6144}'); self.unit_loads(64, 5, WM, 's86', 6144, depth=self.dwo, prior=8)
        a('s_waitcnt vmcnt(8)')
        self.gemv_fly(96, 160, True)
        a('s_waitcnt vmcnt(0)')
        self.gemv_fly(64, 164, False)
        a('s_lshl_b32 s5, s3, 10'); a(f's_add_u32 s5, s5, {RP}'); a('v_add_u32 v3, s5, v2')
        self.merge(20); a('ds_write_b128 v3, v[20:23]')
        self.arrive(C_MR, 8, 9)
        a('s_cmp_lg_u32 s3, 1'); a('s_cbranch_scc1 L_h_end')
        self.waitc(C_MR, 4, 8, 9); self.reduce_parts(RP, 4); self.sanitize(96, 4)
        a(f's_add_u32 s5, s80, {MR_OFF}'); a(f'buffer_store_dwordx4 v[96:99], v2, {WS}, s5 offen sc1')
        self.stamp(8)
        a('L_h_end:')
        self.end()
        a('L_h_q:')
        self.srd(['WQ']); self.consts()
        a('v_lshrrev_b32 v3, 4, v1'); a('v_lshlrev_b32 v3, 14, v3'); a('v_and_b32 v4, 15, v1'); a('v_lshl_add_u32 v3, v4, 4, v3')
        qrows = [8 * (j & 3) + (j >> 2) for j in range(8)]
        a('s_sub_u32 s81, s3, 4')
        a('s_lshl_b32 s5, s81, 19'); a('s_lshl_b32 s6, s4, 8'); a('s_add_u32 s82, s5, s6')
        a('s_waitcnt lgkmcnt(0)')
        self.tag_load()
        a('s_barrier')
        self.stamp(1)
        self.unit_loads(32, 3, WQ, 's82', 8192, qrows, depth=self.dq, prior=0)
        a(f's_add_u32 s82, s82, {32*8192}'); self.unit_loads(64, 3, WQ, 's82', 8192, qrows, depth=self.dq, prior=8)
        self.stamp(2)
        a('s_waitcnt vmcnt(8)'); self.transpose(32, 96)
        a('s_waitcnt vmcnt(0)'); self.transpose(64, 128)
        self.stamp(3)
        self.xvoff(28, 1024, H_, 29)
        a('s_lshl_b32 s6, s81, 7'); a('v_add_u32 v28, s6, v28'); a(f'v_mov_b32 v29, {ZR}')
        for u in range(4): a(f'v_cndmask_b32 v{24+u}, v29, v28, {BM[u]}')
        a('s_lshl_b32 s5, s81, 10'); a(f's_add_u32 s5, s5, {QP}'); a('v_add_u32 v3, s5, v2')
        self.waitc(C_H, 1, 8, 9)
        self.stamp(4)
        self.gemv2(24, 32, 96, 64)
        self.merge(64); a('ds_write_b128 v3, v[64:67]')
        self.arrive(C_Q, 8, 9)
        a('s_cmp_lg_u32 s3, 4'); a('s_cbranch_scc1 L_h_end')
        a('v_lshrrev_b32 v10, 4, v1'); a('v_lshlrev_b32 v10, 5, v10'); a('v_bfe_u32 v11, v1, 1, 3'); a('v_add_u32 v10, v10, v11')
        a('v_and_b32 v11, 1, v1'); a('v_lshl_add_u32 v10, v11, 7, v10'); a('v_lshlrev_b32 v10, 1, v10'); a(f'v_add_u32 v10, {QT}, v10')
        a('v_lshlrev_b32 v11, 3, v1'); a(f'v_add_u32 v11, {QT}, v11')
        self.tag_make()
        self.waitc(C_Q, 8, 8, 9); self.reduce_parts(QP, 8)
        a('v_cvt_pk_bf16_f32 v96, v96, v97'); a('v_cvt_pk_bf16_f32 v98, v98, v99')
        a('ds_write_b16 v10, v96'); a('ds_write_b16_d16_hi v10, v96 offset:16')
        a('ds_write_b16 v10, v98 offset:32'); a('ds_write_b16_d16_hi v10, v98 offset:48')
        a('s_waitcnt lgkmcnt(0)'); a('ds_read_b64 v[100:101], v11')
        a(f'v_mov_b32 v97, {TAG}'); a(f'v_mov_b32 v99, {TAG}')
        a(f's_add_u32 s5, s80, {Q_OFF}')
        a('s_waitcnt lgkmcnt(0)')
        a('v_mov_b32 v96, v100'); a('v_mov_b32 v98, v101')
        a(f'buffer_store_dwordx4 v[96:99], v2, {WS}, s5 offen sc1')
        self.arrive(C_W1, 8, 9)
        self.stamp(5)
        self.end()

    def pollcnt(self, off):
        a = self.a; lp = self.lab('LC'); ld = self.lab('LE')
        a(f's_mov_b32 {POLLC}, 0'); a(f'{lp}:')
        a(f'buffer_load_dword v14, v13, {DBG}, 0 offen offset:{off} sc1'); a('s_waitcnt vmcnt(0)')
        a('v_and_b32 v15, 63, v14'); a('v_cmp_gt_u32 vcc, 32, v15'); a(f's_cbranch_vccz {ld}')
        a('s_sleep 1'); a(f's_add_u32 {POLLC}, {POLLC}, 1'); a(f's_cmp_lt_u32 {POLLC}, {POLL_MAX}'); a(f's_cbranch_scc1 {lp}')
        a(f'{ld}:')

    def gemv2(self, xa, xr, T, acc):
        a = self.a
        for kb in range(2):
            for u in range(4): a(f'ds_read_b128 {v(xr+16*kb+4*u,4)}, v{xa+u} offset:{64*kb}')
        for kb in range(2):
            for m in range(8):
                if m % 2 == 0: a(f's_waitcnt lgkmcnt({7 - 4*kb - m//2})')
                c = '0' if (kb == 0 and m < 2) else v(acc + 4 * (m & 1), 4)
                a(f'v_mfma_f32_16x16x32_bf16 {v(acc+4*(m&1),4)}, {v(T+32*kb+4*m,4)}, {v(xr+16*kb+4*(m>>1),4)}, {c}')

    def getmode(self):
        self.waitc(C_MODE, 1, 8, 9, SMODE)

    def tail(self):
        a = self.a
        a(f's_mul_i32 s80, s4, {ASTR}'); a(f's_add_u32 s80, s80, {AUXREG}')
        a('v_lshlrev_b32 v2, 4, v1')
        a('s_cmp_ge_u32 s3, 8'); a('s_cbranch_scc1 L_tail_c')
        a('s_cmp_ge_u32 s3, 4'); a('s_cbranch_scc1 L_tail_b')
        self.tail_a(); self.tail_b(); self.tail_c()

    def tail_a(self):
        a = self.a
        self.srd(['WO', 'OUT', 'X']); self.consts()
        a('s_sub_u32 s5, s3, 1'); a('s_and_b32 s5, s5, 1'); a('s_lshl_b32 s81, s5, 10')
        a('s_waitcnt lgkmcnt(0)')
        a(f'buffer_load_dwordx4 v[40:43], v2, {X_}, s81 offen')
        self.tag_load()
        a('s_barrier')
        rows = [8 * (j & 3) + 2 * (j >> 2) for j in range(8)]
        a('v_lshrrev_b32 v3, 5, v1'); a('v_lshlrev_b32 v3, 15, v3'); a('v_bfe_u32 v4, v1, 4, 1'); a('v_lshl_add_u32 v3, v4, 12, v3')
        a('v_and_b32 v4, 15, v1'); a('v_lshl_add_u32 v39, v4, 4, v3')
        a('s_lshl_b32 s5, s4, 17'); a('s_lshl_b32 s6, s3, 8'); a('s_add_u32 s87, s5, s6')
        if self.early:
            a(f's_add_u32 s82, s87, {(64 + 1)*1024}')
            self.unit_loads(136, 39, WO, 's82', 1024, rows)
        a('s_cmp_eq_u32 s3, 0'); a('s_cbranch_scc1 L_a_h1'); a('s_cmp_eq_u32 s3, 3'); a('s_cbranch_scc1 L_a_wo')
        a(f's_waitcnt vmcnt({8 if self.early else 0})')
        self.ln_x()
        a('s_branch L_a_wo')
        a('L_a_h1:')
        a('v_lshrrev_b32 v3, 5, v1'); a('v_lshlrev_b32 v3, 4, v3'); a('v_bfe_u32 v4, v1, 3, 2'); a('v_add_u32 v3, v3, v4'); a(f'v_mul_u32_u24 v3, {ASTR}, v3')
        a('v_and_b32 v4, 7, v1'); a('v_lshl_add_u32 v3, v4, 4, v3')
        a('s_lshr_b32 s5, s4, 3'); a(f's_mul_i32 s5, s5, {4*ASTR}'); a('s_and_b32 s6, s4, 7'); a('s_lshl_b32 s6, s6, 7'); a('s_add_u32 s5, s5, s6')
        a(f's_add_u32 s82, s5, {AUXREG+MC_OFF}')
        a('s_lshr_b32 s5, s4, 1'); a('s_lshl_b32 s5, s5, 5'); a('s_and_b32 s6, s4, 1'); a('s_lshl_b32 s6, s6, 2'); a('s_add_u32 s5, s5, s6'); a('s_lshl_b32 s5, s5, 2')
        a(f's_add_u32 s5, s5, {LNX}')
        a('v_bfe_u32 v5, v1, 1, 2'); a('v_and_b32 v6, 1, v1'); a('v_lshlrev_b32 v7, 4, v5'); a('v_lshl_add_u32 v7, v6, 6, v7')
        a('v_lshl_add_u32 v5, v6, 9, v5'); a('v_lshlrev_b32 v5, 2, v5'); a('v_add_u32 v5, s5, v5')
        a(f's_add_u32 s83, s80, {H_OFF}')
        self.waitc(C_LN, 2, 8, 9)
        for r in range(4): a(f'ds_read_b32 v{24+r}, v5 offset:{32*r}')
        self.tag_make()
        self.stamp(7)
        a(f's_mov_b32 {POLLC}, 0'); a('L_a_mp:')
        a(f's_and_b32 s5, {POLLC}, 63'); a('s_cmp_eq_u32 s5, 63'); a('s_cselect_b32 s5, 2048, 0'); a('s_add_u32 s5, s5, s82')
        a(f'buffer_load_dwordx4 v[16:19], v3, {WS}, s5 offen sc1'); a(f'buffer_load_dwordx4 v[20:23], v3, {WS}, s5 offen offset:1024 sc1')
        a('s_waitcnt vmcnt(0)')
        for i, r in enumerate([17, 19, 21, 23]):
            if i == 0: a(f'v_cmp_ne_u32 vcc, {TAG}, v{r}')
            else: a(f'v_cmp_ne_u32 s[88:89], {TAG}, v{r}'); a('s_or_b64 vcc, vcc, s[88:89]')
        a('s_cmp_eq_u64 vcc, 0'); a('s_cbranch_scc1 L_a_mq')
        a(f's_add_u32 {POLLC}, {POLLC}, 1'); a(f's_cmp_lt_u32 {POLLC}, {POLL_MAX}'); a('s_cbranch_scc1 L_a_mp')
        a('L_a_mq:')
        self.stamp(8)
        for r in range(4): a(f'v_add_f32_dpp v{12+r}, v{16+2*r}, v{16+2*r} row_ror:8 row_mask:0xf bank_mask:0xf')
        for r in range(4): a(f'v_mov_b32 v{16+r}, v{12+r}')
        for r in range(4): a(f'v_permlane16_swap_b32 v{12+r}, v{16+r}')
        for r in range(4): a(f'v_add_f32 v{12+r}, v{12+r}, v{16+r}')
        for r in range(4): a(f'v_mov_b32 v{16+r}, v{12+r}')
        for r in range(4): a(f'v_permlane32_swap_b32 v{12+r}, v{16+r}')
        for p in (12, 14, 16, 18): self.rnd2(p, p + 1, 8)
        for r in range(4): a(f'v_add_f32 v{16+r}, 1.0, v{16+r}')
        self.rnd2(16, 17, 8); self.rnd2(18, 19, 8)
        for r in range(4): a(f'v_mul_f32 v{24+r}, v{24+r}, v{16+r}')
        self.rnd2(24, 25, 8); self.rnd2(26, 27, 8)
        for r in range(4): a(f'v_add_f32 v{24+r}, v{24+r}, v{12+r}')
        a('v_cvt_pk_bf16_f32 v24, v24, v25'); a('v_cvt_pk_bf16_f32 v26, v26, v27'); a(f'v_mov_b32 v25, {TAG}'); a(f'v_mov_b32 v27, {TAG}')
        a('s_mov_b64 exec, 0xff'); a(f'buffer_store_dwordx4 v[24:27], v7, {WS}, s83 offen sc1'); a('s_mov_b64 exec, -1')
        self.arrive(C_H, 8, 9)
        self.stamp(9)
        a('L_a_wo:')
        if self.wo_wait: self.waitc(C_H, 1, 8, 9)
        for kb in ([0, 1, 2] if self.early else [3, 0, 1, 2]):
            a(f's_add_u32 s82, s87, {(64*(kb&1) + (kb>>1))*1024}')
            self.unit_loads(40 + 32 * kb, 39, WO, 's82', 1024, rows, depth=self.dl0, prior=0 if kb == 3 else 99)
        for kb in range(4):
            if kb < 3: a(f's_waitcnt vmcnt({16 - 8*kb})')
            self.transpose(40 + 32 * kb, 8 + 32 * kb)
        self.stamp(1)
        self.xvoff(164, 256, OB, 165)
        a(f'v_mov_b32 v165, {ZR}')
        for u in range(4): a(f'v_cndmask_b32 v{160+u}, v165, v164, {BM[u]}')
        a('s_lshl_b32 s5, s3, 10'); a('s_add_u32 s81, s80, s5')
        a('v_lshrrev_b32 v3, 3, v1'); a(f'v_mul_u32_u24 v3, {ASTR}, v3'); a('v_and_b32 v4, 7, v1'); a('v_lshl_add_u32 v3, v4, 4, v3')
        a('v_lshrrev_b32 v5, 4, v1'); a('v_lshlrev_b32 v5, 2, v5'); a('v_lshl_add_u32 v4, v4, 4, v5')
        a('v_lshrrev_b32 v5, 2, v1'); a(f'v_mul_u32_u24 v5, {ASTR}, v5'); a('v_and_b32 v6, 3, v1'); a('v_lshl_add_u32 v5, v6, 5, v5')
        a('s_sub_u32 s5, s3, 1'); a('s_lshl_b32 s5, s5, 4'); a('v_add_u32 v5, s5, v5')
        a('v_lshlrev_b32 v6, 5, v1'); a('v_add_u32 v6, s5, v6')
        a('s_lshl_b32 s82, s4, 7'); a(f's_add_u32 s82, s82, {AUXREG}')
        self.waitc(C_MODE, 1, 166, 167, SMODE)
        a('s_cmp_eq_u32 s3, 0'); a('s_cbranch_scc0 L_a_pt')
        for off in (A_OFF, P2_OFF):
            for i in range(4):
                a(f's_add_u32 s6, s82, {8*i*ASTR + off}'); a(f'buffer_load_dwordx4 v[136:139], v3, {WS}, s6 offen sc1')
        a('s_branch L_a_pu')
        a('L_a_pt:')
        a('s_cmp_eq_u32 s3, 3'); a('s_cbranch_scc1 L_a_pu')
        for i in range(2):
            a(f's_mov_b32 s6, {AUXREG+X1_OFF+16*i*ASTR}'); a(f'buffer_load_dwordx4 v[136:139], v5, {WS}, s6 offen sc1')
        a('L_a_pu:')
        a('s_waitcnt vmcnt(0)')
        self.stamp(2)
        a('s_barrier')
        self.stamp(3)
        X = [136, 8, 24, 40]
        def xread(kb):
            for u in range(4): a(f'ds_read_b128 {v(X[kb]+4*u,4)}, v{160+u} offset:{64*kb}')
        xread(0)
        for kb in range(4):
            if kb: a(f's_waitcnt lgkmcnt({0 if kb == 3 else 4})')
            for m in range(8):
                if kb == 0 and m in (0, 2): a(f's_waitcnt lgkmcnt({3 - m//2})')
                if kb == 0 and m in (4, 6): a(f's_waitcnt lgkmcnt({4 + 3 - m//2})')
                c = '0' if (kb == 0 and m < 2) else v(152 + 4 * (m & 1), 4)
                a(f'v_mfma_f32_16x16x32_bf16 {v(152+4*(m&1),4)}, {v(8+32*kb+4*m,4)}, {v(X[kb]+4*(m>>1),4)}, {c}')
                if kb == 0 and m == 3: xread(1)
                if kb == 0 and m == 7: xread(2)
                if kb == 1 and m == 3: xread(3)
        self.merge(152); self.sanitize(152, 4)
        self.pub(f'buffer_store_dwordx4 v[152:155], v2, {WS}, s81 offen')
        self.stamp(4)
        a('s_cmp_eq_u32 s3, 3'); a('s_cbranch_scc1 L_a_end')
        a('s_cmp_lg_u32 s3, 0'); a('s_cbranch_scc1 L_a_ln')
        a(f'v_add_u32 v7, {SMALL}, v4')
        for k in range(4): a(f'ds_read_b32 v{40+k}, v7 offset:{128*k}')
        def rs(off, last_half):
            loads = []
            for i in range(4):
                loads.append(f's_add_u32 s6, s82, {8*i*ASTR + off}')
                if i == 3 and last_half: loads.append('s_mov_b32 exec_hi, 0')
                loads.append(f'buffer_load_dwordx4 {v(8+4*i,4)}, v3, {WS}, s6 offen sc1')
                if i == 3 and last_half: loads.append('s_mov_b64 exec, -1')
            self.poll(loads, range(8, 24), 24)
            for r in range(4): a(f'v_add_f32 v{8+r}, v{8+r}, v{12+r}'); a(f'v_add_f32 v{16+r}, v{16+r}, v{20+r}')
            for r in range(4): a(f'v_add_f32 v{8+r}, v{8+r}, v{16+r}')
            self.red4rows(8)
            a('v_add_f32_dpp v8, v8, v8 row_ror:8 row_mask:0xf bank_mask:0xf')
        rs(A_OFF, False)
        a('s_waitcnt lgkmcnt(0)')
        a('v_fma_f32 v44, v40, v8, v41')
        a('v_min_u32 v45, -2, v44')
        a(f's_add_u32 s6, s80, {X1_OFF}')
        a('s_mov_b32 exec_lo, 0x00ff00ff'); a('s_mov_b32 exec_hi, 0x00ff00ff')
        self.pub(f'buffer_store_dword v45, v4, {WS}, s6 offen')
        a('s_mov_b64 exec, -1')
        self.stamp(5)
        a('s_lshr_b32 s5, s4, 1'); a('s_lshl_b32 s5, s5, 5'); a('s_and_b32 s6, s4, 1'); a('s_lshl_b32 s6, s6, 2'); a('s_add_u32 s5, s5, s6'); a('s_lshl_b32 s83, s5, 1')
        a('v_lshrrev_b32 v46, 4, v1'); a('v_lshlrev_b32 v46, 3, v46'); a('v_bfe_u32 v47, v1, 1, 2'); a('v_add_u32 v46, v46, v47')
        a('v_and_b32 v47, 1, v1'); a('v_lshl_add_u32 v46, v47, 9, v46'); a('v_lshlrev_b32 v46, 1, v46')
        for r in range(4): a(f'v_mov_b32 v{20+r}, 0')
        a('s_barrier'); a('s_barrier')
        self.stamp(6)
        rs(P2_OFF, True)
        a('v_add_f32 v8, v8, v43'); a('v_fma_f32 v8, v42, v8, v44'); a('v_cvt_pk_bf16_f32 v8, v8, v8')
        a('s_mov_b32 exec_lo, 0x00ff00ff'); a('s_mov_b32 exec_hi, 0x00ff00ff')
        a(f'buffer_store_short v8, v46, {OUT}, s83 offen')
        a('s_cmp_lg_u32 s4, 0'); a('s_cbranch_scc1 L_a_end')
        a(f's_add_u32 s5, {EPO}, 1'); a('v_mov_b32 v9, s5'); a('v_mov_b32 v10, 0')
        a('s_mov_b64 exec, 1'); a(f'buffer_store_dword v9, v10, {WS}, 0 offen sc1')
        a('L_a_end:')
        self.end()
        a('L_a_ln:')
        a('s_cmp_ge_u32 s4, 28'); a('s_cbranch_scc1 L_a_end')
        a(f'v_add_u32 v7, {IMA}, v6')
        a('ds_read_b128 v[16:19], v7'); a('ds_read_b128 v[20:23], v7 offset:2048')
        a(f'ds_read_b128 v[24:27], v7 offset:{IMS-IMA}'); a(f'ds_read_b128 v[28:31], v7 offset:{IMS-IMA+2048}')
        a(f's_mov_b32 s82, {AUXREG+X1_OFF}'); a(f's_mov_b32 s83, {AUXREG+X1_OFF+16*ASTR}')
        a('v_lshlrev_b32 v7, 3, v1'); a('s_sub_u32 s5, s3, 1'); a('s_lshl_b32 s5, s5, 10'); a(f's_add_u32 s5, s5, {YB}'); a('v_add_u32 v7, s5, v7')
        self.poll([f'buffer_load_dwordx4 v[8:11], v5, {WS}, s82 offen sc1', f'buffer_load_dwordx4 v[12:15], v5, {WS}, s83 offen sc1'], range(8, 16), 32)
        self.stamp(5)
        def stats():
            a('v_add_f32 v32, v8, v9'); a('v_mul_f32 v33, v8, v8')
            for i in range(2, 8): a(f'v_add_f32 v32, v32, v{8+i}'); a(f'v_fmac_f32 v33, v{8+i-1}, v{8+i-1}')
            a('v_fmac_f32 v33, v15, v15')
            a('v_permlane32_swap_b32 v32, v33'); a('v_add_f32 v32, v32, v33')
            a('v_mov_b32 v33, v32'); a('v_permlane16_swap_b32 v32, v33'); a('v_add_f32 v32, v32, v33')
            self.rowsum(32)
            a('v_readlane_b32 s5, v32, 0'); a('v_readlane_b32 s6, v32, 32')
            a('v_mov_b32 v33, 0x3b000000')
            a('v_mul_f32 v35, s5, v33'); a('v_mul_f32 v34, s6, v33')
            a('v_fma_f32 v34, -v35, v35, v34'); a('v_max_f32 v34, 0, v34'); a('v_add_f32 v34, 0x3727c5ac, v34')
            a('v_rsq_f32 v34, v34'); a('v_mul_f32 v35, -v35, v34')
        a('v_readfirstlane_b32 s5, v8')
        for i in range(8): a(f'v_subrev_f32 v{8+i}, s5, v{8+i}')
        stats()
        a('s_waitcnt lgkmcnt(0)')
        for i in range(8): a(f'v_fma_f32 v{8+i}, v{8+i}, v34, v35')
        for i in range(8): a(f'v_fma_f32 v{8+i}, v{8+i}, v{16+i}, v{24+i}')
        stats()
        for i in range(8): a(f'v_fma_f32 v{8+i}, v{8+i}, v34, v35')
        for i in range(4): a(f'v_cvt_pk_bf16_f32 v{8+i}, v{8+2*i}, v{9+2*i}')
        a('ds_write_b64 v7, v[8:9]'); a('ds_write_b64 v7, v[10:11] offset:512')
        a('s_waitcnt lgkmcnt(0)')
        self.stamp(6)
        a('s_barrier')
        self.end()

    def tail_b(self):
        a = self.a
        a('L_tail_b:')
        self.srd(['W2']); self.consts()
        a('s_sub_u32 s81, s3, 4')
        self.wvoff(3, 1024, 4)
        a('s_lshl_b32 s5, s4, 16'); a('s_lshl_b32 s6, s81, 8'); a('s_add_u32 s82, s5, s6')
        a('s_waitcnt lgkmcnt(0)')
        a('s_cmp_eq_u32 s3, 5'); a('s_cbranch_scc0 L_b_ni')
        self.lds_init(); a('s_waitcnt lgkmcnt(0)')
        a('L_b_ni:')
        a('s_cmp_eq_u32 s3, 4'); a('s_cbranch_scc0 L_b_nc')
        for i in range(4): a(f'v_mov_b32 v{8+i}, -1')
        for i in range(8):
            if i % 4 == 0: a(f's_add_u32 s5, s80, {(i//4)*4096}')
            a(f'buffer_store_dwordx4 v[8:11], v2, {WS}, s5 offen offset:{(i%4)*1024} sc1')
        a(f's_add_u32 s5, s80, {X1_OFF}')
        a('s_mov_b64 exec, 0xffffff'); a(f'buffer_store_dwordx4 v[8:11], v2, {WS}, s5 offen sc1'); a('s_mov_b64 exec, -1')
        a('s_barrier')
        self.xcc_inc('s85')
        a('v_mov_b32 v12, s85'); a('v_mov_b32 v13, 0')
        a('s_waitcnt vmcnt(0)')
        a('s_mov_b64 exec, 1'); a(f'buffer_atomic_add v12, v13, {DBG}, 0 offen offset:4 sc1'); a('s_mov_b64 exec, -1')
        self.stamp(1)
        a('s_mov_b64 exec, 1')
        a('s_cmp_lg_u32 s4, 0'); a('s_cbranch_scc1 L_b_fl')
        self.pollcnt(4)
        a('v_readfirstlane_b32 s6, v14')
        a('s_lshl_b32 s85, s85, 5'); a('s_cmp_eq_u32 s85, s6'); a(f's_cselect_b32 s85, {1 if self.force_slow else 2}, 1')
        self.pollcnt(0)
        a('v_mov_b32 v16, s85'); a(f'buffer_store_dword v16, v13, {DBG}, 0 offen offset:128 sc1')
        a('s_branch L_b_fm')
        a('L_b_fl:')
        self.poll([f'buffer_load_dword v16, v13, {DBG}, 0 offen offset:128 sc1'], [16], 17, zero=True, sleep=8)
        a('L_b_fm:')
        a('v_readfirstlane_b32 s5, v16'); a('s_mov_b64 exec, -1')
        self.arrive(C_MODE, 8, 9, 's5')
        self.stamp(7)
        a('s_branch L_b_w2')
        a('L_b_nc:')
        a('s_barrier')
        a('L_b_w2:')
        if self.prio: a('s_setprio 2')
        a('s_cmp_ge_u32 s4, 28'); a('s_cbranch_scc1 L_b_now2')
        if self.early2:
            a('s_cmp_eq_u32 s3, 4'); a('s_cbranch_scc1 L_b_e4')
            self.unit_loads(32, 3, W2, 's82', 1024)
            self.waitc(C_H, 1, 8, 9)
            a('s_branch L_b_e5')
            a('L_b_e4:')
            self.unit_loads(32, 3, W2, 's82', 1024)
            a('L_b_e5:')
        else:
            self.waitc(C_H, 1, 8, 9)
            self.unit_loads(32, 3, W2, 's82', 1024, depth=self.dl, prior=1)
        a(f's_add_u32 s82, s82, {32*1024}'); self.unit_loads(64, 3, W2, 's82', 1024, depth=self.dl)
        a('s_waitcnt vmcnt(0)')
        self.transpose(32, 96); self.transpose(64, 128)
        a('L_b_now2:')
        self.stamp(2)
        self.getmode()
        a('s_lshr_b32 s82, s81, 1')
        a('v_lshrrev_b32 v4, 4, v1')
        for i in range(3): a(f'v_add_u32 v{8+i}, {4*i}, v4')
        for i in range(3): a(f'v_lshlrev_b32 v{12+i}, 3, v{8+i}')
        a('s_mul_i32 s5, s82, 96'); a('s_add_u32 s83, s80, s5'); a(f's_add_u32 s83, s83, {ST_OFF}')
        self.poll([f'buffer_load_dwordx2 {v(32+2*i,2)}, v{12+i}, {WS}, s83 offen sc1' for i in range(3)], range(32, 38), 16, sleep=8)
        self.stamp(4)
        a('v_max3_f32 v16, v32, v34, v36'); self.xrows(16, 17, 'max')
        for i in range(3): a(f'v_sub_f32 v{48+i}, v{32+2*i}, v16')
        for i in range(3): a(f'v_mul_f32 v{48+i}, {LOG2E}, v{48+i}')
        for i in range(3): a(f'v_exp_f32 v{48+i}, v{48+i}')
        a('v_mul_f32 v16, v48, v33')
        for i in range(1, 3): a(f'v_fmac_f32 v16, v{48+i}, v{33+2*i}')
        self.xrows(16, 17)
        a('v_rcp_f32 v16, v16')
        for i in range(3): a(f'v_mul_f32 v{48+i}, v{48+i}, v16')
        a('v_and_b32 v5, 15, v1')
        for i in range(3): a(f'v_lshlrev_b32 v{12+i}, 11, v{8+i}'); a(f'v_lshl_add_u32 v{12+i}, v5, 4, v{12+i}')
        a('s_lshl_b32 s5, s82, 3'); a('s_lshr_b32 s6, s4, 2'); a('s_add_u32 s5, s5, s6'); a(f's_mul_i32 s5, s5, {12*2048}')
        a('s_and_b32 s6, s4, 3'); a('s_lshl_b32 s6, s6, 9'); a('s_add_u32 s5, s5, s6')
        a('s_and_b32 s6, s81, 1'); a('s_lshl_b32 s6, s6, 8'); a('s_add_u32 s5, s5, s6'); a(f's_add_u32 s83, s5, {MO_BASE}')
        a('v_lshl_add_u32 v6, v5, 2, v4'); a('v_lshlrev_b32 v6, 1, v6'); a('s_lshl_b32 s5, s81, 7'); a(f's_add_u32 s5, s5, {OB}'); a('v_add_u32 v6, s5, v6')
        self.xvoff(20, 128, HB, 21); a(f'v_mov_b32 v21, {ZR}')
        for u in range(4): a(f'v_cndmask_b32 v{24+u}, v21, v20, {BM[u]}')
        a('s_lshl_b32 s5, s81, 10'); a('s_add_u32 s84, s80, s5'); a(f's_add_u32 s84, s84, {P2_OFF}')
        self.poll([f'buffer_load_dwordx4 {v(32+4*i,4)}, v{12+i}, {WS}, s83 offen sc1' for i in range(3)], range(32, 44), 16)
        self.stamp(5)
        for r in range(4): a(f'v_mul_f32 v{32+r}, v{32+r}, v48')
        for i in range(1, 3):
            for r in range(4): a(f'v_fmac_f32 v{32+r}, v{32+4*i+r}, v{48+i}')
        self.red4rows(32)
        a('v_cvt_pk_bf16_f32 v32, v32, v32'); a('ds_write_b16 v6, v32')
        a('s_waitcnt lgkmcnt(0)'); a('s_barrier')
        a('s_cmp_ge_u32 s4, 28'); a('s_cbranch_scc1 L_b_end')
        a('s_barrier'); a('s_barrier')
        self.gemv2(24, 52, 96, 84)
        self.merge(84); self.sanitize(84, 4)
        self.pub(f'buffer_store_dwordx4 v[84:87], v2, {WS}, s84 offen')
        self.stamp(6)
        a('L_b_end:')
        self.end()

    def tail_c(self):
        a = self.a
        a('L_tail_c:')
        self.srd(['WM', 'C', 'W1', 'B1', 'X', 'B2']); self.consts()
        a('s_sub_u32 s81, s3, 8')
        self.wvoff(5, 6144, 4); self.xvoff(6, 1024, 0, 4)
        a('s_and_b32 s5, s4, 3'); a('s_lshl_b32 s5, s5, 7'); a('s_lshl_b32 s6, s81, 5'); a('s_add_u32 s83, s5, s6')
        a('s_mul_i32 s5, s83, 6144'); a('s_lshr_b32 s6, s4, 2'); a('s_lshl_b32 s6, s6, 8'); a('s_add_u32 s84, s5, s6')
        a('s_lshl_b32 s83, s83, 1')
        a('s_waitcnt lgkmcnt(0)')
        a(f'buffer_load_dwordx4 v[156:159], v6, {C_}, s83 offen')
        self.unit_loads(96, 5, WM, 's84', 6144, pol=self.mcpol)
        self.tag_load()
        self.stamp(4)
        a('s_barrier')
        a('s_waitcnt vmcnt(8)')
        self.silu4(156, 8)
        a('s_waitcnt vmcnt(0)')
        self.stamp(5)
        self.gemv_fly(96, 156, True)
        a('s_lshl_b32 s5, s81, 10'); a(f's_add_u32 s5, s5, {MP}'); a('v_add_u32 v4, s5, v2')
        self.merge(20); a('ds_write_b128 v4, v[20:23]')
        self.arrive(C_MC, 8, 9)
        a('s_cmp_lg_u32 s3, 8'); a('s_cbranch_scc1 L_c_w1')
        self.tag_make()
        for i in range(4): a(f'v_mov_b32 v{33+2*i}, {TAG}')
        self.waitc(C_MC, 4, 8, 9); self.reduce_parts(MP, 4)
        for i in range(4): a(f'v_mov_b32 v{32+2*i}, v{96+i}')
        a(f's_add_u32 s5, s80, {MC_OFF}')
        a(f'buffer_store_dwordx4 v[32:35], v2, {WS}, s5 offen'); a(f'buffer_store_dwordx4 v[36:39], v2, {WS}, s5 offen offset:1024')
        a(f'buffer_store_dwordx4 v[32:35], v2, {WS}, s5 offen offset:2048 sc1'); a(f'buffer_store_dwordx4 v[36:39], v2, {WS}, s5 offen offset:3072 sc1')
        self.stamp(6)
        a('L_c_w1:')
        if self.prio: a('s_setprio 1')
        self.waitc(C_H, 1, 8, 9)
        a('s_cmp_eq_u32 s3, 8'); a('s_cbranch_scc1 L_c_fin')
        self.getmode()
        self.stamp(1)
        a('s_cmp_lg_u32 s3, 9'); a('s_cbranch_scc1 L_c_img')
        a('v_and_b32 v4, 7, v1'); a('v_lshlrev_b32 v5, 4, v4')
        a('s_lshr_b32 s5, s4, 1'); a('s_lshl_b32 s5, s5, 5'); a('s_and_b32 s6, s4, 1'); a('s_lshl_b32 s6, s6, 2'); a('s_add_u32 s5, s5, s6'); a('s_lshl_b32 s84, s5, 1')
        a('v_and_b32 v6, 6, v4'); a('v_and_b32 v7, 1, v4'); a('v_lshl_add_u32 v7, v7, 10, v6')
        for r in range(4):
            a(f'buffer_load_ushort v{116+r}, v7, {X_}, s84 offen offset:{16*r}')
            a(f'buffer_load_ushort v{124+r}, v6, {B2}, s84 offen offset:{16*r}')
        a('s_lshr_b32 s5, s4, 3'); a('s_lshl_b32 s5, s5, 1'); a(f's_mul_i32 s5, s5, {ASTR}'); a('s_and_b32 s6, s4, 7'); a('s_lshl_b32 s6, s6, 7')
        a('s_add_u32 s5, s5, s6'); a(f's_add_u32 s85, s5, {AUXREG+MR_OFF}')
        loads = []
        for q in range(2):
            for ks in range(2):
                loads.append(f's_add_u32 s6, s85, {(24*q+ks)*ASTR}')
                loads.append(f'buffer_load_dwordx4 {v(96+8*q+4*ks,4)}, v5, {WS}, s6 offen sc1')
        self.poll(loads, range(96, 112), 8, sleep=16)
        for r in range(4): a(f'v_add_f32 v{112+r}, v{96+r}, v{100+r}'); a(f'v_add_f32 v{120+r}, v{104+r}, v{108+r}')
        for p in (112, 114, 120, 122): self.rnd2(p, p + 1, 8)
        for r in range(4): a(f'v_lshlrev_b32 v{116+r}, 16, v{116+r}'); a(f'v_lshlrev_b32 v{124+r}, 16, v{124+r}')
        a(f'v_add_u32 v5, {SMALL}, v5')
        for k in range(4): a(f'ds_write_b128 v5, {v(112+4*k,4)} offset:{128*k}')
        a('s_branch L_c_fin')
        a('L_c_img:')
        a('s_sub_u32 s5, s3, 10'); a('s_lshl_b32 s5, s5, 4')
        a('v_and_b32 v4, 31, v1'); a('v_lshlrev_b32 v4, 5, v4'); a('v_lshrrev_b32 v5, 5, v1'); a(f'v_mul_u32_u24 v5, {2*ASTR}, v5'); a('v_add_u32 v4, v4, v5'); a('v_add_u32 v4, s5, v4')
        a('v_lshlrev_b32 v5, 5, v1'); a('v_add_u32 v5, s5, v5'); a(f'v_add_u32 v5, {IMA}, v5')
        loads = []
        for q in range(2):
            for i in range(2):
                for ks in range(2):
                    loads.append(f's_mov_b32 s6, {AUXREG + MR_OFF + ((4+4*q+2*i)*2+ks)*ASTR}')
                    loads.append(f'buffer_load_dwordx4 {v(96+16*q+8*i+4*ks,4)}, v4, {WS}, s6 offen sc1')
        self.poll(loads, range(96, 128), 8, sleep=16)
        for q in range(2):
            for i in range(2):
                for r in range(4): a(f'v_add_f32 v{128+8*q+4*i+r}, v{96+16*q+8*i+r}, v{100+16*q+8*i+r}')
        for p in range(128, 144, 2): self.rnd2(p, p + 1, 8)
        for i in range(8): a(f'v_add_f32 v{136+i}, 1.0, v{136+i}')
        for p in range(136, 144, 2): self.rnd2(p, p + 1, 8)
        a('v_add_f32 v10, v128, v129')
        for i in range(2, 8): a(f'v_add_f32 v10, v10, v{128+i}')
        self.wavesum(10, 11); a('v_mul_f32 v10, 0x3b000000, v10')
        for i in range(8): a(f'v_sub_f32 v{128+i}, v{128+i}, v10')
        a('ds_write_b128 v5, v[136:139]'); a('ds_write_b128 v5, v[140:143] offset:2048')
        a(f'ds_write_b128 v5, v[128:131] offset:{IMS-IMA}'); a(f'ds_write_b128 v5, v[132:135] offset:{IMS-IMA+2048}')
        a('L_c_fin:')
        self.stamp(7)
        a('s_cmp_ge_u32 s4, 28'); a('s_cbranch_scc1 L_c_last')
        a('v_bfe_u32 v3, v1, 3, 2'); a('v_lshlrev_b32 v3, 3, v3'); a('v_lshrrev_b32 v4, 5, v1'); a('v_add_u32 v3, v3, v4')
        a('v_mul_u32_u24 v3, 3584, v3'); a('v_and_b32 v4, 7, v1'); a('v_lshl_add_u32 v3, v4, 4, v3')
        a('s_cmp_lg_u32 s3, 8'); a('s_cbranch_scc1 L_c_b1')
        a('s_lshl_b32 s82, s4, 7'); a('s_mov_b32 s83, 0')
        a('L_c_dma:')
        for i in range(4):
            if i: a(f's_add_u32 s5, s82, {2*i*3584}')
            a(f's_add_u32 m0, s83, {1024*i}')
            a(f's_waitcnt vmcnt({self.dw1-1})')
            a(f'buffer_load_dwordx4 v3, {W1}, {"s5" if i else "s82"} offen {self.wpol} lds')
        a(f's_add_u32 s82, s82, {32*3584}'); a('s_add_u32 s83, s83, 4096'); a('s_cmp_lt_u32 s83, 65536'); a('s_cbranch_scc1 L_c_dma')
        a('L_c_b1:')
        a('v_lshrrev_b32 v4, 4, v1'); a('v_lshlrev_b32 v4, 3, v4'); a('s_lshl_b32 s5, s4, 7'); a('s_lshl_b32 s6, s81, 5'); a('s_add_u32 s5, s5, s6')
        a(f'buffer_load_dwordx2 v[28:29], v4, {B1}, s5 offen')
        a('s_waitcnt lgkmcnt(0)')
        self.stamp(2)
        a('s_barrier')
        a('s_waitcnt vmcnt(0)')
        self.arrive(C_W1, 8, 9); self.waitc(C_W1, 4, 8, 9)
        a('v_lshrrev_b32 v3, 4, v1'); a('v_lshlrev_b32 v3, 10, v3'); a('v_bfe_u32 v4, v1, 2, 2'); a('v_lshl_add_u32 v3, v4, 7, v3')
        a('v_and_b32 v4, 3, v1'); a('v_lshl_add_u32 v3, v4, 3, v3'); a('s_lshl_b32 s5, s81, 5'); a('v_add_u32 v3, s5, v3')
        for kb in range(16):
            a(f'ds_read_b64_tr_b16 {v(32+4*kb,2)}, v3 offset:{4096*kb}'); a(f'ds_read_b64_tr_b16 {v(34+4*kb,2)}, v3 offset:{4096*kb+512}')
            if kb % 4 == 3: a('s_waitcnt lgkmcnt(0)')
        a(f'v_lshlrev_b32 v24, 16, v28'); a(f'v_and_b32 v25, {HIM}, v28'); a('v_lshlrev_b32 v26, 16, v29'); a(f'v_and_b32 v27, {HIM}, v29')
        self.xvoff(3, 1024, YB, 4)
        a('v_and_b32 v4, 1, v1'); a('v_lshlrev_b32 v4, 7, v4'); a('v_lshrrev_b32 v5, 4, v1'); a('v_lshl_add_u32 v4, v5, 3, v4')
        a('s_lshl_b32 s5, s81, 5'); a(f's_add_u32 s5, s5, {HB}'); a('v_add_u32 v4, s5, v4')
        c0 = -2.0 * 1.4426950408889634 * 0.7978845608028654
        import struct
        f2u = lambda x: struct.unpack('<I', struct.pack('<f', x))[0]
        a(f's_mov_b32 s82, {f2u(c0):#x}'); a(f'v_mov_b32 v5, {f2u(c0*0.044715):#x}')
        self.stamp(8)
        a('s_barrier')
        for kb in range(16): a(f'ds_read_b128 {v(96+4*kb,4)}, v3 offset:{64*kb}')
        for kb in range(16):
            a(f's_waitcnt lgkmcnt({15-kb})')
            a(f'v_mfma_f32_16x16x32_bf16 v[20:23], {v(32+4*kb,4)}, {v(96+4*kb,4)}, {"0" if kb == 0 else "v[20:23]"}')
        for r in range(4): a(f'v_add_f32 v{20+r}, v{20+r}, v{24+r}')
        for r in range(4): a(f'v_mul_f32 v{8+r}, v{20+r}, v{20+r}')
        for r in range(4): a(f'v_fma_f32 v{8+r}, v{8+r}, v5, s82')
        for r in range(4): a(f'v_mul_f32 v{8+r}, v{8+r}, v{20+r}')
        for r in range(4): a(f'v_exp_f32 v{8+r}, v{8+r}')
        for r in range(4): a(f'v_add_f32 v{8+r}, 1.0, v{8+r}')
        for r in range(4): a(f'v_rcp_f32 v{8+r}, v{8+r}')
        for r in range(4): a(f'v_mul_f32 v{8+r}, v{8+r}, v{20+r}')
        a('v_cvt_pk_bf16_f32 v8, v8, v9'); a('v_cvt_pk_bf16_f32 v9, v10, v11')
        a('s_mov_b32 exec_lo, 0x00030003'); a('s_mov_b32 exec_hi, 0x00030003'); a('ds_write_b64 v4, v[8:9]'); a('s_mov_b64 exec, -1')
        a('s_waitcnt lgkmcnt(0)')
        self.stamp(3)
        a('s_barrier')
        self.end()
        a('L_c_last:')
        a('s_waitcnt lgkmcnt(0)'); a('s_barrier')
        self.end()

    def build(self):
        a = self.a
        a(f'; @launch grid=(256,1,1) block=(768,1,1) lds={LDS_BYTES}')
        a('.amdgcn_target "amdgcn-amd-amdhsa--gfx950"'); a('.text'); a(f'.globl {KNAME}'); a('.p2align 8'); a(f'.type {KNAME},@function'); a(f'{KNAME}:')
        a('s_cmp_ge_u32 s2, 256'); a('s_cbranch_scc1 L_exit')
        self.srd(['K', 'V', 'WS', 'DBG'])
        a('v_lshrrev_b32 v2, 6, v0'); a('v_and_b32 v1, 63, v0'); a('v_readfirstlane_b32 s3, v2')
        self.stamp_init()
        a('s_and_b32 s5, s2, 7'); a('s_lshr_b32 s4, s2, 3'); a('s_cmp_eq_u32 s5, 0'); a('s_cbranch_scc1 L_tail')
        a('s_mul_i32 s6, s4, 37'); a('s_lshr_b32 s6, s6, 8'); a('s_mul_i32 s6, s6, 7'); a('s_sub_u32 s6, s4, s6'); a('s_add_u32 s6, s6, 1')
        a('s_cmp_eq_u32 s5, s6'); a('s_cbranch_scc1 L_head')
        a('s_cmp_gt_u32 s5, s6'); a('s_cselect_b32 s6, 2, 1')
        a('s_mul_i32 s4, s4, 6'); a('s_add_u32 s4, s4, s5'); a('s_sub_u32 s4, s4, s6')
        self.attention()
        a('L_head:')
        self.head()
        a('L_tail:')
        self.tail()
        a('L_exit:'); a('s_endpgm')
        nn = a.fix()
        a('.section .rodata,"a"'); a('.p2align 6'); a(f'.amdhsa_kernel {KNAME}')
        for l in ['next_free_vgpr 168', 'next_free_sgpr 102', 'accum_offset 168', 'group_segment_fixed_size 0', 'kernarg_size 120',
                  'user_sgpr_count 2', 'user_sgpr_kernarg_segment_ptr 1', 'system_sgpr_workgroup_id_x 1']:
            a.L.append(f'  .amdhsa_{l}')
        a('.end_amdhsa_kernel')
        return a.text(), nn

if __name__ == '__main__':
    import argparse
    p = argparse.ArgumentParser()
    p.add_argument('-o', default='k.s'); p.add_argument('--dbg', action='store_true'); p.add_argument('--slow', action='store_true')
    p.add_argument('--thr', type=int, default=3); p.add_argument('--vpre', type=int, default=6); p.add_argument('--vextra', type=int, default=1)
    p.add_argument('--dq', type=int, default=4); p.add_argument('--dwo', type=int, default=16); p.add_argument('--dl', type=int, default=4)
    p.add_argument('--n1', type=int, default=2); p.add_argument('--n2', type=int, default=2); p.add_argument('--qsleep', type=int, default=0); p.add_argument('--qdelay', type=int, default=0); p.add_argument('--mcpol', default='nt'); p.add_argument('--dl0', type=int, default=8); p.add_argument('--wowait', type=int, default=1); p.add_argument('--thr2', type=int, default=3); p.add_argument('--nlast', type=int, default=0); p.add_argument('--early', type=int, default=0); p.add_argument('--dw1', type=int, default=16); p.add_argument('--qsets', type=int, default=1); p.add_argument('--hsets', type=int, default=1); p.add_argument('--hsleep', type=int, default=1); p.add_argument('--prio', type=int, default=0); p.add_argument('--early2', type=int, default=1); p.add_argument('--fakeq', type=int, default=0)
    p.add_argument('--wpol', default='nt'); p.add_argument('--kvpol', default='nt')
    g = p.parse_args()
    t, nn = Gen(dbg=g.dbg, thr=g.thr, vpre=g.vpre, vextra=g.vextra, force_slow=g.slow, wpol=g.wpol, kvpol=g.kvpol, dq=g.dq, dwo=g.dwo, dl=g.dl, n1=g.n1, n2=g.n2, qsleep=g.qsleep, qdelay=g.qdelay, mcpol=g.mcpol, dl0=g.dl0, wo_wait=g.wowait, thr2=g.thr2, nlast=g.nlast, early=g.early, dw1=g.dw1, qsets=g.qsets, hsets=g.hsets, hsleep=g.hsleep, prio=g.prio, early2=g.early2, fakeq=g.fakeq).build()
    open(g.o, 'w').write(t)
    print('wrote', g.o, 'lines', t.count('\n'), 'nop states', nn)
```

```python
import sys
from asmlib import Asm
KNAME = 'adaLN_cond__gqa_block_cached__mixer_channel_mlp__decode_kernel'

AUXREG = 0x8000
ASTR = 117 * 128
A_OFF, P2_OFF, MR_OFF, Q_OFF, X1_OFF, ST_OFF, H_OFF, MC_OFF = 0, 4096, 8192, 9216, 10240, 10368, 10624, 10752
MO_BASE = 0x80000
TS_BASE = 0x200000
WS_NREC = 0x400000
L0 = 65536
H_, LNX, QP, MP, RP, IMA, IMS, YB, QT, OB, ZR, HB, SMALL, CNT = [L0 + x for x in
    (0, 2048, 6144, 14336, 18432, 22528, 26624, 30720, 32768, 33280, 33792, 34048, 34304, 34816)]
C_MODE, C_CLR, C_LN, C_MC, C_H, C_Q, C_MR, C_W1 = [4 * i for i in range(8)]
LDS_BYTES = L0 + 34880
QL, MW, FW, AF, PART = 0, 1024, 1536, 1792, 2048
K_, V_, WS, DBG, X_, WQ, WO, W1, B1, W2, B2, C_, WM, OUT = [f's[{8+4*i}:{11+4*i}]' for i in range(14)]
SRDN = dict(K=8, V=12, WS=16, DBG=20, X=24, WQ=28, WO=32, W1=36, B1=40, W2=44, B2=48, C=52, WM=56, OUT=60)
KOFF = dict(X=0, K=8, V=16, WQ=24, WO=32, W1=48, B1=56, W2=64, B2=72, C=80, WM=88, OUT=96, DBG=104, WS=112)
NREC = dict(X=2048, K=0x2000000, V=0x2000000, WQ=0x400000, WO=0x400000, W1=1835008, B1=3584, W2=1835008, B2=1024,
            C=2048, WM=3145728, OUT=2048, DBG=256, WS=WS_NREC)
BM = [f's[{64+2*u}:{65+2*u}]' for u in range(4)]
ML2 = 's[72:73]'
SEL = ['s74', 's75']
HIM = 's76'
LOG2E = 's77'
SMODE = 's78'
STMP = 's79'
EPO = 's96'
TAG = 's97'
POLLC = 's98'
POLL_MAX = 40000
LOG2E_F = 0x3fb8aa3b

def v(b, n=1): return f'v{b}' if n == 1 else f'v[{b}:{b+n-1}]'

class Gen:
    def __init__(self, dbg=False, thr=3, vpre=8, vextra=4, force_slow=False, wpol='nt', kvpol='nt', dq=16, dwo=8, dl=4, n1=2, n2=2, qsleep=0, qdelay=0, mcpol='nt', dl0=4, wo_wait=1, thr2=3, nlast=0, early=0, dw1=16, qsets=4, hsets=2, hsleep=4, prio=1, early2=1, fakeq=0, dbg2=None):
        self.a = Asm(); self.n = 0; self.dbg = dbg; self.thr = thr; self.vpre = vpre; self.vextra = vextra
        self.n1 = n1; self.n2 = n2; self.qsleep = qsleep; self.qdelay = qdelay; self.mcpol = mcpol; self.dl0 = dl0; self.wo_wait = wo_wait; self.thr2 = thr2; self.nlast = nlast; self.early = early; self.dw1 = dw1; self.qsets = qsets; self.hsets = hsets; self.hsleep = hsleep; self.prio = prio; self.early2 = early2; self.fakeq = fakeq; self.dbg2 = dbg2; self.dq = dq; self.dwo = dwo; self.dl = dl; self.force_slow = force_slow; self.wpol = wpol; self.kvpol = kvpol
    def lab(self, p='L'):
        self.n += 1; return f'{p}_{self.n}'
    def srd(self, names):
        a = self.a
        for nm in names: a(f's_load_dwordx2 s[{SRDN[nm]}:{SRDN[nm]+1}], s[0:1], {KOFF[nm]}')
        for nm in names:
            a(f's_mov_b32 s{SRDN[nm]+2}, {NREC[nm]:#x}'); a(f's_mov_b32 s{SRDN[nm]+3}, 0x20000')
    def consts(self):
        a = self.a
        for u in range(4):
            m = 0x000f000f << (4 * u)
            a(f's_mov_b32 s{64+2*u}, {m:#x}'); a(f's_mov_b32 s{65+2*u}, {m:#x}')
        a('s_mov_b32 s72, 0xcccccccc'); a('s_mov_b32 s73, 0xcccccccc')
        a('s_mov_b32 s74, 0x05040100'); a('s_mov_b32 s75, 0x07060302')
        a('s_mov_b32 s76, 0xffff0000'); a(f's_mov_b32 s77, {LOG2E_F:#x}')
    def stamp(self, i):
        if not self.dbg: return
        self.a(f's_memrealtime s[100:101]\ns_waitcnt lgkmcnt(0)\nv_writelane_b32 v0, s100, {i}')
    def stamp_init(self):
        if not self.dbg: return
        self.a('v_mov_b32 v0, 0')
        self.stamp(0)
    def end(self):
        a = self.a
        if self.dbg:
            self.stamp(15)
            a('s_mov_b64 exec, 0xffff')
            a('s_mul_i32 s5, s2, 12'); a('s_add_u32 s5, s5, s3'); a('s_lshl_b32 s5, s5, 6'); a(f's_add_u32 s5, s5, {TS_BASE}')
            a('v_lshlrev_b32 v2, 2, v1')
            a(f'buffer_store_dword v0, v2, {WS}, s5 offen')
            if self.dbg2:
                l = self.lab('LK')
                a(f's_cmp_lg_u32 s2, {self.dbg2[0]}'); a(f's_cbranch_scc1 {l}'); a(f's_cmp_lg_u32 s3, {self.dbg2[1]}'); a(f's_cbranch_scc1 {l}')
                a('v_readlane_b32 s5, v0, 0'); a('v_subrev_u32 v0, s5, v0')
                a('s_mov_b64 exec, 0xfffc'); a(f'buffer_store_dword v0, v2, {DBG}, 0 offen')
                a(f'{l}:')
        a('s_endpgm')
    def poll(self, loads, regs, tmp, zero=False, sleep=0, pre=None):
        a = self.a; lp = self.lab('LP'); ld = self.lab('LD')
        a(f's_mov_b32 {POLLC}, 0'); a(f'{lp}:')
        for s in loads: a(s)
        a('s_waitcnt vmcnt(0)')
        op = 'min' if zero else 'max'
        rs = list(regs)
        if len(rs) == 1: src = rs[0]
        else:
            src = tmp
            if len(rs) % 2 == 0: a(f'v_{op}_u32 v{tmp}, v{rs[0]}, v{rs[1]}'); rs = rs[2:]
            else: a(f'v_{op}3_u32 v{tmp}, v{rs[0]}, v{rs[1]}, v{rs[2]}'); rs = rs[3:]
            while rs: a(f'v_{op}3_u32 v{tmp}, v{tmp}, v{rs[0]}, v{rs[1]}'); rs = rs[2:]
        a(f'v_cmp_eq_u32 vcc, {0 if zero else -1}, v{src}')
        a(f's_cbranch_vccz {ld}')
        if sleep: a(f's_sleep {sleep}')
        a(f's_add_u32 {POLLC}, {POLLC}, 1'); a(f's_cmp_lt_u32 {POLLC}, {POLL_MAX}'); a(f's_cbranch_scc1 {lp}')
        a(f'{ld}:')
    def spoll(self, base, offs, zero=False, sleep=2, ge=None):
        a = self.a; lp = self.lab('LS'); ld = self.lab('LT')
        a(f's_mov_b32 {POLLC}, 0'); a(f'{lp}:')
        for i, o in enumerate(offs): a(f's_load_dword s{88+i}, {base}, {o:#x} glc')
        a('s_waitcnt lgkmcnt(0)')
        if ge is not None:
            a('s_and_b32 s89, s88, 0x3f'); a(f's_cmp_ge_u32 s89, {ge}')
        else:
            for i in range(1, len(offs)): a(f's_{"min" if zero else "max"}_u32 s88, s88, s{88+i}')
            a(f's_cmp_lg_u32 s88, {0 if zero else -1}')
        a(f's_cbranch_scc1 {ld}')
        if sleep: a(f's_sleep {sleep}')
        a(f's_add_u32 {POLLC}, {POLLC}, 1'); a(f's_cmp_lt_u32 {POLLC}, {POLL_MAX}'); a(f's_cbranch_scc1 {lp}')
        a(f'{ld}:')
    def tag_load(self):
        self.a(f's_load_dword {EPO}, s[16:17], 0x0')
    def tag_make(self):
        a = self.a
        a('s_waitcnt lgkmcnt(0)'); a(f's_mul_i32 {TAG}, {EPO}, 0x9e3779b1'); a(f's_add_u32 {TAG}, {TAG}, 0x85ebca6b')
    def tpoll(self, loads, tagregs, sleep=0):
        a = self.a; lp = self.lab('LQ'); ld = self.lab('LR')
        a(f's_mov_b32 {POLLC}, 0'); a(f'{lp}:')
        for s_ in loads: a(s_)
        a('s_waitcnt vmcnt(0)')
        for i, r in enumerate(tagregs):
            if i == 0: a(f'v_cmp_ne_u32 vcc, {TAG}, v{r}')
            else: a(f'v_cmp_ne_u32 s[88:89], {TAG}, v{r}'); a('s_or_b64 vcc, vcc, s[88:89]')
        a('s_cmp_eq_u64 vcc, 0'); a(f's_cbranch_scc1 {ld}')
        if sleep: a(f's_sleep {sleep}')
        a(f's_add_u32 {POLLC}, {POLLC}, 1'); a(f's_cmp_lt_u32 {POLLC}, {POLL_MAX}'); a(f's_cbranch_scc1 {lp}')
        a(f'{ld}:')
    def tpoll_pipe(self, mk, nld, base, dst, sets, gap):
        a = self.a; lp = self.lab('LU'); ld = self.lab('LV'); outs = [self.lab('LO') for _ in range(sets)]
        for k in range(sets - 1):
            for s_ in mk(base + 4 * nld * k): a(s_)
            if gap: a(f's_sleep {gap}')
        a(f's_mov_b32 {POLLC}, 0'); a(f'{lp}:')
        for k in range(sets):
            kn = (k + sets - 1) % sets
            for s_ in mk(base + 4 * nld * kn): a(s_)
            a(f's_waitcnt vmcnt({nld * (sets - 1)})')
            b = base + 4 * nld * k
            for i in range(2 * nld):
                if i == 0: a(f'v_cmp_ne_u32 vcc, {TAG}, v{b+1}')
                else: a(f'v_cmp_ne_u32 s[88:89], {TAG}, v{b+1+2*i}'); a('s_or_b64 vcc, vcc, s[88:89]')
            a('s_cmp_eq_u64 vcc, 0'); a(f's_cbranch_scc1 {outs[k]}')
            if gap: a(f's_sleep {gap}')
        a(f's_add_u32 {POLLC}, {POLLC}, 1'); a(f's_cmp_lt_u32 {POLLC}, {POLL_MAX}'); a(f's_cbranch_scc1 {lp}')
        for k in range(sets):
            a(f'{outs[k]}:')
            b = base + 4 * nld * k
            for i in range(nld): a(f'v_mov_b32 v{dst+2*i}, v{b+4*i}'); a(f'v_mov_b32 v{dst+2*i+1}, v{b+4*i+2}')
            if k < sets - 1: a(f's_branch {ld}')
        a(f'{ld}:')
    def arrive(self, c, t0, t1, val=1):
        a = self.a
        a(f'v_mov_b32 v{t0}, {CNT + c}'); a(f'v_mov_b32 v{t1}, {val}' if isinstance(val, int) else f'v_mov_b32 v{t1}, {val}')
        a('s_mov_b64 exec, 1'); a(f'ds_add_u32 v{t0}, v{t1}'); a('s_mov_b64 exec, -1')
    def waitc(self, c, target, t0, t1, dst=STMP):
        a = self.a; lp = self.lab('LW'); ld = self.lab('LX')
        a(f'v_mov_b32 v{t0}, {CNT + c}'); a(f's_mov_b32 {POLLC}, 0'); a(f'{lp}:')
        a(f'ds_read_b32 v{t1}, v{t0}'); a('s_waitcnt lgkmcnt(0)'); a(f'v_readfirstlane_b32 {dst}, v{t1}')
        a(f's_cmp_ge_u32 {dst}, {target}'); a(f's_cbranch_scc1 {ld}')
        a('s_sleep 1'); a(f's_add_u32 {POLLC}, {POLLC}, 1'); a(f's_cmp_lt_u32 {POLLC}, {POLL_MAX*8}'); a(f's_cbranch_scc1 {lp}')
        a(f'{ld}:')
    def pub(self, ins):
        a = self.a; lf = self.lab('LF'); ld = self.lab('LG')
        a(f's_cmp_eq_u32 {SMODE}, 2'); a(f's_cbranch_scc1 {lf}')
        a(ins + ' sc1'); a(f's_branch {ld}'); a(f'{lf}:'); a(ins); a(f'{ld}:')
    def rnd2(self, x, y, t):
        a = self.a
        a(f'v_cvt_pk_bf16_f32 v{t}, v{x}, v{y}'); a(f'v_lshlrev_b32 v{x}, 16, v{t}'); a(f'v_and_b32 v{y}, {HIM}, v{t}')
    def rowsum(self, x, op='add'):
        for n in (8, 4, 2, 1): self.a(f'v_{op}_f32_dpp v{x}, v{x}, v{x} row_ror:{n} row_mask:0xf bank_mask:0xf')
    def xrows(self, x, t, op='add'):
        a = self.a
        a(f'v_mov_b32 v{t}, v{x}'); a(f'v_permlane16_swap_b32 v{x}, v{t}'); a(f'v_{op}_f32 v{x}, v{x}, v{t}')
        a(f'v_mov_b32 v{t}, v{x}'); a(f'v_permlane32_swap_b32 v{x}, v{t}'); a(f'v_{op}_f32 v{x}, v{x}, v{t}')
    def wavesum(self, x, t): self.rowsum(x); self.xrows(x, t)
    def red4rows(self, o):
        a = self.a
        a(f'v_permlane32_swap_b32 v{o}, v{o+2}'); a(f'v_permlane32_swap_b32 v{o+1}, v{o+3}')
        a(f'v_add_f32 v{o}, v{o}, v{o+2}'); a(f'v_add_f32 v{o+1}, v{o+1}, v{o+3}')
        a(f'v_permlane16_swap_b32 v{o}, v{o+1}'); a(f'v_add_f32 v{o}, v{o}, v{o+1}')
    def silu4(self, r, t):
        a = self.a
        a('s_mov_b32 s99, 0x7e800000')
        for i in range(4):
            lo, hi, e0, e1 = t, t + 1, t + 2, t + 3
            a(f'v_lshlrev_b32 v{lo}, 16, v{r+i}'); a(f'v_and_b32 v{hi}, {HIM}, v{r+i}')
            a(f'v_mul_f32 v{e0}, {LOG2E}, v{lo}'); a(f'v_mul_f32 v{e1}, {LOG2E}, v{hi}')
            a(f'v_exp_f32 v{e0}, -v{e0}'); a(f'v_exp_f32 v{e1}, -v{e1}')
            a(f'v_add_f32 v{e0}, 1.0, v{e0}'); a(f'v_add_f32 v{e1}, 1.0, v{e1}')
            r0, r1, q0, q1 = t + 4, t + 5, t + 6, t + 7
            a(f'v_rcp_f32 v{r0}, v{e0}'); a(f'v_rcp_f32 v{r1}, v{e1}')
            a(f'v_mul_f32 v{q0}, v{lo}, v{r0}'); a(f'v_mul_f32 v{q1}, v{hi}, v{r1}')
            a(f'v_cmp_gt_f32 vcc, s99, v{e0}'); a(f'v_fma_f32 v{lo}, -v{q0}, v{e0}, v{lo}'); a(f'v_fma_f32 v{lo}, v{lo}, v{r0}, v{q0}')
            a(f'v_cndmask_b32 v{lo}, v{q0}, v{lo}, vcc')
            a(f'v_cmp_gt_f32 vcc, s99, v{e1}'); a(f'v_fma_f32 v{hi}, -v{q1}, v{e1}, v{hi}'); a(f'v_fma_f32 v{hi}, v{hi}, v{r1}, v{q1}')
            a(f'v_cndmask_b32 v{hi}, v{q1}, v{hi}, vcc')
            a(f'v_cvt_pk_bf16_f32 v{r+i}, v{lo}, v{hi}')
    def transpose(self, raw, dst, jjs=range(4)):
        for jj in jjs:
            for m in range(8):
                self.a(f'v_perm_b32 v{dst+4*m+jj}, v{raw+4*(2*jj+1)+(m>>1)}, v{raw+4*(2*jj)+(m>>1)}, {SEL[m&1]}')
    def gemv_fly(self, raw, xrep, first, xv=8, T=12, acc=20):
        a = self.a
        for u in range(4):
            for i in range(4): a(f'v_cndmask_b32 v{xv+i}, 0, v{xrep+i}, {BM[u]}')
            for e in range(2):
                for jj in range(4):
                    a(f'v_perm_b32 v{T+4*e+jj}, v{raw+4*(2*jj+1)+u}, v{raw+4*(2*jj)+u}, {SEL[e]}')
            for e in range(2):
                c = '0' if (first and u == 0) else v(acc + 4 * e, 4)
                a(f'v_mfma_f32_16x16x32_bf16 {v(acc+4*e,4)}, {v(T+4*e,4)}, {v(xv,4)}, {c}')
    def merge(self, acc):
        for r in range(4): self.a(f'v_cndmask_b32 v{acc+r}, v{acc+r}, v{acc+4+r}, {ML2}')
    def sanitize(self, r, n):
        for i in range(n): self.a(f'v_min_u32 v{r+i}, -2, v{r+i}')
    def unit_loads(self, raw, voff, srd, sbase, rs, rows=None, pol=None, depth=None, prior=99):
        a = self.a; pol = self.wpol if pol is None else pol
        for j in range(8):
            off = (rows[j] if rows else j) * rs
            if depth and prior + j >= depth: a(f's_waitcnt vmcnt({depth-1})')
            if off < 4096: a(f'buffer_load_dwordx4 {v(raw+4*j,4)}, v{voff}, {srd}, {sbase} offen offset:{off} {pol}')
            else:
                a(f's_add_u32 s7, {sbase}, {off}')
                a(f'buffer_load_dwordx4 {v(raw+4*j,4)}, v{voff}, {srd}, s7 offen {pol}')
    def wvoff(self, dst, rs, t):
        a = self.a
        a(f'v_lshrrev_b32 v{dst}, 4, v1'); a(f'v_mul_u32_u24 v{dst}, {8*rs}, v{dst}')
        a(f'v_and_b32 v{t}, 15, v1'); a(f'v_lshl_add_u32 v{dst}, v{t}, 4, v{dst}')
    def xvoff(self, dst, bstride, base, t):
        a = self.a
        a(f'v_and_b32 v{dst}, 1, v1'); a(f'v_mul_u32_u24 v{dst}, {bstride}, v{dst}')
        a(f'v_lshrrev_b32 v{t}, 4, v1'); a(f'v_lshl_add_u32 v{dst}, v{t}, 4, v{dst}')
        if base: a(f'v_add_u32 v{dst}, {base}, v{dst}')

    def attention(self):
        a = self.a
        a('s_mov_b32 s5, 0x15555556'); a('s_mul_hi_u32 s80, s4, s5')
        a('s_mul_i32 s5, s80, 12'); a('s_sub_u32 s81, s4, s5')
        a('s_cmp_lt_u32 s81, 8'); a('s_cselect_b32 s82, 11, 10')
        a('s_cmp_ge_u32 s3, 11'); a('s_cbranch_scc1 L_att_ctl')
        a('s_cmp_ge_u32 s3, s82'); a('s_cbranch_scc1 L_exit')
        a('s_min_u32 s5, s81, 8'); a('s_mul_i32 s6, s81, 10'); a('s_add_u32 s5, s5, s6'); a('s_lshl_b32 s5, s5, 14')
        a('s_lshl_b32 s6, s80, 21'); a('s_add_u32 s5, s5, s6'); a('s_lshl_b32 s6, s3, 10'); a('s_add_u32 s83, s5, s6')
        a('s_lshl_b32 s84, s82, 10')
        a('v_bfe_u32 v3, v1, 2, 2'); a('v_lshlrev_b32 v3, 8, v3'); a('v_lshrrev_b32 v4, 4, v1'); a('v_lshl_add_u32 v3, v4, 6, v3')
        a('v_and_b32 v4, 3, v1'); a('v_lshl_add_u32 v3, v4, 4, v3')
        a('v_lshlrev_b32 v2, 4, v1')
        a('s_mov_b32 s85, s83')
        a('s_waitcnt lgkmcnt(0)')
        KB, VB = 32, 96
        issued = [0]
        def thr(d):
            if issued[0] >= d: a(f's_waitcnt vmcnt({d-1})')
        for t in range(16):
            thr(self.thr)
            a(f'buffer_load_dwordx4 {v(KB+4*t,4)}, v3, {K_}, s85 offen {self.kvpol}')
            if t < 15: a('s_add_u32 s85, s85, s84')
            issued[0] += 1
            if t == 7: self.stamp(7)
            if t == 15: self.stamp(8)
            if t == self.thr - 1:
                self.consts()
                a('v_and_b32 v28, 3, v1'); a('v_lshlrev_b32 v29, 8, v28'); a('v_lshrrev_b32 v30, 2, v1'); a('v_lshl_add_u32 v29, v30, 4, v29')
                a('s_lshl_b32 s5, s3, 5'); a('v_lshl_add_u32 v28, v28, 3, s5')
                a(f'v_mov_b32 v27, {AF}')
                a('s_mov_b32 s86, 0x3db504f3'); a('s_mov_b32 s92, 0')
                a('s_barrier')
        vorder = [8 * bk + x for bk in range(2) for x in (0, 4, 1, 5, 2, 6, 3, 7)]
        for i in range(16):
            l = self.lab('LV')
            a(f's_mul_i32 s85, s84, {vorder[i]}'); a('s_add_u32 s85, s85, s83')
            a('s_cmp_gt_i32 s92, 0'); a(f's_cbranch_scc1 {l}')
            a(f's_waitcnt vmcnt({(self.thr if i < 16 - self.nlast else self.thr2) - 1})')
            a(f'{l}:')
            a(f'buffer_load_dwordx4 {v(VB+4*i,4)}, v2, {V_}, s85 offen {self.kvpol}')
            if i == 7: self.stamp(9)
            if self.thr - 1 <= i < 15: a('s_call_b64 s[90:91], L_att_chk')
        self.stamp(1)
        a('s_cmp_lt_i32 s92, 0'); a('s_cbranch_scc1 L_att_pv')
        self.lspin(27, 0, 1, 26)
        a('s_call_b64 s[90:91], L_att_qk')
        a('L_att_pv:')
        a('s_lshl_b32 s5, s3, 11'); a(f's_add_u32 s5, s5, {PART}'); a('v_add_u32 v3, s5, v2')
        a('s_cmp_lg_u32 s3, 0'); a('s_cbranch_scc1 L_att_pv2')
        self.att_red_addr(0)
        self.att_factors()
        a('L_att_pv2:')
        for bk in range(2):
            raw = VB + 32 * bk; T = 64 if bk == 0 else 96
            for jj in range(4):
                a(f's_waitcnt vmcnt({16 - 8*bk - 2*jj - 2})')
                self.transpose(raw, T, [jj])
            if bk == 1: self.stamp(4)
            for m in range(8):
                c = '0' if (bk == 0 and m < 2) else v(160 + 4 * (m & 1), 4)
                a(f'v_mfma_f32_16x16x32_bf16 {v(160+4*(m&1),4)}, {v(T+4*m,4)}, {v(KB+16*bk+4*(m>>1),4)}, {c}')
        a('ds_write_b128 v3, v[160:163]'); a('ds_write_b128 v3, v[164:167] offset:1024')
        a('s_waitcnt lgkmcnt(0)')
        a('s_cmp_eq_u32 s3, 0'); a('s_cbranch_scc1 L_att_red')
        a('s_barrier')
        self.end()
        a('L_att_chk:')
        a('s_cmp_lt_i32 s92, 0'); a('s_cbranch_scc1 L_att_ret')
        a('s_cmp_gt_i32 s92, 0'); a('s_cbranch_scc1 L_att_cd')
        a('ds_read_b32 v26, v27'); a('s_waitcnt lgkmcnt(0)'); a('v_readfirstlane_b32 s5, v26')
        a('s_cmp_eq_u32 s5, 0'); a('s_cbranch_scc1 L_att_ret')
        a(f's_mov_b32 s92, {self.vextra + 1}')
        a('L_att_cd:')
        a('s_sub_u32 s92, s92, 1'); a('s_cmp_eq_u32 s92, 0'); a('s_cbranch_scc1 L_att_qk')
        a('L_att_ret:')
        a('s_setpc_b64 s[90:91]')
        a('L_att_qk:')
        self.stamp(2)
        a(f'ds_read_b128 v[4:7], v29 offset:{QL}')
        a('s_mov_b32 s92, -1')
        a('s_waitcnt lgkmcnt(0)')
        def adds(t):
            u = t & 3; R = 8 + (t >> 2); D = 12 + 4 * (t % 3)
            for k in (1, 2, 3):
                r = (u + k) & 3
                s1 = f'v{D+u}' if k == 1 else f'v{R}'
                a(f'v_add_f32_dpp v{R}, v{D+r}, {s1} row_ror:{(4*(u-r))%16} row_mask:0xf bank_mask:{1<<u:#x}')
        for t in range(16):
            if t >= 3: adds(t - 3)
            a(f'v_mfma_f32_16x16x32_bf16 {v(12+4*(t%3),4)}, {v(KB+4*t,4)}, v[4:7], 0')
        for i in range(32): a(f'v_mov_b32 v{KB+i}, 0')
        for t in range(13, 16): adds(t)
        self.rnd2(8, 9, 12); self.rnd2(10, 11, 13)
        for i in range(4): a(f'v_mul_f32 v{8+i}, s86, v{8+i}')
        self.rnd2(8, 9, 12); self.rnd2(10, 11, 13)
        a('v_max3_f32 v12, v8, v9, v10'); a('v_max_f32 v12, v12, v11')
        a('v_max_f32_dpp v12, v12, v12 row_ror:4 row_mask:0xf bank_mask:0xf')
        a('v_max_f32_dpp v12, v12, v12 row_ror:8 row_mask:0xf bank_mask:0xf')
        self.xrows(12, 13, 'max')
        a(f'v_mul_f32 v14, {LOG2E}, v12')
        for i in range(4): a(f'v_fma_f32 v{8+i}, v{8+i}, {LOG2E}, -v14')
        for i in range(4): a(f'v_exp_f32 v{8+i}, v{8+i}')
        a('v_add_f32 v13, v8, v9'); a('v_add_f32 v15, v10, v11'); a('v_add_f32 v13, v13, v15')
        a('v_cvt_pk_bf16_f32 v16, v8, v9'); a('v_cvt_pk_bf16_f32 v17, v10, v11')
        a('v_add_f32_dpp v13, v13, v13 row_ror:4 row_mask:0xf bank_mask:0xf')
        a('v_add_f32_dpp v13, v13, v13 row_ror:8 row_mask:0xf bank_mask:0xf')
        self.xrows(13, 14)
        a('v_mov_b32 v14, 1')
        a('s_mov_b64 exec, 0xf'); a(f'ds_write_b64 v28, v[12:13] offset:{MW}')
        a('s_mov_b64 exec, 1'); a('ds_add_u32 v27, v14 offset:4'); a('s_mov_b64 exec, -1')
        for bk in range(2):
            for u in range(4):
                for jj in range(4):
                    n = (4 * (u - jj)) % 16
                    c = f'row_ror:{n}' if n else 'quad_perm:[0,1,2,3]'
                    a(f'v_mov_b32_dpp v{KB+16*bk+4*u+jj}, v{16+bk} {c} row_mask:0xf bank_mask:{1<<u:#x}')
        self.stamp(3)
        a('s_setpc_b64 s[90:91]')
        a('L_att_ctl:')
        a('s_setprio 3')
        a('v_lshlrev_b32 v2, 4, v1')
        a('v_mov_b32 v16, 0xff800000'); a('v_mov_b32 v17, 0'); a('v_lshlrev_b32 v6, 3, v1'); a(f'ds_write_b64 v6, v[16:17] offset:{MW}')
        for i in range(4): a(f'v_mov_b32 v{8+i}, -1'); a(f'v_mov_b32 v{12+i}, 0')
        a(f'v_mov_b32 v27, {AF}'); a('ds_write_b128 v27, v[12:15]')
        a(f'ds_write_b128 v2, v[12:15] offset:{PART+10*2048}'); a(f'ds_write_b128 v2, v[12:15] offset:{PART+10*2048+1024}')
        a('s_waitcnt lgkmcnt(0)')
        a('s_barrier')
        self.tag_load()
        self.att_red_addr(1)
        a('s_and_b32 s84, s80, 7'); a('s_lshl_b32 s84, s84, 2'); a(f's_mul_i32 s84, s84, {ASTR}'); a(f's_add_u32 s84, s84, {AUXREG}')
        a('s_lshr_b32 s85, s80, 3')
        a(f'buffer_store_dwordx4 v[8:11], v2, {WS}, s87 offen sc1'); a(f'buffer_store_dwordx4 v[8:11], v2, {WS}, s87 offen offset:1024 sc1')
        a('v_lshrrev_b32 v7, 5, v1'); a(f'v_mul_u32_u24 v24, {ASTR}, v7'); a('v_and_b32 v16, 31, v1'); a('v_lshl_add_u32 v24, v16, 4, v24')
        a('v_lshlrev_b32 v25, 8, v7'); a('v_lshl_add_u32 v25, v16, 3, v25')
        a('s_lshl_b32 s5, s85, 9'); a('s_add_u32 s86, s84, s5'); a(f's_add_u32 s86, s86, {Q_OFF}'); a(f's_add_u32 s83, s86, {2*ASTR}')
        a(f's_mov_b32 {LOG2E}, {LOG2E_F:#x}')
        self.tag_make()
        if self.qdelay: a(f's_sleep {self.qdelay}')
        self.stamp(1)
        if not self.fakeq: self.tpoll_pipe(lambda b: [f'buffer_load_dwordx4 {v(b,4)}, v24, {WS}, s86 offen sc1', f'buffer_load_dwordx4 {v(b+4,4)}, v24, {WS}, s83 offen sc1'],
                        2, 80, 16, self.qsets, self.qsleep)
        a('v_mov_b32 v26, 1')
        a(f'ds_write_b64 v25, v[16:17] offset:{QL}'); a(f'ds_write_b64 v25, v[18:19] offset:{QL+512}')
        a('ds_write_b32 v27, v26')
        self.stamp(2)
        a('s_mov_b64 exec, 1')
        self.poll([f'buffer_load_dword v16, v12, {DBG}, 0 offen offset:128 sc1'], [16], 17, zero=True, sleep=2)
        a('s_mov_b64 exec, -1')
        a('v_and_b32 v3, 3, v1'); a(f'v_mul_u32_u24 v7, {ASTR}, v3')
        a('s_mul_i32 s5, s85, 12'); a('s_add_u32 s5, s5, s81'); a('s_lshl_b32 s5, s5, 3'); a('s_add_u32 s5, s5, s84'); a(f's_add_u32 s86, s5, {ST_OFF}')
        self.lspin(27, 4, 's82', 26)
        a(f'ds_read_b64 v[18:19], v6 offset:{MW}'); a('s_waitcnt lgkmcnt(0)')
        a('v_max_f32_dpp v16, v18, v18 row_ror:4 row_mask:0xf bank_mask:0xf')
        a('v_max_f32_dpp v16, v16, v16 row_ror:8 row_mask:0xf bank_mask:0xf')
        self.xrows(16, 17, 'max')
        a('v_sub_f32 v18, v18, v16'); a(f'v_mul_f32 v18, {LOG2E}, v18'); a('v_exp_f32 v18, v18')
        a('v_lshlrev_b32 v6, 2, v1'); a('v_mul_f32 v17, v18, v19')
        a(f'ds_write_b32 v6, v18 offset:{FW}'); a('v_mov_b32 v26, 1'); a('ds_write_b32 v27, v26 offset:8')
        a('v_add_f32_dpp v17, v17, v17 row_ror:4 row_mask:0xf bank_mask:0xf')
        a('v_add_f32_dpp v17, v17, v17 row_ror:8 row_mask:0xf bank_mask:0xf')
        self.xrows(17, 18)
        self.sanitize(16, 2)
        a('s_mov_b64 exec, 0xf'); a(f'buffer_store_dwordx2 v[16:17], v7, {WS}, s86 offen sc1'); a('s_mov_b64 exec, -1')
        self.stamp(3)
        self.att_factors()
        a('L_att_red:')
        a('s_barrier')
        self.stamp(5)
        for w in range(11): a(f'ds_read_b128 {v(32+4*w,4)}, v31 offset:{2048*w}')
        for w in range(11):
            a(f's_waitcnt lgkmcnt({10-w})')
            for r in range(4):
                if w == 0: a(f'v_mul_f32 v{32+r}, v{32+r}, v12')
                else: a(f'v_fmac_f32 v{32+r}, v{32+4*w+r}, v{12+w}')
        self.sanitize(32, 4)
        a(f'buffer_store_dwordx4 v[32:35], v30, {WS}, s87 offen sc1')
        self.stamp(6)
        if self.dbg: a('s_waitcnt vmcnt(0)')
        self.end()

    def lspin(self, va, off, target, t):
        a = self.a; lp = self.lab('LY'); ld = self.lab('LZ')
        a(f's_mov_b32 {POLLC}, 0'); a(f'{lp}:')
        a(f'ds_read_b32 v{t}, v{va} offset:{off}'); a('s_waitcnt lgkmcnt(0)'); a(f'v_readfirstlane_b32 {STMP}, v{t}')
        a(f's_cmp_ge_u32 {STMP}, {target}'); a(f's_cbranch_scc1 {ld}')
        a('s_sleep 1'); a(f's_add_u32 {POLLC}, {POLLC}, 1'); a(f's_cmp_lt_u32 {POLLC}, {POLL_MAX*8}'); a(f's_cbranch_scc1 {lp}')
        a(f'{ld}:')

    def att_factors(self):
        a = self.a
        self.lspin(27, 8, 1, 26)
        a('v_and_b32 v26, 3, v1'); a('v_lshlrev_b32 v26, 2, v26')
        for w in range(11): a(f'ds_read_b32 v{12+w}, v26 offset:{FW+16*w}')
        a('s_waitcnt lgkmcnt(0)')

    def att_red_addr(self, e):
        a = self.a
        a('s_lshl_b32 s87, s4, 11'); a(f's_add_u32 s87, s87, {MO_BASE}')
        a('v_and_b32 v30, 3, v1'); a('v_lshlrev_b32 v30, 9, v30'); a('v_lshrrev_b32 v31, 2, v1'); a('v_lshl_add_u32 v30, v31, 4, v30')
        if e: a(f'v_add_u32 v30, {256*e}, v30')
        a(f'v_add_u32 v31, {PART + 1024*e}, v2')

    def xcc_inc(self, dst):
        a = self.a
        a('s_getreg_b32 s5, hwreg(HW_REG_XCC_ID)'); a('s_and_b32 s5, s5, 7')
        a('s_mul_i32 s6, s5, s5'); a('s_lshl_b32 s6, s6, 16'); a('s_lshl_b32 s5, s5, 8'); a('s_add_u32 s5, s5, s6'); a(f's_add_u32 {dst}, s5, 1')

    def lds_init(self):
        a = self.a
        a('v_mov_b32 v8, 0'); a('v_lshlrev_b32 v9, 2, v1'); a(f'v_add_u32 v10, {ZR}, v9'); a('ds_write_b32 v10, v8')
        a(f'v_add_u32 v10, {CNT}, v9'); a('s_mov_b64 exec, 0xffff'); a('ds_write_b32 v10, v8'); a('s_mov_b64 exec, -1')

    def reduce_parts(self, base, n, dst=96):
        a = self.a
        a(f'v_add_u32 v3, {base}, v2')
        for w in range(n): a(f'ds_read_b128 {v(dst+4*w,4)}, v3 offset:{1024*w}')
        a('s_waitcnt lgkmcnt(0)')
        for w in range(1, n):
            for r in range(4): a(f'v_add_f32 v{dst+r}, v{dst+r}, v{dst+4*w+r}')

    def ln_x(self):
        a = self.a
        for i in range(4): a(f'v_lshlrev_b32 v{12+2*i}, 16, v{40+i}'); a(f'v_and_b32 v{13+2*i}, {HIM}, v{40+i}')
        a('v_add_f32 v20, v12, v13')
        for i in range(2, 8): a(f'v_add_f32 v20, v20, v{12+i}')
        self.wavesum(20, 21)
        a('v_mul_f32 v20, 0x3b000000, v20')
        a('v_mov_b32 v22, 0')
        for i in range(8): a(f'v_sub_f32 v21, v{12+i}, v20'); a('v_fmac_f32 v22, v21, v21')
        self.wavesum(22, 21)
        a('v_mul_f32 v22, 0x3b000000, v22')
        self.rnd2(20, 22, 21)
        a('v_add_f32 v22, 0x3727c5ac, v22'); self.rnd2(22, 23, 21)
        a('v_sqrt_f32 v22, v22'); self.rnd2(22, 23, 21)
        a('v_rcp_f32 v23, v22')
        for i in range(8): a(f'v_sub_f32 v{12+i}, v{12+i}, v20')
        for i in range(4): self.rnd2(12 + 2 * i, 13 + 2 * i, 21)
        for i in range(8):
            a(f'v_mul_f32 v24, v{12+i}, v23'); a(f'v_fma_f32 v25, -v24, v22, v{12+i}'); a(f'v_fma_f32 v{12+i}, v25, v23, v24')
        for i in range(4): self.rnd2(12 + 2 * i, 13 + 2 * i, 21)
        a('v_lshlrev_b32 v21, 5, v1'); a('s_lshl_b32 s5, s81, 1'); a(f's_add_u32 s5, s5, {LNX}'); a('v_add_u32 v21, s5, v21')
        a('ds_write_b128 v21, v[12:15]'); a('ds_write_b128 v21, v[16:19] offset:16')
        self.arrive(C_LN, 8, 9)

    def head(self):
        a = self.a
        a(f's_mul_i32 s80, s4, {ASTR}'); a(f's_add_u32 s80, s80, {AUXREG}')
        a('v_lshlrev_b32 v2, 4, v1')
        a('s_cmp_ge_u32 s3, 4'); a('s_cbranch_scc1 L_h_q')
        self.srd(['WM', 'C']); self.consts()
        self.wvoff(5, 6144, 4); self.xvoff(6, 1024, 0, 4)
        a('s_and_b32 s5, s4, 1'); a('s_lshl_b32 s5, s5, 8'); a('s_lshl_b32 s6, s3, 6'); a('s_add_u32 s85, s5, s6')
        a('s_mul_i32 s5, s85, 6144'); a('s_lshr_b32 s6, s4, 1'); a('s_lshl_b32 s6, s6, 8'); a('s_add_u32 s86, s5, s6'); a('s_add_u32 s86, s86, 2048')
        a('s_lshl_b32 s85, s85, 1')
        for i in range(4): a(f'v_mov_b32 v{8+i}, -1')
        a(f's_add_u32 s5, s80, {MR_OFF}')
        a('s_waitcnt lgkmcnt(0)')
        a('s_cmp_lg_u32 s3, 0'); a('s_cbranch_scc1 L_h_nc')
        a(f'buffer_store_dwordx4 v[8:11], v2, {WS}, s5 offen sc1')
        self.tag_load()
        a('L_h_nc:')
        a(f'buffer_load_dwordx4 v[160:163], v6, {C_}, s85 offen'); a(f'buffer_load_dwordx4 v[164:167], v6, {C_}, s85 offen offset:64')
        a('s_cmp_lg_u32 s3, 3'); a('s_cbranch_scc1 L_h_ni')
        self.lds_init(); a('s_waitcnt lgkmcnt(0)')
        a('L_h_ni:')
        a('s_barrier')
        a('s_cmp_lg_u32 s3, 0'); a('s_cbranch_scc1 L_h_wh')
        a('v_mov_b32 v12, 1'); a('v_mov_b32 v13, 0')
        a('v_lshrrev_b32 v3, 3, v1'); a(f'v_mul_u32_u24 v4, {ASTR}, v3'); a('v_and_b32 v7, 7, v1'); a('v_lshl_add_u32 v4, v7, 4, v4')
        a('v_lshlrev_b32 v3, 5, v3'); a('v_bfe_u32 v7, v1, 2, 1'); a('v_lshl_add_u32 v3, v7, 10, v3'); a('v_and_b32 v7, 3, v1'); a('v_lshl_add_u32 v3, v7, 3, v3')
        a(f'v_add_u32 v3, {H_}, v3')
        self.tag_make()
        a('s_waitcnt vmcnt(2)')
        a('s_mov_b64 exec, 1'); a(f'buffer_atomic_add v12, v13, {DBG}, 0 offen sc1'); a('s_mov_b64 exec, -1')
        self.stamp(1)
        for i in range(4): a(f's_mov_b32 s{81+i}, {AUXREG+H_OFF+8*i*ASTR}')
        self.tpoll_pipe(lambda b: [f'buffer_load_dwordx4 {v(b+4*i,4)}, v4, {WS}, s{81+i} offen sc1' for i in range(4)], 4, 32, 16, self.hsets, self.hsleep)
        for i in range(4): a(f'ds_write_b64 v3, {v(16+2*i,2)} offset:{256*i}')
        self.arrive(C_H, 8, 9)
        self.stamp(3)
        a('L_h_wh:')
        a('s_waitcnt vmcnt(0)')
        self.silu4(160, 8); self.silu4(164, 8)
        self.waitc(C_W1, 1, 8, 9)
        self.unit_loads(96, 5, WM, 's86', 6144, depth=self.dwo, prior=0)
        a(f's_add_u32 s86, s86, {32*6144}'); self.unit_loads(64, 5, WM, 's86', 6144, depth=self.dwo, prior=8)
        a('s_waitcnt vmcnt(8)')
        self.gemv_fly(96, 160, True)
        a('s_waitcnt vmcnt(0)')
        self.gemv_fly(64, 164, False)
        a('s_lshl_b32 s5, s3, 10'); a(f's_add_u32 s5, s5, {RP}'); a('v_add_u32 v3, s5, v2')
        self.merge(20); a('ds_write_b128 v3, v[20:23]')
        self.arrive(C_MR, 8, 9)
        a('s_cmp_lg_u32 s3, 1'); a('s_cbranch_scc1 L_h_end')
        self.waitc(C_MR, 4, 8, 9); self.reduce_parts(RP, 4); self.sanitize(96, 4)
        a(f's_add_u32 s5, s80, {MR_OFF}'); a(f'buffer_store_dwordx4 v[96:99], v2, {WS}, s5 offen sc1')
        self.stamp(8)
        a('L_h_end:')
        self.end()
        a('L_h_q:')
        self.srd(['WQ']); self.consts()
        a('v_lshrrev_b32 v3, 4, v1'); a('v_lshlrev_b32 v3, 14, v3'); a('v_and_b32 v4, 15, v1'); a('v_lshl_add_u32 v3, v4, 4, v3')
        qrows = [8 * (j & 3) + (j >> 2) for j in range(8)]
        a('s_sub_u32 s81, s3, 4')
        a('s_lshl_b32 s5, s81, 19'); a('s_lshl_b32 s6, s4, 8'); a('s_add_u32 s82, s5, s6')
        a('s_waitcnt lgkmcnt(0)')
        self.tag_load()
        a('s_barrier')
        self.stamp(1)
        self.unit_loads(32, 3, WQ, 's82', 8192, qrows, depth=self.dq, prior=0)
        a(f's_add_u32 s82, s82, {32*8192}'); self.unit_loads(64, 3, WQ, 's82', 8192, qrows, depth=self.dq, prior=8)
        self.stamp(2)
        a('s_waitcnt vmcnt(8)'); self.transpose(32, 96)
        a('s_waitcnt vmcnt(0)'); self.transpose(64, 128)
        self.stamp(3)
        self.xvoff(28, 1024, H_, 29)
        a('s_lshl_b32 s6, s81, 7'); a('v_add_u32 v28, s6, v28'); a(f'v_mov_b32 v29, {ZR}')
        for u in range(4): a(f'v_cndmask_b32 v{24+u}, v29, v28, {BM[u]}')
        a('s_lshl_b32 s5, s81, 10'); a(f's_add_u32 s5, s5, {QP}'); a('v_add_u32 v3, s5, v2')
        self.waitc(C_H, 1, 8, 9)
        self.stamp(4)
        self.gemv2(24, 32, 96, 64)
        self.merge(64); a('ds_write_b128 v3, v[64:67]')
        self.arrive(C_Q, 8, 9)
        a('s_cmp_lg_u32 s3, 4'); a('s_cbranch_scc1 L_h_end')
        a('v_lshrrev_b32 v10, 4, v1'); a('v_lshlrev_b32 v10, 5, v10'); a('v_bfe_u32 v11, v1, 1, 3'); a('v_add_u32 v10, v10, v11')
        a('v_and_b32 v11, 1, v1'); a('v_lshl_add_u32 v10, v11, 7, v10'); a('v_lshlrev_b32 v10, 1, v10'); a(f'v_add_u32 v10, {QT}, v10')
        a('v_lshlrev_b32 v11, 3, v1'); a(f'v_add_u32 v11, {QT}, v11')
        self.tag_make()
        self.waitc(C_Q, 8, 8, 9); self.reduce_parts(QP, 8)
        a('v_cvt_pk_bf16_f32 v96, v96, v97'); a('v_cvt_pk_bf16_f32 v98, v98, v99')
        a('ds_write_b16 v10, v96'); a('ds_write_b16_d16_hi v10, v96 offset:16')
        a('ds_write_b16 v10, v98 offset:32'); a('ds_write_b16_d16_hi v10, v98 offset:48')
        a('s_waitcnt lgkmcnt(0)'); a('ds_read_b64 v[100:101], v11')
        a(f'v_mov_b32 v97, {TAG}'); a(f'v_mov_b32 v99, {TAG}')
        a(f's_add_u32 s5, s80, {Q_OFF}')
        a('s_waitcnt lgkmcnt(0)')
        a('v_mov_b32 v96, v100'); a('v_mov_b32 v98, v101')
        a(f'buffer_store_dwordx4 v[96:99], v2, {WS}, s5 offen sc1')
        self.arrive(C_W1, 8, 9)
        self.stamp(5)
        self.end()

    def pollcnt(self, off):
        a = self.a; lp = self.lab('LC'); ld = self.lab('LE')
        a(f's_mov_b32 {POLLC}, 0'); a(f'{lp}:')
        a(f'buffer_load_dword v14, v13, {DBG}, 0 offen offset:{off} sc1'); a('s_waitcnt vmcnt(0)')
        a('v_and_b32 v15, 63, v14'); a('v_cmp_gt_u32 vcc, 32, v15'); a(f's_cbranch_vccz {ld}')
        a('s_sleep 1'); a(f's_add_u32 {POLLC}, {POLLC}, 1'); a(f's_cmp_lt_u32 {POLLC}, {POLL_MAX}'); a(f's_cbranch_scc1 {lp}')
        a(f'{ld}:')

    def gemv2(self, xa, xr, T, acc):
        a = self.a
        for kb in range(2):
            for u in range(4): a(f'ds_read_b128 {v(xr+16*kb+4*u,4)}, v{xa+u} offset:{64*kb}')
        for kb in range(2):
            for m in range(8):
                if m % 2 == 0: a(f's_waitcnt lgkmcnt({7 - 4*kb - m//2})')
                c = '0' if (kb == 0 and m < 2) else v(acc + 4 * (m & 1), 4)
                a(f'v_mfma_f32_16x16x32_bf16 {v(acc+4*(m&1),4)}, {v(T+32*kb+4*m,4)}, {v(xr+16*kb+4*(m>>1),4)}, {c}')

    def getmode(self):
        self.waitc(C_MODE, 1, 8, 9, SMODE)

    def tail(self):
        a = self.a
        a(f's_mul_i32 s80, s4, {ASTR}'); a(f's_add_u32 s80, s80, {AUXREG}')
        a('v_lshlrev_b32 v2, 4, v1')
        a('s_cmp_ge_u32 s3, 8'); a('s_cbranch_scc1 L_tail_c')
        a('s_cmp_ge_u32 s3, 4'); a('s_cbranch_scc1 L_tail_b')
        self.tail_a(); self.tail_b(); self.tail_c()

    def tail_a(self):
        a = self.a
        self.srd(['WO', 'OUT', 'X']); self.consts()
        a('s_sub_u32 s5, s3, 1'); a('s_and_b32 s5, s5, 1'); a('s_lshl_b32 s81, s5, 10')
        a('s_waitcnt lgkmcnt(0)')
        a(f'buffer_load_dwordx4 v[40:43], v2, {X_}, s81 offen')
        self.tag_load()
        a('s_barrier')
        rows = [8 * (j & 3) + 2 * (j >> 2) for j in range(8)]
        a('v_lshrrev_b32 v3, 5, v1'); a('v_lshlrev_b32 v3, 15, v3'); a('v_bfe_u32 v4, v1, 4, 1'); a('v_lshl_add_u32 v3, v4, 12, v3')
        a('v_and_b32 v4, 15, v1'); a('v_lshl_add_u32 v39, v4, 4, v3')
        a('s_lshl_b32 s5, s4, 17'); a('s_lshl_b32 s6, s3, 8'); a('s_add_u32 s87, s5, s6')
        if self.early:
            a(f's_add_u32 s82, s87, {(64 + 1)*1024}')
            self.unit_loads(136, 39, WO, 's82', 1024, rows)
        a('s_cmp_eq_u32 s3, 0'); a('s_cbranch_scc1 L_a_h1'); a('s_cmp_eq_u32 s3, 3'); a('s_cbranch_scc1 L_a_wo')
        a(f's_waitcnt vmcnt({8 if self.early else 0})')
        self.ln_x()
        a('s_branch L_a_wo')
        a('L_a_h1:')
        a('v_lshrrev_b32 v3, 5, v1'); a('v_lshlrev_b32 v3, 4, v3'); a('v_bfe_u32 v4, v1, 3, 2'); a('v_add_u32 v3, v3, v4'); a(f'v_mul_u32_u24 v3, {ASTR}, v3')
        a('v_and_b32 v4, 7, v1'); a('v_lshl_add_u32 v3, v4, 4, v3')
        a('s_lshr_b32 s5, s4, 3'); a(f's_mul_i32 s5, s5, {4*ASTR}'); a('s_and_b32 s6, s4, 7'); a('s_lshl_b32 s6, s6, 7'); a('s_add_u32 s5, s5, s6')
        a(f's_add_u32 s82, s5, {AUXREG+MC_OFF}')
        a('s_lshr_b32 s5, s4, 1'); a('s_lshl_b32 s5, s5, 5'); a('s_and_b32 s6, s4, 1'); a('s_lshl_b32 s6, s6, 2'); a('s_add_u32 s5, s5, s6'); a('s_lshl_b32 s5, s5, 2')
        a(f's_add_u32 s5, s5, {LNX}')
        a('v_bfe_u32 v5, v1, 1, 2'); a('v_and_b32 v6, 1, v1'); a('v_lshlrev_b32 v7, 4, v5'); a('v_lshl_add_u32 v7, v6, 6, v7')
        a('v_lshl_add_u32 v5, v6, 9, v5'); a('v_lshlrev_b32 v5, 2, v5'); a('v_add_u32 v5, s5, v5')
        a(f's_add_u32 s83, s80, {H_OFF}')
        self.waitc(C_LN, 2, 8, 9)
        for r in range(4): a(f'ds_read_b32 v{24+r}, v5 offset:{32*r}')
        self.tag_make()
        self.stamp(7)
        a(f's_mov_b32 {POLLC}, 0'); a('L_a_mp:')
        a(f's_and_b32 s5, {POLLC}, 63'); a('s_cmp_eq_u32 s5, 63'); a('s_cselect_b32 s5, 2048, 0'); a('s_add_u32 s5, s5, s82')
        a(f'buffer_load_dwordx4 v[16:19], v3, {WS}, s5 offen sc1'); a(f'buffer_load_dwordx4 v[20:23], v3, {WS}, s5 offen offset:1024 sc1')
        a('s_waitcnt vmcnt(0)')
        for i, r in enumerate([17, 19, 21, 23]):
            if i == 0: a(f'v_cmp_ne_u32 vcc, {TAG}, v{r}')
            else: a(f'v_cmp_ne_u32 s[88:89], {TAG}, v{r}'); a('s_or_b64 vcc, vcc, s[88:89]')
        a('s_cmp_eq_u64 vcc, 0'); a('s_cbranch_scc1 L_a_mq')
        a(f's_add_u32 {POLLC}, {POLLC}, 1'); a(f's_cmp_lt_u32 {POLLC}, {POLL_MAX}'); a('s_cbranch_scc1 L_a_mp')
        a('L_a_mq:')
        self.stamp(8)
        for r in range(4): a(f'v_add_f32_dpp v{12+r}, v{16+2*r}, v{16+2*r} row_ror:8 row_mask:0xf bank_mask:0xf')
        for r in range(4): a(f'v_mov_b32 v{16+r}, v{12+r}')
        for r in range(4): a(f'v_permlane16_swap_b32 v{12+r}, v{16+r}')
        for r in range(4): a(f'v_add_f32 v{12+r}, v{12+r}, v{16+r}')
        for r in range(4): a(f'v_mov_b32 v{16+r}, v{12+r}')
        for r in range(4): a(f'v_permlane32_swap_b32 v{12+r}, v{16+r}')
        for p in (12, 14, 16, 18): self.rnd2(p, p + 1, 8)
        for r in range(4): a(f'v_add_f32 v{16+r}, 1.0, v{16+r}')
        self.rnd2(16, 17, 8); self.rnd2(18, 19, 8)
        for r in range(4): a(f'v_mul_f32 v{24+r}, v{24+r}, v{16+r}')
        self.rnd2(24, 25, 8); self.rnd2(26, 27, 8)
        for r in range(4): a(f'v_add_f32 v{24+r}, v{24+r}, v{12+r}')
        a('v_cvt_pk_bf16_f32 v24, v24, v25'); a('v_cvt_pk_bf16_f32 v26, v26, v27'); a(f'v_mov_b32 v25, {TAG}'); a(f'v_mov_b32 v27, {TAG}')
        a('s_mov_b64 exec, 0xff'); a(f'buffer_store_dwordx4 v[24:27], v7, {WS}, s83 offen sc1'); a('s_mov_b64 exec, -1')
        self.arrive(C_H, 8, 9)
        self.stamp(9)
        a('L_a_wo:')
        if self.wo_wait: self.waitc(C_H, 1, 8, 9)
        for kb in ([0, 1, 2] if self.early else [3, 0, 1, 2]):
            a(f's_add_u32 s82, s87, {(64*(kb&1) + (kb>>1))*1024}')
            self.unit_loads(40 + 32 * kb, 39, WO, 's82', 1024, rows, depth=self.dl0, prior=0 if kb == 3 else 99)
        for kb in range(4):
            if kb < 3: a(f's_waitcnt vmcnt({16 - 8*kb})')
            self.transpose(40 + 32 * kb, 8 + 32 * kb)
        self.stamp(1)
        self.xvoff(164, 256, OB, 165)
        a(f'v_mov_b32 v165, {ZR}')
        for u in range(4): a(f'v_cndmask_b32 v{160+u}, v165, v164, {BM[u]}')
        a('s_lshl_b32 s5, s3, 10'); a('s_add_u32 s81, s80, s5')
        a('v_lshrrev_b32 v3, 3, v1'); a(f'v_mul_u32_u24 v3, {ASTR}, v3'); a('v_and_b32 v4, 7, v1'); a('v_lshl_add_u32 v3, v4, 4, v3')
        a('v_lshrrev_b32 v5, 4, v1'); a('v_lshlrev_b32 v5, 2, v5'); a('v_lshl_add_u32 v4, v4, 4, v5')
        a('v_lshrrev_b32 v5, 2, v1'); a(f'v_mul_u32_u24 v5, {ASTR}, v5'); a('v_and_b32 v6, 3, v1'); a('v_lshl_add_u32 v5, v6, 5, v5')
        a('s_sub_u32 s5, s3, 1'); a('s_lshl_b32 s5, s5, 4'); a('v_add_u32 v5, s5, v5')
        a('v_lshlrev_b32 v6, 5, v1'); a('v_add_u32 v6, s5, v6')
        a('s_lshl_b32 s82, s4, 7'); a(f's_add_u32 s82, s82, {AUXREG}')
        self.waitc(C_MODE, 1, 166, 167, SMODE)
        a('s_cmp_eq_u32 s3, 0'); a('s_cbranch_scc0 L_a_pt')
        for off in (A_OFF, P2_OFF):
            for i in range(4):
                a(f's_add_u32 s6, s82, {8*i*ASTR + off}'); a(f'buffer_load_dwordx4 v[136:139], v3, {WS}, s6 offen sc1')
        a('s_branch L_a_pu')
        a('L_a_pt:')
        a('s_cmp_eq_u32 s3, 3'); a('s_cbranch_scc1 L_a_pu')
        for i in range(2):
            a(f's_mov_b32 s6, {AUXREG+X1_OFF+16*i*ASTR}'); a(f'buffer_load_dwordx4 v[136:139], v5, {WS}, s6 offen sc1')
        a('L_a_pu:')
        a('s_waitcnt vmcnt(0)')
        self.stamp(2)
        a('s_barrier')
        self.stamp(3)
        X = [136, 8, 24, 40]
        def xread(kb):
            for u in range(4): a(f'ds_read_b128 {v(X[kb]+4*u,4)}, v{160+u} offset:{64*kb}')
        xread(0)
        for kb in range(4):
            if kb: a(f's_waitcnt lgkmcnt({0 if kb == 3 else 4})')
            for m in range(8):
                if kb == 0 and m in (0, 2): a(f's_waitcnt lgkmcnt({3 - m//2})')
                if kb == 0 and m in (4, 6): a(f's_waitcnt lgkmcnt({4 + 3 - m//2})')
                c = '0' if (kb == 0 and m < 2) else v(152 + 4 * (m & 1), 4)
                a(f'v_mfma_f32_16x16x32_bf16 {v(152+4*(m&1),4)}, {v(8+32*kb+4*m,4)}, {v(X[kb]+4*(m>>1),4)}, {c}')
                if kb == 0 and m == 3: xread(1)
                if kb == 0 and m == 7: xread(2)
                if kb == 1 and m == 3: xread(3)
        self.merge(152); self.sanitize(152, 4)
        self.pub(f'buffer_store_dwordx4 v[152:155], v2, {WS}, s81 offen')
        self.stamp(4)
        a('s_cmp_eq_u32 s3, 3'); a('s_cbranch_scc1 L_a_end')
        a('s_cmp_lg_u32 s3, 0'); a('s_cbranch_scc1 L_a_ln')
        a(f'v_add_u32 v7, {SMALL}, v4')
        for k in range(4): a(f'ds_read_b32 v{40+k}, v7 offset:{128*k}')
        def rs(off, last_half):
            loads = []
            for i in range(4):
                loads.append(f's_add_u32 s6, s82, {8*i*ASTR + off}')
                if i == 3 and last_half: loads.append('s_mov_b32 exec_hi, 0')
                loads.append(f'buffer_load_dwordx4 {v(8+4*i,4)}, v3, {WS}, s6 offen sc1')
                if i == 3 and last_half: loads.append('s_mov_b64 exec, -1')
            self.poll(loads, range(8, 24), 24)
            for r in range(4): a(f'v_add_f32 v{8+r}, v{8+r}, v{12+r}'); a(f'v_add_f32 v{16+r}, v{16+r}, v{20+r}')
            for r in range(4): a(f'v_add_f32 v{8+r}, v{8+r}, v{16+r}')
            self.red4rows(8)
            a('v_add_f32_dpp v8, v8, v8 row_ror:8 row_mask:0xf bank_mask:0xf')
        rs(A_OFF, False)
        a('s_waitcnt lgkmcnt(0)')
        a('v_fma_f32 v44, v40, v8, v41')
        a('v_min_u32 v45, -2, v44')
        a(f's_add_u32 s6, s80, {X1_OFF}')
        a('s_mov_b32 exec_lo, 0x00ff00ff'); a('s_mov_b32 exec_hi, 0x00ff00ff')
        self.pub(f'buffer_store_dword v45, v4, {WS}, s6 offen')
        a('s_mov_b64 exec, -1')
        self.stamp(5)
        a('s_lshr_b32 s5, s4, 1'); a('s_lshl_b32 s5, s5, 5'); a('s_and_b32 s6, s4, 1'); a('s_lshl_b32 s6, s6, 2'); a('s_add_u32 s5, s5, s6'); a('s_lshl_b32 s83, s5, 1')
        a('v_lshrrev_b32 v46, 4, v1'); a('v_lshlrev_b32 v46, 3, v46'); a('v_bfe_u32 v47, v1, 1, 2'); a('v_add_u32 v46, v46, v47')
        a('v_and_b32 v47, 1, v1'); a('v_lshl_add_u32 v46, v47, 9, v46'); a('v_lshlrev_b32 v46, 1, v46')
        for r in range(4): a(f'v_mov_b32 v{20+r}, 0')
        a('s_barrier'); a('s_barrier')
        self.stamp(6)
        rs(P2_OFF, True)
        a('v_add_f32 v8, v8, v43'); a('v_fma_f32 v8, v42, v8, v44'); a('v_cvt_pk_bf16_f32 v8, v8, v8')
        a('s_mov_b32 exec_lo, 0x00ff00ff'); a('s_mov_b32 exec_hi, 0x00ff00ff')
        a(f'buffer_store_short v8, v46, {OUT}, s83 offen')
        a('s_cmp_lg_u32 s4, 0'); a('s_cbranch_scc1 L_a_end')
        a(f's_add_u32 s5, {EPO}, 1'); a('v_mov_b32 v9, s5'); a('v_mov_b32 v10, 0')
        a('s_mov_b64 exec, 1'); a(f'buffer_store_dword v9, v10, {WS}, 0 offen sc1')
        a('L_a_end:')
        self.end()
        a('L_a_ln:')
        a('s_cmp_ge_u32 s4, 28'); a('s_cbranch_scc1 L_a_end')
        a(f'v_add_u32 v7, {IMA}, v6')
        a('ds_read_b128 v[16:19], v7'); a('ds_read_b128 v[20:23], v7 offset:2048')
        a(f'ds_read_b128 v[24:27], v7 offset:{IMS-IMA}'); a(f'ds_read_b128 v[28:31], v7 offset:{IMS-IMA+2048}')
        a(f's_mov_b32 s82, {AUXREG+X1_OFF}'); a(f's_mov_b32 s83, {AUXREG+X1_OFF+16*ASTR}')
        a('v_lshlrev_b32 v7, 3, v1'); a('s_sub_u32 s5, s3, 1'); a('s_lshl_b32 s5, s5, 10'); a(f's_add_u32 s5, s5, {YB}'); a('v_add_u32 v7, s5, v7')
        self.poll([f'buffer_load_dwordx4 v[8:11], v5, {WS}, s82 offen sc1', f'buffer_load_dwordx4 v[12:15], v5, {WS}, s83 offen sc1'], range(8, 16), 32)
        self.stamp(5)
        def stats():
            a('v_add_f32 v32, v8, v9'); a('v_mul_f32 v33, v8, v8')
            for i in range(2, 8): a(f'v_add_f32 v32, v32, v{8+i}'); a(f'v_fmac_f32 v33, v{8+i-1}, v{8+i-1}')
            a('v_fmac_f32 v33, v15, v15')
            a('v_permlane32_swap_b32 v32, v33'); a('v_add_f32 v32, v32, v33')
            a('v_mov_b32 v33, v32'); a('v_permlane16_swap_b32 v32, v33'); a('v_add_f32 v32, v32, v33')
            self.rowsum(32)
            a('v_readlane_b32 s5, v32, 0'); a('v_readlane_b32 s6, v32, 32')
            a('v_mov_b32 v33, 0x3b000000')
            a('v_mul_f32 v35, s5, v33'); a('v_mul_f32 v34, s6, v33')
            a('v_fma_f32 v34, -v35, v35, v34'); a('v_max_f32 v34, 0, v34'); a('v_add_f32 v34, 0x3727c5ac, v34')
            a('v_rsq_f32 v34, v34'); a('v_mul_f32 v35, -v35, v34')
        a('v_readfirstlane_b32 s5, v8')
        for i in range(8): a(f'v_subrev_f32 v{8+i}, s5, v{8+i}')
        stats()
        a('s_waitcnt lgkmcnt(0)')
        for i in range(8): a(f'v_fma_f32 v{8+i}, v{8+i}, v34, v35')
        for i in range(8): a(f'v_fma_f32 v{8+i}, v{8+i}, v{16+i}, v{24+i}')
        stats()
        for i in range(8): a(f'v_fma_f32 v{8+i}, v{8+i}, v34, v35')
        for i in range(4): a(f'v_cvt_pk_bf16_f32 v{8+i}, v{8+2*i}, v{9+2*i}')
        a('ds_write_b64 v7, v[8:9]'); a('ds_write_b64 v7, v[10:11] offset:512')
        a('s_waitcnt lgkmcnt(0)')
        self.stamp(6)
        a('s_barrier')
        self.end()

    def tail_b(self):
        a = self.a
        a('L_tail_b:')
        self.srd(['W2']); self.consts()
        a('s_sub_u32 s81, s3, 4')
        self.wvoff(3, 1024, 4)
        a('s_lshl_b32 s5, s4, 16'); a('s_lshl_b32 s6, s81, 8'); a('s_add_u32 s82, s5, s6')
        a('s_waitcnt lgkmcnt(0)')
        a('s_cmp_eq_u32 s3, 5'); a('s_cbranch_scc0 L_b_ni')
        self.lds_init(); a('s_waitcnt lgkmcnt(0)')
        a('L_b_ni:')
        a('s_cmp_eq_u32 s3, 4'); a('s_cbranch_scc0 L_b_nc')
        for i in range(4): a(f'v_mov_b32 v{8+i}, -1')
        for i in range(8):
            if i % 4 == 0: a(f's_add_u32 s5, s80, {(i//4)*4096}')
            a(f'buffer_store_dwordx4 v[8:11], v2, {WS}, s5 offen offset:{(i%4)*1024} sc1')
        a(f's_add_u32 s5, s80, {X1_OFF}')
        a('s_mov_b64 exec, 0xffffff'); a(f'buffer_store_dwordx4 v[8:11], v2, {WS}, s5 offen sc1'); a('s_mov_b64 exec, -1')
        a('s_barrier')
        self.xcc_inc('s85')
        a('v_mov_b32 v12, s85'); a('v_mov_b32 v13, 0')
        a('s_waitcnt vmcnt(0)')
        a('s_mov_b64 exec, 1'); a(f'buffer_atomic_add v12, v13, {DBG}, 0 offen offset:4 sc1'); a('s_mov_b64 exec, -1')
        self.stamp(1)
        a('s_mov_b64 exec, 1')
        a('s_cmp_lg_u32 s4, 0'); a('s_cbranch_scc1 L_b_fl')
        self.pollcnt(4)
        a('v_readfirstlane_b32 s6, v14')
        a('s_lshl_b32 s85, s85, 5'); a('s_cmp_eq_u32 s85, s6'); a(f's_cselect_b32 s85, {1 if self.force_slow else 2}, 1')
        self.pollcnt(0)
        a('v_mov_b32 v16, s85'); a(f'buffer_store_dword v16, v13, {DBG}, 0 offen offset:128 sc1')
        a('s_branch L_b_fm')
        a('L_b_fl:')
        self.poll([f'buffer_load_dword v16, v13, {DBG}, 0 offen offset:128 sc1'], [16], 17, zero=True, sleep=8)
        a('L_b_fm:')
        a('v_readfirstlane_b32 s5, v16'); a('s_mov_b64 exec, -1')
        self.arrive(C_MODE, 8, 9, 's5')
        self.stamp(7)
        a('s_branch L_b_w2')
        a('L_b_nc:')
        a('s_barrier')
        a('L_b_w2:')
        if self.prio: a('s_setprio 2')
        a('s_cmp_ge_u32 s4, 28'); a('s_cbranch_scc1 L_b_now2')
        if self.early2:
            a('s_cmp_eq_u32 s3, 4'); a('s_cbranch_scc1 L_b_e4')
            self.unit_loads(32, 3, W2, 's82', 1024)
            self.waitc(C_H, 1, 8, 9)
            a('s_branch L_b_e5')
            a('L_b_e4:')
            self.unit_loads(32, 3, W2, 's82', 1024)
            a('L_b_e5:')
        else:
            self.waitc(C_H, 1, 8, 9)
            self.unit_loads(32, 3, W2, 's82', 1024, depth=self.dl, prior=1)
        a(f's_add_u32 s82, s82, {32*1024}'); self.unit_loads(64, 3, W2, 's82', 1024, depth=self.dl)
        a('s_waitcnt vmcnt(0)')
        self.transpose(32, 96); self.transpose(64, 128)
        a('L_b_now2:')
        self.stamp(2)
        self.getmode()
        a('s_lshr_b32 s82, s81, 1')
        a('v_lshrrev_b32 v4, 4, v1')
        for i in range(3): a(f'v_add_u32 v{8+i}, {4*i}, v4')
        for i in range(3): a(f'v_lshlrev_b32 v{12+i}, 3, v{8+i}')
        a('s_mul_i32 s5, s82, 96'); a('s_add_u32 s83, s80, s5'); a(f's_add_u32 s83, s83, {ST_OFF}')
        self.poll([f'buffer_load_dwordx2 {v(32+2*i,2)}, v{12+i}, {WS}, s83 offen sc1' for i in range(3)], range(32, 38), 16, sleep=8)
        self.stamp(4)
        a('v_max3_f32 v16, v32, v34, v36'); self.xrows(16, 17, 'max')
        for i in range(3): a(f'v_sub_f32 v{48+i}, v{32+2*i}, v16')
        for i in range(3): a(f'v_mul_f32 v{48+i}, {LOG2E}, v{48+i}')
        for i in range(3): a(f'v_exp_f32 v{48+i}, v{48+i}')
        a('v_mul_f32 v16, v48, v33')
        for i in range(1, 3): a(f'v_fmac_f32 v16, v{48+i}, v{33+2*i}')
        self.xrows(16, 17)
        a('v_rcp_f32 v16, v16')
        for i in range(3): a(f'v_mul_f32 v{48+i}, v{48+i}, v16')
        a('v_and_b32 v5, 15, v1')
        for i in range(3): a(f'v_lshlrev_b32 v{12+i}, 11, v{8+i}'); a(f'v_lshl_add_u32 v{12+i}, v5, 4, v{12+i}')
        a('s_lshl_b32 s5, s82, 3'); a('s_lshr_b32 s6, s4, 2'); a('s_add_u32 s5, s5, s6'); a(f's_mul_i32 s5, s5, {12*2048}')
        a('s_and_b32 s6, s4, 3'); a('s_lshl_b32 s6, s6, 9'); a('s_add_u32 s5, s5, s6')
        a('s_and_b32 s6, s81, 1'); a('s_lshl_b32 s6, s6, 8'); a('s_add_u32 s5, s5, s6'); a(f's_add_u32 s83, s5, {MO_BASE}')
        a('v_lshl_add_u32 v6, v5, 2, v4'); a('v_lshlrev_b32 v6, 1, v6'); a('s_lshl_b32 s5, s81, 7'); a(f's_add_u32 s5, s5, {OB}'); a('v_add_u32 v6, s5, v6')
        self.xvoff(20, 128, HB, 21); a(f'v_mov_b32 v21, {ZR}')
        for u in range(4): a(f'v_cndmask_b32 v{24+u}, v21, v20, {BM[u]}')
        a('s_lshl_b32 s5, s81, 10'); a('s_add_u32 s84, s80, s5'); a(f's_add_u32 s84, s84, {P2_OFF}')
        self.poll([f'buffer_load_dwordx4 {v(32+4*i,4)}, v{12+i}, {WS}, s83 offen sc1' for i in range(3)], range(32, 44), 16)
        self.stamp(5)
        for r in range(4): a(f'v_mul_f32 v{32+r}, v{32+r}, v48')
        for i in range(1, 3):
            for r in range(4): a(f'v_fmac_f32 v{32+r}, v{32+4*i+r}, v{48+i}')
        self.red4rows(32)
        a('v_cvt_pk_bf16_f32 v32, v32, v32'); a('ds_write_b16 v6, v32')
        a('s_waitcnt lgkmcnt(0)'); a('s_barrier')
        a('s_cmp_ge_u32 s4, 28'); a('s_cbranch_scc1 L_b_end')
        a('s_barrier'); a('s_barrier')
        self.gemv2(24, 52, 96, 84)
        self.merge(84); self.sanitize(84, 4)
        self.pub(f'buffer_store_dwordx4 v[84:87], v2, {WS}, s84 offen')
        self.stamp(6)
        a('L_b_end:')
        self.end()

    def tail_c(self):
        a = self.a
        a('L_tail_c:')
        self.srd(['WM', 'C', 'W1', 'B1', 'X', 'B2']); self.consts()
        a('s_sub_u32 s81, s3, 8')
        self.wvoff(5, 6144, 4); self.xvoff(6, 1024, 0, 4)
        a('s_and_b32 s5, s4, 3'); a('s_lshl_b32 s5, s5, 7'); a('s_lshl_b32 s6, s81, 5'); a('s_add_u32 s83, s5, s6')
        a('s_mul_i32 s5, s83, 6144'); a('s_lshr_b32 s6, s4, 2'); a('s_lshl_b32 s6, s6, 8'); a('s_add_u32 s84, s5, s6')
        a('s_lshl_b32 s83, s83, 1')
        a('s_waitcnt lgkmcnt(0)')
        a(f'buffer_load_dwordx4 v[156:159], v6, {C_}, s83 offen')
        self.unit_loads(96, 5, WM, 's84', 6144, pol=self.mcpol)
        self.tag_load()
        self.stamp(4)
        a('s_barrier')
        a('s_waitcnt vmcnt(8)')
        self.silu4(156, 8)
        a('s_waitcnt vmcnt(0)')
        self.stamp(5)
        self.gemv_fly(96, 156, True)
        a('s_lshl_b32 s5, s81, 10'); a(f's_add_u32 s5, s5, {MP}'); a('v_add_u32 v4, s5, v2')
        self.merge(20); a('ds_write_b128 v4, v[20:23]')
        self.arrive(C_MC, 8, 9)
        a('s_cmp_lg_u32 s3, 8'); a('s_cbranch_scc1 L_c_w1')
        self.tag_make()
        for i in range(4): a(f'v_mov_b32 v{33+2*i}, {TAG}')
        self.waitc(C_MC, 4, 8, 9); self.reduce_parts(MP, 4)
        for i in range(4): a(f'v_mov_b32 v{32+2*i}, v{96+i}')
        a(f's_add_u32 s5, s80, {MC_OFF}')
        a(f'buffer_store_dwordx4 v[32:35], v2, {WS}, s5 offen'); a(f'buffer_store_dwordx4 v[36:39], v2, {WS}, s5 offen offset:1024')
        a(f'buffer_store_dwordx4 v[32:35], v2, {WS}, s5 offen offset:2048 sc1'); a(f'buffer_store_dwordx4 v[36:39], v2, {WS}, s5 offen offset:3072 sc1')
        self.stamp(6)
        a('L_c_w1:')
        if self.prio: a('s_setprio 1')
        self.waitc(C_H, 1, 8, 9)
        a('s_cmp_eq_u32 s3, 8'); a('s_cbranch_scc1 L_c_fin')
        self.getmode()
        self.stamp(1)
        a('s_cmp_lg_u32 s3, 9'); a('s_cbranch_scc1 L_c_img')
        a('v_and_b32 v4, 7, v1'); a('v_lshlrev_b32 v5, 4, v4')
        a('s_lshr_b32 s5, s4, 1'); a('s_lshl_b32 s5, s5, 5'); a('s_and_b32 s6, s4, 1'); a('s_lshl_b32 s6, s6, 2'); a('s_add_u32 s5, s5, s6'); a('s_lshl_b32 s84, s5, 1')
        a('v_and_b32 v6, 6, v4'); a('v_and_b32 v7, 1, v4'); a('v_lshl_add_u32 v7, v7, 10, v6')
        for r in range(4):
            a(f'buffer_load_ushort v{116+r}, v7, {X_}, s84 offen offset:{16*r}')
            a(f'buffer_load_ushort v{124+r}, v6, {B2}, s84 offen offset:{16*r}')
        a('s_lshr_b32 s5, s4, 3'); a('s_lshl_b32 s5, s5, 1'); a(f's_mul_i32 s5, s5, {ASTR}'); a('s_and_b32 s6, s4, 7'); a('s_lshl_b32 s6, s6, 7')
        a('s_add_u32 s5, s5, s6'); a(f's_add_u32 s85, s5, {AUXREG+MR_OFF}')
        loads = []
        for q in range(2):
            for ks in range(2):
                loads.append(f's_add_u32 s6, s85, {(24*q+ks)*ASTR}')
                loads.append(f'buffer_load_dwordx4 {v(96+8*q+4*ks,4)}, v5, {WS}, s6 offen sc1')
        self.poll(loads, range(96, 112), 8, sleep=16)
        for r in range(4): a(f'v_add_f32 v{112+r}, v{96+r}, v{100+r}'); a(f'v_add_f32 v{120+r}, v{104+r}, v{108+r}')
        for p in (112, 114, 120, 122): self.rnd2(p, p + 1, 8)
        for r in range(4): a(f'v_lshlrev_b32 v{116+r}, 16, v{116+r}'); a(f'v_lshlrev_b32 v{124+r}, 16, v{124+r}')
        a(f'v_add_u32 v5, {SMALL}, v5')
        for k in range(4): a(f'ds_write_b128 v5, {v(112+4*k,4)} offset:{128*k}')
        a('s_branch L_c_fin')
        a('L_c_img:')
        a('s_sub_u32 s5, s3, 10'); a('s_lshl_b32 s5, s5, 4')
        a('v_and_b32 v4, 31, v1'); a('v_lshlrev_b32 v4, 5, v4'); a('v_lshrrev_b32 v5, 5, v1'); a(f'v_mul_u32_u24 v5, {2*ASTR}, v5'); a('v_add_u32 v4, v4, v5'); a('v_add_u32 v4, s5, v4')
        a('v_lshlrev_b32 v5, 5, v1'); a('v_add_u32 v5, s5, v5'); a(f'v_add_u32 v5, {IMA}, v5')
        loads = []
        for q in range(2):
            for i in range(2):
                for ks in range(2):
                    loads.append(f's_mov_b32 s6, {AUXREG + MR_OFF + ((4+4*q+2*i)*2+ks)*ASTR}')
                    loads.append(f'buffer_load_dwordx4 {v(96+16*q+8*i+4*ks,4)}, v4, {WS}, s6 offen sc1')
        self.poll(loads, range(96, 128), 8, sleep=16)
        for q in range(2):
            for i in range(2):
                for r in range(4): a(f'v_add_f32 v{128+8*q+4*i+r}, v{96+16*q+8*i+r}, v{100+16*q+8*i+r}')
        for p in range(128, 144, 2): self.rnd2(p, p + 1, 8)
        for i in range(8): a(f'v_add_f32 v{136+i}, 1.0, v{136+i}')
        for p in range(136, 144, 2): self.rnd2(p, p + 1, 8)
        a('v_add_f32 v10, v128, v129')
        for i in range(2, 8): a(f'v_add_f32 v10, v10, v{128+i}')
        self.wavesum(10, 11); a('v_mul_f32 v10, 0x3b000000, v10')
        for i in range(8): a(f'v_sub_f32 v{128+i}, v{128+i}, v10')
        a('ds_write_b128 v5, v[136:139]'); a('ds_write_b128 v5, v[140:143] offset:2048')
        a(f'ds_write_b128 v5, v[128:131] offset:{IMS-IMA}'); a(f'ds_write_b128 v5, v[132:135] offset:{IMS-IMA+2048}')
        a('L_c_fin:')
        self.stamp(7)
        a('s_cmp_ge_u32 s4, 28'); a('s_cbranch_scc1 L_c_last')
        a('v_bfe_u32 v3, v1, 3, 2'); a('v_lshlrev_b32 v3, 3, v3'); a('v_lshrrev_b32 v4, 5, v1'); a('v_add_u32 v3, v3, v4')
        a('v_mul_u32_u24 v3, 3584, v3'); a('v_and_b32 v4, 7, v1'); a('v_lshl_add_u32 v3, v4, 4, v3')
        a('s_cmp_lg_u32 s3, 8'); a('s_cbranch_scc1 L_c_b1')
        a('s_lshl_b32 s82, s4, 7'); a('s_mov_b32 s83, 0')
        a('L_c_dma:')
        for i in range(4):
            if i: a(f's_add_u32 s5, s82, {2*i*3584}')
            a(f's_add_u32 m0, s83, {1024*i}')
            a(f's_waitcnt vmcnt({self.dw1-1})')
            a(f'buffer_load_dwordx4 v3, {W1}, {"s5" if i else "s82"} offen {self.wpol} lds')
        a(f's_add_u32 s82, s82, {32*3584}'); a('s_add_u32 s83, s83, 4096'); a('s_cmp_lt_u32 s83, 65536'); a('s_cbranch_scc1 L_c_dma')
        a('L_c_b1:')
        a('v_lshrrev_b32 v4, 4, v1'); a('v_lshlrev_b32 v4, 3, v4'); a('s_lshl_b32 s5, s4, 7'); a('s_lshl_b32 s6, s81, 5'); a('s_add_u32 s5, s5, s6')
        a(f'buffer_load_dwordx2 v[28:29], v4, {B1}, s5 offen')
        a('s_waitcnt lgkmcnt(0)')
        self.stamp(2)
        a('s_barrier')
        a('s_waitcnt vmcnt(0)')
        self.arrive(C_W1, 8, 9); self.waitc(C_W1, 4, 8, 9)
        a('v_lshrrev_b32 v3, 4, v1'); a('v_lshlrev_b32 v3, 10, v3'); a('v_bfe_u32 v4, v1, 2, 2'); a('v_lshl_add_u32 v3, v4, 7, v3')
        a('v_and_b32 v4, 3, v1'); a('v_lshl_add_u32 v3, v4, 3, v3'); a('s_lshl_b32 s5, s81, 5'); a('v_add_u32 v3, s5, v3')
        for kb in range(16):
            a(f'ds_read_b64_tr_b16 {v(32+4*kb,2)}, v3 offset:{4096*kb}'); a(f'ds_read_b64_tr_b16 {v(34+4*kb,2)}, v3 offset:{4096*kb+512}')
            if kb % 4 == 3: a('s_waitcnt lgkmcnt(0)')
        a(f'v_lshlrev_b32 v24, 16, v28'); a(f'v_and_b32 v25, {HIM}, v28'); a('v_lshlrev_b32 v26, 16, v29'); a(f'v_and_b32 v27, {HIM}, v29')
        self.xvoff(3, 1024, YB, 4)
        a('v_and_b32 v4, 1, v1'); a('v_lshlrev_b32 v4, 7, v4'); a('v_lshrrev_b32 v5, 4, v1'); a('v_lshl_add_u32 v4, v5, 3, v4')
        a('s_lshl_b32 s5, s81, 5'); a(f's_add_u32 s5, s5, {HB}'); a('v_add_u32 v4, s5, v4')
        c0 = -2.0 * 1.4426950408889634 * 0.7978845608028654
        import struct
        f2u = lambda x: struct.unpack('<I', struct.pack('<f', x))[0]
        a(f's_mov_b32 s82, {f2u(c0):#x}'); a(f'v_mov_b32 v5, {f2u(c0*0.044715):#x}')
        self.stamp(8)
        a('s_barrier')
        for kb in range(16): a(f'ds_read_b128 {v(96+4*kb,4)}, v3 offset:{64*kb}')
        for kb in range(16):
            a(f's_waitcnt lgkmcnt({15-kb})')
            a(f'v_mfma_f32_16x16x32_bf16 v[20:23], {v(32+4*kb,4)}, {v(96+4*kb,4)}, {"0" if kb == 0 else "v[20:23]"}')
        for r in range(4): a(f'v_add_f32 v{20+r}, v{20+r}, v{24+r}')
        for r in range(4): a(f'v_mul_f32 v{8+r}, v{20+r}, v{20+r}')
        for r in range(4): a(f'v_fma_f32 v{8+r}, v{8+r}, v5, s82')
        for r in range(4): a(f'v_mul_f32 v{8+r}, v{8+r}, v{20+r}')
        for r in range(4): a(f'v_exp_f32 v{8+r}, v{8+r}')
        for r in range(4): a(f'v_add_f32 v{8+r}, 1.0, v{8+r}')
        for r in range(4): a(f'v_rcp_f32 v{8+r}, v{8+r}')
        for r in range(4): a(f'v_mul_f32 v{8+r}, v{8+r}, v{20+r}')
        a('v_cvt_pk_bf16_f32 v8, v8, v9'); a('v_cvt_pk_bf16_f32 v9, v10, v11')
        a('s_mov_b32 exec_lo, 0x00030003'); a('s_mov_b32 exec_hi, 0x00030003'); a('ds_write_b64 v4, v[8:9]'); a('s_mov_b64 exec, -1')
        a('s_waitcnt lgkmcnt(0)')
        self.stamp(3)
        a('s_barrier')
        self.end()
        a('L_c_last:')
        a('s_waitcnt lgkmcnt(0)'); a('s_barrier')
        self.end()

    def build(self):
        a = self.a
        a(f'; @launch grid=(256,1,1) block=(768,1,1) lds={LDS_BYTES}')
        a('.amdgcn_target "amdgcn-amd-amdhsa--gfx950"'); a('.text'); a(f'.globl {KNAME}'); a('.p2align 8'); a(f'.type {KNAME},@function'); a(f'{KNAME}:')
        a('s_cmp_ge_u32 s2, 256'); a('s_cbranch_scc1 L_exit')
        self.srd(['K', 'V', 'WS', 'DBG'])
        a('v_lshrrev_b32 v2, 6, v0'); a('v_and_b32 v1, 63, v0'); a('v_readfirstlane_b32 s3, v2')
        self.stamp_init()
        a('s_and_b32 s5, s2, 7'); a('s_lshr_b32 s4, s2, 3'); a('s_cmp_eq_u32 s5, 0'); a('s_cbranch_scc1 L_tail')
        a('s_mul_i32 s6, s4, 37'); a('s_lshr_b32 s6, s6, 8'); a('s_mul_i32 s6, s6, 7'); a('s_sub_u32 s6, s4, s6'); a('s_add_u32 s6, s6, 1')
        a('s_cmp_eq_u32 s5, s6'); a('s_cbranch_scc1 L_head')
        a('s_cmp_gt_u32 s5, s6'); a('s_cselect_b32 s6, 2, 1')
        a('s_mul_i32 s4, s4, 6'); a('s_add_u32 s4, s4, s5'); a('s_sub_u32 s4, s4, s6')
        self.attention()
        a('L_head:')
        self.head()
        a('L_tail:')
        self.tail()
        a('L_exit:'); a('s_endpgm')
        nn = a.fix()
        a('.section .rodata,"a"'); a('.p2align 6'); a(f'.amdhsa_kernel {KNAME}')
        for l in ['next_free_vgpr 168', 'next_free_sgpr 102', 'accum_offset 168', 'group_segment_fixed_size 0', 'kernarg_size 120',
                  'user_sgpr_count 2', 'user_sgpr_kernarg_segment_ptr 1', 'system_sgpr_workgroup_id_x 1']:
            a.L.append(f'  .amdhsa_{l}')
        a('.end_amdhsa_kernel')
        return a.text(), nn

if __name__ == '__main__':
    import argparse
    p = argparse.ArgumentParser()
    p.add_argument('-o', default='k.s'); p.add_argument('--dbg', action='store_true'); p.add_argument('--slow', action='store_true')
    p.add_argument('--thr', type=int, default=3); p.add_argument('--vpre', type=int, default=6); p.add_argument('--vextra', type=int, default=1)
    p.add_argument('--dq', type=int, default=4); p.add_argument('--dwo', type=int, default=16); p.add_argument('--dl', type=int, default=4)
    p.add_argument('--n1', type=int, default=2); p.add_argument('--n2', type=int, default=2); p.add_argument('--qsleep', type=int, default=0); p.add_argument('--qdelay', type=int, default=0); p.add_argument('--mcpol', default='nt'); p.add_argument('--dl0', type=int, default=8); p.add_argument('--wowait', type=int, default=1); p.add_argument('--thr2', type=int, default=3); p.add_argument('--nlast', type=int, default=0); p.add_argument('--early', type=int, default=0); p.add_argument('--dw1', type=int, default=16); p.add_argument('--qsets', type=int, default=1); p.add_argument('--hsets', type=int, default=1); p.add_argument('--hsleep', type=int, default=1); p.add_argument('--prio', type=int, default=0); p.add_argument('--early2', type=int, default=1); p.add_argument('--fakeq', type=int, default=0); p.add_argument('--dbg2', default=None)
    p.add_argument('--wpol', default='nt'); p.add_argument('--kvpol', default='nt')
    g = p.parse_args()
    t, nn = Gen(dbg=g.dbg, thr=g.thr, vpre=g.vpre, vextra=g.vextra, force_slow=g.slow, wpol=g.wpol, kvpol=g.kvpol, dq=g.dq, dwo=g.dwo, dl=g.dl, n1=g.n1, n2=g.n2, qsleep=g.qsleep, qdelay=g.qdelay, mcpol=g.mcpol, dl0=g.dl0, wo_wait=g.wowait, thr2=g.thr2, nlast=g.nlast, early=g.early, dw1=g.dw1, qsets=g.qsets, hsets=g.hsets, hsleep=g.hsleep, prio=g.prio, early2=g.early2, fakeq=g.fakeq, dbg2=tuple(map(int, g.dbg2.split(','))) if g.dbg2 else None).build()
    open(g.o, 'w').write(t)
    print('wrote', g.o, 'lines', t.count('\n'), 'nop states', nn)
```

```python
import sys
from asmlib import Asm
KNAME = 'adaLN_cond__gqa_block_cached__mixer_channel_mlp__decode_kernel'

AUXREG = 0x8000
ASTR = 117 * 128
A_OFF, P2_OFF, MR_OFF, Q_OFF, X1_OFF, ST_OFF, H_OFF, MC_OFF = 0, 4096, 8192, 9216, 10240, 10368, 10624, 10752
MO_BASE = 0x80000
TS_BASE = 0x200000
WS_NREC = 0x400000
L0 = 65536
H_, LNX, QP, MP, RP, IMA, IMS, YB, QT, OB, ZR, HB, SMALL, CNT = [L0 + x for x in
    (0, 2304, 6400, 14592, 18688, 22784, 26880, 30976, 33280, 33792, 34432, 34816, 35328, 35840)]
YSTR, OSTR, HSTR = 1088, 320, 1088
C_MODE, C_CLR, C_LN, C_MC, C_H, C_Q, C_MR, C_W1 = [4 * i for i in range(8)]
LDS_BYTES = L0 + 35904
QL, MW, FW, AF, PART = 0, 1024, 1536, 1792, 2048
K_, V_, WS, DBG, X_, WQ, WO, W1, B1, W2, B2, C_, WM, OUT = [f's[{8+4*i}:{11+4*i}]' for i in range(14)]
SRDN = dict(K=8, V=12, WS=16, DBG=20, X=24, WQ=28, WO=32, W1=36, B1=40, W2=44, B2=48, C=52, WM=56, OUT=60)
KOFF = dict(X=0, K=8, V=16, WQ=24, WO=32, W1=48, B1=56, W2=64, B2=72, C=80, WM=88, OUT=96, DBG=104, WS=112)
NREC = dict(X=2048, K=0x2000000, V=0x2000000, WQ=0x400000, WO=0x400000, W1=1835008, B1=3584, W2=1835008, B2=1024,
            C=2048, WM=3145728, OUT=2048, DBG=256, WS=WS_NREC)
BM = [f's[{64+2*u}:{65+2*u}]' for u in range(4)]
ML2 = 's[72:73]'
SEL = ['s74', 's75']
HIM = 's76'
LOG2E = 's77'
SMODE = 's78'
STMP = 's79'
EPO = 's96'
TAG = 's97'
POLLC = 's98'
POLL_MAX = 40000
LOG2E_F = 0x3fb8aa3b

def v(b, n=1): return f'v{b}' if n == 1 else f'v[{b}:{b+n-1}]'

class Gen:
    def __init__(self, dbg=False, thr=3, vpre=8, vextra=4, force_slow=False, wpol='nt', kvpol='nt', dq=16, dwo=8, dl=4, n1=2, n2=2, qsleep=0, qdelay=0, mcpol='nt', dl0=4, wo_wait=1, thr2=3, nlast=0, early=0, dw1=16, qsets=4, hsets=2, hsleep=4, prio=1, early2=1, fakeq=0, dbg2=None, lite=0, touch=0, dry=1, pipe=0, thr0=3, nfirst=0, ibsts=1, warm=1):
        self.a = Asm(); self.n = 0; self.dbg = dbg; self.thr = thr; self.vpre = vpre; self.vextra = vextra
        self.n1 = n1; self.n2 = n2; self.qsleep = qsleep; self.qdelay = qdelay; self.mcpol = mcpol; self.dl0 = dl0; self.wo_wait = wo_wait; self.thr2 = thr2; self.nlast = nlast; self.early = early; self.dw1 = dw1; self.qsets = qsets; self.hsets = hsets; self.hsleep = hsleep; self.prio = prio; self.early2 = early2; self.fakeq = fakeq; self.dbg2 = dbg2; self.lite = lite; self.touch = touch; self.dry = dry; self.pipe = pipe; self.thr0 = thr0; self.nfirst = nfirst; self.ibsts = ibsts; self.warm = warm; self.dq = dq; self.dwo = dwo; self.dl = dl; self.force_slow = force_slow; self.wpol = wpol; self.kvpol = kvpol
    def lab(self, p='L'):
        self.n += 1; return f'{p}_{self.n}'
    def srd(self, names):
        a = self.a
        for nm in names: a(f's_load_dwordx2 s[{SRDN[nm]}:{SRDN[nm]+1}], s[0:1], {KOFF[nm]}')
        for nm in names:
            a(f's_mov_b32 s{SRDN[nm]+2}, {NREC[nm]:#x}'); a(f's_mov_b32 s{SRDN[nm]+3}, 0x20000')
    def consts(self):
        a = self.a
        for u in range(4):
            m = 0x000f000f << (4 * u)
            a(f's_mov_b32 s{64+2*u}, {m:#x}'); a(f's_mov_b32 s{65+2*u}, {m:#x}')
        a('s_mov_b32 s72, 0xcccccccc'); a('s_mov_b32 s73, 0xcccccccc')
        a('s_mov_b32 s74, 0x05040100'); a('s_mov_b32 s75, 0x07060302')
        a('s_mov_b32 s76, 0xffff0000'); a(f's_mov_b32 s77, {LOG2E_F:#x}')
    def stamp(self, i):
        if not self.dbg: return
        if self.lite and i not in (0, 15): return
        self.a(f's_memrealtime s[100:101]\ns_waitcnt lgkmcnt(0)\nv_writelane_b32 v0, s100, {i}')
    def cstamp(self, i):
        if not self.dbg: return
        self.a(f's_memtime s[100:101]\ns_waitcnt lgkmcnt(0)\nv_writelane_b32 v0, s100, {i}')
    def stamp_init(self):
        if not self.dbg: return
        self.a('v_mov_b32 v0, 0')
        self.stamp(0); self.cstamp(13)
    def end(self):
        a = self.a
        if self.dbg:
            self.stamp(15); self.cstamp(14)
            a('s_mov_b64 exec, 0xffff')
            a('s_mul_i32 s5, s2, 12'); a('s_add_u32 s5, s5, s3'); a('s_lshl_b32 s5, s5, 6'); a(f's_add_u32 s5, s5, {TS_BASE}')
            a('v_lshlrev_b32 v2, 2, v1')
            a(f'buffer_store_dword v0, v2, {WS}, s5 offen')
            if self.dbg2:
                l = self.lab('LK')
                a(f's_cmp_lg_u32 s2, {self.dbg2[0]}'); a(f's_cbranch_scc1 {l}'); a(f's_cmp_lg_u32 s3, {self.dbg2[1]}'); a(f's_cbranch_scc1 {l}')
                a('v_readlane_b32 s5, v0, 0'); a('v_subrev_u32 v0, s5, v0')
                a('s_mov_b64 exec, 0xfffc'); a(f'buffer_store_dword v0, v2, {DBG}, 0 offen')
                a(f'{l}:')
        a('s_endpgm')
    def poll(self, loads, regs, tmp, zero=False, sleep=0, pre=None):
        a = self.a; lp = self.lab('LP'); ld = self.lab('LD')
        a(f's_mov_b32 {POLLC}, 0'); a(f'{lp}:')
        for s in loads: a(s)
        a('s_waitcnt vmcnt(0)')
        op = 'min' if zero else 'max'
        rs = list(regs)
        if len(rs) == 1: src = rs[0]
        else:
            src = tmp
            if len(rs) % 2 == 0: a(f'v_{op}_u32 v{tmp}, v{rs[0]}, v{rs[1]}'); rs = rs[2:]
            else: a(f'v_{op}3_u32 v{tmp}, v{rs[0]}, v{rs[1]}, v{rs[2]}'); rs = rs[3:]
            while rs: a(f'v_{op}3_u32 v{tmp}, v{tmp}, v{rs[0]}, v{rs[1]}'); rs = rs[2:]
        a(f'v_cmp_eq_u32 vcc, {0 if zero else -1}, v{src}')
        a(f's_cbranch_vccz {ld}')
        if sleep: a(f's_sleep {sleep}')
        a(f's_add_u32 {POLLC}, {POLLC}, 1'); a(f's_cmp_lt_u32 {POLLC}, {POLL_MAX}'); a(f's_cbranch_scc1 {lp}')
        a(f'{ld}:')
    def spoll(self, base, offs, zero=False, sleep=2, ge=None):
        a = self.a; lp = self.lab('LS'); ld = self.lab('LT')
        a(f's_mov_b32 {POLLC}, 0'); a(f'{lp}:')
        for i, o in enumerate(offs): a(f's_load_dword s{88+i}, {base}, {o:#x} glc')
        a('s_waitcnt lgkmcnt(0)')
        if ge is not None:
            a('s_and_b32 s89, s88, 0x3f'); a(f's_cmp_ge_u32 s89, {ge}')
        else:
            for i in range(1, len(offs)): a(f's_{"min" if zero else "max"}_u32 s88, s88, s{88+i}')
            a(f's_cmp_lg_u32 s88, {0 if zero else -1}')
        a(f's_cbranch_scc1 {ld}')
        if sleep: a(f's_sleep {sleep}')
        a(f's_add_u32 {POLLC}, {POLLC}, 1'); a(f's_cmp_lt_u32 {POLLC}, {POLL_MAX}'); a(f's_cbranch_scc1 {lp}')
        a(f'{ld}:')
    def tag_load(self):
        self.a(f's_load_dword {EPO}, s[16:17], 0x0')
    def tag_make(self):
        a = self.a
        a('s_waitcnt lgkmcnt(0)'); a(f's_mul_i32 {TAG}, {EPO}, 0x9e3779b1'); a(f's_add_u32 {TAG}, {TAG}, 0x85ebca6b')
    def tpoll(self, loads, tagregs, sleep=0):
        a = self.a; lp = self.lab('LQ'); ld = self.lab('LR')
        a(f's_mov_b32 {POLLC}, 0'); a(f'{lp}:')
        for s_ in loads: a(s_)
        a('s_waitcnt vmcnt(0)')
        for i, r in enumerate(tagregs):
            if i == 0: a(f'v_cmp_ne_u32 vcc, {TAG}, v{r}')
            else: a(f'v_cmp_ne_u32 s[88:89], {TAG}, v{r}'); a('s_or_b64 vcc, vcc, s[88:89]')
        a('s_cmp_eq_u64 vcc, 0'); a(f's_cbranch_scc1 {ld}')
        if sleep: a(f's_sleep {sleep}')
        a(f's_add_u32 {POLLC}, {POLLC}, 1'); a(f's_cmp_lt_u32 {POLLC}, {POLL_MAX}'); a(f's_cbranch_scc1 {lp}')
        a(f'{ld}:')
    def tpoll_pipe(self, mk, nld, base, dst, sets, gap):
        a = self.a; lp = self.lab('LU'); ld = self.lab('LV'); outs = [self.lab('LO') for _ in range(sets)]
        for k in range(sets - 1):
            for s_ in mk(base + 4 * nld * k): a(s_)
            if gap: a(f's_sleep {gap}')
        a(f's_mov_b32 {POLLC}, 0'); a(f'{lp}:')
        for k in range(sets):
            kn = (k + sets - 1) % sets
            for s_ in mk(base + 4 * nld * kn): a(s_)
            a(f's_waitcnt vmcnt({nld * (sets - 1)})')
            b = base + 4 * nld * k
            for i in range(2 * nld):
                if i == 0: a(f'v_cmp_ne_u32 vcc, {TAG}, v{b+1}')
                else: a(f'v_cmp_ne_u32 s[88:89], {TAG}, v{b+1+2*i}'); a('s_or_b64 vcc, vcc, s[88:89]')
            a('s_cmp_eq_u64 vcc, 0'); a(f's_cbranch_scc1 {outs[k]}')
            if gap: a(f's_sleep {gap}')
        a(f's_add_u32 {POLLC}, {POLLC}, 1'); a(f's_cmp_lt_u32 {POLLC}, {POLL_MAX}'); a(f's_cbranch_scc1 {lp}')
        for k in range(sets):
            a(f'{outs[k]}:')
            b = base + 4 * nld * k
            for i in range(nld): a(f'v_mov_b32 v{dst+2*i}, v{b+4*i}'); a(f'v_mov_b32 v{dst+2*i+1}, v{b+4*i+2}')
            if k < sets - 1: a(f's_branch {ld}')
        a(f'{ld}:')
    def ex(self, lo, hi):
        self.a(f's_and_b32 exec_lo, {lo:#x}, s94'); self.a(f's_and_b32 exec_hi, {hi:#x}, s95')
    def exfull(self): self.a('s_mov_b64 exec, s[94:95]')
    def bar(self):
        l = self.lab('LB'); self.a(f's_cbranch_execz {l}'); self.a('s_barrier'); self.a(f'{l}:')
    def dry_begin(self, label):
        a = self.a
        a(f's_mov_b64 s[94:95], {0 if self.dry else -1}'); a('s_mov_b64 exec, s[94:95]'); a(f'{label}:')
    def dry_end(self, label):
        a = self.a; l = self.lab('LN')
        a(f's_cbranch_execnz {l}'); a('s_mov_b64 s[94:95], -1'); a('s_mov_b64 exec, -1'); a(f's_branch {label}'); a(f'{l}:')
    def ppoll(self, mk, nld, nregs, bases, tmp, consume):
        a = self.a; lp = self.lab('LP'); ld = self.lab('LD'); o = [self.lab('LO') for _ in bases]
        if not self.pipe:
            self.poll(mk(bases[0]), range(bases[0], bases[0] + nregs), tmp); consume(bases[0]); return
        for s_ in mk(bases[0]): a(s_)
        a(f's_mov_b32 {POLLC}, 0'); a(f'{lp}:')
        for k, b in enumerate(bases):
            for s_ in mk(bases[1 - k]): a(s_)
            a(f's_waitcnt vmcnt({nld})')
            rs = list(range(b, b + nregs))
            if len(rs) % 2 == 0: a(f'v_max_u32 v{tmp}, v{rs[0]}, v{rs[1]}'); rs = rs[2:]
            else: a(f'v_max3_u32 v{tmp}, v{rs[0]}, v{rs[1]}, v{rs[2]}'); rs = rs[3:]
            while rs: a(f'v_max3_u32 v{tmp}, v{tmp}, v{rs[0]}, v{rs[1]}'); rs = rs[2:]
            a(f'v_cmp_eq_u32 vcc, -1, v{tmp}'); a(f's_cbranch_vccz {o[k]}')
        a(f's_add_u32 {POLLC}, {POLLC}, 1'); a(f's_cmp_lt_u32 {POLLC}, {POLL_MAX}'); a(f's_cbranch_scc1 {lp}')
        a(f'{o[1]}:'); consume(bases[1]); a(f's_branch {ld}')
        a(f'{o[0]}:'); consume(bases[0])
        a(f'{ld}:')
    def arrive(self, c, t0, t1, val=1):
        a = self.a
        a(f'v_mov_b32 v{t0}, {CNT + c}'); a(f'v_mov_b32 v{t1}, {val}' if isinstance(val, int) else f'v_mov_b32 v{t1}, {val}')
        a('s_mov_b64 exec, 1'); a(f'ds_add_u32 v{t0}, v{t1}'); a('s_mov_b64 exec, -1')
    def waitc(self, c, target, t0, t1, dst=STMP):
        a = self.a; lp = self.lab('LW'); ld = self.lab('LX')
        a(f'v_mov_b32 v{t0}, {CNT + c}'); a(f's_mov_b32 {POLLC}, 0'); a(f'{lp}:')
        a(f'ds_read_b32 v{t1}, v{t0}'); a('s_waitcnt lgkmcnt(0)'); a(f'v_readfirstlane_b32 {dst}, v{t1}')
        a(f's_cmp_ge_u32 {dst}, {target}'); a(f's_cbranch_scc1 {ld}')
        a('s_sleep 1'); a(f's_add_u32 {POLLC}, {POLLC}, 1'); a(f's_cmp_lt_u32 {POLLC}, {POLL_MAX*8}'); a(f's_cbranch_scc1 {lp}')
        a(f'{ld}:')
    def pub(self, ins):
        a = self.a; lf = self.lab('LF'); ld = self.lab('LG')
        a(f's_cmp_eq_u32 {SMODE}, 2'); a(f's_cbranch_scc1 {lf}')
        a(ins + ' sc1'); a(f's_branch {ld}'); a(f'{lf}:'); a(ins); a(f'{ld}:')
    def rnd2(self, x, y, t):
        a = self.a
        a(f'v_cvt_pk_bf16_f32 v{t}, v{x}, v{y}'); a(f'v_lshlrev_b32 v{x}, 16, v{t}'); a(f'v_and_b32 v{y}, {HIM}, v{t}')
    def rowsum(self, x, op='add'):
        for n in (8, 4, 2, 1): self.a(f'v_{op}_f32_dpp v{x}, v{x}, v{x} row_ror:{n} row_mask:0xf bank_mask:0xf')
    def xrows(self, x, t, op='add'):
        a = self.a
        a(f'v_mov_b32 v{t}, v{x}'); a(f'v_permlane16_swap_b32 v{x}, v{t}'); a(f'v_{op}_f32 v{x}, v{x}, v{t}')
        a(f'v_mov_b32 v{t}, v{x}'); a(f'v_permlane32_swap_b32 v{x}, v{t}'); a(f'v_{op}_f32 v{x}, v{x}, v{t}')
    def wavesum(self, x, t): self.rowsum(x); self.xrows(x, t)
    def red4rows(self, o):
        a = self.a
        a(f'v_permlane32_swap_b32 v{o}, v{o+2}'); a(f'v_permlane32_swap_b32 v{o+1}, v{o+3}')
        a(f'v_add_f32 v{o}, v{o}, v{o+2}'); a(f'v_add_f32 v{o+1}, v{o+1}, v{o+3}')
        a(f'v_permlane16_swap_b32 v{o}, v{o+1}'); a(f'v_add_f32 v{o}, v{o}, v{o+1}')
    def silu4(self, r, t):
        a = self.a
        a('s_mov_b32 s99, 0x7e800000')
        for i in range(4):
            lo, hi, e0, e1 = t, t + 1, t + 2, t + 3
            a(f'v_lshlrev_b32 v{lo}, 16, v{r+i}'); a(f'v_and_b32 v{hi}, {HIM}, v{r+i}')
            a(f'v_mul_f32 v{e0}, {LOG2E}, v{lo}'); a(f'v_mul_f32 v{e1}, {LOG2E}, v{hi}')
            a(f'v_exp_f32 v{e0}, -v{e0}'); a(f'v_exp_f32 v{e1}, -v{e1}')
            a(f'v_add_f32 v{e0}, 1.0, v{e0}'); a(f'v_add_f32 v{e1}, 1.0, v{e1}')
            r0, r1, q0, q1 = t + 4, t + 5, t + 6, t + 7
            a(f'v_rcp_f32 v{r0}, v{e0}'); a(f'v_rcp_f32 v{r1}, v{e1}')
            a(f'v_mul_f32 v{q0}, v{lo}, v{r0}'); a(f'v_mul_f32 v{q1}, v{hi}, v{r1}')
            a(f'v_cmp_gt_f32 s[88:89], s99, v{e0}'); a(f'v_fma_f32 v{lo}, -v{q0}, v{e0}, v{lo}'); a(f'v_fma_f32 v{lo}, v{lo}, v{r0}, v{q0}')
            a(f'v_cndmask_b32 v{lo}, v{q0}, v{lo}, s[88:89]')
            a(f'v_cmp_gt_f32 s[90:91], s99, v{e1}'); a(f'v_fma_f32 v{hi}, -v{q1}, v{e1}, v{hi}'); a(f'v_fma_f32 v{hi}, v{hi}, v{r1}, v{q1}')
            a(f'v_cndmask_b32 v{hi}, v{q1}, v{hi}, s[90:91]')
            a(f'v_cvt_pk_bf16_f32 v{r+i}, v{lo}, v{hi}')
    def transpose(self, raw, dst, jjs=range(4)):
        for jj in jjs:
            for m in range(8):
                self.a(f'v_perm_b32 v{dst+4*m+jj}, v{raw+4*(2*jj+1)+(m>>1)}, v{raw+4*(2*jj)+(m>>1)}, {SEL[m&1]}')
    def gemv_fly(self, raw, xrep, first, xv=8, T=12, acc=20):
        a = self.a
        for u in range(4):
            for i in range(4): a(f'v_cndmask_b32 v{xv+i}, 0, v{xrep+i}, {BM[u]}')
            for e in range(2):
                for jj in range(4):
                    a(f'v_perm_b32 v{T+4*e+jj}, v{raw+4*(2*jj+1)+u}, v{raw+4*(2*jj)+u}, {SEL[e]}')
            for e in range(2):
                c = '0' if (first and u == 0) else v(acc + 4 * e, 4)
                a(f'v_mfma_f32_16x16x32_bf16 {v(acc+4*e,4)}, {v(T+4*e,4)}, {v(xv,4)}, {c}')
    def merge(self, acc):
        for r in range(4): self.a(f'v_cndmask_b32 v{acc+r}, v{acc+r}, v{acc+4+r}, {ML2}')
    def sanitize(self, r, n):
        pass
    def unit_loads(self, raw, voff, srd, sbase, rs, rows=None, pol=None, depth=None, prior=99, hook=None):
        a = self.a; pol = self.wpol if pol is None else pol
        for j in range(8):
            off = (rows[j] if rows else j) * rs
            if depth and prior + j >= depth: a(f's_waitcnt vmcnt({depth-1})')
            if off < 4096: a(f'buffer_load_dwordx4 {v(raw+4*j,4)}, v{voff}, {srd}, {sbase} offen offset:{off} {pol}')
            else:
                a(f's_add_u32 s7, {sbase}, {off}')
                a(f'buffer_load_dwordx4 {v(raw+4*j,4)}, v{voff}, {srd}, s7 offen {pol}')
            if hook and j == min(hook[0], 7): a(hook[1])
    def wvoff(self, dst, rs, t):
        a = self.a
        a(f'v_lshrrev_b32 v{dst}, 4, v1'); a(f'v_mul_u32_u24 v{dst}, {8*rs}, v{dst}')
        a(f'v_and_b32 v{t}, 15, v1'); a(f'v_lshl_add_u32 v{dst}, v{t}, 4, v{dst}')
    def xvoff(self, dst, bstride, base, t):
        a = self.a
        a(f'v_and_b32 v{dst}, 1, v1'); a(f'v_mul_u32_u24 v{dst}, {bstride}, v{dst}')
        a(f'v_lshrrev_b32 v{t}, 4, v1'); a(f'v_lshl_add_u32 v{dst}, v{t}, 4, v{dst}')
        if base: a(f'v_add_u32 v{dst}, {base}, v{dst}')

    def attention(self):
        a = self.a
        a('s_mov_b32 s5, 0x15555556'); a('s_mul_hi_u32 s80, s4, s5')
        a('s_mul_i32 s5, s80, 12'); a('s_sub_u32 s81, s4, s5')
        a('s_cmp_lt_u32 s81, 8'); a('s_cselect_b32 s82, 11, 10')
        a('s_cmp_ge_u32 s3, 11'); a('s_cbranch_scc1 L_att_ctl')
        a('s_cmp_ge_u32 s3, s82'); a('s_cbranch_scc1 L_exit')
        a('s_min_u32 s5, s81, 8'); a('s_mul_i32 s6, s81, 10'); a('s_add_u32 s5, s5, s6'); a('s_lshl_b32 s5, s5, 14')
        a('s_lshl_b32 s6, s80, 21'); a('s_add_u32 s5, s5, s6'); a('s_lshl_b32 s6, s3, 10'); a('s_add_u32 s83, s5, s6')
        a('s_lshl_b32 s84, s82, 10')
        a('v_bfe_u32 v3, v1, 2, 2'); a('v_lshlrev_b32 v3, 8, v3'); a('v_lshrrev_b32 v4, 4, v1'); a('v_lshl_add_u32 v3, v4, 6, v3')
        a('v_and_b32 v4, 3, v1'); a('v_lshl_add_u32 v3, v4, 4, v3')
        a('v_lshlrev_b32 v2, 4, v1')
        a('s_mov_b32 s85, s83')
        a('s_waitcnt lgkmcnt(0)')
        KB, VB = 32, 96
        issued = [0]
        def thr(d):
            if issued[0] >= d: a(f's_waitcnt vmcnt({d-1})')
        for t in range(16):
            thr(self.thr0 if t < self.nfirst else self.thr)
            a(f'buffer_load_dwordx4 {v(KB+4*t,4)}, v3, {K_}, s85 offen {self.kvpol}')
            if t < 15: a('s_add_u32 s85, s85, s84')
            issued[0] += 1
            if t == 0: self.stamp(10)
            if t == 7: self.stamp(7)
            if t == 15: self.stamp(8)
            if t == min(self.thr, self.thr0) - 1:
                self.consts()
                a('v_and_b32 v28, 3, v1'); a('v_lshlrev_b32 v29, 8, v28'); a('v_lshrrev_b32 v30, 2, v1'); a('v_lshl_add_u32 v29, v30, 4, v29')
                a('s_lshl_b32 s5, s3, 5'); a('v_lshl_add_u32 v28, v28, 3, s5')
                a(f'v_mov_b32 v27, {AF}')
                a('s_mov_b32 s86, 0x3db504f3'); a('s_mov_b32 s92, 0'); a('s_mov_b64 s[94:95], -1')
                a('s_barrier')
        vorder = [8 * bk + x for bk in range(2) for x in (0, 4, 1, 5, 2, 6, 3, 7)]
        for i in range(16):
            if i >= self.thr: a('s_call_b64 s[90:91], L_att_chk')
            else: a(f's_waitcnt vmcnt({self.thr - 1})')
            a(f's_mul_i32 s85, s84, {vorder[i]}'); a('s_add_u32 s85, s85, s83')
            a(f'buffer_load_dwordx4 {v(VB+4*i,4)}, v2, {V_}, s85 offen {self.kvpol}')
            if i == 7: self.stamp(9)
        self.stamp(1)
        a('s_cmp_lt_i32 s92, 0'); a('s_cbranch_scc1 L_att_pv')
        self.lspin(27, 0, 1, 26)
        a('s_call_b64 s[90:91], L_att_qk')
        a('L_att_pv:')
        a('s_lshl_b32 s5, s3, 11'); a(f's_add_u32 s5, s5, {PART}'); a('v_add_u32 v3, s5, v2')
        a('s_cmp_lg_u32 s3, 0'); a('s_cbranch_scc1 L_att_pv2')
        self.att_red_addr(0)
        self.att_factors()
        a('L_att_pv2:')
        for bk in range(2):
            raw = VB + 32 * bk; T = 64 if bk == 0 else 96
            for jj in range(4):
                a(f's_waitcnt vmcnt({16 - 8*bk - 2*jj - 2})')
                self.transpose(raw, T, [jj])
            if bk == 1: self.stamp(4)
            for m in range(8):
                c = '0' if (bk == 0 and m < 2) else v(160 + 4 * (m & 1), 4)
                a(f'v_mfma_f32_16x16x32_bf16 {v(160+4*(m&1),4)}, {v(T+4*m,4)}, {v(KB+16*bk+4*(m>>1),4)}, {c}')
        a('ds_write_b128 v3, v[160:163]'); a('ds_write_b128 v3, v[164:167] offset:1024')
        a('s_waitcnt lgkmcnt(0)')
        a('s_cbranch_execz L_att_red')
        a('s_cmp_eq_u32 s3, 0'); a('s_cbranch_scc1 L_att_red')
        a('s_barrier')
        self.end()
        a('L_att_chk:')
        a('s_cmp_lt_i32 s92, 0'); a('s_cbranch_scc1 L_att_w2')
        a('s_cmp_gt_i32 s92, 0'); a('s_cbranch_scc1 L_att_cd')
        a('s_mov_b32 s93, 0')
        a('L_att_sp:')
        a('ds_read_b32 v26, v27'); a('s_waitcnt lgkmcnt(0)'); a('v_readfirstlane_b32 s5, v26')
        a('s_cmp_lg_u32 s5, 0'); a('s_cbranch_scc1 L_att_fl')
        if self.ibsts:
            a('s_getreg_b32 s5, hwreg(HW_REG_IB_STS, 0, 4)'); a(f's_cmp_lt_u32 s5, {self.thr}'); a('s_cbranch_scc1 L_att_wt')
            a('s_add_u32 s93, s93, 1'); a('s_cmp_lt_u32 s93, 24'); a('s_cbranch_scc1 L_att_sp')
        a('L_att_wt:')
        a(f's_waitcnt vmcnt({self.thr - 1})')
        a('s_setpc_b64 s[90:91]')
        a('L_att_w2:')
        a(f's_waitcnt vmcnt({self.thr2 - 1})')
        a('s_setpc_b64 s[90:91]')
        a('L_att_fl:')
        a(f's_mov_b32 s92, {self.vextra + 1}')
        a('L_att_cd:')
        a('s_sub_u32 s92, s92, 1'); a('s_cmp_eq_u32 s92, 0'); a('s_cbranch_scc1 L_att_qk')
        a('s_setpc_b64 s[90:91]')
        a('L_att_qk:')
        self.stamp(2)
        a(f'ds_read_b128 v[4:7], v29 offset:{QL}')
        a('s_mov_b32 s92, -1')
        a('s_waitcnt lgkmcnt(0)')
        Dr = lambda t: 12 + 4 * t if t < 3 else KB + 4 * (t - 3)
        def dpp(dst, s0, s1, n, bm=0xf): a(f'v_add_f32_dpp v{dst}, v{s0}, v{s1} row_ror:{n} row_mask:0xf bank_mask:{bm:#x}')
        def lvl1(t):
            u = t & 3; D = Dr(t)
            dpp(D + u, D + ((u + 1) & 3), D + u, 12); dpp(D + ((u + 2) & 3), D + ((u + 3) & 3), D + ((u + 2) & 3), 12)
        def lvl2(t):
            u = t & 3; D = Dr(t)
            dpp(8 + (t >> 2), D + ((u + 2) & 3), D + u, 8, 1 << u)
        for t in range(21):
            if t < 16: a(f'v_mfma_f32_16x16x32_bf16 {v(Dr(t),4)}, {v(KB+4*t,4)}, v[4:7], 0')
            if 4 <= t < 20: lvl1(t - 4)
            if t >= 5: lvl2(t - 5)
        def rnd4():
            a('v_cvt_pk_bf16_f32 v12, v8, v9'); a('v_cvt_pk_bf16_f32 v13, v10, v11')
            a('v_lshlrev_b32 v8, 16, v12'); a(f'v_and_b32 v9, {HIM}, v12'); a('v_lshlrev_b32 v10, 16, v13'); a(f'v_and_b32 v11, {HIM}, v13')
        rnd4()
        for i in range(4): a(f'v_mul_f32 v{8+i}, s86, v{8+i}')
        rnd4()
        a('v_max3_f32 v12, v8, v9, v10'); a('v_max_f32 v12, v12, v11')
        a('v_max_f32_dpp v12, v12, v12 row_ror:4 row_mask:0xf bank_mask:0xf')
        a('v_max_f32_dpp v12, v12, v12 row_ror:8 row_mask:0xf bank_mask:0xf')
        self.xrows(12, 13, 'max')
        a(f'v_mul_f32 v14, {LOG2E}, v12')
        for i in range(4): a(f'v_fma_f32 v{8+i}, v{8+i}, {LOG2E}, -v14')
        for i in range(4): a(f'v_exp_f32 v{8+i}, v{8+i}')
        for u in range(4): a(f'v_cndmask_b32 v{20+u}, 0, -1, {BM[u]}')
        a('v_cvt_pk_bf16_f32 v16, v8, v9'); a('v_add_f32 v13, v8, v9'); a('v_cvt_pk_bf16_f32 v17, v10, v11'); a('v_add_f32 v18, v10, v11')
        chain = ['v_add_f32 v13, v13, v18', 'v_add_f32_dpp v13, v13, v13 row_ror:4 row_mask:0xf bank_mask:0xf',
                 'v_add_f32_dpp v13, v13, v13 row_ror:8 row_mask:0xf bank_mask:0xf', 'v_mov_b32 v18, v13', 'v_permlane16_swap_b32 v13, v18',
                 'v_add_f32 v13, v13, v18', 'v_mov_b32 v18, v13', 'v_permlane32_swap_b32 v13, v18', 'v_add_f32 v13, v13, v18', 'v_mov_b32 v14, 1']
        cnt = 0
        for u in range(4):
            for bk in range(2):
                for jj in range(4):
                    n = (4 * (u - jj)) % 16
                    c = f'row_ror:{n}' if n else 'quad_perm:[0,1,2,3]'
                    a(f'v_and_b32_dpp v{KB+16*bk+4*u+jj}, v{16+bk}, v{20+u} {c} row_mask:0xf bank_mask:0xf')
                    cnt += 1
                    if cnt % 3 == 0 and chain: a(chain.pop(0))
        self.ex(0xf, 0); a(f'ds_write_b64 v28, v[12:13] offset:{MW}')
        self.ex(1, 0); a('ds_add_u32 v27, v14 offset:4'); self.exfull()
        self.stamp(3)
        a('s_setpc_b64 s[90:91]')
        a('L_att_ctl:')
        a('s_setprio 3')
        a('v_lshlrev_b32 v2, 4, v1')
        a('v_mov_b32 v16, 0xff800000'); a('v_mov_b32 v17, 0'); a('v_lshlrev_b32 v6, 3, v1'); a(f'ds_write_b64 v6, v[16:17] offset:{MW}')
        for i in range(4): a(f'v_mov_b32 v{8+i}, -1'); a(f'v_mov_b32 v{12+i}, 0')
        a(f'v_mov_b32 v27, {AF}'); a('ds_write_b128 v27, v[12:15]')
        a(f'ds_write_b128 v2, v[12:15] offset:{PART+10*2048}'); a(f'ds_write_b128 v2, v[12:15] offset:{PART+10*2048+1024}')
        a('s_waitcnt lgkmcnt(0)')
        a('s_barrier')
        self.tag_load()
        self.att_red_addr(1)
        a('s_and_b32 s84, s80, 7'); a('s_lshl_b32 s84, s84, 2'); a(f's_mul_i32 s84, s84, {ASTR}'); a(f's_add_u32 s84, s84, {AUXREG}')
        a('s_lshr_b32 s85, s80, 3')
        a(f'buffer_store_dwordx4 v[8:11], v2, {WS}, s87 offen sc1'); a(f'buffer_store_dwordx4 v[8:11], v2, {WS}, s87 offen offset:1024 sc1')
        if self.warm:
            a('v_mov_b32 v29, 0'); a('v_mov_b32 v28, 0'); a('v_mov_b32 v3, 0')
            a('s_mov_b64 s[94:95], 0'); a('s_mov_b64 exec, 0')
            a('s_call_b64 s[90:91], L_att_qk')
            a('s_branch L_att_pv2')
            a('L_att_wd:')
            a('s_mov_b64 exec, -1')
        a('s_mov_b64 s[94:95], -1')
        a('v_mov_b32 v12, 0'); a('v_lshlrev_b32 v6, 3, v1'); a(f'v_mov_b32 v27, {AF}')
        a('v_lshrrev_b32 v7, 5, v1'); a(f'v_mul_u32_u24 v24, {ASTR}, v7'); a('v_and_b32 v16, 31, v1'); a('v_lshl_add_u32 v24, v16, 4, v24')
        a('v_lshlrev_b32 v25, 8, v7'); a('v_lshl_add_u32 v25, v16, 3, v25')
        a('s_lshl_b32 s5, s85, 9'); a('s_add_u32 s86, s84, s5'); a(f's_add_u32 s86, s86, {Q_OFF}'); a(f's_add_u32 s83, s86, {2*ASTR}')
        a(f's_mov_b32 {LOG2E}, {LOG2E_F:#x}')
        self.tag_make()
        if self.qdelay: a(f's_sleep {self.qdelay}')
        self.stamp(1)
        if not self.fakeq: self.tpoll_pipe(lambda b: [f'buffer_load_dwordx4 {v(b,4)}, v24, {WS}, s86 offen sc1', f'buffer_load_dwordx4 {v(b+4,4)}, v24, {WS}, s83 offen sc1'],
                        2, 80, 16, self.qsets, self.qsleep)
        a('v_mov_b32 v26, 1')
        a(f'ds_write_b64 v25, v[16:17] offset:{QL}'); a(f'ds_write_b64 v25, v[18:19] offset:{QL+512}')
        a('ds_write_b32 v27, v26')
        self.stamp(2)
        a('s_mov_b64 exec, 1')
        self.poll([f'buffer_load_dword v16, v12, {DBG}, 0 offen offset:128 sc1'], [16], 17, zero=True, sleep=2)
        a('s_mov_b64 exec, -1')
        a('v_and_b32 v3, 3, v1'); a(f'v_mul_u32_u24 v7, {ASTR}, v3')
        a('s_mul_i32 s5, s85, 12'); a('s_add_u32 s5, s5, s81'); a('s_lshl_b32 s5, s5, 3'); a('s_add_u32 s5, s5, s84'); a(f's_add_u32 s86, s5, {ST_OFF}')
        self.lspin(27, 4, 's82', 26)
        a(f'ds_read_b64 v[18:19], v6 offset:{MW}'); a('s_waitcnt lgkmcnt(0)')
        a('v_max_f32_dpp v16, v18, v18 row_ror:4 row_mask:0xf bank_mask:0xf')
        a('v_max_f32_dpp v16, v16, v16 row_ror:8 row_mask:0xf bank_mask:0xf')
        self.xrows(16, 17, 'max')
        a('v_sub_f32 v18, v18, v16'); a(f'v_mul_f32 v18, {LOG2E}, v18'); a('v_exp_f32 v18, v18')
        a('v_lshlrev_b32 v6, 2, v1'); a('v_mul_f32 v17, v18, v19')
        a(f'ds_write_b32 v6, v18 offset:{FW}'); a('v_mov_b32 v26, 1'); a('ds_write_b32 v27, v26 offset:8')
        a('v_add_f32_dpp v17, v17, v17 row_ror:4 row_mask:0xf bank_mask:0xf')
        a('v_add_f32_dpp v17, v17, v17 row_ror:8 row_mask:0xf bank_mask:0xf')
        self.xrows(17, 18)
        self.sanitize(16, 2)
        a('s_mov_b64 exec, 0xf'); a(f'buffer_store_dwordx2 v[16:17], v7, {WS}, s86 offen sc1'); a('s_mov_b64 exec, -1')
        self.stamp(3)
        self.att_factors()
        a('L_att_red:')
        self.bar()
        self.stamp(5)
        for w in range(11): a(f'ds_read_b128 {v(32+4*w,4)}, v31 offset:{2048*w}')
        for w in range(11):
            a(f's_waitcnt lgkmcnt({10-w})')
            for r in range(4):
                if w == 0: a(f'v_mul_f32 v{32+r}, v{32+r}, v12')
                else: a(f'v_fmac_f32 v{32+r}, v{32+4*w+r}, v{12+w}')
        self.sanitize(32, 4)
        a(f'buffer_store_dwordx4 v[32:35], v30, {WS}, s87 offen sc1')
        if self.warm: a('s_cbranch_execz L_att_wd')
        self.stamp(6)
        if self.dbg: a('s_waitcnt vmcnt(0)')
        self.end()

    def lspin(self, va, off, target, t):
        a = self.a; lp = self.lab('LY'); ld = self.lab('LZ')
        a(f's_mov_b32 {POLLC}, 0'); a(f'{lp}:')
        a(f'ds_read_b32 v{t}, v{va} offset:{off}'); a('s_waitcnt lgkmcnt(0)'); a(f'v_readfirstlane_b32 {STMP}, v{t}')
        a(f's_cmp_ge_u32 {STMP}, {target}'); a(f's_cbranch_scc1 {ld}')
        a('s_sleep 1'); a(f's_add_u32 {POLLC}, {POLLC}, 1'); a(f's_cmp_lt_u32 {POLLC}, {POLL_MAX*8}'); a(f's_cbranch_scc1 {lp}')
        a(f'{ld}:')

    def att_factors(self):
        a = self.a
        self.lspin(27, 8, 1, 26)
        a('v_and_b32 v26, 3, v1'); a('v_lshlrev_b32 v26, 2, v26')
        for w in range(11): a(f'ds_read_b32 v{12+w}, v26 offset:{FW+16*w}')
        a('s_waitcnt lgkmcnt(0)')

    def code_touch(self, hi, nbytes, t):
        a = self.a; here = self.lab('LH')
        a('s_getpc_b64 s[92:93]'); a(f'{here}:')
        a(f's_mov_b32 s94, {hi}-{here}'); a('s_mov_b32 s95, 0x20000')
        a(f'v_lshlrev_b32 v{t}, 6, v1')
        for i in range(0, nbytes, 4096):
            a(f's_mov_b32 s5, {i}'); a(f'buffer_load_dword v{t+1}, v{t}, s[92:95], s5 offen')

    def att_red_addr(self, e):
        a = self.a
        a('s_lshl_b32 s87, s4, 11'); a(f's_add_u32 s87, s87, {MO_BASE}')
        a('v_and_b32 v30, 3, v1'); a('v_lshlrev_b32 v30, 9, v30'); a('v_lshrrev_b32 v31, 2, v1'); a('v_lshl_add_u32 v30, v31, 4, v30')
        if e: a(f'v_add_u32 v30, {256*e}, v30')
        a(f'v_add_u32 v31, {PART + 1024*e}, v2')

    def xcc_inc(self, dst):
        a = self.a
        a('s_getreg_b32 s5, hwreg(HW_REG_XCC_ID)'); a('s_and_b32 s5, s5, 7')
        a('s_mul_i32 s6, s5, s5'); a('s_lshl_b32 s6, s6, 16'); a('s_lshl_b32 s5, s5, 8'); a('s_add_u32 s5, s5, s6'); a(f's_add_u32 {dst}, s5, 1')

    def lds_init(self):
        a = self.a
        a('v_mov_b32 v8, 0'); a('v_lshlrev_b32 v9, 2, v1'); a(f'v_add_u32 v10, {ZR}, v9'); a('ds_write_b32 v10, v8')
        a(f'v_add_u32 v10, {CNT}, v9'); a('s_mov_b64 exec, 0xffff'); a('ds_write_b32 v10, v8'); a('s_mov_b64 exec, -1')

    def reduce_parts(self, base, n, dst=96):
        a = self.a
        a(f'v_add_u32 v3, {base}, v2')
        for w in range(n): a(f'ds_read_b128 {v(dst+4*w,4)}, v3 offset:{1024*w}')
        a('s_waitcnt lgkmcnt(0)')
        for w in range(1, n):
            for r in range(4): a(f'v_add_f32 v{dst+r}, v{dst+r}, v{dst+4*w+r}')

    def ln_x(self):
        a = self.a
        for i in range(4): a(f'v_lshlrev_b32 v{12+2*i}, 16, v{40+i}'); a(f'v_and_b32 v{13+2*i}, {HIM}, v{40+i}')
        a('v_add_f32 v20, v12, v13')
        for i in range(2, 8): a(f'v_add_f32 v20, v20, v{12+i}')
        self.wavesum(20, 21)
        a('v_mul_f32 v20, 0x3b000000, v20')
        a('v_mov_b32 v22, 0')
        for i in range(8): a(f'v_sub_f32 v21, v{12+i}, v20'); a('v_fmac_f32 v22, v21, v21')
        self.wavesum(22, 21)
        a('v_mul_f32 v22, 0x3b000000, v22')
        self.rnd2(20, 22, 21)
        a('v_add_f32 v22, 0x3727c5ac, v22'); self.rnd2(22, 23, 21)
        a('v_sqrt_f32 v22, v22'); self.rnd2(22, 23, 21)
        a('v_rcp_f32 v23, v22')
        for i in range(8): a(f'v_sub_f32 v{12+i}, v{12+i}, v20')
        for i in range(4): self.rnd2(12 + 2 * i, 13 + 2 * i, 21)
        for i in range(8):
            a(f'v_mul_f32 v24, v{12+i}, v23'); a(f'v_fma_f32 v25, -v24, v22, v{12+i}'); a(f'v_fma_f32 v{12+i}, v25, v23, v24')
        for i in range(4): self.rnd2(12 + 2 * i, 13 + 2 * i, 21)
        a('v_lshlrev_b32 v21, 5, v1'); a('s_lshl_b32 s5, s81, 1'); a(f's_add_u32 s5, s5, {LNX}'); a('v_add_u32 v21, s5, v21')
        a('ds_write_b128 v21, v[12:15]'); a('ds_write_b128 v21, v[16:19] offset:16')
        self.arrive(C_LN, 8, 9)

    def head(self):
        a = self.a
        a(f's_mul_i32 s80, s4, {ASTR}'); a(f's_add_u32 s80, s80, {AUXREG}')
        a('v_lshlrev_b32 v2, 4, v1')
        a('s_cmp_ge_u32 s3, 4'); a('s_cbranch_scc1 L_h_q')
        self.srd(['WM', 'C']); self.consts()
        self.wvoff(5, 6144, 4); self.xvoff(6, 1024, 0, 4)
        a('s_and_b32 s5, s4, 1'); a('s_lshl_b32 s5, s5, 8'); a('s_lshl_b32 s6, s3, 6'); a('s_add_u32 s85, s5, s6')
        a('s_mul_i32 s5, s85, 6144'); a('s_lshr_b32 s6, s4, 1'); a('s_lshl_b32 s6, s6, 8'); a('s_add_u32 s86, s5, s6'); a('s_add_u32 s86, s86, 2048')
        a('s_lshl_b32 s85, s85, 1')
        for i in range(4): a(f'v_mov_b32 v{8+i}, -1')
        a(f's_add_u32 s5, s80, {MR_OFF}')
        a('s_waitcnt lgkmcnt(0)')
        a('s_cmp_lg_u32 s3, 0'); a('s_cbranch_scc1 L_h_nc')
        a(f'buffer_store_dwordx4 v[8:11], v2, {WS}, s5 offen sc1')
        self.tag_load()
        a('L_h_nc:')
        a(f'buffer_load_dwordx4 v[160:163], v6, {C_}, s85 offen'); a(f'buffer_load_dwordx4 v[164:167], v6, {C_}, s85 offen offset:64')
        a('s_cmp_lg_u32 s3, 3'); a('s_cbranch_scc1 L_h_ni')
        self.lds_init(); a('s_waitcnt lgkmcnt(0)')
        a('L_h_ni:')
        a('s_barrier')
        a('s_cmp_lg_u32 s3, 0'); a('s_cbranch_scc1 L_h_wh')
        a('v_mov_b32 v12, 1'); a('v_mov_b32 v13, 0')
        a('v_lshrrev_b32 v3, 3, v1'); a(f'v_mul_u32_u24 v4, {ASTR}, v3'); a('v_and_b32 v7, 7, v1'); a('v_lshl_add_u32 v4, v7, 4, v4')
        a('v_lshlrev_b32 v3, 5, v3'); a('v_bfe_u32 v7, v1, 2, 1'); a(f'v_mul_u32_u24 v7, {HSTR}, v7'); a('v_add_u32 v3, v3, v7'); a('v_and_b32 v7, 3, v1'); a('v_lshl_add_u32 v3, v7, 3, v3')
        a(f'v_add_u32 v3, {H_}, v3')
        self.tag_make()
        a('s_waitcnt vmcnt(2)')
        a('s_mov_b64 exec, 1'); a(f'buffer_atomic_add v12, v13, {DBG}, 0 offen sc1'); a('s_mov_b64 exec, -1')
        self.stamp(1)
        for i in range(4): a(f's_mov_b32 s{81+i}, {AUXREG+H_OFF+8*i*ASTR}')
        self.tpoll_pipe(lambda b: [f'buffer_load_dwordx4 {v(b+4*i,4)}, v4, {WS}, s{81+i} offen sc1' for i in range(4)], 4, 32, 16, self.hsets, self.hsleep)
        for i in range(4): a(f'ds_write_b64 v3, {v(16+2*i,2)} offset:{256*i}')
        self.arrive(C_H, 8, 9)
        self.stamp(3)
        a('L_h_wh:')
        a('s_waitcnt vmcnt(0)')
        self.silu4(160, 8); self.silu4(164, 8)
        self.waitc(C_W1, 1, 8, 9)
        self.unit_loads(96, 5, WM, 's86', 6144, depth=self.dwo, prior=0)
        a(f's_add_u32 s86, s86, {32*6144}'); self.unit_loads(64, 5, WM, 's86', 6144, depth=self.dwo, prior=8)
        a('s_waitcnt vmcnt(8)')
        self.gemv_fly(96, 160, True)
        a('s_waitcnt vmcnt(0)')
        self.gemv_fly(64, 164, False)
        a('s_lshl_b32 s5, s3, 10'); a(f's_add_u32 s5, s5, {RP}'); a('v_add_u32 v3, s5, v2')
        self.merge(20); a('ds_write_b128 v3, v[20:23]')
        self.arrive(C_MR, 8, 9)
        a('s_cmp_lg_u32 s3, 1'); a('s_cbranch_scc1 L_h_end')
        self.waitc(C_MR, 4, 8, 9); self.reduce_parts(RP, 4); self.sanitize(96, 4)
        a(f's_add_u32 s5, s80, {MR_OFF}'); a(f'buffer_store_dwordx4 v[96:99], v2, {WS}, s5 offen sc1')
        self.stamp(8)
        a('L_h_end:')
        self.end()
        a('L_h_q:')
        self.srd(['WQ']); self.consts()
        a('v_lshrrev_b32 v3, 4, v1'); a('v_lshlrev_b32 v3, 14, v3'); a('v_and_b32 v4, 15, v1'); a('v_lshl_add_u32 v3, v4, 4, v3')
        qrows = [8 * (j & 3) + (j >> 2) for j in range(8)]
        a('s_sub_u32 s81, s3, 4')
        a('s_lshl_b32 s5, s81, 19'); a('s_lshl_b32 s6, s4, 8'); a('s_add_u32 s82, s5, s6')
        a('s_waitcnt lgkmcnt(0)')
        self.tag_load()
        self.stamp(1)
        self.unit_loads(32, 3, WQ, 's82', 8192, qrows, depth=self.dq, prior=0, hook=(self.dq - 1, 's_barrier'))
        a(f's_add_u32 s82, s82, {32*8192}'); self.unit_loads(64, 3, WQ, 's82', 8192, qrows, depth=self.dq, prior=8)
        self.stamp(2)
        a('s_waitcnt vmcnt(8)'); self.transpose(32, 96)
        a('s_waitcnt vmcnt(0)'); self.transpose(64, 128)
        self.stamp(3)
        self.xvoff(28, HSTR, H_, 29)
        a('s_lshl_b32 s6, s81, 7'); a('v_add_u32 v28, s6, v28'); a(f'v_mov_b32 v29, {ZR}')
        for u in range(4): a(f'v_cndmask_b32 v{24+u}, v29, v28, {BM[u]}')
        a('s_lshl_b32 s5, s81, 10'); a(f's_add_u32 s5, s5, {QP}'); a('v_add_u32 v3, s5, v2')
        self.waitc(C_H, 1, 8, 9)
        self.stamp(4)
        self.gemv2(24, 32, 96, 64)
        self.merge(64); a('ds_write_b128 v3, v[64:67]')
        self.arrive(C_Q, 8, 9)
        a('s_cmp_lg_u32 s3, 4'); a('s_cbranch_scc1 L_h_end')
        a('v_lshrrev_b32 v10, 4, v1'); a('v_lshlrev_b32 v10, 5, v10'); a('v_bfe_u32 v11, v1, 1, 3'); a('v_add_u32 v10, v10, v11')
        a('v_and_b32 v11, 1, v1'); a('v_lshl_add_u32 v10, v11, 7, v10'); a('v_lshlrev_b32 v10, 1, v10'); a(f'v_add_u32 v10, {QT}, v10')
        a('v_lshlrev_b32 v11, 3, v1'); a(f'v_add_u32 v11, {QT}, v11')
        self.tag_make()
        self.waitc(C_Q, 8, 8, 9); self.reduce_parts(QP, 8)
        a('v_cvt_pk_bf16_f32 v96, v96, v97'); a('v_cvt_pk_bf16_f32 v98, v98, v99')
        a('ds_write_b16 v10, v96'); a('ds_write_b16_d16_hi v10, v96 offset:16')
        a('ds_write_b16 v10, v98 offset:32'); a('ds_write_b16_d16_hi v10, v98 offset:48')
        a('s_waitcnt lgkmcnt(0)'); a('ds_read_b64 v[100:101], v11')
        a(f'v_mov_b32 v97, {TAG}'); a(f'v_mov_b32 v99, {TAG}')
        a(f's_add_u32 s5, s80, {Q_OFF}')
        a('s_waitcnt lgkmcnt(0)')
        a('v_mov_b32 v96, v100'); a('v_mov_b32 v98, v101')
        a(f'buffer_store_dwordx4 v[96:99], v2, {WS}, s5 offen sc1')
        self.arrive(C_W1, 8, 9)
        self.stamp(5)
        self.end()

    def pollcnt(self, off):
        a = self.a; lp = self.lab('LC'); ld = self.lab('LE')
        a(f's_mov_b32 {POLLC}, 0'); a(f'{lp}:')
        a(f'buffer_load_dword v14, v13, {DBG}, 0 offen offset:{off} sc1'); a('s_waitcnt vmcnt(0)')
        a('v_and_b32 v15, 63, v14'); a('v_cmp_gt_u32 vcc, 32, v15'); a(f's_cbranch_vccz {ld}')
        a('s_sleep 1'); a(f's_add_u32 {POLLC}, {POLLC}, 1'); a(f's_cmp_lt_u32 {POLLC}, {POLL_MAX}'); a(f's_cbranch_scc1 {lp}')
        a(f'{ld}:')

    def gemv2(self, xa, xr, T, acc):
        a = self.a
        for kb in range(2):
            for u in range(4): a(f'ds_read_b128 {v(xr+16*kb+4*u,4)}, v{xa+u} offset:{64*kb}')
        for kb in range(2):
            for m in range(8):
                if m % 2 == 0: a(f's_waitcnt lgkmcnt({7 - 4*kb - m//2})')
                c = '0' if (kb == 0 and m < 2) else v(acc + 4 * (m & 1), 4)
                a(f'v_mfma_f32_16x16x32_bf16 {v(acc+4*(m&1),4)}, {v(T+32*kb+4*m,4)}, {v(xr+16*kb+4*(m>>1),4)}, {c}')

    def getmode(self):
        self.waitc(C_MODE, 1, 8, 9, SMODE)

    def tail(self):
        a = self.a
        a(f's_mul_i32 s80, s4, {ASTR}'); a(f's_add_u32 s80, s80, {AUXREG}')
        a('v_lshlrev_b32 v2, 4, v1')
        a('s_cmp_ge_u32 s3, 8'); a('s_cbranch_scc1 L_tail_c')
        a('s_cmp_ge_u32 s3, 4'); a('s_cbranch_scc1 L_tail_b')
        self.tail_a(); self.tail_b(); self.tail_c()

    def tail_a(self):
        a = self.a
        self.srd(['WO', 'OUT', 'X']); self.consts()
        a('s_sub_u32 s5, s3, 1'); a('s_and_b32 s5, s5, 1'); a('s_lshl_b32 s81, s5, 10')
        a('s_waitcnt lgkmcnt(0)')
        a(f'buffer_load_dwordx4 v[40:43], v2, {X_}, s81 offen')
        self.tag_load()
        a('s_barrier')
        rows = [8 * (j & 3) + 2 * (j >> 2) for j in range(8)]
        a('v_lshrrev_b32 v3, 5, v1'); a('v_lshlrev_b32 v3, 15, v3'); a('v_bfe_u32 v4, v1, 4, 1'); a('v_lshl_add_u32 v3, v4, 12, v3')
        a('v_and_b32 v4, 15, v1'); a('v_lshl_add_u32 v39, v4, 4, v3')
        a('s_lshl_b32 s5, s4, 17'); a('s_lshl_b32 s6, s3, 8'); a('s_add_u32 s87, s5, s6')
        if self.early:
            a(f's_add_u32 s82, s87, {(64 + 1)*1024}')
            self.unit_loads(136, 39, WO, 's82', 1024, rows)
        a('s_cmp_eq_u32 s3, 0'); a('s_cbranch_scc1 L_a_h1'); a('s_cmp_eq_u32 s3, 3'); a('s_cbranch_scc1 L_a_wo')
        a(f's_waitcnt vmcnt({8 if self.early else 0})')
        self.ln_x()
        a('s_branch L_a_wo')
        a('L_a_h1:')
        a('v_lshrrev_b32 v3, 5, v1'); a('v_lshlrev_b32 v3, 4, v3'); a('v_bfe_u32 v4, v1, 3, 2'); a('v_add_u32 v3, v3, v4'); a(f'v_mul_u32_u24 v3, {ASTR}, v3')
        a('v_and_b32 v4, 7, v1'); a('v_lshl_add_u32 v3, v4, 4, v3')
        a('s_lshr_b32 s5, s4, 3'); a(f's_mul_i32 s5, s5, {4*ASTR}'); a('s_and_b32 s6, s4, 7'); a('s_lshl_b32 s6, s6, 7'); a('s_add_u32 s5, s5, s6')
        a(f's_add_u32 s82, s5, {AUXREG+MC_OFF}')
        a('s_lshr_b32 s5, s4, 1'); a('s_lshl_b32 s5, s5, 5'); a('s_and_b32 s6, s4, 1'); a('s_lshl_b32 s6, s6, 2'); a('s_add_u32 s5, s5, s6'); a('s_lshl_b32 s5, s5, 2')
        a(f's_add_u32 s5, s5, {LNX}')
        a('v_bfe_u32 v5, v1, 1, 2'); a('v_and_b32 v6, 1, v1'); a('v_lshlrev_b32 v7, 4, v5'); a('v_lshl_add_u32 v7, v6, 6, v7')
        a('v_lshl_add_u32 v5, v6, 9, v5'); a('v_lshlrev_b32 v5, 2, v5'); a('v_add_u32 v5, s5, v5')
        a(f's_add_u32 s83, s80, {H_OFF}')
        self.waitc(C_LN, 2, 8, 9)
        for r in range(4): a(f'ds_read_b32 v{24+r}, v5 offset:{32*r}')
        self.tag_make()
        self.stamp(7)
        a(f's_mov_b32 {POLLC}, 0'); a('L_a_mp:')
        a(f's_and_b32 s5, {POLLC}, 63'); a('s_cmp_eq_u32 s5, 63'); a('s_cselect_b32 s5, 2048, 0'); a('s_add_u32 s5, s5, s82')
        a(f'buffer_load_dwordx4 v[16:19], v3, {WS}, s5 offen sc1'); a(f'buffer_load_dwordx4 v[20:23], v3, {WS}, s5 offen offset:1024 sc1')
        a('s_waitcnt vmcnt(0)')
        for i, r in enumerate([17, 19, 21, 23]):
            if i == 0: a(f'v_cmp_ne_u32 vcc, {TAG}, v{r}')
            else: a(f'v_cmp_ne_u32 s[88:89], {TAG}, v{r}'); a('s_or_b64 vcc, vcc, s[88:89]')
        a('s_cmp_eq_u64 vcc, 0'); a('s_cbranch_scc1 L_a_mq')
        a(f's_add_u32 {POLLC}, {POLLC}, 1'); a(f's_cmp_lt_u32 {POLLC}, {POLL_MAX}'); a('s_cbranch_scc1 L_a_mp')
        a('L_a_mq:')
        self.stamp(8)
        for r in range(4): a(f'v_add_f32_dpp v{12+r}, v{16+2*r}, v{16+2*r} row_ror:8 row_mask:0xf bank_mask:0xf')
        for r in range(4): a(f'v_mov_b32 v{16+r}, v{12+r}')
        for r in range(4): a(f'v_permlane16_swap_b32 v{12+r}, v{16+r}')
        for r in range(4): a(f'v_add_f32 v{12+r}, v{12+r}, v{16+r}')
        for r in range(4): a(f'v_mov_b32 v{16+r}, v{12+r}')
        for r in range(4): a(f'v_permlane32_swap_b32 v{12+r}, v{16+r}')
        for p in (12, 14, 16, 18): self.rnd2(p, p + 1, 8)
        for r in range(4): a(f'v_add_f32 v{16+r}, 1.0, v{16+r}')
        self.rnd2(16, 17, 8); self.rnd2(18, 19, 8)
        for r in range(4): a(f'v_mul_f32 v{24+r}, v{24+r}, v{16+r}')
        self.rnd2(24, 25, 8); self.rnd2(26, 27, 8)
        for r in range(4): a(f'v_add_f32 v{24+r}, v{24+r}, v{12+r}')
        a('v_cvt_pk_bf16_f32 v24, v24, v25'); a('v_cvt_pk_bf16_f32 v26, v26, v27'); a(f'v_mov_b32 v25, {TAG}'); a(f'v_mov_b32 v27, {TAG}')
        a('s_mov_b64 exec, 0xff'); a(f'buffer_store_dwordx4 v[24:27], v7, {WS}, s83 offen sc1'); a('s_mov_b64 exec, -1')
        self.arrive(C_H, 8, 9)
        self.stamp(9)
        a('L_a_wo:')
        if self.wo_wait: self.waitc(C_H, 1, 8, 9)
        if self.touch:
            a('s_cmp_lg_u32 s3, 3'); a('s_cbranch_scc1 L_a_nt')
            self.code_touch('L_exit', 12288, 8)
            a('L_a_nt:')
        for kb in ([0, 1, 2] if self.early else [3, 0, 1, 2]):
            a(f's_add_u32 s82, s87, {(64*(kb&1) + (kb>>1))*1024}')
            self.unit_loads(40 + 32 * kb, 39, WO, 's82', 1024, rows, depth=self.dl0, prior=0 if kb == 3 else 99)
        for kb in range(4):
            if kb < 3: a(f's_waitcnt vmcnt({16 - 8*kb})')
            self.transpose(40 + 32 * kb, 8 + 32 * kb)
        self.stamp(1)
        self.xvoff(164, OSTR, OB, 165)
        a(f'v_mov_b32 v165, {ZR}')
        for u in range(4): a(f'v_cndmask_b32 v{160+u}, v165, v164, {BM[u]}')
        a('s_lshl_b32 s5, s3, 10'); a('s_add_u32 s81, s80, s5')
        self.waitc(C_MODE, 1, 166, 167, SMODE)
        a('s_cmp_eq_u32 s3, 0'); a('s_cbranch_scc0 L_a_pt')
        a('v_lshrrev_b32 v3, 3, v1'); a(f'v_mul_u32_u24 v3, {ASTR}, v3'); a('v_and_b32 v4, 7, v1'); a('v_lshl_add_u32 v3, v4, 4, v3')
        a('v_lshrrev_b32 v5, 4, v1'); a('v_lshlrev_b32 v5, 2, v5'); a('v_lshl_add_u32 v4, v4, 4, v5')
        a(f'v_add_u32 v7, {SMALL}, v4')
        a('s_lshl_b32 s5, s4, 7')
        for i in range(4): a(f's_add_u32 s{82+i}, s5, {AUXREG + 8*i*ASTR + A_OFF}'); a(f's_add_u32 s{86+i}, s5, {AUXREG + 8*i*ASTR + P2_OFF}')
        a(f's_add_u32 s90, s80, {X1_OFF}')
        a('s_lshr_b32 s5, s4, 1'); a('s_lshl_b32 s5, s5, 5'); a('s_and_b32 s6, s4, 1'); a('s_lshl_b32 s6, s6, 2'); a('s_add_u32 s5, s5, s6'); a('s_lshl_b32 s91, s5, 1')
        a('v_lshrrev_b32 v5, 4, v1'); a('v_lshlrev_b32 v5, 3, v5'); a('v_bfe_u32 v6, v1, 1, 2'); a('v_add_u32 v5, v5, v6')
        a('v_and_b32 v6, 1, v1'); a('v_lshl_add_u32 v5, v6, 9, v5'); a('v_lshlrev_b32 v5, 1, v5')
        a(f's_add_u32 s5, {EPO}, 1'); a('v_mov_b32 v166, s5'); a('v_mov_b32 v167, 0')
        for i in range(8): a(f'buffer_load_dwordx4 v[136:139], v3, {WS}, s{82+i} offen sc1')
        a('s_branch L_a_pu')
        a('L_a_pt:')
        a('v_lshrrev_b32 v5, 2, v1'); a(f'v_mul_u32_u24 v5, {ASTR}, v5'); a('v_and_b32 v6, 3, v1'); a('v_lshl_add_u32 v5, v6, 5, v5')
        a('s_sub_u32 s5, s3, 1'); a('s_and_b32 s5, s5, 1'); a('s_lshl_b32 s6, s5, 4'); a('v_add_u32 v5, s6, v5')
        a('v_lshlrev_b32 v6, 5, v1'); a(f's_add_u32 s6, s6, {IMA}'); a('v_add_u32 v6, s6, v6')
        a('v_lshlrev_b32 v7, 3, v1'); a(f's_mul_i32 s5, s5, {YSTR}'); a(f's_add_u32 s5, s5, {YB}'); a('v_add_u32 v7, s5, v7')
        a(f's_mov_b32 s82, {AUXREG+X1_OFF}'); a(f's_mov_b32 s83, {AUXREG+X1_OFF+16*ASTR}')
        a('s_mov_b32 s84, 0x3b000000'); a('v_mov_b32 v3, 0x3727c5ac')
        for i in range(2): a(f'buffer_load_dwordx4 v[136:139], v5, {WS}, s{82+i} offen sc1')
        a('L_a_pu:')
        a('s_waitcnt vmcnt(0)')
        self.stamp(2)
        self.dry_begin('L_a_go')
        self.bar()
        self.stamp(3)
        X = [136, 8, 24, 40]
        def xread(kb):
            for u in range(4): a(f'ds_read_b128 {v(X[kb]+4*u,4)}, v{160+u} offset:{64*kb}')
        xread(0)
        for kb in range(4):
            if kb: a(f's_waitcnt lgkmcnt({0 if kb == 3 else 4})')
            for m in range(8):
                if kb == 0 and m in (0, 2): a(f's_waitcnt lgkmcnt({3 - m//2})')
                if kb == 0 and m in (4, 6): a(f's_waitcnt lgkmcnt({4 + 3 - m//2})')
                c = '0' if (kb == 0 and m < 2) else v(152 + 4 * (m & 1), 4)
                a(f'v_mfma_f32_16x16x32_bf16 {v(152+4*(m&1),4)}, {v(8+32*kb+4*m,4)}, {v(X[kb]+4*(m>>1),4)}, {c}')
                if kb == 0 and m == 3: xread(1)
                if kb == 0 and m == 7: xread(2)
                if kb == 1 and m == 3: xread(3)
        self.merge(152)
        self.pub(f'buffer_store_dwordx4 v[152:155], v2, {WS}, s81 offen')
        self.stamp(4)
        a('s_cmp_lg_u32 s3, 0'); a('s_cbranch_scc1 L_a_ln')
        for k in range(4): a(f'ds_read_b32 v{72+k}, v7 offset:{128*k}')
        def rs(s0, last_half):
            def mk(b):
                L = [f'buffer_load_dwordx4 {v(b+4*i,4)}, v3, {WS}, s{s0+i} offen sc1' for i in range(4)]
                if last_half: L = L[:3] + ['s_mov_b32 exec_hi, 0', L[3], 's_mov_b32 exec_hi, s95']
                return L
            def consume(b):
                for r in range(4): a(f'v_add_f32 v{156+r}, v{b+r}, v{b+4+r}'); a(f'v_add_f32 v{b+8+r}, v{b+8+r}, v{b+12+r}')
                for r in range(4): a(f'v_add_f32 v{156+r}, v{156+r}, v{b+8+r}')
            self.ppoll(mk, 4, 16, [8, 24] if not last_half else [80, 96], 164, consume)
            self.red4rows(156)
            a('v_add_f32_dpp v156, v156, v156 row_ror:8 row_mask:0xf bank_mask:0xf')
        rs(82, False)
        a('s_waitcnt lgkmcnt(0)')
        a('v_fma_f32 v76, v72, v156, v73')
        self.ex(0x00ff00ff, 0x00ff00ff)
        self.pub(f'buffer_store_dword v76, v4, {WS}, s90 offen')
        self.exfull()
        self.stamp(5)
        for r in range(4): a(f'v_mov_b32 v{92+r}, 0'); a(f'v_mov_b32 v{108+r}, 0')
        a('v_fmac_f32 v76, v74, v75')
        self.bar(); self.bar()
        self.stamp(6)
        rs(86, True)
        a('v_fmac_f32 v76, v74, v156'); a('v_cvt_pk_bf16_f32 v76, v76, v76')
        self.ex(0x00ff00ff, 0x00ff00ff)
        a(f'buffer_store_short v76, v5, {OUT}, s91 offen')
        a('s_cmp_lg_u32 s4, 0'); a('s_cbranch_scc1 L_a_end')
        self.ex(1, 0); a(f'buffer_store_dword v166, v167, {WS}, 0 offen sc1')
        a('L_a_end:')
        self.dry_end('L_a_go')
        self.end()
        a('L_a_ln:')
        a('s_cmp_eq_u32 s3, 3'); a('s_cbranch_scc1 L_a_end')
        a('s_cmp_ge_u32 s4, 28'); a('s_cbranch_scc1 L_a_end')
        a('ds_read_b128 v[72:75], v6'); a('ds_read_b128 v[76:79], v6 offset:2048')
        a(f'ds_read_b128 v[80:83], v6 offset:{IMS-IMA}'); a(f'ds_read_b128 v[84:87], v6 offset:{IMS-IMA+2048}')
        def shift(b):
            a(f'v_readfirstlane_b32 s6, v{b}')
            for i in range(4): a(f'v_pk_add_f32 {v(88+2*i,2)}, {v(b+2*i,2)}, s[6:7] op_sel_hi:[1,0] neg_lo:[0,1] neg_hi:[0,1]')
        self.ppoll(lambda b: [f'buffer_load_dwordx4 {v(b,4)}, v5, {WS}, s82 offen sc1', f'buffer_load_dwordx4 {v(b+4,4)}, v5, {WS}, s83 offen sc1'],
                   2, 8, [8, 16], 164, shift)
        self.stamp(5)
        def stats():
            a('v_pk_mul_f32 v[98:99], v[88:89], v[88:89]'); a('v_pk_add_f32 v[96:97], v[88:89], v[90:91]')
            a('v_pk_fma_f32 v[98:99], v[90:91], v[90:91], v[98:99]'); a('v_pk_add_f32 v[100:101], v[92:93], v[94:95]')
            a('v_pk_fma_f32 v[98:99], v[92:93], v[92:93], v[98:99]'); a('v_pk_add_f32 v[96:97], v[96:97], v[100:101]')
            a('v_pk_fma_f32 v[98:99], v[94:95], v[94:95], v[98:99]')
            a('v_add_f32 v156, v96, v97'); a('v_add_f32 v157, v98, v99')
            a('v_permlane32_swap_b32 v156, v157'); a('v_add_f32 v156, v156, v157')
            a('v_mov_b32 v157, v156'); a('v_permlane16_swap_b32 v156, v157'); a('v_add_f32 v156, v156, v157')
            self.rowsum(156)
            a('v_readlane_b32 s6, v156, 0'); a('v_readlane_b32 s5, v156, 32')
            a('v_mov_b32 v159, s84')
            a('v_mul_f32 v156, s6, v159'); a('v_fma_f32 v158, s5, v159, v3')
            a('v_fma_f32 v158, -v156, v156, v158'); a('v_max_f32 v158, v158, v3'); a('v_rsq_f32 v158, v158')
            for i in range(4): a(f'v_pk_add_f32 {v(88+2*i,2)}, {v(88+2*i,2)}, v[156:157] op_sel_hi:[1,0] neg_lo:[0,1] neg_hi:[0,1]')
        stats()
        a('s_waitcnt lgkmcnt(0)')
        for i in range(4): a(f'v_pk_mul_f32 {v(88+2*i,2)}, {v(88+2*i,2)}, {v(72+2*i,2)}')
        for i in range(4): a(f'v_pk_fma_f32 {v(88+2*i,2)}, {v(88+2*i,2)}, v[158:159], {v(80+2*i,2)} op_sel_hi:[1,0,1]')
        stats()
        for i in range(4): a(f'v_pk_mul_f32 {v(88+2*i,2)}, {v(88+2*i,2)}, v[158:159] op_sel_hi:[1,0]')
        for i in range(4): a(f'v_cvt_pk_bf16_f32 v{88+i}, v{88+2*i}, v{89+2*i}')
        a('ds_write_b64 v7, v[88:89]'); a('ds_write_b64 v7, v[90:91] offset:512')
        a('s_waitcnt lgkmcnt(0)')
        self.stamp(6)
        self.bar()
        a('s_branch L_a_end')

    def tail_b(self):
        a = self.a
        a('L_tail_b:')
        self.srd(['W2']); self.consts()
        a('s_sub_u32 s81, s3, 4')
        self.wvoff(3, 1024, 4)
        a('s_lshl_b32 s5, s4, 16'); a('s_lshl_b32 s6, s81, 8'); a('s_add_u32 s82, s5, s6')
        a('s_waitcnt lgkmcnt(0)')
        a('s_cmp_eq_u32 s3, 5'); a('s_cbranch_scc0 L_b_ni')
        self.lds_init(); a('s_waitcnt lgkmcnt(0)')
        a('L_b_ni:')
        a('s_cmp_eq_u32 s3, 4'); a('s_cbranch_scc0 L_b_nc')
        for i in range(4): a(f'v_mov_b32 v{8+i}, -1')
        for i in range(8):
            if i % 4 == 0: a(f's_add_u32 s5, s80, {(i//4)*4096}')
            a(f'buffer_store_dwordx4 v[8:11], v2, {WS}, s5 offen offset:{(i%4)*1024} sc1')
        a(f's_add_u32 s5, s80, {X1_OFF}')
        a('s_mov_b64 exec, 0xffffff'); a(f'buffer_store_dwordx4 v[8:11], v2, {WS}, s5 offen sc1'); a('s_mov_b64 exec, -1')
        a('s_barrier')
        self.xcc_inc('s85')
        a('v_mov_b32 v12, s85'); a('v_mov_b32 v13, 0')
        a('s_waitcnt vmcnt(0)')
        a('s_mov_b64 exec, 1'); a(f'buffer_atomic_add v12, v13, {DBG}, 0 offen offset:4 sc1'); a('s_mov_b64 exec, -1')
        self.stamp(1)
        a('s_mov_b64 exec, 1')
        a('s_cmp_lg_u32 s4, 0'); a('s_cbranch_scc1 L_b_fl')
        self.pollcnt(4)
        a('v_readfirstlane_b32 s6, v14')
        a('s_lshl_b32 s85, s85, 5'); a('s_cmp_eq_u32 s85, s6'); a(f's_cselect_b32 s85, {1 if self.force_slow else 2}, 1')
        self.pollcnt(0)
        a('v_mov_b32 v16, s85'); a(f'buffer_store_dword v16, v13, {DBG}, 0 offen offset:128 sc1')
        a('s_branch L_b_fm')
        a('L_b_fl:')
        self.poll([f'buffer_load_dword v16, v13, {DBG}, 0 offen offset:128 sc1'], [16], 17, zero=True, sleep=8)
        a('L_b_fm:')
        a('v_readfirstlane_b32 s5, v16'); a('s_mov_b64 exec, -1')
        self.arrive(C_MODE, 8, 9, 's5')
        self.stamp(7)
        a('s_branch L_b_w2')
        a('L_b_nc:')
        a('s_barrier')
        a('L_b_w2:')
        if self.prio: a('s_setprio 2')
        a('s_cmp_ge_u32 s4, 28'); a('s_cbranch_scc1 L_b_now2')
        if self.early2:
            a('s_cmp_eq_u32 s3, 4'); a('s_cbranch_scc1 L_b_e4')
            self.unit_loads(32, 3, W2, 's82', 1024)
            self.waitc(C_H, 1, 8, 9)
            a('s_branch L_b_e5')
            a('L_b_e4:')
            self.unit_loads(32, 3, W2, 's82', 1024)
            a('L_b_e5:')
        else:
            self.waitc(C_H, 1, 8, 9)
            self.unit_loads(32, 3, W2, 's82', 1024, depth=self.dl, prior=1)
        a(f's_add_u32 s82, s82, {32*1024}'); self.unit_loads(64, 3, W2, 's82', 1024, depth=self.dl)
        a('s_waitcnt vmcnt(0)')
        self.transpose(32, 96); self.transpose(64, 128)
        a('L_b_now2:')
        self.stamp(2)
        self.getmode()
        a('s_lshr_b32 s82, s81, 1')
        a('v_lshrrev_b32 v4, 4, v1')
        for i in range(3): a(f'v_add_u32 v{8+i}, {4*i}, v4')
        for i in range(3): a(f'v_lshlrev_b32 v{12+i}, 3, v{8+i}')
        a('s_mul_i32 s5, s82, 96'); a('s_add_u32 s83, s80, s5'); a(f's_add_u32 s83, s83, {ST_OFF}')
        self.poll([f'buffer_load_dwordx2 {v(32+2*i,2)}, v{12+i}, {WS}, s83 offen sc1' for i in range(3)], range(32, 38), 16, sleep=8)
        self.stamp(4)
        a('v_max3_f32 v16, v32, v34, v36'); self.xrows(16, 17, 'max')
        for i in range(3): a(f'v_sub_f32 v{48+i}, v{32+2*i}, v16')
        for i in range(3): a(f'v_mul_f32 v{48+i}, {LOG2E}, v{48+i}')
        for i in range(3): a(f'v_exp_f32 v{48+i}, v{48+i}')
        a('v_mul_f32 v16, v48, v33')
        for i in range(1, 3): a(f'v_fmac_f32 v16, v{48+i}, v{33+2*i}')
        self.xrows(16, 17)
        a('v_rcp_f32 v16, v16')
        for i in range(3): a(f'v_mul_f32 v{48+i}, v{48+i}, v16')
        a('v_and_b32 v5, 15, v1')
        for i in range(3): a(f'v_lshlrev_b32 v{12+i}, 11, v{8+i}'); a(f'v_lshl_add_u32 v{12+i}, v5, 4, v{12+i}')
        a('s_lshl_b32 s5, s82, 3'); a('s_lshr_b32 s6, s4, 2'); a('s_add_u32 s5, s5, s6'); a(f's_mul_i32 s5, s5, {12*2048}')
        a('s_and_b32 s6, s4, 3'); a('s_lshl_b32 s6, s6, 9'); a('s_add_u32 s5, s5, s6')
        a('s_and_b32 s6, s81, 1'); a('s_lshl_b32 s6, s6, 8'); a('s_add_u32 s5, s5, s6'); a(f's_add_u32 s83, s5, {MO_BASE}')
        a('v_lshl_add_u32 v6, v5, 2, v4'); a('v_lshlrev_b32 v6, 1, v6'); a('s_and_b32 s5, s81, 1'); a('s_lshl_b32 s5, s5, 7'); a(f's_mul_i32 s6, s82, {OSTR}'); a('s_add_u32 s5, s5, s6'); a(f's_add_u32 s5, s5, {OB}'); a('v_add_u32 v6, s5, v6')
        self.xvoff(20, OSTR, HB, 21); a(f'v_mov_b32 v21, {ZR}')
        for u in range(4): a(f'v_cndmask_b32 v{24+u}, v21, v20, {BM[u]}')
        a('s_lshl_b32 s5, s81, 10'); a('s_add_u32 s84, s80, s5'); a(f's_add_u32 s84, s84, {P2_OFF}')
        self.dry_begin('L_b_go')
        def comb(b):
            for r in range(4): a(f'v_mul_f32 v{28+r}, v{b+r}, v48')
            for i in range(1, 3):
                for r in range(4): a(f'v_fmac_f32 v{28+r}, v{b+4*i+r}, v{48+i}')
        self.ppoll(lambda b: [f'buffer_load_dwordx4 {v(b+4*i,4)}, v{12+i}, {WS}, s83 offen sc1' for i in range(3)], 3, 12, [32, 52], 16, comb)
        self.stamp(5)
        self.red4rows(28)
        a('v_cvt_pk_bf16_f32 v28, v28, v28'); a('ds_write_b16 v6, v28')
        a('s_waitcnt lgkmcnt(0)'); self.bar()
        a('s_cmp_ge_u32 s4, 28'); a('s_cbranch_scc1 L_b_end')
        a('s_waitcnt vmcnt(0)')
        self.bar(); self.bar()
        self.gemv2(24, 52, 96, 84)
        self.merge(84)
        self.pub(f'buffer_store_dwordx4 v[84:87], v2, {WS}, s84 offen')
        self.stamp(6)
        a('L_b_end:')
        self.dry_end('L_b_go')
        self.end()

    def tail_c(self):
        a = self.a
        a('L_tail_c:')
        self.srd(['WM', 'C', 'W1', 'B1', 'X', 'B2']); self.consts()
        a('s_sub_u32 s81, s3, 8')
        self.wvoff(5, 6144, 4); self.xvoff(6, 1024, 0, 4)
        a('s_and_b32 s5, s4, 3'); a('s_lshl_b32 s5, s5, 7'); a('s_lshl_b32 s6, s81, 5'); a('s_add_u32 s83, s5, s6')
        a('s_mul_i32 s5, s83, 6144'); a('s_lshr_b32 s6, s4, 2'); a('s_lshl_b32 s6, s6, 8'); a('s_add_u32 s84, s5, s6')
        a('s_lshl_b32 s83, s83, 1')
        a('s_waitcnt lgkmcnt(0)')
        a(f'buffer_load_dwordx4 v[156:159], v6, {C_}, s83 offen')
        self.unit_loads(96, 5, WM, 's84', 6144, pol=self.mcpol)
        self.tag_load()
        self.stamp(4)
        a('s_barrier')
        a('s_waitcnt vmcnt(8)')
        self.silu4(156, 8)
        a('s_waitcnt vmcnt(0)')
        self.stamp(5)
        self.gemv_fly(96, 156, True)
        a('s_lshl_b32 s5, s81, 10'); a(f's_add_u32 s5, s5, {MP}'); a('v_add_u32 v4, s5, v2')
        self.merge(20); a('ds_write_b128 v4, v[20:23]')
        self.arrive(C_MC, 8, 9)
        a('s_cmp_lg_u32 s3, 8'); a('s_cbranch_scc1 L_c_w1')
        self.tag_make()
        for i in range(4): a(f'v_mov_b32 v{33+2*i}, {TAG}')
        self.waitc(C_MC, 4, 8, 9); self.reduce_parts(MP, 4)
        for i in range(4): a(f'v_mov_b32 v{32+2*i}, v{96+i}')
        a(f's_add_u32 s5, s80, {MC_OFF}')
        a(f'buffer_store_dwordx4 v[32:35], v2, {WS}, s5 offen'); a(f'buffer_store_dwordx4 v[36:39], v2, {WS}, s5 offen offset:1024')
        a(f'buffer_store_dwordx4 v[32:35], v2, {WS}, s5 offen offset:2048 sc1'); a(f'buffer_store_dwordx4 v[36:39], v2, {WS}, s5 offen offset:3072 sc1')
        self.stamp(6)
        a('L_c_w1:')
        if self.prio: a('s_setprio 1')
        self.waitc(C_H, 1, 8, 9)
        a('s_cmp_eq_u32 s3, 8'); a('s_cbranch_scc1 L_c_fin')
        self.getmode()
        self.stamp(1)
        a('s_cmp_lg_u32 s3, 9'); a('s_cbranch_scc1 L_c_img')
        a('v_and_b32 v4, 7, v1'); a('v_lshlrev_b32 v5, 4, v4')
        a('s_lshr_b32 s5, s4, 1'); a('s_lshl_b32 s5, s5, 5'); a('s_and_b32 s6, s4, 1'); a('s_lshl_b32 s6, s6, 2'); a('s_add_u32 s5, s5, s6'); a('s_lshl_b32 s84, s5, 1')
        a('v_and_b32 v6, 6, v4'); a('v_and_b32 v7, 1, v4'); a('v_lshl_add_u32 v7, v7, 10, v6')
        for r in range(4):
            a(f'buffer_load_ushort v{116+r}, v7, {X_}, s84 offen offset:{16*r}')
            a(f'buffer_load_ushort v{124+r}, v6, {B2}, s84 offen offset:{16*r}')
        a('s_lshr_b32 s5, s4, 3'); a('s_lshl_b32 s5, s5, 1'); a(f's_mul_i32 s5, s5, {ASTR}'); a('s_and_b32 s6, s4, 7'); a('s_lshl_b32 s6, s6, 7')
        a('s_add_u32 s5, s5, s6'); a(f's_add_u32 s85, s5, {AUXREG+MR_OFF}')
        loads = []
        for q in range(2):
            for ks in range(2):
                loads.append(f's_add_u32 s6, s85, {(24*q+ks)*ASTR}')
                loads.append(f'buffer_load_dwordx4 {v(96+8*q+4*ks,4)}, v5, {WS}, s6 offen sc1')
        self.poll(loads, range(96, 112), 8, sleep=16)
        for r in range(4): a(f'v_add_f32 v{112+r}, v{96+r}, v{100+r}'); a(f'v_add_f32 v{120+r}, v{104+r}, v{108+r}')
        for p in (112, 114, 120, 122): self.rnd2(p, p + 1, 8)
        for r in range(4): a(f'v_lshlrev_b32 v{116+r}, 16, v{116+r}'); a(f'v_lshlrev_b32 v{124+r}, 16, v{124+r}')
        a(f'v_add_u32 v5, {SMALL}, v5')
        for k in range(4): a(f'ds_write_b128 v5, {v(112+4*k,4)} offset:{128*k}')
        a('s_branch L_c_fin')
        a('L_c_img:')
        a('s_sub_u32 s5, s3, 10'); a('s_lshl_b32 s5, s5, 4')
        a('v_and_b32 v4, 31, v1'); a('v_lshlrev_b32 v4, 5, v4'); a('v_lshrrev_b32 v5, 5, v1'); a(f'v_mul_u32_u24 v5, {2*ASTR}, v5'); a('v_add_u32 v4, v4, v5'); a('v_add_u32 v4, s5, v4')
        a('v_lshlrev_b32 v5, 5, v1'); a('v_add_u32 v5, s5, v5'); a(f'v_add_u32 v5, {IMA}, v5')
        loads = []
        for q in range(2):
            for i in range(2):
                for ks in range(2):
                    loads.append(f's_mov_b32 s6, {AUXREG + MR_OFF + ((4+4*q+2*i)*2+ks)*ASTR}')
                    loads.append(f'buffer_load_dwordx4 {v(96+16*q+8*i+4*ks,4)}, v4, {WS}, s6 offen sc1')
        self.poll(loads, range(96, 128), 8, sleep=16)
        for q in range(2):
            for i in range(2):
                for r in range(4): a(f'v_add_f32 v{128+8*q+4*i+r}, v{96+16*q+8*i+r}, v{100+16*q+8*i+r}')
        for p in range(128, 144, 2): self.rnd2(p, p + 1, 8)
        for i in range(8): a(f'v_add_f32 v{136+i}, 1.0, v{136+i}')
        for p in range(136, 144, 2): self.rnd2(p, p + 1, 8)
        a('v_add_f32 v10, v128, v129')
        for i in range(2, 8): a(f'v_add_f32 v10, v10, v{128+i}')
        self.wavesum(10, 11); a('v_mul_f32 v10, 0x3b000000, v10')
        for i in range(8): a(f'v_sub_f32 v{128+i}, v{128+i}, v10')
        a('ds_write_b128 v5, v[136:139]'); a('ds_write_b128 v5, v[140:143] offset:2048')
        a(f'ds_write_b128 v5, v[128:131] offset:{IMS-IMA}'); a(f'ds_write_b128 v5, v[132:135] offset:{IMS-IMA+2048}')
        a('L_c_fin:')
        self.stamp(7)
        a('s_cmp_ge_u32 s4, 28'); a('s_cbranch_scc1 L_c_last')
        a('v_bfe_u32 v3, v1, 3, 2'); a('v_lshlrev_b32 v3, 3, v3'); a('v_lshrrev_b32 v4, 5, v1'); a('v_add_u32 v3, v3, v4')
        a('v_mul_u32_u24 v3, 3584, v3'); a('v_and_b32 v4, 7, v1'); a('v_lshl_add_u32 v3, v4, 4, v3')
        a('s_cmp_lg_u32 s3, 8'); a('s_cbranch_scc1 L_c_b1')
        a('s_lshl_b32 s82, s4, 7'); a('s_mov_b32 s83, 0')
        a('L_c_dma:')
        for i in range(4):
            if i: a(f's_add_u32 s5, s82, {2*i*3584}')
            a(f's_add_u32 m0, s83, {1024*i}')
            a(f's_waitcnt vmcnt({self.dw1-1})')
            a(f'buffer_load_dwordx4 v3, {W1}, {"s5" if i else "s82"} offen {self.wpol} lds')
        a(f's_add_u32 s82, s82, {32*3584}'); a('s_add_u32 s83, s83, 4096'); a('s_cmp_lt_u32 s83, 65536'); a('s_cbranch_scc1 L_c_dma')
        a('L_c_b1:')
        a('v_lshrrev_b32 v4, 4, v1'); a('v_lshlrev_b32 v4, 3, v4'); a('s_lshl_b32 s5, s4, 7'); a('s_lshl_b32 s6, s81, 5'); a('s_add_u32 s5, s5, s6')
        a(f'buffer_load_dwordx2 v[28:29], v4, {B1}, s5 offen')
        a('s_waitcnt lgkmcnt(0)')
        self.stamp(2)
        a('s_barrier')
        a('s_waitcnt vmcnt(0)')
        self.arrive(C_W1, 8, 9); self.waitc(C_W1, 4, 8, 9)
        a('v_lshrrev_b32 v3, 4, v1'); a('v_lshlrev_b32 v3, 10, v3'); a('v_bfe_u32 v4, v1, 2, 2'); a('v_lshl_add_u32 v3, v4, 7, v3')
        a('v_and_b32 v4, 3, v1'); a('v_lshl_add_u32 v3, v4, 3, v3'); a('s_lshl_b32 s5, s81, 5'); a('v_add_u32 v3, s5, v3')
        for kb in range(16):
            a(f'ds_read_b64_tr_b16 {v(32+4*kb,2)}, v3 offset:{4096*kb}'); a(f'ds_read_b64_tr_b16 {v(34+4*kb,2)}, v3 offset:{4096*kb+512}')
            if kb % 4 == 3: a('s_waitcnt lgkmcnt(0)')
        a(f'v_lshlrev_b32 v24, 16, v28'); a(f'v_and_b32 v25, {HIM}, v28'); a('v_lshlrev_b32 v26, 16, v29'); a(f'v_and_b32 v27, {HIM}, v29')
        self.xvoff(3, YSTR, YB, 4)
        a('v_and_b32 v4, 1, v1'); a(f'v_mul_u32_u24 v4, {OSTR}, v4'); a('v_lshrrev_b32 v5, 4, v1'); a('v_lshl_add_u32 v4, v5, 3, v4')
        a('s_lshl_b32 s5, s81, 5'); a(f's_add_u32 s5, s5, {HB}'); a('v_add_u32 v4, s5, v4')
        c0 = -2.0 * 1.4426950408889634 * 0.7978845608028654
        import struct
        f2u = lambda x: struct.unpack('<I', struct.pack('<f', x))[0]
        a(f's_mov_b32 s82, {f2u(c0):#x}'); a(f'v_mov_b32 v5, {f2u(c0*0.044715):#x}')
        self.stamp(8)
        self.dry_begin('L_c_go')
        self.bar()
        for kb in range(16): a(f'ds_read_b128 {v(96+4*kb,4)}, v3 offset:{64*kb}')
        for kb in range(16):
            a(f's_waitcnt lgkmcnt({15-kb})')
            a(f'v_mfma_f32_16x16x32_bf16 v[20:23], {v(32+4*kb,4)}, {v(96+4*kb,4)}, {"0" if kb == 0 else "v[20:23]"}')
        for r in range(4): a(f'v_add_f32 v{20+r}, v{20+r}, v{24+r}')
        for r in range(4): a(f'v_mul_f32 v{8+r}, v{20+r}, v{20+r}')
        for r in range(4): a(f'v_fma_f32 v{8+r}, v{8+r}, v5, s82')
        for r in range(4): a(f'v_mul_f32 v{8+r}, v{8+r}, v{20+r}')
        for r in range(4): a(f'v_exp_f32 v{8+r}, v{8+r}')
        for r in range(4): a(f'v_add_f32 v{8+r}, 1.0, v{8+r}')
        for r in range(4): a(f'v_rcp_f32 v{8+r}, v{8+r}')
        for r in range(4): a(f'v_mul_f32 v{8+r}, v{8+r}, v{20+r}')
        a('v_cvt_pk_bf16_f32 v8, v8, v9'); a('v_cvt_pk_bf16_f32 v9, v10, v11')
        self.ex(0x00030003, 0x00030003); a('ds_write_b64 v4, v[8:9]')
        a('s_waitcnt lgkmcnt(0)')
        self.stamp(3)
        self.bar()
        self.dry_end('L_c_go')
        self.end()
        a('L_c_last:')
        a('s_waitcnt lgkmcnt(0)'); a('s_barrier')
        self.end()

    def build(self):
        a = self.a
        a(f'; @launch grid=(256,1,1) block=(768,1,1) lds={LDS_BYTES}')
        a('.amdgcn_target "amdgcn-amd-amdhsa--gfx950"'); a('.text'); a(f'.globl {KNAME}'); a('.p2align 8'); a(f'.type {KNAME},@function'); a(f'{KNAME}:')
        a('s_cmp_ge_u32 s2, 256'); a('s_cbranch_scc1 L_exit')
        self.srd(['K', 'V', 'WS', 'DBG'])
        a('v_lshrrev_b32 v2, 6, v0'); a('v_and_b32 v1, 63, v0'); a('v_readfirstlane_b32 s3, v2')
        self.stamp_init()
        a('s_and_b32 s5, s2, 7'); a('s_lshr_b32 s4, s2, 3'); a('s_cmp_eq_u32 s5, 0'); a('s_cbranch_scc1 L_tail')
        a('s_mul_i32 s6, s4, 37'); a('s_lshr_b32 s6, s6, 8'); a('s_mul_i32 s6, s6, 7'); a('s_sub_u32 s6, s4, s6'); a('s_add_u32 s6, s6, 1')
        a('s_cmp_eq_u32 s5, s6'); a('s_cbranch_scc1 L_head')
        a('s_cmp_gt_u32 s5, s6'); a('s_cselect_b32 s6, 2, 1')
        a('s_mul_i32 s4, s4, 6'); a('s_add_u32 s4, s4, s5'); a('s_sub_u32 s4, s4, s6')
        self.attention()
        a('L_head:')
        self.head()
        a('L_tail:')
        self.tail()
        a('L_exit:'); a('s_endpgm')
        nn = a.fix()
        a('.section .rodata,"a"'); a('.p2align 6'); a(f'.amdhsa_kernel {KNAME}')
        for l in ['next_free_vgpr 168', 'next_free_sgpr 102', 'accum_offset 168', 'group_segment_fixed_size 0', 'kernarg_size 120',
                  'user_sgpr_count 2', 'user_sgpr_kernarg_segment_ptr 1', 'system_sgpr_workgroup_id_x 1']:
            a.L.append(f'  .amdhsa_{l}')
        a('.end_amdhsa_kernel')
        return a.text(), nn

if __name__ == '__main__':
    import argparse
    p = argparse.ArgumentParser()
    p.add_argument('-o', default='k.s'); p.add_argument('--dbg', action='store_true'); p.add_argument('--slow', action='store_true')
    p.add_argument('--thr', type=int, default=3); p.add_argument('--vpre', type=int, default=6); p.add_argument('--vextra', type=int, default=0)
    p.add_argument('--dq', type=int, default=4); p.add_argument('--dwo', type=int, default=16); p.add_argument('--dl', type=int, default=4)
    p.add_argument('--n1', type=int, default=2); p.add_argument('--n2', type=int, default=2); p.add_argument('--qsleep', type=int, default=0); p.add_argument('--qdelay', type=int, default=0); p.add_argument('--mcpol', default='nt'); p.add_argument('--dl0', type=int, default=8); p.add_argument('--wowait', type=int, default=1); p.add_argument('--thr2', type=int, default=3); p.add_argument('--nlast', type=int, default=0); p.add_argument('--early', type=int, default=0); p.add_argument('--dw1', type=int, default=16); p.add_argument('--qsets', type=int, default=1); p.add_argument('--hsets', type=int, default=1); p.add_argument('--hsleep', type=int, default=1); p.add_argument('--prio', type=int, default=0); p.add_argument('--early2', type=int, default=1); p.add_argument('--fakeq', type=int, default=0); p.add_argument('--dbg2', default=None); p.add_argument('--lite', type=int, default=0); p.add_argument('--touch', type=int, default=1); p.add_argument('--dry', type=int, default=0); p.add_argument('--pipe', type=int, default=0); p.add_argument('--thr0', type=int, default=3); p.add_argument('--nfirst', type=int, default=0); p.add_argument('--ibsts', type=int, default=1); p.add_argument('--warm', type=int, default=0)
    p.add_argument('--wpol', default='nt'); p.add_argument('--kvpol', default='nt')
    g = p.parse_args()
    t, nn = Gen(dbg=g.dbg, thr=g.thr, vpre=g.vpre, vextra=g.vextra, force_slow=g.slow, wpol=g.wpol, kvpol=g.kvpol, dq=g.dq, dwo=g.dwo, dl=g.dl, n1=g.n1, n2=g.n2, qsleep=g.qsleep, qdelay=g.qdelay, mcpol=g.mcpol, dl0=g.dl0, wo_wait=g.wowait, thr2=g.thr2, nlast=g.nlast, early=g.early, dw1=g.dw1, qsets=g.qsets, hsets=g.hsets, hsleep=g.hsleep, prio=g.prio, early2=g.early2, fakeq=g.fakeq, dbg2=tuple(map(int, g.dbg2.split(','))) if g.dbg2 else None, lite=g.lite, touch=g.touch, dry=g.dry, pipe=g.pipe, thr0=g.thr0, nfirst=g.nfirst, ibsts=g.ibsts, warm=g.warm).build()
    open(g.o, 'w').write(t)
    print('wrote', g.o, 'lines', t.count('\n'), 'nop states', nn)
```

```python
import sys
from asmlib import Asm
KNAME = 'adaLN_cond__gqa_block_cached__mixer_channel_mlp__decode_kernel'

AUXREG = 0x8000
ASTR = 117 * 128
A_OFF, P2_OFF, MR_OFF, Q_OFF, X1_OFF, ST_OFF, H_OFF, MC_OFF = 0, 4096, 8192, 9216, 10240, 10368, 10624, 10752
MO_BASE = 0x80000
X1G = 0x7e000
TS_BASE = 0x200000
WS_NREC = 0x400000
L0 = 65536
H_, LNX, QP, MP, RP, IMA, IMS, YB, QT, OB, ZR, HB, SMALL, CNT = [L0 + x for x in
    (0, 2304, 6400, 14592, 18688, 22784, 26880, 30976, 33280, 33792, 34464, 34816, 35328, 35840)]
YSTR, OSTR, HSTR = 1152, 384, 1088
C_MODE, C_CLR, C_LN, C_MC, C_H, C_Q, C_MR, C_W1 = [4 * i for i in range(8)]
LDS_BYTES = L0 + 35904
QL, MW, FW, AF, PART = 0, 1024, 1536, 1792, 2048
K_, V_, WS, DBG, X_, WQ, WO, W1, B1, W2, B2, C_, WM, OUT = [f's[{8+4*i}:{11+4*i}]' for i in range(14)]
SRDN = dict(K=8, V=12, WS=16, DBG=20, X=24, WQ=28, WO=32, W1=36, B1=40, W2=44, B2=48, C=52, WM=56, OUT=60)
KOFF = dict(X=0, K=8, V=16, WQ=24, WO=32, W1=48, B1=56, W2=64, B2=72, C=80, WM=88, OUT=96, DBG=104, WS=112)
NREC = dict(X=2048, K=0x2000000, V=0x2000000, WQ=0x400000, WO=0x400000, W1=1835008, B1=3584, W2=1835008, B2=1024,
            C=2048, WM=3145728, OUT=2048, DBG=256, WS=WS_NREC)
BM = [f's[{64+2*u}:{65+2*u}]' for u in range(4)]
ML2 = 's[72:73]'
SEL = ['s74', 's75']
HIM = 's76'
LOG2E = 's77'
SMODE = 's78'
STMP = 's79'
EPO = 's96'
TAG = 's97'
POLLC = 's98'
POLL_MAX = 40000
LOG2E_F = 0x3fb8aa3b

def v(b, n=1): return f'v{b}' if n == 1 else f'v[{b}:{b+n-1}]'

class Gen:
    def __init__(self, dbg=False, thr=3, vpre=8, vextra=4, force_slow=False, wpol='nt', kvpol='nt', dq=16, dwo=8, dl=4, n1=2, n2=2, qsleep=0, qdelay=0, mcpol='nt', dl0=4, wo_wait=1, thr2=3, nlast=0, early=0, dw1=16, qsets=4, hsets=2, hsleep=4, prio=1, early2=1, fakeq=0, dbg2=None, lite=0, touch=0, dry=1, pipe=0, thr0=3, nfirst=0, ibsts=1, warm=1, nohello=0, vgrad=0, touch2=0, psleep=16, ssleep=8, mrearly=0, n1st=0, w1pf=0, tsleep=0, agdelay=0, rsdelay=0, ydeep=99, nstep=0, ta_cnt=1, lighth=0, pipet1=0):
        self.a = Asm(); self.n = 0; self.late = []; self.dbg = dbg; self.thr = thr; self.vpre = vpre; self.vextra = vextra
        self.n1 = n1; self.n2 = n2; self.qsleep = qsleep; self.qdelay = qdelay; self.mcpol = mcpol; self.dl0 = dl0; self.wo_wait = wo_wait; self.thr2 = thr2; self.nlast = nlast; self.early = early; self.dw1 = dw1; self.qsets = qsets; self.hsets = hsets; self.hsleep = hsleep; self.prio = prio; self.early2 = early2; self.fakeq = fakeq; self.dbg2 = dbg2; self.lite = lite; self.touch = touch; self.dry = dry; self.pipe = pipe; self.thr0 = thr0; self.nfirst = nfirst; self.ibsts = ibsts; self.warm = warm; self.nohello = nohello; self.vgrad = vgrad; self.touch2 = touch2; self.psleep = psleep; self.ssleep = ssleep; self.mrearly = mrearly; self.n1st = n1st; self.w1pf = w1pf; self.tsleep = tsleep; self.agdelay = agdelay; self.rsdelay = rsdelay; self.ydeep = ydeep; self.nstep = nstep; self.ta_cnt = ta_cnt; self.lighth = lighth; self.pipet1 = pipet1; self.dq = dq; self.dwo = dwo; self.dl = dl; self.force_slow = force_slow; self.wpol = wpol; self.kvpol = kvpol
    def lab(self, p='L'):
        self.n += 1; return f'{p}_{self.n}'
    def srd(self, names):
        a = self.a
        for nm in names: a(f's_load_dwordx2 s[{SRDN[nm]}:{SRDN[nm]+1}], s[0:1], {KOFF[nm]}')
        for nm in names:
            a(f's_mov_b32 s{SRDN[nm]+2}, {NREC[nm]:#x}'); a(f's_mov_b32 s{SRDN[nm]+3}, 0x20000')
    def consts(self):
        a = self.a
        for u in range(4):
            m = 0x000f000f << (4 * u)
            a(f's_mov_b32 s{64+2*u}, {m:#x}'); a(f's_mov_b32 s{65+2*u}, {m:#x}')
        a('s_mov_b32 s72, 0xcccccccc'); a('s_mov_b32 s73, 0xcccccccc')
        a('s_mov_b32 s74, 0x05040100'); a('s_mov_b32 s75, 0x07060302')
        a('s_mov_b32 s76, 0xffff0000'); a(f's_mov_b32 s77, {LOG2E_F:#x}')
    def stamp(self, i):
        if not self.dbg: return
        if self.lite and i not in (0, 15): return
        self.a(f's_memrealtime s[100:101]\ns_waitcnt lgkmcnt(0)\nv_writelane_b32 v0, s100, {i}')
    def cstamp(self, i):
        if not self.dbg: return
        self.a(f's_memtime s[100:101]\ns_waitcnt lgkmcnt(0)\nv_writelane_b32 v0, s100, {i}')
    def stamp_init(self):
        if not self.dbg: return
        self.a('v_mov_b32 v0, 0')
        self.stamp(0); self.cstamp(13)
    def end(self):
        a = self.a
        if self.dbg:
            self.stamp(15); self.cstamp(14)
            a('s_mov_b64 exec, 0xffff')
            a('s_mul_i32 s5, s2, 12'); a('s_add_u32 s5, s5, s3'); a('s_lshl_b32 s5, s5, 6'); a(f's_add_u32 s5, s5, {TS_BASE}')
            a('v_lshlrev_b32 v2, 2, v1')
            a(f'buffer_store_dword v0, v2, {WS}, s5 offen')
            if self.dbg2:
                l = self.lab('LK')
                a(f's_cmp_lg_u32 s2, {self.dbg2[0]}'); a(f's_cbranch_scc1 {l}'); a(f's_cmp_lg_u32 s3, {self.dbg2[1]}'); a(f's_cbranch_scc1 {l}')
                a('v_readlane_b32 s5, v0, 0'); a('v_subrev_u32 v0, s5, v0')
                a('s_mov_b64 exec, 0xfffc'); a(f'buffer_store_dword v0, v2, {DBG}, 0 offen')
                a(f'{l}:')
        a('s_endpgm')
    def poll(self, loads, regs, tmp, zero=False, sleep=0, pre=None):
        a = self.a; lp = self.lab('LP'); ld = self.lab('LD'); lc = self.lab('LC')
        a(f's_mov_b32 {POLLC}, 0')
        if pre: a(f's_branch {lc}')
        a(f'{lp}:')
        for s in loads: a(s)
        a('s_waitcnt vmcnt(0)')
        if pre: a(f'{lc}:')
        op = 'min' if zero else 'max'
        rs = list(regs)
        if len(rs) == 1: src = rs[0]
        else:
            src = tmp
            if len(rs) % 2 == 0: a(f'v_{op}_u32 v{tmp}, v{rs[0]}, v{rs[1]}'); rs = rs[2:]
            else: a(f'v_{op}3_u32 v{tmp}, v{rs[0]}, v{rs[1]}, v{rs[2]}'); rs = rs[3:]
            while rs: a(f'v_{op}3_u32 v{tmp}, v{tmp}, v{rs[0]}, v{rs[1]}'); rs = rs[2:]
        a(f'v_cmp_eq_u32 vcc, {0 if zero else -1}, v{src}')
        a(f's_cbranch_vccz {ld}')
        if sleep: a(f's_sleep {sleep}')
        a(f's_add_u32 {POLLC}, {POLLC}, 1'); a(f's_cmp_lt_u32 {POLLC}, {POLL_MAX}'); a(f's_cbranch_scc1 {lp}')
        a(f'{ld}:')
    def spoll(self, base, offs, zero=False, sleep=2, ge=None):
        a = self.a; lp = self.lab('LS'); ld = self.lab('LT')
        a(f's_mov_b32 {POLLC}, 0'); a(f'{lp}:')
        for i, o in enumerate(offs): a(f's_load_dword s{88+i}, {base}, {o:#x} glc')
        a('s_waitcnt lgkmcnt(0)')
        if ge is not None:
            a('s_and_b32 s89, s88, 0x3f'); a(f's_cmp_ge_u32 s89, {ge}')
        else:
            for i in range(1, len(offs)): a(f's_{"min" if zero else "max"}_u32 s88, s88, s{88+i}')
            a(f's_cmp_lg_u32 s88, {0 if zero else -1}')
        a(f's_cbranch_scc1 {ld}')
        if sleep: a(f's_sleep {sleep}')
        a(f's_add_u32 {POLLC}, {POLLC}, 1'); a(f's_cmp_lt_u32 {POLLC}, {POLL_MAX}'); a(f's_cbranch_scc1 {lp}')
        a(f'{ld}:')
    def tag_load(self):
        self.a(f's_load_dword {EPO}, s[16:17], 0x0')
    def tag_make(self):
        a = self.a
        a('s_waitcnt lgkmcnt(0)'); a(f's_mul_i32 {TAG}, {EPO}, 0x9e3779b1'); a(f's_add_u32 {TAG}, {TAG}, 0x85ebca6b')
    def tpoll(self, loads, tagregs, sleep=0):
        a = self.a; lp = self.lab('LQ'); ld = self.lab('LR')
        a(f's_mov_b32 {POLLC}, 0'); a(f'{lp}:')
        for s_ in loads: a(s_)
        a('s_waitcnt vmcnt(0)')
        for i, r in enumerate(tagregs):
            if i == 0: a(f'v_cmp_ne_u32 vcc, {TAG}, v{r}')
            else: a(f'v_cmp_ne_u32 s[88:89], {TAG}, v{r}'); a('s_or_b64 vcc, vcc, s[88:89]')
        a('s_cmp_eq_u64 vcc, 0'); a(f's_cbranch_scc1 {ld}')
        if sleep: a(f's_sleep {sleep}')
        a(f's_add_u32 {POLLC}, {POLLC}, 1'); a(f's_cmp_lt_u32 {POLLC}, {POLL_MAX}'); a(f's_cbranch_scc1 {lp}')
        a(f'{ld}:')
    def tpoll_pipe(self, mk, nld, base, dst, sets, gap):
        a = self.a; lp = self.lab('LU'); ld = self.lab('LV'); outs = [self.lab('LO') for _ in range(sets)]
        for k in range(sets - 1):
            for s_ in mk(base + 4 * nld * k): a(s_)
            if gap: a(f's_sleep {gap}')
        a(f's_mov_b32 {POLLC}, 0'); a(f'{lp}:')
        for k in range(sets):
            kn = (k + sets - 1) % sets
            for s_ in mk(base + 4 * nld * kn): a(s_)
            a(f's_waitcnt vmcnt({nld * (sets - 1)})')
            b = base + 4 * nld * k
            for i in range(2 * nld):
                if i == 0: a(f'v_cmp_ne_u32 vcc, {TAG}, v{b+1}')
                else: a(f'v_cmp_ne_u32 s[88:89], {TAG}, v{b+1+2*i}'); a('s_or_b64 vcc, vcc, s[88:89]')
            a('s_cmp_eq_u64 vcc, 0'); a(f's_cbranch_scc1 {outs[k]}')
            if gap: a(f's_sleep {gap}')
        a(f's_add_u32 {POLLC}, {POLLC}, 1'); a(f's_cmp_lt_u32 {POLLC}, {POLL_MAX}'); a(f's_cbranch_scc1 {lp}')
        for k in range(sets):
            a(f'{outs[k]}:')
            b = base + 4 * nld * k
            for i in range(nld): a(f'v_mov_b32 v{dst+2*i}, v{b+4*i}'); a(f'v_mov_b32 v{dst+2*i+1}, v{b+4*i+2}')
            if k < sets - 1: a(f's_branch {ld}')
        a(f'{ld}:')
    def ex(self, lo, hi):
        self.a(f's_and_b32 exec_lo, {lo:#x}, s94'); self.a(f's_and_b32 exec_hi, {hi:#x}, s95')
    def exfull(self): self.a('s_mov_b64 exec, s[94:95]')
    def bar(self):
        if not (self.dry or self.warm): self.a('s_barrier'); return
        l = self.lab('LB'); self.a(f's_cbranch_execz {l}'); self.a('s_barrier'); self.a(f'{l}:')
    def dry_begin(self, label):
        a = self.a
        if not self.dry: a('s_mov_b64 s[94:95], -1'); return
        a('s_mov_b64 s[94:95], 0'); a('s_mov_b64 exec, s[94:95]'); a(f'{label}:')
    def dry_end(self, label):
        a = self.a; l = self.lab('LN')
        if not self.dry: return
        a(f's_cbranch_execnz {l}'); a('s_mov_b64 s[94:95], -1'); a('s_mov_b64 exec, -1'); a(f's_branch {label}'); a(f'{l}:')
    def ppoll(self, mk, nld, nregs, bases, tmp, consume, delay=0):
        a = self.a; lp = self.lab('LP'); ld = self.lab('LD'); o = [self.lab('LO') for _ in bases]
        if self.pipe < 2:
            if delay: a(f's_sleep {delay}')
            self.poll(mk(bases[0]), range(bases[0], bases[0] + nregs), tmp, sleep=self.tsleep); consume(bases[0]); return
        for s_ in mk(bases[0]): a(s_)
        a(f's_mov_b32 {POLLC}, 0'); a(f'{lp}:')
        for k, b in enumerate(bases):
            for s_ in mk(bases[1 - k]): a(s_)
            a(f's_waitcnt vmcnt({nld})')
            rs = list(range(b, b + nregs))
            if len(rs) % 2 == 0: a(f'v_max_u32 v{tmp}, v{rs[0]}, v{rs[1]}'); rs = rs[2:]
            else: a(f'v_max3_u32 v{tmp}, v{rs[0]}, v{rs[1]}, v{rs[2]}'); rs = rs[3:]
            while rs: a(f'v_max3_u32 v{tmp}, v{tmp}, v{rs[0]}, v{rs[1]}'); rs = rs[2:]
            a(f'v_cmp_eq_u32 vcc, -1, v{tmp}'); a(f's_cbranch_vccz {o[k]}')
        a(f's_add_u32 {POLLC}, {POLLC}, 1'); a(f's_cmp_lt_u32 {POLLC}, {POLL_MAX}'); a(f's_cbranch_scc1 {lp}')
        a(f'{o[1]}:'); consume(bases[1]); a(f's_branch {ld}')
        a(f'{o[0]}:'); consume(bases[0])
        a(f'{ld}:')
    def arrive(self, c, t0, t1, val=1):
        a = self.a
        a(f'v_mov_b32 v{t0}, {CNT + c}'); a(f'v_mov_b32 v{t1}, {val}' if isinstance(val, int) else f'v_mov_b32 v{t1}, {val}')
        a('s_mov_b64 exec, 1'); a(f'ds_add_u32 v{t0}, v{t1}'); a('s_mov_b64 exec, -1')
    def waitc(self, c, target, t0, t1, dst=STMP):
        a = self.a; lp = self.lab('LW'); ld = self.lab('LX')
        a(f'v_mov_b32 v{t0}, {CNT + c}'); a(f's_mov_b32 {POLLC}, 0'); a(f'{lp}:')
        a(f'ds_read_b32 v{t1}, v{t0}'); a('s_waitcnt lgkmcnt(0)'); a(f'v_readfirstlane_b32 {dst}, v{t1}')
        a(f's_cmp_ge_u32 {dst}, {target}'); a(f's_cbranch_scc1 {ld}')
        a('s_sleep 1'); a(f's_add_u32 {POLLC}, {POLLC}, 1'); a(f's_cmp_lt_u32 {POLLC}, {POLL_MAX*8}'); a(f's_cbranch_scc1 {lp}')
        a(f'{ld}:')
    def pub(self, ins):
        a = self.a; lf = self.lab('LF'); ld = self.lab('LG')
        a(f's_cbranch_scc0 {lf}'); a(ins); a(f'{ld}:')
        self.late.append([f'{lf}:', ins + ' sc1', f's_branch {ld}'])
    def pub_pre(self): self.a(f's_cmp_eq_u32 {SMODE}, 2')
    def flush_late(self):
        for blk in self.late:
            for l in blk: self.a(l)
        self.late = []
    def npoll(self, loads, regs, tmp, compute, res, pre=False):
        a = self.a; lp = self.lab('LP'); ld = self.lab('LD'); lc = self.lab('LC')
        a(f's_mov_b32 {POLLC}, 0')
        if pre: a(f's_branch {lc}')
        a(f'{lp}:')
        for s_ in loads: a(s_)
        a(f'{lc}:')
        a('s_waitcnt vmcnt(0)')
        compute()
        a(f'v_cmp_u_f32 vcc, v{res}, v{res+1}'); a(f'v_cmp_u_f32 s[92:93], v{res+2}, v{res+3}'); a('s_or_b64 vcc, vcc, s[92:93]')
        a(f's_cbranch_vccnz {ld}_r'); a(f'{ld}:')
        rs = list(regs); blk = [f'{ld}_r:', f's_add_u32 {POLLC}, {POLLC}, 1', f's_and_b32 s5, {POLLC}, 31', f's_cbranch_scc1 {lp}',
                                f'v_max_u32 v{tmp}, v{rs[0]}, v{rs[1]}']
        rs = rs[2:]
        while rs: blk.append(f'v_max3_u32 v{tmp}, v{tmp}, v{rs[0]}, v{rs[1]}'); rs = rs[2:]
        blk += [f'v_cmp_eq_u32 vcc, -1, v{tmp}', f's_cbranch_vccz {ld}', f's_cmp_lt_u32 {POLLC}, {POLL_MAX}', f's_cbranch_scc1 {lp}', f's_branch {ld}']
        self.late.append(blk)
        return lc
    def npoll2(self, mk, nld, bases, nregs, tmp, compute, res, pre=False):
        a = self.a; lp = self.lab('LP'); ld = self.lab('LD'); l2 = self.lab('LE')
        if not pre:
            for s_ in mk(bases[0]): a(s_)
        a(f's_mov_b32 {POLLC}, 0'); a(f'{lp}:')
        def rnd(k):
            for s_ in mk(bases[1 - k]): a(s_)
            a(f's_waitcnt vmcnt({nld})')
            compute(bases[k])
            a(f'v_cmp_u_f32 vcc, v{res}, v{res+1}'); a(f'v_cmp_u_f32 s[92:93], v{res+2}, v{res+3}'); a('s_or_b64 vcc, vcc, s[92:93]')
        rnd(0); a(f's_cbranch_vccz {ld}')
        rnd(1); a(f's_cbranch_vccnz {ld}_r'); a(f'{ld}:')
        rs = list(range(bases[1], bases[1] + nregs))
        blk = [f'{ld}_r:', f's_add_u32 {POLLC}, {POLLC}, 1', f's_and_b32 s5, {POLLC}, 31', f's_cbranch_scc1 {lp}', f'v_max_u32 v{tmp}, v{rs[0]}, v{rs[1]}']
        rs = rs[2:]
        while rs: blk.append(f'v_max3_u32 v{tmp}, v{tmp}, v{rs[0]}, v{rs[1]}'); rs = rs[2:]
        blk += [f'v_cmp_eq_u32 vcc, -1, v{tmp}', f's_cbranch_vccz {ld}', f's_cmp_lt_u32 {POLLC}, {POLL_MAX}', f's_cbranch_scc1 {lp}', f's_branch {ld}']
        self.late.append(blk)
    def rnd2(self, x, y, t):
        a = self.a
        a(f'v_cvt_pk_bf16_f32 v{t}, v{x}, v{y}'); a(f'v_lshlrev_b32 v{x}, 16, v{t}'); a(f'v_and_b32 v{y}, {HIM}, v{t}')
    def rowsum(self, x, op='add'):
        for n in (8, 4, 2, 1): self.a(f'v_{op}_f32_dpp v{x}, v{x}, v{x} row_ror:{n} row_mask:0xf bank_mask:0xf')
    def xrows(self, x, t, op='add'):
        a = self.a
        a(f'v_mov_b32 v{t}, v{x}'); a(f'v_permlane16_swap_b32 v{x}, v{t}'); a(f'v_{op}_f32 v{x}, v{x}, v{t}')
        a(f'v_mov_b32 v{t}, v{x}'); a(f'v_permlane32_swap_b32 v{x}, v{t}'); a(f'v_{op}_f32 v{x}, v{x}, v{t}')
    def wavesum(self, x, t): self.rowsum(x); self.xrows(x, t)
    def red4rows(self, o):
        a = self.a
        a(f'v_permlane32_swap_b32 v{o}, v{o+2}'); a(f'v_permlane32_swap_b32 v{o+1}, v{o+3}')
        a(f'v_add_f32 v{o}, v{o}, v{o+2}'); a(f'v_add_f32 v{o+1}, v{o+1}, v{o+3}')
        a(f'v_permlane16_swap_b32 v{o}, v{o+1}'); a(f'v_add_f32 v{o}, v{o}, v{o+1}')
    def silu4(self, r, t):
        a = self.a
        a('s_mov_b32 s99, 0x7e800000')
        for i in range(4):
            lo, hi, e0, e1 = t, t + 1, t + 2, t + 3
            a(f'v_lshlrev_b32 v{lo}, 16, v{r+i}'); a(f'v_and_b32 v{hi}, {HIM}, v{r+i}')
            a(f'v_mul_f32 v{e0}, {LOG2E}, v{lo}'); a(f'v_mul_f32 v{e1}, {LOG2E}, v{hi}')
            a(f'v_exp_f32 v{e0}, -v{e0}'); a(f'v_exp_f32 v{e1}, -v{e1}')
            a(f'v_add_f32 v{e0}, 1.0, v{e0}'); a(f'v_add_f32 v{e1}, 1.0, v{e1}')
            r0, r1, q0, q1 = t + 4, t + 5, t + 6, t + 7
            a(f'v_rcp_f32 v{r0}, v{e0}'); a(f'v_rcp_f32 v{r1}, v{e1}')
            a(f'v_mul_f32 v{q0}, v{lo}, v{r0}'); a(f'v_mul_f32 v{q1}, v{hi}, v{r1}')
            a(f'v_cmp_gt_f32 s[88:89], s99, v{e0}'); a(f'v_fma_f32 v{lo}, -v{q0}, v{e0}, v{lo}'); a(f'v_fma_f32 v{lo}, v{lo}, v{r0}, v{q0}')
            a(f'v_cndmask_b32 v{lo}, v{q0}, v{lo}, s[88:89]')
            a(f'v_cmp_gt_f32 s[90:91], s99, v{e1}'); a(f'v_fma_f32 v{hi}, -v{q1}, v{e1}, v{hi}'); a(f'v_fma_f32 v{hi}, v{hi}, v{r1}, v{q1}')
            a(f'v_cndmask_b32 v{hi}, v{q1}, v{hi}, s[90:91]')
            a(f'v_cvt_pk_bf16_f32 v{r+i}, v{lo}, v{hi}')
    def transpose(self, raw, dst, jjs=range(4), rs=4, ds=4):
        for jj in jjs:
            for m in range(8):
                self.a(f'v_perm_b32 v{dst+ds*m+jj}, v{raw+rs*(2*jj+1)+(m>>1)}, v{raw+rs*(2*jj)+(m>>1)}, {SEL[m&1]}')
    def sxaddr(self, dst, bstride, base, t):
        a = self.a
        self.xvoff(dst, bstride, base, t); a(f'v_bfe_u32 v{t}, v1, 1, 1'); a(f'v_lshl_add_u32 v{dst}, v{t}, 6, v{dst}')
    def sidx(self, dst):
        self.a(f'v_mov_b32 v{dst}, 0x4444'); self.a(f'v_mov_b32 v{dst+1}, 0xeeee'); self.a(f'v_cndmask_b32 v{dst}, v{dst}, v{dst+1}, {ML2}')
    def gemv_fly(self, raw, xrep, first, xv=8, T=12, acc=20):
        a = self.a
        for u in range(4):
            for i in range(4): a(f'v_cndmask_b32 v{xv+i}, 0, v{xrep+i}, {BM[u]}')
            for e in range(2):
                for jj in range(4):
                    a(f'v_perm_b32 v{T+4*e+jj}, v{raw+4*(2*jj+1)+u}, v{raw+4*(2*jj)+u}, {SEL[e]}')
            for e in range(2):
                c = '0' if (first and u == 0) else v(acc + 4 * e, 4)
                a(f'v_mfma_f32_16x16x32_bf16 {v(acc+4*e,4)}, {v(T+4*e,4)}, {v(xv,4)}, {c}')
    def merge(self, acc, pre=False):
        if pre: self.pub_pre()
        for r in range(4): self.a(f'v_cndmask_b32 v{acc+r}, v{acc+r}, v{acc+4+r}, {ML2}')
    def sanitize(self, r, n):
        pass
    def unit_loads(self, raw, voff, srd, sbase, rs, rows=None, pol=None, depth=None, prior=99, hook=None, qs=4):
        a = self.a; pol = self.wpol if pol is None else pol
        for j in range(8):
            off = (rows[j] if rows else j) * rs
            if depth and prior + j >= depth: a(f's_waitcnt vmcnt({depth-1})')
            if off < 4096: a(f'buffer_load_dwordx4 {v(raw+qs*j,4)}, v{voff}, {srd}, {sbase} offen offset:{off} {pol}')
            else:
                a(f's_add_u32 s7, {sbase}, {off}')
                a(f'buffer_load_dwordx4 {v(raw+qs*j,4)}, v{voff}, {srd}, s7 offen {pol}')
            if hook and j == min(hook[0], 7): a(hook[1])
    def wvoff(self, dst, rs, t):
        a = self.a
        a(f'v_lshrrev_b32 v{dst}, 4, v1'); a(f'v_mul_u32_u24 v{dst}, {8*rs}, v{dst}')
        a(f'v_and_b32 v{t}, 15, v1'); a(f'v_lshl_add_u32 v{dst}, v{t}, 4, v{dst}')
    def xvoff(self, dst, bstride, base, t):
        a = self.a
        a(f'v_and_b32 v{dst}, 1, v1'); a(f'v_mul_u32_u24 v{dst}, {bstride}, v{dst}')
        a(f'v_lshrrev_b32 v{t}, 4, v1'); a(f'v_lshl_add_u32 v{dst}, v{t}, 4, v{dst}')
        if base: a(f'v_add_u32 v{dst}, {base}, v{dst}')

    def attention(self):
        a = self.a
        a('s_mov_b32 s5, 0x15555556'); a('s_mul_hi_u32 s80, s4, s5')
        a('s_mul_i32 s5, s80, 12'); a('s_sub_u32 s81, s4, s5')
        a('s_cmp_lt_u32 s81, 8'); a('s_cselect_b32 s82, 11, 10')
        a('s_cmp_ge_u32 s3, 11'); a('s_cbranch_scc1 L_att_ctl')
        a('s_cmp_ge_u32 s3, s82'); a('s_cbranch_scc1 L_exit')
        a('s_min_u32 s5, s81, 8'); a('s_mul_i32 s6, s81, 10'); a('s_add_u32 s5, s5, s6'); a('s_lshl_b32 s5, s5, 14')
        a('s_lshl_b32 s6, s80, 21'); a('s_add_u32 s5, s5, s6'); a('s_lshl_b32 s6, s3, 10'); a('s_add_u32 s83, s5, s6')
        a('s_lshl_b32 s84, s82, 10')
        a('v_bfe_u32 v3, v1, 2, 2'); a('v_lshlrev_b32 v3, 8, v3'); a('v_lshrrev_b32 v4, 4, v1'); a('v_lshl_add_u32 v3, v4, 6, v3')
        a('v_and_b32 v4, 3, v1'); a('v_lshl_add_u32 v3, v4, 4, v3')
        a('v_lshlrev_b32 v2, 4, v1')
        a('s_mov_b32 s85, s83')
        a('s_waitcnt lgkmcnt(0)')
        KB, VB = 32, 96
        issued = [0]
        def thr(d):
            if self.ydeep < 11 and issued[0] >= d:
                l = self.lab('LJ')
                a(f's_cmp_ge_u32 s3, {self.ydeep}'); a(f's_cbranch_scc1 {l}'); a(f's_waitcnt vmcnt({d-1})'); a(f'{l}:'); a(f's_waitcnt vmcnt({d})')
            elif issued[0] >= d: a(f's_waitcnt vmcnt({d-1})')
        for t in range(16):
            ng = sum(t < self.nfirst - self.nstep * g for g in range(3))
            if 0 < ng < 3 and issued[0] >= self.thr0:
                l = self.lab('LI')
                a(f's_cmp_ge_u32 s3, {4*ng}'); a(f's_cbranch_scc1 {l}'); a(f's_waitcnt vmcnt({self.thr0-1})'); a(f'{l}:'); thr(self.thr)
            else: thr(1 if t < self.n1st else self.thr0 if ng else self.thr)
            a(f'buffer_load_dwordx4 {v(KB+4*t,4)}, v3, {K_}, s85 offen {self.kvpol}')
            if t < 15: a('s_add_u32 s85, s85, s84')
            issued[0] += 1
            if t == 0: self.stamp(10)
            if t == 7: self.stamp(7)
            if t == 15: self.stamp(8)
            if t == (0 if self.n1st else min(self.thr, self.thr0) - 1):
                self.consts()
                a('v_and_b32 v28, 3, v1'); a('v_lshlrev_b32 v29, 8, v28'); a('v_lshrrev_b32 v30, 2, v1'); a('v_lshl_add_u32 v29, v30, 4, v29')
                a('s_lshl_b32 s5, s3, 5'); a('v_lshl_add_u32 v28, v28, 3, s5')
                a(f'v_mov_b32 v27, {AF}')
                a('s_mov_b32 s86, 0x3db504f3'); a('s_mov_b32 s92, 0'); a('s_mov_b64 s[94:95], -1')
                a(f's_cmp_ge_u32 s3, {self.ydeep}'); a(f's_cselect_b32 s88, {self.thr+1}, {self.thr}')
                a('s_barrier')
        vorder = [8 * bk + x for bk in range(2) for x in (0, 4, 1, 5, 2, 6, 3, 7)]
        for i in range(16):
            if i >= self.thr + (self.ydeep < 11): a('s_call_b64 s[90:91], L_att_chk')
            else: thr(self.thr)
            a(f's_mul_i32 s85, s84, {vorder[i]}'); a('s_add_u32 s85, s85, s83')
            a(f'buffer_load_dwordx4 {v(VB+4*i,4)}, v2, {V_}, s85 offen {self.kvpol}')
            if i == 7: self.stamp(9)
        self.stamp(1)
        a('s_cmp_lt_i32 s92, 0'); a('s_cbranch_scc1 L_att_pv')
        self.lspin(27, 0, 1, 26)
        a('s_call_b64 s[90:91], L_att_qk')
        a('L_att_pv:')
        a('s_lshl_b32 s5, s3, 11'); a(f's_add_u32 s5, s5, {PART}'); a('v_add_u32 v3, s5, v2')
        a('s_cmp_lg_u32 s3, 0'); a('s_cbranch_scc1 L_att_pv2')
        self.att_red_addr(0)
        self.att_factors()
        a('L_att_pv2:')
        for bk in range(2):
            raw = VB + 32 * bk; T = 64 if bk == 0 else 96
            for jj in range(4):
                a(f's_waitcnt vmcnt({16 - 8*bk - 2*jj - 2})')
                self.transpose(raw, T, [jj])
            if bk == 1: self.stamp(4)
            for m in range(8):
                c = '0' if (bk == 0 and m < 2) else v(160 + 4 * (m & 1), 4)
                a(f'v_mfma_f32_16x16x32_bf16 {v(160+4*(m&1),4)}, {v(T+4*m,4)}, {v(KB+16*bk+4*(m>>1),4)}, {c}')
        a('ds_write_b128 v3, v[160:163]'); a('ds_write_b128 v3, v[164:167] offset:1024')
        a('s_waitcnt lgkmcnt(0)')
        a('s_cbranch_execz L_att_red')
        a('s_cmp_eq_u32 s3, 0'); a('s_cbranch_scc1 L_att_red')
        a('s_barrier')
        self.end()
        a('L_att_chk:')
        a('s_cmp_lt_i32 s92, 0'); a('s_cbranch_scc1 L_att_w2')
        a('s_cmp_gt_i32 s92, 0'); a('s_cbranch_scc1 L_att_cd')
        a('s_mov_b32 s93, 0')
        a('L_att_sp:')
        a('ds_read_b32 v26, v27'); a('s_waitcnt lgkmcnt(0)'); a('v_readfirstlane_b32 s5, v26')
        a('s_cmp_lg_u32 s5, 0'); a('s_cbranch_scc1 L_att_fl')
        if self.ibsts:
            a('s_getreg_b32 s5, hwreg(HW_REG_IB_STS, 0, 4)'); a('s_cmp_lt_u32 s5, s88'); a('s_cbranch_scc1 L_att_wt')
            a('s_add_u32 s93, s93, 1'); a('s_cmp_lt_u32 s93, 24'); a('s_cbranch_scc1 L_att_sp')
        a('L_att_wt:')
        thr(self.thr)
        a('s_setpc_b64 s[90:91]')
        a('L_att_w2:')
        thr(self.thr2)
        a('s_setpc_b64 s[90:91]')
        a('L_att_fl:')
        if self.vgrad: a('s_lshr_b32 s92, s3, 2'); a(f's_mul_i32 s92, s92, {self.vgrad}'); a('s_lshr_b32 s92, s92, 1'); a(f's_add_u32 s92, s92, {self.vextra + 1}')
        else: a(f's_mov_b32 s92, {self.vextra + 1}')
        a('L_att_cd:')
        a('s_sub_u32 s92, s92, 1'); a('s_cmp_eq_u32 s92, 0'); a('s_cbranch_scc1 L_att_qk')
        a('s_setpc_b64 s[90:91]')
        a('L_att_qk:')
        self.stamp(2)
        a(f'ds_read_b128 v[4:7], v29 offset:{QL}')
        a('s_mov_b32 s92, -1')
        a('s_waitcnt lgkmcnt(0)')
        Dr = lambda t: 12 + 4 * t if t < 3 else KB + 4 * (t - 3)
        def dpp(dst, s0, s1, n, bm=0xf): a(f'v_add_f32_dpp v{dst}, v{s0}, v{s1} row_ror:{n} row_mask:0xf bank_mask:{bm:#x}')
        def lvl1(t):
            u = t & 3; D = Dr(t)
            dpp(D + u, D + ((u + 1) & 3), D + u, 12); dpp(D + ((u + 2) & 3), D + ((u + 3) & 3), D + ((u + 2) & 3), 12)
        def lvl2(t):
            u = t & 3; D = Dr(t)
            dpp(8 + (t >> 2), D + ((u + 2) & 3), D + u, 8, 1 << u)
        for t in range(21):
            if t < 16: a(f'v_mfma_f32_16x16x32_bf16 {v(Dr(t),4)}, {v(KB+4*t,4)}, v[4:7], 0')
            if 4 <= t < 20: lvl1(t - 4)
            if t >= 5: lvl2(t - 5)
        def rnd4():
            a('v_cvt_pk_bf16_f32 v12, v8, v9'); a('v_cvt_pk_bf16_f32 v13, v10, v11')
            a('v_lshlrev_b32 v8, 16, v12'); a(f'v_and_b32 v9, {HIM}, v12'); a('v_lshlrev_b32 v10, 16, v13'); a(f'v_and_b32 v11, {HIM}, v13')
        rnd4()
        for i in range(4): a(f'v_mul_f32 v{8+i}, s86, v{8+i}')
        rnd4()
        a('v_max3_f32 v12, v8, v9, v10'); a('v_max_f32 v12, v12, v11')
        a('v_max_f32_dpp v12, v12, v12 row_ror:4 row_mask:0xf bank_mask:0xf')
        a('v_max_f32_dpp v12, v12, v12 row_ror:8 row_mask:0xf bank_mask:0xf')
        self.xrows(12, 13, 'max')
        a(f'v_mul_f32 v14, {LOG2E}, v12')
        for i in range(4): a(f'v_fma_f32 v{8+i}, v{8+i}, {LOG2E}, -v14')
        for i in range(4): a(f'v_exp_f32 v{8+i}, v{8+i}')
        for u in range(4): a(f'v_cndmask_b32 v{20+u}, 0, -1, {BM[u]}')
        a('v_cvt_pk_bf16_f32 v16, v8, v9'); a('v_add_f32 v13, v8, v9'); a('v_cvt_pk_bf16_f32 v17, v10, v11'); a('v_add_f32 v18, v10, v11')
        chain = ['v_add_f32 v13, v13, v18', 'v_add_f32_dpp v13, v13, v13 row_ror:4 row_mask:0xf bank_mask:0xf',
                 'v_add_f32_dpp v13, v13, v13 row_ror:8 row_mask:0xf bank_mask:0xf', 'v_mov_b32 v18, v13', 'v_permlane16_swap_b32 v13, v18',
                 'v_add_f32 v13, v13, v18', 'v_mov_b32 v18, v13', 'v_permlane32_swap_b32 v13, v18', 'v_add_f32 v13, v13, v18', 'v_mov_b32 v14, 1']
        cnt = 0
        for u in range(4):
            for bk in range(2):
                for jj in range(4):
                    n = (4 * (u - jj)) % 16
                    c = f'row_ror:{n}' if n else 'quad_perm:[0,1,2,3]'
                    a(f'v_and_b32_dpp v{KB+16*bk+4*u+jj}, v{16+bk}, v{20+u} {c} row_mask:0xf bank_mask:0xf')
                    cnt += 1
                    if cnt % 3 == 0 and chain: a(chain.pop(0))
        self.ex(0xf, 0); a(f'ds_write_b64 v28, v[12:13] offset:{MW}')
        self.ex(1, 0); a('ds_add_u32 v27, v14 offset:4'); self.exfull()
        self.stamp(3)
        a('s_setpc_b64 s[90:91]')
        a('L_att_ctl:')
        a('s_setprio 3')
        a('v_lshlrev_b32 v2, 4, v1')
        a('v_mov_b32 v16, 0xff800000'); a('v_mov_b32 v17, 0'); a('v_lshlrev_b32 v6, 3, v1'); a(f'ds_write_b64 v6, v[16:17] offset:{MW}')
        for i in range(4): a(f'v_mov_b32 v{8+i}, -1'); a(f'v_mov_b32 v{12+i}, 0')
        a(f'v_mov_b32 v27, {AF}'); a('ds_write_b128 v27, v[12:15]')
        a(f'ds_write_b128 v2, v[12:15] offset:{PART+10*2048}'); a(f'ds_write_b128 v2, v[12:15] offset:{PART+10*2048+1024}')
        a('s_waitcnt lgkmcnt(0)')
        a('s_barrier')
        self.tag_load()
        self.att_red_addr(1)
        a('s_and_b32 s84, s80, 7'); a('s_lshl_b32 s84, s84, 2'); a(f's_mul_i32 s84, s84, {ASTR}'); a(f's_add_u32 s84, s84, {AUXREG}')
        a('s_lshr_b32 s85, s80, 3')
        a(f'buffer_store_dwordx4 v[8:11], v2, {WS}, s87 offen sc1'); a(f'buffer_store_dwordx4 v[8:11], v2, {WS}, s87 offen offset:1024 sc1')
        if self.warm:
            a('v_mov_b32 v29, 0'); a('v_mov_b32 v28, 0'); a('v_mov_b32 v3, 0')
            a('s_mov_b64 s[94:95], 0'); a('s_mov_b64 exec, 0')
            a('s_call_b64 s[90:91], L_att_qk')
            a('s_branch L_att_pv2')
            a('L_att_wd:')
            a('s_mov_b64 exec, -1')
        a('s_mov_b64 s[94:95], -1')
        a('v_mov_b32 v12, 0'); a('v_lshlrev_b32 v6, 3, v1'); a(f'v_mov_b32 v27, {AF}')
        a('v_lshrrev_b32 v7, 5, v1'); a(f'v_mul_u32_u24 v24, {ASTR}, v7'); a('v_and_b32 v16, 31, v1'); a('v_lshl_add_u32 v24, v16, 4, v24')
        a('v_lshlrev_b32 v25, 8, v7'); a('v_lshl_add_u32 v25, v16, 3, v25')
        a('s_lshl_b32 s5, s85, 9'); a('s_add_u32 s86, s84, s5'); a(f's_add_u32 s86, s86, {Q_OFF}'); a(f's_add_u32 s83, s86, {2*ASTR}')
        a(f's_mov_b32 {LOG2E}, {LOG2E_F:#x}')
        self.tag_make()
        if self.qdelay: a(f's_sleep {self.qdelay}')
        self.stamp(1)
        if not self.fakeq: self.tpoll_pipe(lambda b: [f'buffer_load_dwordx4 {v(b,4)}, v24, {WS}, s86 offen sc1', f'buffer_load_dwordx4 {v(b+4,4)}, v24, {WS}, s83 offen sc1'],
                        2, 80, 16, self.qsets, self.qsleep)
        a('v_mov_b32 v26, 1')
        a(f'ds_write_b64 v25, v[16:17] offset:{QL}'); a(f'ds_write_b64 v25, v[18:19] offset:{QL+512}')
        a('ds_write_b32 v27, v26')
        self.stamp(2)
        a('s_mov_b64 exec, 1')
        self.poll([f'buffer_load_dword v16, v12, {DBG}, 0 offen offset:128 sc1'], [16], 17, zero=True, sleep=2)
        a('s_mov_b64 exec, -1')
        a('v_and_b32 v3, 3, v1'); a(f'v_mul_u32_u24 v7, {ASTR}, v3')
        a('s_mul_i32 s5, s85, 12'); a('s_add_u32 s5, s5, s81'); a('s_lshl_b32 s5, s5, 3'); a('s_add_u32 s5, s5, s84'); a(f's_add_u32 s86, s5, {ST_OFF}')
        self.lspin(27, 4, 's82', 26)
        a(f'ds_read_b64 v[18:19], v6 offset:{MW}'); a('s_waitcnt lgkmcnt(0)')
        a('v_max_f32_dpp v16, v18, v18 row_ror:4 row_mask:0xf bank_mask:0xf')
        a('v_max_f32_dpp v16, v16, v16 row_ror:8 row_mask:0xf bank_mask:0xf')
        self.xrows(16, 17, 'max')
        a('v_sub_f32 v18, v18, v16'); a(f'v_mul_f32 v18, {LOG2E}, v18'); a('v_exp_f32 v18, v18')
        a('v_lshlrev_b32 v6, 2, v1'); a('v_mul_f32 v17, v18, v19')
        a(f'ds_write_b32 v6, v18 offset:{FW}'); a('v_mov_b32 v26, 1'); a('ds_write_b32 v27, v26 offset:8')
        a('v_add_f32_dpp v17, v17, v17 row_ror:4 row_mask:0xf bank_mask:0xf')
        a('v_add_f32_dpp v17, v17, v17 row_ror:8 row_mask:0xf bank_mask:0xf')
        self.xrows(17, 18)
        self.sanitize(16, 2)
        a('s_mov_b64 exec, 0xf'); a(f'buffer_store_dwordx2 v[16:17], v7, {WS}, s86 offen sc1'); a('s_mov_b64 exec, -1')
        self.stamp(3)
        self.att_factors()
        a('L_att_red:')
        self.bar()
        self.stamp(5)
        for w in range(11): a(f'ds_read_b128 {v(32+4*w,4)}, v31 offset:{2048*w}')
        for w in range(11):
            a(f's_waitcnt lgkmcnt({10-w})')
            for r in range(4):
                if w == 0: a(f'v_mul_f32 v{32+r}, v{32+r}, v12')
                else: a(f'v_fmac_f32 v{32+r}, v{32+4*w+r}, v{12+w}')
        self.sanitize(32, 4)
        a(f'buffer_store_dwordx4 v[32:35], v30, {WS}, s87 offen sc1')
        if self.warm: a('s_cbranch_execz L_att_wd')
        self.stamp(6)
        if self.dbg: a('s_waitcnt vmcnt(0)')
        self.end()

    def lspin(self, va, off, target, t):
        a = self.a; lp = self.lab('LY'); ld = self.lab('LZ')
        a(f's_mov_b32 {POLLC}, 0'); a(f'{lp}:')
        a(f'ds_read_b32 v{t}, v{va} offset:{off}'); a('s_waitcnt lgkmcnt(0)'); a(f'v_readfirstlane_b32 {STMP}, v{t}')
        a(f's_cmp_ge_u32 {STMP}, {target}'); a(f's_cbranch_scc1 {ld}')
        a('s_sleep 1'); a(f's_add_u32 {POLLC}, {POLLC}, 1'); a(f's_cmp_lt_u32 {POLLC}, {POLL_MAX*8}'); a(f's_cbranch_scc1 {lp}')
        a(f'{ld}:')

    def att_factors(self):
        a = self.a
        self.lspin(27, 8, 1, 26)
        a('v_and_b32 v26, 3, v1'); a('v_lshlrev_b32 v26, 2, v26')
        for w in range(11): a(f'ds_read_b32 v{12+w}, v26 offset:{FW+16*w}')
        a('s_waitcnt lgkmcnt(0)')

    def code_touch(self, hi, nbytes, t):
        a = self.a; here = self.lab('LH')
        a('s_getpc_b64 s[92:93]'); a(f'{here}:')
        a(f's_mov_b32 s94, {hi}-{here}'); a('s_mov_b32 s95, 0x20000')
        a(f'v_lshlrev_b32 v{t}, 6, v1')
        for i in range(0, nbytes, 4096):
            a(f's_mov_b32 s5, {i}'); a(f'buffer_load_dword v{t+1}, v{t}, s[92:95], s5 offen')

    def code_touch2(self, lo, hi, t):
        a = self.a; here = self.lab('LH')
        a('s_getpc_b64 s[92:93]'); a(f'{here}:')
        a(f's_mov_b32 s94, {hi}-{here}'); a('s_mov_b32 s95, 0x20000'); a(f's_mov_b32 s5, {lo}-{here}')
        a(f'v_lshlrev_b32 v{t}, 6, v1')
        a(f'buffer_load_dword v{t+1}, v{t}, s[92:95], s5 offen')

    def att_red_addr(self, e):
        a = self.a
        a('s_lshl_b32 s87, s4, 11'); a(f's_add_u32 s87, s87, {MO_BASE}')
        a('v_and_b32 v30, 3, v1'); a('v_lshlrev_b32 v30, 9, v30'); a('v_lshrrev_b32 v31, 2, v1'); a('v_lshl_add_u32 v30, v31, 4, v30')
        if e: a(f'v_add_u32 v30, {256*e}, v30')
        a(f'v_add_u32 v31, {PART + 1024*e}, v2')

    def xcc_inc(self, dst):
        a = self.a
        a('s_getreg_b32 s5, hwreg(HW_REG_XCC_ID)'); a('s_and_b32 s5, s5, 7')
        a('s_mul_i32 s6, s5, s5'); a('s_lshl_b32 s6, s6, 16'); a('s_lshl_b32 s5, s5, 8'); a('s_add_u32 s5, s5, s6'); a(f's_add_u32 {dst}, s5, 1')

    def lds_init(self):
        a = self.a
        a('v_mov_b32 v8, 0'); a('v_lshlrev_b32 v9, 2, v1'); a(f'v_add_u32 v10, {ZR}, v9'); a('ds_write_b32 v10, v8')
        a(f'v_add_u32 v10, {CNT}, v9'); a('s_mov_b64 exec, 0xffff'); a('ds_write_b32 v10, v8'); a('s_mov_b64 exec, -1')

    def reduce_parts(self, base, n, dst=96):
        a = self.a
        a(f'v_add_u32 v3, {base}, v2')
        for w in range(n): a(f'ds_read_b128 {v(dst+4*w,4)}, v3 offset:{1024*w}')
        a('s_waitcnt lgkmcnt(0)')
        for w in range(1, n):
            for r in range(4): a(f'v_add_f32 v{dst+r}, v{dst+r}, v{dst+4*w+r}')

    def ln_x(self):
        a = self.a
        for i in range(4): a(f'v_lshlrev_b32 v{12+2*i}, 16, v{40+i}'); a(f'v_and_b32 v{13+2*i}, {HIM}, v{40+i}')
        a('v_add_f32 v20, v12, v13')
        for i in range(2, 8): a(f'v_add_f32 v20, v20, v{12+i}')
        self.wavesum(20, 21)
        a('v_mul_f32 v20, 0x3b000000, v20')
        a('v_mov_b32 v22, 0')
        for i in range(8): a(f'v_sub_f32 v21, v{12+i}, v20'); a('v_fmac_f32 v22, v21, v21')
        self.wavesum(22, 21)
        a('v_mul_f32 v22, 0x3b000000, v22')
        self.rnd2(20, 22, 21)
        a('v_add_f32 v22, 0x3727c5ac, v22'); self.rnd2(22, 23, 21)
        a('v_sqrt_f32 v22, v22'); self.rnd2(22, 23, 21)
        a('v_rcp_f32 v23, v22')
        for i in range(8): a(f'v_sub_f32 v{12+i}, v{12+i}, v20')
        for i in range(4): self.rnd2(12 + 2 * i, 13 + 2 * i, 21)
        for i in range(8):
            a(f'v_mul_f32 v24, v{12+i}, v23'); a(f'v_fma_f32 v25, -v24, v22, v{12+i}'); a(f'v_fma_f32 v{12+i}, v25, v23, v24')
        for i in range(4): self.rnd2(12 + 2 * i, 13 + 2 * i, 21)
        a('v_lshlrev_b32 v21, 5, v1'); a('s_lshl_b32 s5, s81, 1'); a(f's_add_u32 s5, s5, {LNX}'); a('v_add_u32 v21, s5, v21')
        a('ds_write_b128 v21, v[12:15]'); a('ds_write_b128 v21, v[16:19] offset:16')
        self.arrive(C_LN, 8, 9)

    def head(self):
        a = self.a
        a(f's_mul_i32 s80, s4, {ASTR}'); a(f's_add_u32 s80, s80, {AUXREG}')
        a('v_lshlrev_b32 v2, 4, v1')
        a('s_cmp_ge_u32 s3, 4'); a('s_cbranch_scc1 L_h_q')
        self.srd(['WM', 'C']); self.consts()
        self.wvoff(5, 6144, 4); self.xvoff(6, 1024, 0, 4)
        a('s_and_b32 s5, s4, 1'); a('s_lshl_b32 s5, s5, 8'); a('s_lshl_b32 s6, s3, 6'); a('s_add_u32 s85, s5, s6')
        a('s_mul_i32 s5, s85, 6144'); a('s_lshr_b32 s6, s4, 1'); a('s_lshl_b32 s6, s6, 8'); a('s_add_u32 s86, s5, s6'); a('s_add_u32 s86, s86, 2048')
        a('s_lshl_b32 s85, s85, 1')
        for i in range(4): a(f'v_mov_b32 v{8+i}, -1')
        a(f's_add_u32 s5, s80, {MR_OFF}')
        a('s_waitcnt lgkmcnt(0)')
        a('s_cmp_lg_u32 s3, 0'); a('s_cbranch_scc1 L_h_nc')
        a(f'buffer_store_dwordx4 v[8:11], v2, {WS}, s5 offen sc1')
        self.tag_load()
        a('L_h_nc:')
        a(f'buffer_load_dwordx4 v[160:163], v6, {C_}, s85 offen'); a(f'buffer_load_dwordx4 v[164:167], v6, {C_}, s85 offen offset:64')
        a('s_cmp_lg_u32 s3, 3'); a('s_cbranch_scc1 L_h_ni')
        self.lds_init(); a('s_waitcnt lgkmcnt(0)')
        a('L_h_ni:')
        a('s_barrier')
        a('s_cmp_lg_u32 s3, 0'); a('s_cbranch_scc1 L_h_wh')
        a('v_mov_b32 v12, 1'); a('v_mov_b32 v13, 0')
        a('v_lshrrev_b32 v3, 3, v1'); a(f'v_mul_u32_u24 v4, {ASTR}, v3'); a('v_and_b32 v7, 7, v1'); a('v_lshl_add_u32 v4, v7, 4, v4')
        a('v_lshlrev_b32 v3, 5, v3'); a('v_bfe_u32 v7, v1, 2, 1'); a(f'v_mul_u32_u24 v7, {HSTR}, v7'); a('v_add_u32 v3, v3, v7'); a('v_and_b32 v7, 3, v1'); a('v_lshl_add_u32 v3, v7, 3, v3')
        a(f'v_add_u32 v3, {H_}, v3')
        self.tag_make()
        a('s_waitcnt vmcnt(2)')
        if not self.nohello: a('s_mov_b64 exec, 1'); a(f'buffer_atomic_add v12, v13, {DBG}, 0 offen sc1'); a('s_mov_b64 exec, -1')
        self.stamp(1)
        for i in range(4): a(f's_mov_b32 s{81+i}, {AUXREG+H_OFF+8*i*ASTR}')
        self.tpoll_pipe(lambda b: [f'buffer_load_dwordx4 {v(b+4*i,4)}, v4, {WS}, s{81+i} offen sc1' for i in range(4)], 4, 32, 16, self.hsets, self.hsleep)
        for i in range(4): a(f'ds_write_b64 v3, {v(16+2*i,2)} offset:{256*i}')
        self.arrive(C_H, 8, 9)
        self.stamp(3)
        a('L_h_wh:')
        a('s_waitcnt vmcnt(0)')
        self.silu4(160, 8); self.silu4(164, 8)
        if self.mrearly: self.waitc(C_LN, 8, 8, 9)
        else: self.waitc(C_W1, 1, 8, 9)
        self.unit_loads(96, 5, WM, 's86', 6144, depth=self.dwo, prior=0)
        a(f's_add_u32 s86, s86, {32*6144}'); self.unit_loads(64, 5, WM, 's86', 6144, depth=self.dwo, prior=8)
        a('s_waitcnt vmcnt(8)')
        self.gemv_fly(96, 160, True)
        a('s_waitcnt vmcnt(0)')
        self.gemv_fly(64, 164, False)
        a('s_lshl_b32 s5, s3, 10'); a(f's_add_u32 s5, s5, {RP}'); a('v_add_u32 v3, s5, v2')
        self.merge(20); a('ds_write_b128 v3, v[20:23]')
        self.arrive(C_MR, 8, 9)
        a('s_cmp_lg_u32 s3, 1'); a('s_cbranch_scc1 L_h_end')
        self.waitc(C_MR, 4, 8, 9); self.reduce_parts(RP, 4); self.sanitize(96, 4)
        a(f's_add_u32 s5, s80, {MR_OFF}'); a(f'buffer_store_dwordx4 v[96:99], v2, {WS}, s5 offen sc1')
        self.stamp(8)
        a('L_h_end:')
        self.end()
        a('L_h_q:')
        self.srd(['WQ']); self.consts()
        a('v_lshrrev_b32 v3, 4, v1'); a('v_lshlrev_b32 v3, 14, v3'); a('v_and_b32 v4, 15, v1'); a('v_lshl_add_u32 v3, v4, 4, v3')
        qrows = [8 * (j & 3) + (j >> 2) for j in range(8)]
        a('s_sub_u32 s81, s3, 4')
        a('s_lshl_b32 s5, s81, 19'); a('s_lshl_b32 s6, s4, 8'); a('s_add_u32 s82, s5, s6')
        a('s_waitcnt lgkmcnt(0)')
        self.tag_load()
        self.stamp(1)
        self.unit_loads(32, 3, WQ, 's82', 8192, qrows, depth=self.dq, prior=0, hook=(self.dq - 1, 's_barrier'))
        a(f's_add_u32 s82, s82, {32*8192}'); self.unit_loads(64, 3, WQ, 's82', 8192, qrows, depth=self.dq, prior=8)
        self.stamp(2)
        a('s_waitcnt vmcnt(8)'); self.transpose(32, 96)
        a('s_waitcnt vmcnt(0)')
        if self.mrearly: self.arrive(C_LN, 8, 9)
        self.transpose(64, 128)
        self.stamp(3)
        self.xvoff(28, HSTR, H_, 29)
        a('s_lshl_b32 s6, s81, 7'); a('v_add_u32 v28, s6, v28'); a(f'v_mov_b32 v29, {ZR}')
        for u in range(4): a(f'v_cndmask_b32 v{24+u}, v29, v28, {BM[u]}')
        a('s_lshl_b32 s5, s81, 10'); a(f's_add_u32 s5, s5, {QP}'); a('v_add_u32 v3, s5, v2')
        self.waitc(C_H, 1, 8, 9)
        self.stamp(4)
        self.gemv2(24, 32, 96, 64)
        self.merge(64); a('ds_write_b128 v3, v[64:67]')
        self.arrive(C_Q, 8, 9)
        a('s_cmp_lg_u32 s3, 4'); a('s_cbranch_scc1 L_h_end')
        a('v_lshrrev_b32 v10, 4, v1'); a('v_lshlrev_b32 v10, 5, v10'); a('v_bfe_u32 v11, v1, 1, 3'); a('v_add_u32 v10, v10, v11')
        a('v_and_b32 v11, 1, v1'); a('v_lshl_add_u32 v10, v11, 7, v10'); a('v_lshlrev_b32 v10, 1, v10'); a(f'v_add_u32 v10, {QT}, v10')
        a('v_lshlrev_b32 v11, 3, v1'); a(f'v_add_u32 v11, {QT}, v11')
        self.tag_make()
        self.waitc(C_Q, 8, 8, 9); self.reduce_parts(QP, 8)
        a('v_cvt_pk_bf16_f32 v96, v96, v97'); a('v_cvt_pk_bf16_f32 v98, v98, v99')
        a('ds_write_b16 v10, v96'); a('ds_write_b16_d16_hi v10, v96 offset:16')
        a('ds_write_b16 v10, v98 offset:32'); a('ds_write_b16_d16_hi v10, v98 offset:48')
        a('s_waitcnt lgkmcnt(0)'); a('ds_read_b64 v[100:101], v11')
        a(f'v_mov_b32 v97, {TAG}'); a(f'v_mov_b32 v99, {TAG}')
        a(f's_add_u32 s5, s80, {Q_OFF}')
        a('s_waitcnt lgkmcnt(0)')
        a('v_mov_b32 v96, v100'); a('v_mov_b32 v98, v101')
        a(f'buffer_store_dwordx4 v[96:99], v2, {WS}, s5 offen sc1')
        self.arrive(C_W1, 8, 9)
        self.stamp(5)
        self.end()

    def pollcnt(self, off):
        a = self.a; lp = self.lab('LC'); ld = self.lab('LE')
        a(f's_mov_b32 {POLLC}, 0'); a(f'{lp}:')
        a(f'buffer_load_dword v14, v13, {DBG}, 0 offen offset:{off} sc1'); a('s_waitcnt vmcnt(0)')
        a('v_and_b32 v15, 63, v14'); a('v_cmp_gt_u32 vcc, 32, v15'); a(f's_cbranch_vccz {ld}')
        a('s_sleep 1'); a(f's_add_u32 {POLLC}, {POLLC}, 1'); a(f's_cmp_lt_u32 {POLLC}, {POLL_MAX}'); a(f's_cbranch_scc1 {lp}')
        a(f'{ld}:')

    def gemv2(self, xa, xr, T, acc):
        a = self.a
        for kb in range(2):
            for u in range(4): a(f'ds_read_b128 {v(xr+16*kb+4*u,4)}, v{xa+u} offset:{64*kb}')
        for kb in range(2):
            for m in range(8):
                if m % 2 == 0: a(f's_waitcnt lgkmcnt({7 - 4*kb - m//2})')
                c = '0' if (kb == 0 and m < 2) else v(acc + 4 * (m & 1), 4)
                a(f'v_mfma_f32_16x16x32_bf16 {v(acc+4*(m&1),4)}, {v(T+32*kb+4*m,4)}, {v(xr+16*kb+4*(m>>1),4)}, {c}')

    def getmode(self):
        self.waitc(C_MODE, 1, 8, 9, SMODE)

    def tail(self):
        a = self.a
        a(f's_mul_i32 s80, s4, {ASTR}'); a(f's_add_u32 s80, s80, {AUXREG}')
        a('v_lshlrev_b32 v2, 4, v1')
        a('s_cmp_ge_u32 s3, 8'); a('s_cbranch_scc1 L_tail_c')
        a('s_cmp_ge_u32 s3, 4'); a('s_cbranch_scc1 L_tail_b')
        self.tail_a()
        if self.lighth: self.h1()
        self.tail_b(); self.tail_c()

    def tail_a(self):
        a = self.a
        self.srd(['WO', 'OUT', 'X']); self.consts()
        a('s_sub_u32 s5, s3, 1'); a('s_and_b32 s5, s5, 1'); a('s_lshl_b32 s81, s5, 10')
        a('s_waitcnt lgkmcnt(0)')
        a(f'buffer_load_dwordx4 v[40:43], v2, {X_}, s81 offen')
        self.tag_load()
        if self.touch2:
            a('s_cmp_lg_u32 s3, 3'); a('s_cbranch_scc1 L_a_t2')
            self.code_touch2('L_tail_c', 'L_c_w1', 32); self.code_touch2(*(('L_h1', 'L_tail_b') if self.lighth else ('L_a_h1', 'L_a_wo')), 32)
            a('L_a_t2:')
        a('s_barrier')
        rows = [8 * (j & 3) + 2 * (j >> 2) for j in range(8)]
        a('v_lshrrev_b32 v3, 5, v1'); a('v_lshlrev_b32 v3, 15, v3'); a('v_bfe_u32 v4, v1, 4, 1'); a('v_lshl_add_u32 v3, v4, 12, v3')
        a('v_and_b32 v4, 15, v1'); a('v_lshl_add_u32 v35, v4, 4, v3')
        a('s_lshl_b32 s5, s4, 17'); a('s_lshl_b32 s6, s3, 8'); a('s_add_u32 s87, s5, s6')
        if self.early:
            a(f's_add_u32 s82, s87, {(64 + 1)*1024}')
            self.unit_loads(136, 35, WO, 's82', 1024, rows)
        if self.lighth:
            a('s_cmp_lt_u32 s4, 28'); a('s_cbranch_scc1 L_a_wo')
            a('s_cmp_eq_u32 s3, 0'); a('s_cbranch_scc1 L_a_h1'); a('s_cmp_eq_u32 s3, 3'); a('s_cbranch_scc1 L_a_h1')
            a(f's_waitcnt vmcnt({8 if self.early else 0})')
            self.ln_x()
        else:
            a('s_cmp_eq_u32 s3, 0'); a('s_cbranch_scc1 L_a_h1'); a('s_cmp_eq_u32 s3, 3'); a('s_cbranch_scc1 L_a_wo')
            a(f's_waitcnt vmcnt({8 if self.early else 0})')
            self.ln_x()
            a('s_branch L_a_wo')
        if self.lighth:
            a('L_a_h1:')
            a('s_call_b64 s[90:91], L_h1')
            self.waitc(C_H, 9, 8, 9)
        else:
            a('L_a_h1:'); a('s_mov_b32 s93, s4')
            self.h1_body()
        a('L_a_wo:')
        if self.wo_wait: self.waitc(C_H, 1, 8, 9)
        if self.touch:
            a('s_cmp_lg_u32 s3, 3'); a('s_cbranch_scc1 L_a_nt')
            self.code_touch('L_exit', 12288, 32)
            a('L_a_nt:')
        for kb in ([0, 1, 2] if self.early else [3, 0, 1, 2]):
            a(f's_add_u32 s82, s87, {(64*(kb&1) + (kb>>1))*1024}')
            S = [8, 12, 72, 76, 136]
            self.unit_loads(S[kb + 1], 35, WO, 's82', 1024, rows, depth=self.dl0, prior=0 if kb == 3 else 99, qs=4 if kb == 3 else 8)
        if self.w1pf: self.arrive(C_CLR, 8, 9)
        for kb in range(4):
            if kb < 3: a(f's_waitcnt vmcnt({16 - 8*kb})')
            self.transpose(S[kb + 1], S[kb], rs=4 if kb == 3 else 8, ds=8)
        self.stamp(1)
        self.sxaddr(164, OSTR, OB, 165)
        a(f'v_mov_b32 v165, {ZR}')
        for u in range(4): a(f'v_cndmask_b32 v{160+u}, v165, v164, {BM[u]}')
        self.sidx(164)
        for i in range(8): a(f'v_mov_b32 v{152+i}, 0')
        a('s_lshl_b32 s5, s3, 10'); a('s_add_u32 s81, s80, s5')
        self.waitc(C_MODE, 1, 166, 167, SMODE)
        a('s_cmp_eq_u32 s3, 0'); a('s_cbranch_scc0 L_a_pt')
        a('v_lshrrev_b32 v3, 3, v1'); a(f'v_mul_u32_u24 v3, {ASTR}, v3'); a('v_and_b32 v4, 7, v1'); a('v_lshl_add_u32 v3, v4, 4, v3')
        a('v_lshrrev_b32 v5, 4, v1'); a('v_lshlrev_b32 v5, 2, v5'); a('v_lshl_add_u32 v4, v4, 4, v5')
        a(f'v_add_u32 v7, {SMALL}, v4')
        a('s_lshl_b32 s5, s4, 7')
        for i in range(4): a(f's_add_u32 s{82+i}, s5, {AUXREG + 8*i*ASTR + A_OFF}'); a(f's_add_u32 s{86+i}, s5, {AUXREG + 8*i*ASTR + P2_OFF}')
        a('s_and_b32 s5, s4, 0x18'); a('s_and_b32 s6, s4, 1'); a('s_lshl_b32 s6, s6, 2'); a('s_add_u32 s5, s5, s6'); a('s_bfe_u32 s6, s4, 0x10002'); a('s_add_u32 s5, s5, s6')
        a('s_lshl_b32 s5, s5, 6'); a('s_and_b32 s6, s4, 2'); a('s_lshl_b32 s6, s6, 4'); a('s_add_u32 s5, s5, s6'); a(f's_add_u32 s90, s5, {X1G}')
        a('v_bfe_u32 v4, v1, 2, 1'); a('v_lshlrev_b32 v4, 7, v4'); a('v_lshrrev_b32 v5, 5, v1'); a('v_lshl_add_u32 v4, v5, 4, v4')
        a('v_and_b32 v6, 3, v1'); a('v_lshl_add_u32 v4, v6, 2, v4'); a('v_lshrrev_b32 v5, 4, v1'); a('v_and_b32 v6, 1, v5'); a('v_lshl_add_u32 v4, v6, 11, v4')
        self.own_n('s91')
        a('v_and_b32 v6, 7, v1'); a('v_lshlrev_b32 v6, 3, v6'); a('v_lshrrev_b32 v165, 5, v1'); a('v_add_u32 v6, v6, v165')
        a('v_and_b32 v5, 1, v5'); a('v_lshl_add_u32 v5, v5, 9, v6'); a('v_lshlrev_b32 v5, 1, v5')
        a(f's_add_u32 s5, {EPO}, 1'); a('v_mov_b32 v166, s5'); a('v_mov_b32 v167, 0')
        for i in range(8): a(f'buffer_load_dwordx4 v[136:139], v3, {WS}, s{82+i} offen sc1')
        a('s_branch L_a_pu')
        a('L_a_pt:')
        a('s_sub_u32 s5, s3, 1'); a('s_and_b32 s5, s5, 1'); a('s_lshl_b32 s6, s5, 4'); a('v_mov_b32 v5, v2')
        a('s_lshl_b32 s82, s5, 11'); a(f's_add_u32 s82, s82, {X1G}'); a('s_add_u32 s83, s82, 1024')
        a('v_lshlrev_b32 v6, 5, v1'); a(f's_add_u32 s6, s6, {IMA}'); a('v_add_u32 v6, s6, v6')
        a('v_lshrrev_b32 v7, 4, v1'); a('v_lshlrev_b32 v7, 7, v7'); a('v_and_b32 v4, 15, v1'); a('v_lshl_add_u32 v7, v4, 2, v7'); a(f's_mul_i32 s5, s5, {YSTR}'); a(f's_add_u32 s5, s5, {YB}'); a('v_add_u32 v7, s5, v7')
        a('s_mov_b32 s84, 0x3b000000'); a('v_mov_b32 v3, 0x3727c5ac')
        for i in range(2): a(f'buffer_load_dwordx4 v[136:139], v5, {WS}, s{82+i} offen sc1')
        a('L_a_pu:')
        a('s_waitcnt vmcnt(0)')
        self.stamp(2)
        self.dry_begin('L_a_go')
        if self.ta_cnt:
            a(f'v_mov_b32 v164, {CNT + C_Q}'); a(f's_mov_b32 {POLLC}, 0'); a('L_a_sp:')
            a('ds_read_b32 v165, v164'); a('s_waitcnt lgkmcnt(0)'); a('v_cmp_gt_u32 vcc, 4, v165'); a('s_cbranch_vccz L_a_sq')
            a(f's_add_u32 {POLLC}, {POLLC}, 1'); a(f's_cmp_lt_u32 {POLLC}, {POLL_MAX*16}'); a('s_cbranch_scc1 L_a_sp'); a('L_a_sq:')
        else: self.bar()
        self.stamp(3)
        X = [136, 8]
        def xread(p):
            for u in range(4): a(f'ds_read_b128 {v(X[p]+4*u,4)}, v{160+u} offset:{128*p}')
        xread(0)
        for p in range(2):
            for m in range(8):
                if m % 2 == 0: a(f's_waitcnt lgkmcnt({3 - m//2 + (4 if p == 0 and m else 0)})')
                a(f'v_smfmac_f32_16x16x64_bf16 {v(152+4*(m&1),4)}, {v(X[p]+4*(m>>1),4)}, {v(8+64*p+8*m,8)}, v164')
                if p == 0 and m == 1: xread(1)
        self.pub_pre()
        a('v_pk_add_f32 v[152:153], v[152:153], v[154:155]'); a('v_pk_add_f32 v[154:155], v[156:157], v[158:159]')
        self.pub(f'buffer_store_dwordx4 v[152:155], v2, {WS}, s81 offen')
        self.stamp(4)
        a('s_cmp_lg_u32 s3, 0'); a('s_cbranch_scc1 L_a_ln')
        if self.ta_cnt: self.waitc(C_MR, 3, 164, 165)
        for k in range(4): a(f'ds_read_b32 v{72+k}, v7 offset:{128*k}')
        def rs(s0, last_half):
            def mk(b):
                L = [f'buffer_load_dwordx4 {v(b+4*i,4)}, v3, {WS}, s{s0+i} offen sc1' for i in range(4)]
                if last_half: L = L[:3] + ['s_mov_b32 exec_hi, 0', L[3], 's_mov_b32 exec_hi, s95']
                return L
            b = 8 if not last_half else 80
            def consume(b=b):
                a(f'v_pk_add_f32 v[156:157], {v(b,2)}, {v(b+4,2)}'); a(f'v_pk_add_f32 v[158:159], {v(b+2,2)}, {v(b+6,2)}')
                a(f'v_pk_add_f32 v[152:153], {v(b+8,2)}, {v(b+12,2)}'); a(f'v_pk_add_f32 v[154:155], {v(b+10,2)}, {v(b+14,2)}')
                a('v_pk_add_f32 v[156:157], v[156:157], v[152:153]'); a('v_pk_add_f32 v[158:159], v[158:159], v[154:155]')
            if self.pipe: self.npoll2(mk, 4, [b, b + 16], 16, 165, consume, 156)
            else: self.npoll(mk(b), range(b, b + 16), 165, consume, 156)
            self.red4rows(156)
            a('v_add_f32_dpp v156, v156, v156 row_ror:8 row_mask:0xf bank_mask:0xf')
        rs(82, False)
        a('s_waitcnt lgkmcnt(0)')
        self.ex(0x00ff00ff, 0x00ff00ff); self.pub_pre()
        a('v_fma_f32 v76, v72, v156, v73')
        self.pub(f'buffer_store_dword v76, v4, {WS}, s90 offen')
        self.exfull()
        self.stamp(5)
        for r in range(4): a(f'v_mov_b32 v{92+r}, 0'); a(f'v_mov_b32 v{108+r}, 0')
        a('v_fmac_f32 v76, v74, v75')
        self.bar(); self.bar()
        self.stamp(6)
        rs(86, True)
        self.ex(0x00ff00ff, 0x00ff00ff)
        a('v_fmac_f32 v76, v74, v156'); a('v_cvt_pk_bf16_f32 v76, v76, v76')
        a(f'buffer_store_short v76, v5, {OUT}, s91 offen')
        a('s_cmp_lg_u32 s4, 0'); a('s_cbranch_scc1 L_a_end')
        self.ex(1, 0); a(f'buffer_store_dword v166, v167, {WS}, 0 offen sc1')
        a('L_a_end:')
        self.dry_end('L_a_go')
        self.end()
        a('L_a_ln:')
        a('s_cmp_eq_u32 s3, 3'); a('s_cbranch_scc1 L_a_end')
        a('s_cmp_ge_u32 s4, 28'); a('s_cbranch_scc1 L_a_end')
        if self.ta_cnt: self.waitc(C_MR, 3, 164, 165)
        a('ds_read_b128 v[72:75], v6'); a('ds_read_b128 v[76:79], v6 offset:2048')
        a(f'ds_read_b128 v[80:83], v6 offset:{IMS-IMA}'); a(f'ds_read_b128 v[84:87], v6 offset:{IMS-IMA+2048}')
        def shift(b):
            a(f'v_readfirstlane_b32 s6, v{b}')
            for i in range(4): a(f'v_pk_add_f32 {v(88+2*i,2)}, {v(b+2*i,2)}, s[6:7] op_sel_hi:[1,0] neg_lo:[0,1] neg_hi:[0,1]')
        self.ppoll(lambda b: [f'buffer_load_dwordx4 {v(b,4)}, v5, {WS}, s82 offen sc1', f'buffer_load_dwordx4 {v(b+4,4)}, v5, {WS}, s83 offen sc1'],
                   2, 8, [8, 16], 165, shift, delay=self.agdelay)
        self.stamp(5)
        def stats():
            a('v_pk_mul_f32 v[98:99], v[88:89], v[88:89]'); a('v_pk_add_f32 v[96:97], v[88:89], v[90:91]')
            a('v_pk_fma_f32 v[98:99], v[90:91], v[90:91], v[98:99]'); a('v_pk_add_f32 v[100:101], v[92:93], v[94:95]')
            a('v_pk_fma_f32 v[98:99], v[92:93], v[92:93], v[98:99]'); a('v_pk_add_f32 v[96:97], v[96:97], v[100:101]')
            a('v_pk_fma_f32 v[98:99], v[94:95], v[94:95], v[98:99]')
            a('v_add_f32 v156, v96, v97'); a('v_add_f32 v157, v98, v99')
            a('v_permlane32_swap_b32 v156, v157'); a('v_add_f32 v156, v156, v157')
            a('v_mov_b32 v157, v156'); a('v_permlane16_swap_b32 v156, v157'); a('v_add_f32 v156, v156, v157')
            self.rowsum(156)
            a('v_readlane_b32 s6, v156, 0'); a('v_readlane_b32 s5, v156, 32')
            a('v_mov_b32 v159, s84')
            a('v_mul_f32 v156, s6, v159'); a('v_fma_f32 v158, s5, v159, v3')
            a('v_fma_f32 v158, -v156, v156, v158'); a('v_max_f32 v158, v158, v3'); a('v_rsq_f32 v158, v158')
            for i in range(4): a(f'v_pk_add_f32 {v(88+2*i,2)}, {v(88+2*i,2)}, v[156:157] op_sel_hi:[1,0] neg_lo:[0,1] neg_hi:[0,1]')
        stats()
        a('s_waitcnt lgkmcnt(0)')
        for i in range(4): a(f'v_pk_mul_f32 {v(88+2*i,2)}, {v(88+2*i,2)}, {v(72+2*i,2)}')
        for i in range(4): a(f'v_pk_fma_f32 {v(88+2*i,2)}, {v(88+2*i,2)}, v[158:159], {v(80+2*i,2)} op_sel_hi:[1,0,1]')
        stats()
        for i in range(4): a(f'v_pk_mul_f32 {v(88+2*i,2)}, {v(88+2*i,2)}, v[158:159] op_sel_hi:[1,0]')
        for i in range(4): a(f'v_cvt_pk_bf16_f32 v{88+i}, v{88+2*i}, v{89+2*i}')
        a('ds_write2_b32 v7, v88, v89 offset1:16'); a('ds_write2_b32 v7, v90, v91 offset0:128 offset1:144')
        a('s_waitcnt lgkmcnt(0)')
        self.stamp(6)
        self.bar()
        a('s_branch L_a_end')
        self.flush_late()

    def h1_body(self):
        a = self.a
        a('v_lshrrev_b32 v3, 5, v1'); a('v_lshlrev_b32 v3, 4, v3'); a('v_bfe_u32 v4, v1, 3, 2'); a('v_add_u32 v3, v3, v4'); a(f'v_mul_u32_u24 v3, {ASTR}, v3')
        a('v_and_b32 v4, 7, v1'); a('v_lshl_add_u32 v3, v4, 4, v3')
        a('s_lshr_b32 s5, s93, 3'); a(f's_mul_i32 s5, s5, {4*ASTR}'); a('s_and_b32 s6, s93, 7'); a('s_lshl_b32 s6, s6, 7'); a('s_add_u32 s5, s5, s6')
        a(f's_add_u32 s82, s5, {AUXREG+MC_OFF}')
        a('s_lshr_b32 s5, s93, 1'); a('s_lshl_b32 s5, s5, 5'); a('s_and_b32 s6, s93, 1'); a('s_lshl_b32 s6, s6, 2'); a('s_add_u32 s5, s5, s6'); a('s_lshl_b32 s5, s5, 2')
        a(f's_add_u32 s5, s5, {LNX}')
        a('v_bfe_u32 v5, v1, 1, 2'); a('v_and_b32 v6, 1, v1'); a('v_lshlrev_b32 v7, 4, v5'); a('v_lshl_add_u32 v7, v6, 6, v7')
        a('v_lshl_add_u32 v5, v6, 9, v5'); a('v_lshlrev_b32 v5, 2, v5'); a('v_add_u32 v5, s5, v5')
        a(f's_mul_i32 s83, s93, {ASTR}'); a(f's_add_u32 s83, s83, {AUXREG+H_OFF}')
        self.waitc(C_LN, 2, 8, 9)
        for r in range(4): a(f'ds_read_b32 v{24+r}, v5 offset:{32*r}')
        self.tag_make()
        self.stamp(7)
        a(f's_mov_b32 {POLLC}, 0'); a('L_a_mp:')
        a(f's_and_b32 s5, {POLLC}, 63'); a('s_cmp_eq_u32 s5, 63'); a('s_cselect_b32 s5, 2048, 0'); a('s_add_u32 s5, s5, s82')
        a(f'buffer_load_dwordx4 v[16:19], v3, {WS}, s5 offen sc1'); a(f'buffer_load_dwordx4 v[20:23], v3, {WS}, s5 offen offset:1024 sc1')
        a('s_waitcnt vmcnt(0)')
        for i, r in enumerate([17, 19, 21, 23]):
            if i == 0: a(f'v_cmp_ne_u32 vcc, {TAG}, v{r}')
            else: a(f'v_cmp_ne_u32 s[88:89], {TAG}, v{r}'); a('s_or_b64 vcc, vcc, s[88:89]')
        a('s_cmp_eq_u64 vcc, 0'); a('s_cbranch_scc1 L_a_mq')
        a(f's_add_u32 {POLLC}, {POLLC}, 1'); a(f's_cmp_lt_u32 {POLLC}, {POLL_MAX}'); a('s_cbranch_scc1 L_a_mp')
        a('L_a_mq:')
        self.stamp(8)
        for r in range(4): a(f'v_add_f32_dpp v{12+r}, v{16+2*r}, v{16+2*r} row_ror:8 row_mask:0xf bank_mask:0xf')
        for r in range(4): a(f'v_mov_b32 v{16+r}, v{12+r}')
        for r in range(4): a(f'v_permlane16_swap_b32 v{12+r}, v{16+r}')
        for r in range(4): a(f'v_add_f32 v{12+r}, v{12+r}, v{16+r}')
        for r in range(4): a(f'v_mov_b32 v{16+r}, v{12+r}')
        for r in range(4): a(f'v_permlane32_swap_b32 v{12+r}, v{16+r}')
        for p in (12, 14, 16, 18): self.rnd2(p, p + 1, 8)
        for r in range(4): a(f'v_add_f32 v{16+r}, 1.0, v{16+r}')
        self.rnd2(16, 17, 8); self.rnd2(18, 19, 8)
        for r in range(4): a(f'v_mul_f32 v{24+r}, v{24+r}, v{16+r}')
        self.rnd2(24, 25, 8); self.rnd2(26, 27, 8)
        for r in range(4): a(f'v_add_f32 v{24+r}, v{24+r}, v{12+r}')
        a('v_cvt_pk_bf16_f32 v24, v24, v25'); a('v_cvt_pk_bf16_f32 v26, v26, v27'); a(f'v_mov_b32 v25, {TAG}'); a(f'v_mov_b32 v27, {TAG}')
        a('s_mov_b64 exec, 0xff'); a(f'buffer_store_dwordx4 v[24:27], v7, {WS}, s83 offen sc1'); a('s_mov_b64 exec, -1')
        self.arrive(C_H, 8, 9)
        self.stamp(9)

    def h1(self):
        a = self.a
        a('L_h1:')
        a('s_sub_u32 s93, s4, 28'); a('s_lshl_b32 s93, s93, 3'); a('s_add_u32 s93, s93, s3')
        self.h1_body()
        a('s_setpc_b64 s[90:91]')

    def own_n(self, dst):
        a = self.a
        a('s_and_b32 s5, s4, 0x18'); a('s_lshl_b32 s5, s5, 5'); a('s_and_b32 s6, s4, 1'); a('s_lshl_b32 s6, s6, 7'); a('s_add_u32 s5, s5, s6')
        a('s_and_b32 s6, s4, 6'); a('s_lshl_b32 s6, s6, 1'); a(f's_add_u32 {dst}, s5, s6')

    def tail_b(self):
        a = self.a
        a('L_tail_b:')
        self.srd(['W2']); self.consts()
        a('s_sub_u32 s81, s3, 4')
        self.wvoff(3, 1024, 4)
        a('s_lshl_b32 s5, s4, 16'); a('s_lshl_b32 s6, s81, 8'); a('s_add_u32 s82, s5, s6')
        a('s_waitcnt lgkmcnt(0)')
        if self.lighth: self.tag_load()
        a('s_cmp_eq_u32 s3, 5'); a('s_cbranch_scc0 L_b_ni')
        self.lds_init(); a('s_waitcnt lgkmcnt(0)')
        a('L_b_ni:')
        a('s_cmp_eq_u32 s3, 4'); a('s_cbranch_scc0 L_b_nc')
        for i in range(4): a(f'v_mov_b32 v{8+i}, -1')
        for i in range(8):
            if i % 4 == 0: a(f's_add_u32 s5, s80, {(i//4)*4096}')
            a(f'buffer_store_dwordx4 v[8:11], v2, {WS}, s5 offen offset:{(i%4)*1024} sc1')
        a(f's_add_u32 s5, s80, {ST_OFF}'); a('s_lshl_b32 s6, s4, 7'); a(f's_add_u32 s6, s6, {X1G}')
        a('s_mov_b64 exec, 0xffff'); a(f'buffer_store_dwordx4 v[8:11], v2, {WS}, s5 offen sc1')
        a('s_mov_b64 exec, 0xff'); a(f'buffer_store_dwordx4 v[8:11], v2, {WS}, s6 offen sc1'); a('s_mov_b64 exec, -1')
        a('s_barrier')
        self.xcc_inc('s85')
        a('v_mov_b32 v12, s85'); a('v_mov_b32 v13, 0')
        a('s_waitcnt vmcnt(0)')
        if not self.nohello: a('s_mov_b64 exec, 1'); a(f'buffer_atomic_add v12, v13, {DBG}, 0 offen offset:4 sc1'); a('s_mov_b64 exec, -1')
        self.stamp(1)
        if self.lighth:
            a('s_cmp_lt_u32 s4, 28'); a('s_cbranch_scc1 L_b_nh')
            a('s_call_b64 s[90:91], L_h1')
            a('v_mov_b32 v13, 0')
            a('L_b_nh:')
        a('s_mov_b64 exec, 1')
        a('s_cmp_lg_u32 s4, 0'); a('s_cbranch_scc1 L_b_fl')
        if self.nohello: a('s_mov_b32 s85, 2'); a('s_sleep 64')
        else:
            self.pollcnt(4)
            a('v_readfirstlane_b32 s6, v14')
            a('s_lshl_b32 s85, s85, 5'); a('s_cmp_eq_u32 s85, s6'); a(f's_cselect_b32 s85, {1 if self.force_slow else 2}, 1')
            self.pollcnt(0)
        a('v_mov_b32 v16, s85'); a(f'buffer_store_dword v16, v13, {DBG}, 0 offen offset:128 sc1')
        a('s_branch L_b_fm')
        a('L_b_fl:')
        self.poll([f'buffer_load_dword v16, v13, {DBG}, 0 offen offset:128 sc1'], [16], 17, zero=True, sleep=8)
        a('L_b_fm:')
        a('v_readfirstlane_b32 s5, v16'); a('s_mov_b64 exec, -1')
        self.arrive(C_MODE, 8, 9, 's5')
        self.stamp(7)
        a('s_branch L_b_w2')
        a('L_b_nc:')
        a('s_barrier')
        if self.lighth:
            a('s_cmp_lt_u32 s4, 28'); a('s_cbranch_scc1 L_b_w2')
            a('s_call_b64 s[90:91], L_h1')
        a('L_b_w2:')
        if self.prio: a('s_setprio 2')
        a('s_cmp_ge_u32 s4, 28'); a('s_cbranch_scc1 L_b_now2')
        if self.early2:
            a('s_cmp_eq_u32 s3, 4'); a('s_cbranch_scc1 L_b_e4')
            self.unit_loads(32, 3, W2, 's82', 1024)
            self.waitc(C_H, 1, 8, 9)
            a('s_branch L_b_e5')
            a('L_b_e4:')
            self.unit_loads(32, 3, W2, 's82', 1024)
            a('L_b_e5:')
        else:
            self.waitc(C_H, 1, 8, 9)
            self.unit_loads(32, 3, W2, 's82', 1024, depth=self.dl, prior=1)
        a(f's_add_u32 s82, s82, {32*1024}'); self.unit_loads(64, 3, W2, 's82', 1024, depth=self.dl)
        a('s_waitcnt vmcnt(0)')
        self.transpose(32, 96, ds=8); self.transpose(64, 100, ds=8)
        a('L_b_now2:')
        self.stamp(2)
        self.getmode()
        a('s_lshr_b32 s82, s81, 1')
        a('v_lshrrev_b32 v4, 4, v1')
        for i in range(3): a(f'v_add_u32 v{8+i}, {4*i}, v4')
        for i in range(3): a(f'v_lshlrev_b32 v{17+i}, 3, v{8+i}')
        a('s_mul_i32 s5, s82, 96'); a('s_add_u32 s85, s80, s5'); a(f's_add_u32 s85, s85, {ST_OFF}')
        a('v_and_b32 v5, 15, v1')
        for i in range(3): a(f'v_lshlrev_b32 v{12+i}, 11, v{8+i}'); a(f'v_lshl_add_u32 v{12+i}, v5, 4, v{12+i}')
        a('s_lshl_b32 s5, s82, 3'); a('s_lshr_b32 s6, s4, 2'); a('s_add_u32 s5, s5, s6'); a(f's_mul_i32 s5, s5, {12*2048}')
        a('s_and_b32 s6, s4, 3'); a('s_lshl_b32 s6, s6, 9'); a('s_add_u32 s5, s5, s6')
        a('s_and_b32 s6, s81, 1'); a('s_lshl_b32 s6, s6, 8'); a('s_add_u32 s5, s5, s6'); a(f's_add_u32 s83, s5, {MO_BASE}')
        a('v_and_b32 v6, 1, v4'); a('v_lshl_add_u32 v6, v5, 1, v6'); a('v_lshlrev_b32 v6, 1, v6'); a('v_lshrrev_b32 v7, 1, v4'); a('v_lshl_add_u32 v6, v7, 6, v6'); a('s_and_b32 s5, s81, 1'); a('s_lshl_b32 s5, s5, 7'); a(f's_mul_i32 s6, s82, {OSTR}'); a('s_add_u32 s5, s5, s6'); a(f's_add_u32 s5, s5, {OB}'); a('v_add_u32 v6, s5, v6')
        self.sxaddr(20, OSTR, HB, 21); a(f'v_mov_b32 v21, {ZR}')
        for u in range(4): a(f'v_cndmask_b32 v{24+u}, v21, v20, {BM[u]}')
        self.sidx(20)
        for i in range(8): a(f'v_mov_b32 v{84+i}, 0')
        a('s_lshl_b32 s5, s81, 10'); a('s_add_u32 s84, s80, s5'); a(f's_add_u32 s84, s84, {P2_OFF}')
        a(f'v_mov_b32 v22, {CNT + C_Q}'); a('v_mov_b32 v23, 1')
        t1 = [f'buffer_load_dwordx4 {v(32+4*i,4)}, v{12+i}, {WS}, s83 offen sc1' for i in range(3)]
        self.poll([f'buffer_load_dwordx2 {v(52+2*i,2)}, v{17+i}, {WS}, s85 offen sc1' for i in range(3)], range(52, 58), 16, sleep=self.ssleep)
        for s_ in t1: a(s_)
        self.stamp(4)
        a('v_max3_f32 v16, v52, v54, v56'); self.xrows(16, 17, 'max')
        for i in range(3): a(f'v_sub_f32 v{48+i}, v{52+2*i}, v16')
        for i in range(3): a(f'v_mul_f32 v{48+i}, {LOG2E}, v{48+i}')
        for i in range(3): a(f'v_exp_f32 v{48+i}, v{48+i}')
        a('v_mul_f32 v16, v48, v53')
        for i in range(1, 3): a(f'v_fmac_f32 v16, v{48+i}, v{53+2*i}')
        self.xrows(16, 17)
        a('v_rcp_f32 v16, v16')
        for i in range(3): a(f'v_mul_f32 v{48+i}, v{48+i}, v16')
        a('s_mov_b64 s[94:95], -1')
        def comb(b=32):
            for h in range(2): a(f'v_pk_mul_f32 {v(28+2*h,2)}, {v(b+2*h,2)}, v[48:49] op_sel_hi:[1,0]')
            for h in range(2): a(f'v_pk_fma_f32 {v(28+2*h,2)}, {v(b+4+2*h,2)}, v[48:49], {v(28+2*h,2)} op_sel:[0,1,0] op_sel_hi:[1,1,1]')
            for h in range(2): a(f'v_pk_fma_f32 {v(28+2*h,2)}, {v(b+8+2*h,2)}, v[50:51], {v(28+2*h,2)} op_sel_hi:[1,0,1]')
        if self.pipet1:
            self.npoll2(lambda b: [f'buffer_load_dwordx4 {v(b+4*i,4)}, v{12+i}, {WS}, s83 offen sc1' for i in range(3)], 3, [32, 60], 12, 16, comb, 28, pre=True)
        else: self.npoll(t1, range(32, 44), 16, comb, 28, pre=True)
        self.stamp(5)
        self.red4rows(28)
        a('v_cvt_pk_bf16_f32 v28, v28, v28'); a('ds_write_b16 v6, v28')
        if self.ta_cnt: a('s_mov_b64 exec, 1'); a('ds_add_u32 v22, v23'); a('s_mov_b64 exec, -1')
        else: a('s_waitcnt lgkmcnt(0)'); a('s_barrier')
        a('s_cmp_ge_u32 s4, 28'); a('s_cbranch_scc1 L_b_end')
        a('s_waitcnt vmcnt(0)')
        a('s_barrier'); a('s_barrier')
        for u in range(4): a(f'ds_read_b128 {v(60+4*u,4)}, v{24+u}')
        for m in range(8):
            if m % 2 == 0: a(f's_waitcnt lgkmcnt({3 - m//2})')
            a(f'v_smfmac_f32_16x16x64_bf16 {v(84+4*(m&1),4)}, {v(60+4*(m>>1),4)}, {v(96+8*m,8)}, v20')
        self.pub_pre()
        a('v_pk_add_f32 v[84:85], v[84:85], v[86:87]'); a('v_pk_add_f32 v[86:87], v[88:89], v[90:91]')
        self.pub(f'buffer_store_dwordx4 v[84:87], v2, {WS}, s84 offen')
        self.stamp(6)
        a('L_b_end:')
        self.end()
        self.flush_late()

    def tail_c(self):
        a = self.a
        a('L_tail_c:')
        self.srd(['WM', 'C', 'W1', 'B1', 'X', 'B2']); self.consts()
        a('s_sub_u32 s81, s3, 8')
        self.wvoff(5, 6144, 4); self.xvoff(6, 1024, 0, 4)
        a('s_and_b32 s5, s4, 3'); a('s_lshl_b32 s5, s5, 7'); a('s_lshl_b32 s6, s81, 5'); a('s_add_u32 s83, s5, s6')
        a('s_mul_i32 s5, s83, 6144'); a('s_lshr_b32 s6, s4, 2'); a('s_lshl_b32 s6, s6, 8'); a('s_add_u32 s84, s5, s6')
        a('s_lshl_b32 s83, s83, 1')
        a('s_waitcnt lgkmcnt(0)')
        a(f'buffer_load_dwordx4 v[156:159], v6, {C_}, s83 offen')
        self.unit_loads(96, 5, WM, 's84', 6144, pol=self.mcpol)
        self.tag_load()
        self.stamp(4)
        a('s_barrier')
        a('s_waitcnt vmcnt(8)')
        self.silu4(156, 8)
        a('s_waitcnt vmcnt(0)')
        self.stamp(5)
        self.gemv_fly(96, 156, True)
        a('s_lshl_b32 s5, s81, 10'); a(f's_add_u32 s5, s5, {MP}'); a('v_add_u32 v4, s5, v2')
        self.merge(20); a('ds_write_b128 v4, v[20:23]')
        self.arrive(C_MC, 8, 9)
        a('s_cmp_lg_u32 s3, 8'); a('s_cbranch_scc1 L_c_w1')
        self.tag_make()
        for i in range(4): a(f'v_mov_b32 v{33+2*i}, {TAG}')
        self.waitc(C_MC, 4, 8, 9); self.reduce_parts(MP, 4)
        for i in range(4): a(f'v_mov_b32 v{32+2*i}, v{96+i}')
        a(f's_add_u32 s5, s80, {MC_OFF}')
        a(f'buffer_store_dwordx4 v[32:35], v2, {WS}, s5 offen'); a(f'buffer_store_dwordx4 v[36:39], v2, {WS}, s5 offen offset:1024')
        a(f'buffer_store_dwordx4 v[32:35], v2, {WS}, s5 offen offset:2048 sc1'); a(f'buffer_store_dwordx4 v[36:39], v2, {WS}, s5 offen offset:3072 sc1')
        if self.lighth: self.arrive(C_H, 8, 9)
        self.stamp(6)
        a('L_c_w1:')
        if self.prio: a('s_setprio 1')
        self.waitc(C_H, 1, 8, 9)
        if self.w1pf:
            a('s_cmp_eq_u32 s3, 8'); a('s_cbranch_scc1 L_c_pw')
            a('s_setprio 3')
            a(f's_mul_i32 s5, s4, {16*3584}'); a('s_sub_u32 s6, s3, 9'); a('s_lshl_b32 s6, s6, 10'); a('s_add_u32 s5, s5, s6')
            for i in range(19):
                if i == 18: a('s_cmp_eq_u32 s3, 11'); a('s_cbranch_scc1 L_c_pd')
                if i >= self.w1pf: a(f's_waitcnt vmcnt({self.w1pf-1})')
                a(f'buffer_load_dwordx4 v[32:35], v2, {W1}, s5 offen'); a('s_add_u32 s5, s5, 3072')
            a('L_c_pd:')
            a('s_branch L_c_gm')
            a('L_c_pw:')
            self.waitc(C_CLR, 4, 8, 9)
            a('s_branch L_c_fin')
            a('L_c_gm:')
        else:
            a('s_cmp_eq_u32 s3, 8'); a('s_cbranch_scc1 L_c_fin')
        self.getmode()
        self.stamp(1)
        a('s_cmp_lg_u32 s3, 9'); a('s_cbranch_scc1 L_c_img')
        a('v_and_b32 v4, 7, v1'); a('v_lshrrev_b32 v5, 4, v1')
        self.own_n('s84')
        a('v_lshlrev_b32 v6, 3, v4'); a('v_lshrrev_b32 v7, 1, v5'); a('v_add_u32 v6, v6, v7'); a('v_lshlrev_b32 v6, 1, v6')
        a('v_and_b32 v7, 1, v5'); a('v_lshl_add_u32 v7, v7, 10, v6')
        a(f'buffer_load_ushort v113, v7, {X_}, s84 offen'); a(f'buffer_load_ushort v115, v6, {B2}, s84 offen')
        a('v_lshrrev_b32 v6, 2, v4'); a('v_lshlrev_b32 v6, 8, v6'); a('v_lshl_add_u32 v6, v5, 4, v6'); a('v_and_b32 v7, 3, v4'); a('v_lshl_add_u32 v6, v7, 2, v6')
        a('s_lshr_b32 s5, s4, 3'); a(f's_mul_i32 s5, s5, {2*ASTR}'); a('s_and_b32 s6, s4, 1'); a('s_lshl_b32 s6, s6, 9'); a('s_add_u32 s5, s5, s6')
        a('s_and_b32 s6, s4, 6'); a('s_lshl_b32 s6, s6, 5'); a('s_add_u32 s5, s5, s6'); a(f's_add_u32 s85, s5, {AUXREG+MR_OFF}')
        loads = []
        for q in range(2):
            for ks in range(2):
                loads.append(f's_add_u32 s6, s85, {(24*q+ks)*ASTR}')
                loads.append(f'buffer_load_dword v{96+2*q+ks}, v6, {WS}, s6 offen sc1')
        self.poll(loads, range(96, 100), 8, sleep=self.psleep)
        a('v_add_f32 v112, v96, v97'); a('v_add_f32 v114, v98, v99')
        self.rnd2(112, 114, 8)
        a('v_lshlrev_b32 v113, 16, v113'); a('v_lshlrev_b32 v115, 16, v115')
        a('v_lshlrev_b32 v5, 2, v5'); a('v_lshl_add_u32 v5, v4, 4, v5'); a(f'v_add_u32 v5, {SMALL}, v5')
        for k in range(4): a(f'ds_write_b32 v5, v{112+k} offset:{128*k}')
        a('s_branch L_c_fa' if self.ta_cnt else 's_branch L_c_fin')
        a('L_c_img:')
        a('s_sub_u32 s5, s3, 10'); a('s_lshl_b32 s5, s5, 4')
        a('v_and_b32 v4, 31, v1'); a('v_lshlrev_b32 v4, 5, v4'); a('v_lshrrev_b32 v5, 5, v1'); a(f'v_mul_u32_u24 v5, {2*ASTR}, v5'); a('v_add_u32 v4, v4, v5'); a('v_add_u32 v4, s5, v4')
        a('v_lshlrev_b32 v5, 5, v1'); a('v_add_u32 v5, s5, v5'); a(f'v_add_u32 v5, {IMA}, v5')
        loads = []
        for q in range(2):
            for i in range(2):
                for ks in range(2):
                    loads.append(f's_mov_b32 s6, {AUXREG + MR_OFF + ((4+4*q+2*i)*2+ks)*ASTR}')
                    loads.append(f'buffer_load_dwordx4 {v(96+16*q+8*i+4*ks,4)}, v4, {WS}, s6 offen sc1')
        self.poll(loads, range(96, 128), 8, sleep=self.psleep)
        for q in range(2):
            for i in range(2):
                for r in range(4): a(f'v_add_f32 v{128+8*q+4*i+r}, v{96+16*q+8*i+r}, v{100+16*q+8*i+r}')
        for p in range(128, 144, 2): self.rnd2(p, p + 1, 8)
        for i in range(8): a(f'v_add_f32 v{136+i}, 1.0, v{136+i}')
        for p in range(136, 144, 2): self.rnd2(p, p + 1, 8)
        a('v_add_f32 v10, v128, v129')
        for i in range(2, 8): a(f'v_add_f32 v10, v10, v{128+i}')
        self.wavesum(10, 11); a('v_mul_f32 v10, 0x3b000000, v10')
        for i in range(8): a(f'v_sub_f32 v{128+i}, v{128+i}, v10')
        a('ds_write_b128 v5, v[136:139]'); a('ds_write_b128 v5, v[140:143] offset:2048')
        a(f'ds_write_b128 v5, v[128:131] offset:{IMS-IMA}'); a(f'ds_write_b128 v5, v[132:135] offset:{IMS-IMA+2048}')
        if self.ta_cnt:
            a('L_c_fa:'); self.arrive(C_MR, 8, 9)
        a('L_c_fin:')
        self.stamp(7)
        a('s_cmp_ge_u32 s4, 28'); a('s_cbranch_scc1 L_c_last')
        a('v_bfe_u32 v3, v1, 3, 2'); a('v_lshlrev_b32 v3, 3, v3'); a('v_lshrrev_b32 v4, 5, v1'); a('v_add_u32 v3, v3, v4')
        a('v_mul_u32_u24 v3, 3584, v3'); a('v_and_b32 v4, 7, v1'); a('v_lshl_add_u32 v3, v4, 4, v3')
        a('s_cmp_lg_u32 s3, 8'); a('s_cbranch_scc1 L_c_b1')
        a('s_lshl_b32 s82, s4, 7'); a('s_mov_b32 s83, 0')
        a('L_c_dma:')
        for i in range(4):
            if i: a(f's_add_u32 s5, s82, {2*i*3584}')
            a(f's_add_u32 m0, s83, {1024*i}')
            a(f's_waitcnt vmcnt({self.dw1-1})')
            a(f'buffer_load_dwordx4 v3, {W1}, {"s5" if i else "s82"} offen {"" if self.w1pf else self.wpol} lds')
        a(f's_add_u32 s82, s82, {32*3584}'); a('s_add_u32 s83, s83, 4096'); a('s_cmp_lt_u32 s83, 65536'); a('s_cbranch_scc1 L_c_dma')
        a('L_c_b1:')
        a('v_and_b32 v4, 15, v1'); a('v_lshlrev_b32 v4, 1, v4'); a('s_lshl_b32 s5, s4, 7'); a('s_lshl_b32 s6, s81, 5'); a('s_add_u32 s5, s5, s6')
        a(f'buffer_load_ushort v24, v4, {B1}, s5 offen')
        a('s_waitcnt lgkmcnt(0)')
        self.stamp(2)
        if not self.ta_cnt: a('s_barrier')
        a('s_waitcnt vmcnt(0)')
        self.arrive(C_W1, 8, 9); self.waitc(C_W1, 4, 8, 9)
        a('v_lshrrev_b32 v3, 4, v1'); a('v_lshlrev_b32 v3, 10, v3'); a('v_bfe_u32 v4, v1, 2, 2'); a('v_lshl_add_u32 v3, v4, 7, v3')
        a('v_and_b32 v4, 3, v1'); a('v_lshl_add_u32 v3, v4, 3, v3'); a('s_lshl_b32 s5, s81, 5'); a('v_add_u32 v3, s5, v3')
        for kb in range(16):
            a(f'ds_read_b64_tr_b16 {v(32+4*kb,2)}, v3 offset:{4096*kb}'); a(f'ds_read_b64_tr_b16 {v(34+4*kb,2)}, v3 offset:{4096*kb+512}')
            if kb % 4 == 3: a('s_waitcnt lgkmcnt(0)')
        a('v_lshlrev_b32 v20, 16, v24'); a('v_mov_b32 v21, v20'); a('v_mov_b32 v22, 0'); a('v_mov_b32 v23, 0')
        for i in range(4): a(f'v_mov_b32 v{24+i}, 0')
        self.sxaddr(3, YSTR, YB, 4); self.sidx(6)
        a('v_bfe_u32 v4, v1, 1, 1'); a('v_lshlrev_b32 v4, 6, v4'); a('v_bfe_u32 v5, v1, 2, 2'); a('v_lshl_add_u32 v4, v5, 2, v4'); a('v_and_b32 v5, 1, v1'); a('v_lshl_add_u32 v4, v5, 1, v4')
        a('s_lshl_b32 s5, s81, 4'); a(f's_add_u32 s5, s5, {HB}'); a('v_add_u32 v4, s5, v4')
        c0 = -2.0 * 1.4426950408889634 * 0.7978845608028654
        import struct
        f2u = lambda x: struct.unpack('<I', struct.pack('<f', x))[0]
        a(f's_mov_b32 s82, {f2u(c0):#x}'); a(f'v_mov_b32 v5, {f2u(c0*0.044715):#x}')
        self.stamp(8)
        self.dry_begin('L_c_go')
        self.bar()
        for kb in range(8): a(f'ds_read_b128 {v(96+4*kb,4)}, v3 offset:{128*kb}')
        for kb in range(8):
            a(f's_waitcnt lgkmcnt({7-kb})')
            a(f'v_smfmac_f32_16x16x64_bf16 v[20:23], {v(96+4*kb,4)}, {v(32+8*kb,8)}, v6')
        self.ex(0xffff, 0)
        a('v_pk_add_f32 v[20:21], v[20:21], v[22:23]')
        for r in range(2): a(f'v_mul_f32 v{8+r}, v{20+r}, v{20+r}')
        for r in range(2): a(f'v_fma_f32 v{8+r}, v{8+r}, v5, s82')
        for r in range(2): a(f'v_mul_f32 v{8+r}, v{8+r}, v{20+r}')
        for r in range(2): a(f'v_exp_f32 v{8+r}, v{8+r}')
        for r in range(2): a(f'v_add_f32 v{8+r}, 1.0, v{8+r}')
        for r in range(2): a(f'v_rcp_f32 v{8+r}, v{8+r}')
        for r in range(2): a(f'v_mul_f32 v{8+r}, v{8+r}, v{20+r}')
        a('v_cvt_pk_bf16_f32 v8, v8, v9')
        a('ds_write_b16 v4, v8'); a(f'ds_write_b16_d16_hi v4, v8 offset:{OSTR}')
        a('s_waitcnt lgkmcnt(0)')
        self.stamp(3)
        self.bar()
        self.dry_end('L_c_go')
        self.end()
        a('L_c_last:')
        if not self.ta_cnt: a('s_waitcnt lgkmcnt(0)'); a('s_barrier')
        self.end()

    def build(self):
        a = self.a
        a(f'; @launch grid=(256,1,1) block=(768,1,1) lds={LDS_BYTES}')
        a('.amdgcn_target "amdgcn-amd-amdhsa--gfx950"'); a('.text'); a(f'.globl {KNAME}'); a('.p2align 8'); a(f'.type {KNAME},@function'); a(f'{KNAME}:')
        a('s_cmp_ge_u32 s2, 256'); a('s_cbranch_scc1 L_exit')
        self.srd(['K', 'V', 'WS', 'DBG'])
        a('v_lshrrev_b32 v2, 6, v0'); a('v_and_b32 v1, 63, v0'); a('v_readfirstlane_b32 s3, v2')
        self.stamp_init()
        a('s_and_b32 s5, s2, 7'); a('s_lshr_b32 s4, s2, 3'); a('s_cmp_eq_u32 s5, 0'); a('s_cbranch_scc1 L_tail')
        a('s_mul_i32 s6, s4, 37'); a('s_lshr_b32 s6, s6, 8'); a('s_mul_i32 s6, s6, 7'); a('s_sub_u32 s6, s4, s6'); a('s_add_u32 s6, s6, 1')
        a('s_cmp_eq_u32 s5, s6'); a('s_cbranch_scc1 L_head')
        a('s_cmp_gt_u32 s5, s6'); a('s_cselect_b32 s6, 2, 1')
        a('s_mul_i32 s4, s4, 6'); a('s_add_u32 s4, s4, s5'); a('s_sub_u32 s4, s4, s6')
        self.attention()
        a('L_head:')
        self.head()
        a('L_tail:')
        self.tail()
        a('L_exit:'); a('s_endpgm')
        nn = a.fix()
        a('.section .rodata,"a"'); a('.p2align 6'); a(f'.amdhsa_kernel {KNAME}')
        for l in ['next_free_vgpr 168', 'next_free_sgpr 102', 'accum_offset 168', 'group_segment_fixed_size 0', 'kernarg_size 120',
                  'user_sgpr_count 2', 'user_sgpr_kernarg_segment_ptr 1', 'system_sgpr_workgroup_id_x 1']:
            a.L.append(f'  .amdhsa_{l}')
        a('.end_amdhsa_kernel')
        return a.text(), nn

if __name__ == '__main__':
    import argparse
    p = argparse.ArgumentParser()
    p.add_argument('-o', default='k.s'); p.add_argument('--dbg', action='store_true'); p.add_argument('--slow', action='store_true')
    p.add_argument('--thr', type=int, default=3); p.add_argument('--vpre', type=int, default=6); p.add_argument('--vextra', type=int, default=0)
    p.add_argument('--dq', type=int, default=4); p.add_argument('--dwo', type=int, default=16); p.add_argument('--dl', type=int, default=4)
    p.add_argument('--n1', type=int, default=2); p.add_argument('--n2', type=int, default=2); p.add_argument('--qsleep', type=int, default=0); p.add_argument('--qdelay', type=int, default=0); p.add_argument('--mcpol', default='nt'); p.add_argument('--dl0', type=int, default=8); p.add_argument('--wowait', type=int, default=1); p.add_argument('--thr2', type=int, default=3); p.add_argument('--nlast', type=int, default=0); p.add_argument('--early', type=int, default=0); p.add_argument('--dw1', type=int, default=40); p.add_argument('--qsets', type=int, default=1); p.add_argument('--hsets', type=int, default=1); p.add_argument('--hsleep', type=int, default=1); p.add_argument('--prio', type=int, default=0); p.add_argument('--early2', type=int, default=1); p.add_argument('--fakeq', type=int, default=0); p.add_argument('--dbg2', default=None); p.add_argument('--lite', type=int, default=0); p.add_argument('--touch', type=int, default=1); p.add_argument('--dry', type=int, default=0); p.add_argument('--pipe', type=int, default=1); p.add_argument('--thr0', type=int, default=2); p.add_argument('--nfirst', type=int, default=6); p.add_argument('--ibsts', type=int, default=1); p.add_argument('--warm', type=int, default=0); p.add_argument('--nohello', type=int, default=0); p.add_argument('--vgrad', type=int, default=2); p.add_argument('--touch2', type=int, default=1); p.add_argument('--psleep', type=int, default=16); p.add_argument('--ssleep', type=int, default=8); p.add_argument('--mrearly', type=int, default=0); p.add_argument('--n1st', type=int, default=0); p.add_argument('--w1pf', type=int, default=0); p.add_argument('--tsleep', type=int, default=0); p.add_argument('--agdelay', type=int, default=0); p.add_argument('--rsdelay', type=int, default=0); p.add_argument('--ydeep', type=int, default=99); p.add_argument('--nstep', type=int, default=0); p.add_argument('--tacnt', type=int, default=0); p.add_argument('--lighth', type=int, default=1); p.add_argument('--pipet1', type=int, default=0)
    p.add_argument('--wpol', default='nt'); p.add_argument('--kvpol', default='nt')
    g = p.parse_args()
    t, nn = Gen(dbg=g.dbg, thr=g.thr, vpre=g.vpre, vextra=g.vextra, force_slow=g.slow, wpol=g.wpol, kvpol=g.kvpol, dq=g.dq, dwo=g.dwo, dl=g.dl, n1=g.n1, n2=g.n2, qsleep=g.qsleep, qdelay=g.qdelay, mcpol=g.mcpol, dl0=g.dl0, wo_wait=g.wowait, thr2=g.thr2, nlast=g.nlast, early=g.early, dw1=g.dw1, qsets=g.qsets, hsets=g.hsets, hsleep=g.hsleep, prio=g.prio, early2=g.early2, fakeq=g.fakeq, dbg2=tuple(map(int, g.dbg2.split(','))) if g.dbg2 else None, lite=g.lite, touch=g.touch, dry=g.dry, pipe=g.pipe, thr0=g.thr0, nfirst=g.nfirst, ibsts=g.ibsts, warm=g.warm, nohello=g.nohello, vgrad=g.vgrad, touch2=g.touch2, psleep=g.psleep, ssleep=g.ssleep, mrearly=g.mrearly, n1st=g.n1st, w1pf=g.w1pf, tsleep=g.tsleep, agdelay=g.agdelay, rsdelay=g.rsdelay, ydeep=g.ydeep, nstep=g.nstep, ta_cnt=g.tacnt, lighth=g.lighth, pipet1=g.pipet1).build()
    open(g.o, 'w').write(t)
    print('wrote', g.o, 'lines', t.count('\n'), 'nop states', nn)
```

```python
import sys
from asmlib import Asm
KNAME = 'adaLN_cond__gqa_block_cached__mixer_channel_mlp__decode_kernel'

AUXREG = 0x8000
ASTR = 117 * 128
A_OFF, P2_OFF, MR_OFF, Q_OFF, X1_OFF, ST_OFF, H_OFF, MC_OFF = 0, 4096, 8192, 9216, 10240, 10368, 10624, 10752
MO_BASE = 0x80000
X1G = 0x7e000
TS_BASE = 0x200000
WS_NREC = 0x400000
L0 = 65536
H_, LNX, QP, MP, RP, IMA, IMS, YB, QT, OB, ZR, HB, SMALL, CNT = [L0 + x for x in
    (0, 2304, 6400, 14592, 18688, 22784, 26880, 30976, 33280, 33792, 34464, 34816, 35328, 35840)]
YSTR, OSTR, HSTR = 1152, 384, 1088
C_MODE, C_CLR, C_LN, C_MC, C_H, C_Q, C_MR, C_W1 = [4 * i for i in range(8)]
LDS_BYTES = L0 + 35904
QL, MW, FW, AF, PART = 0, 1024, 1536, 1792, 2048
K_, V_, WS, DBG, X_, WQ, WO, W1, B1, W2, B2, C_, WM, OUT = [f's[{8+4*i}:{11+4*i}]' for i in range(14)]
SRDN = dict(K=8, V=12, WS=16, DBG=20, X=24, WQ=28, WO=32, W1=36, B1=40, W2=44, B2=48, C=52, WM=56, OUT=60)
KOFF = dict(X=0, K=8, V=16, WQ=24, WO=32, W1=48, B1=56, W2=64, B2=72, C=80, WM=88, OUT=96, DBG=104, WS=112)
NREC = dict(X=2048, K=0x2000000, V=0x2000000, WQ=0x400000, WO=0x400000, W1=1835008, B1=3584, W2=1835008, B2=1024,
            C=2048, WM=3145728, OUT=2048, DBG=256, WS=WS_NREC)
BM = [f's[{64+2*u}:{65+2*u}]' for u in range(4)]
ML2 = 's[72:73]'
SEL = ['s74', 's75']
HIM = 's76'
LOG2E = 's77'
SMODE = 's78'
STMP = 's79'
EPO = 's96'
TAG = 's97'
POLLC = 's98'
POLL_MAX = 40000
LOG2E_F = 0x3fb8aa3b

def v(b, n=1): return f'v{b}' if n == 1 else f'v[{b}:{b+n-1}]'

class Gen:
    def __init__(self, dbg=False, thr=3, vpre=8, vextra=4, force_slow=False, wpol='nt', kvpol='nt', dq=16, dwo=8, dl=4, n1=2, n2=2, qsleep=0, qdelay=0, mcpol='nt', dl0=4, wo_wait=1, thr2=3, nlast=0, early=0, dw1=16, qsets=4, hsets=2, hsleep=4, prio=1, early2=1, fakeq=0, dbg2=None, lite=0, touch=0, dry=1, pipe=0, thr0=3, nfirst=0, ibsts=1, warm=1, nohello=0, vgrad=0, touch2=0, psleep=16, ssleep=8, mrearly=0, n1st=0, w1pf=0, tsleep=0, agdelay=0, rsdelay=0, ydeep=99, nstep=0, ta_cnt=1, lighth=0, pipet1=0, qpol='nt'):
        self.a = Asm(); self.n = 0; self.late = []; self.dbg = dbg; self.thr = thr; self.vpre = vpre; self.vextra = vextra
        self.n1 = n1; self.n2 = n2; self.qsleep = qsleep; self.qdelay = qdelay; self.mcpol = mcpol; self.dl0 = dl0; self.wo_wait = wo_wait; self.thr2 = thr2; self.nlast = nlast; self.early = early; self.dw1 = dw1; self.qsets = qsets; self.hsets = hsets; self.hsleep = hsleep; self.prio = prio; self.early2 = early2; self.fakeq = fakeq; self.dbg2 = dbg2; self.lite = lite; self.touch = touch; self.dry = dry; self.pipe = pipe; self.thr0 = thr0; self.nfirst = nfirst; self.ibsts = ibsts; self.warm = warm; self.nohello = nohello; self.vgrad = vgrad; self.touch2 = touch2; self.psleep = psleep; self.ssleep = ssleep; self.mrearly = mrearly; self.n1st = n1st; self.w1pf = w1pf; self.tsleep = tsleep; self.agdelay = agdelay; self.rsdelay = rsdelay; self.ydeep = ydeep; self.nstep = nstep; self.ta_cnt = ta_cnt; self.lighth = lighth; self.pipet1 = pipet1; self.qpol = qpol; self.dq = dq; self.dwo = dwo; self.dl = dl; self.force_slow = force_slow; self.wpol = wpol; self.kvpol = kvpol
    def lab(self, p='L'):
        self.n += 1; return f'{p}_{self.n}'
    def srd(self, names):
        a = self.a
        for nm in names: a(f's_load_dwordx2 s[{SRDN[nm]}:{SRDN[nm]+1}], s[0:1], {KOFF[nm]}')
        for nm in names:
            a(f's_mov_b32 s{SRDN[nm]+2}, {NREC[nm]:#x}'); a(f's_mov_b32 s{SRDN[nm]+3}, 0x20000')
    def consts(self):
        a = self.a
        for u in range(4):
            m = 0x000f000f << (4 * u)
            a(f's_mov_b32 s{64+2*u}, {m:#x}'); a(f's_mov_b32 s{65+2*u}, {m:#x}')
        a('s_mov_b32 s72, 0xcccccccc'); a('s_mov_b32 s73, 0xcccccccc')
        a('s_mov_b32 s74, 0x05040100'); a('s_mov_b32 s75, 0x07060302')
        a('s_mov_b32 s76, 0xffff0000'); a(f's_mov_b32 s77, {LOG2E_F:#x}')
    def stamp(self, i):
        if not self.dbg: return
        if self.lite and i not in (0, 15): return
        self.a(f's_memrealtime s[100:101]\ns_waitcnt lgkmcnt(0)\nv_writelane_b32 v0, s100, {i}')
    def cstamp(self, i):
        if not self.dbg: return
        self.a(f's_memtime s[100:101]\ns_waitcnt lgkmcnt(0)\nv_writelane_b32 v0, s100, {i}')
    def stamp_init(self):
        if not self.dbg: return
        self.a('v_mov_b32 v0, 0')
        self.stamp(0); self.cstamp(13)
    def end(self):
        a = self.a
        if self.dbg:
            self.stamp(15); self.cstamp(14)
            a('s_mov_b64 exec, 0xffff')
            a('s_mul_i32 s5, s2, 12'); a('s_add_u32 s5, s5, s3'); a('s_lshl_b32 s5, s5, 6'); a(f's_add_u32 s5, s5, {TS_BASE}')
            a('v_lshlrev_b32 v2, 2, v1')
            a(f'buffer_store_dword v0, v2, {WS}, s5 offen')
            if self.dbg2:
                l = self.lab('LK')
                a(f's_cmp_lg_u32 s2, {self.dbg2[0]}'); a(f's_cbranch_scc1 {l}'); a(f's_cmp_lg_u32 s3, {self.dbg2[1]}'); a(f's_cbranch_scc1 {l}')
                a('v_readlane_b32 s5, v0, 0'); a('v_subrev_u32 v0, s5, v0')
                a('s_mov_b64 exec, 0xfffc'); a(f'buffer_store_dword v0, v2, {DBG}, 0 offen')
                a(f'{l}:')
        a('s_endpgm')
    def poll(self, loads, regs, tmp, zero=False, sleep=0, pre=None):
        a = self.a; lp = self.lab('LP'); ld = self.lab('LD'); lc = self.lab('LC')
        a(f's_mov_b32 {POLLC}, 0')
        if pre: a(f's_branch {lc}')
        a(f'{lp}:')
        for s in loads: a(s)
        a('s_waitcnt vmcnt(0)')
        if pre: a(f'{lc}:')
        op = 'min' if zero else 'max'
        rs = list(regs)
        if len(rs) == 1: src = rs[0]
        else:
            src = tmp
            if len(rs) % 2 == 0: a(f'v_{op}_u32 v{tmp}, v{rs[0]}, v{rs[1]}'); rs = rs[2:]
            else: a(f'v_{op}3_u32 v{tmp}, v{rs[0]}, v{rs[1]}, v{rs[2]}'); rs = rs[3:]
            while rs: a(f'v_{op}3_u32 v{tmp}, v{tmp}, v{rs[0]}, v{rs[1]}'); rs = rs[2:]
        a(f'v_cmp_eq_u32 vcc, {0 if zero else -1}, v{src}')
        a(f's_cbranch_vccz {ld}')
        if sleep: a(f's_sleep {sleep}')
        a(f's_add_u32 {POLLC}, {POLLC}, 1'); a(f's_cmp_lt_u32 {POLLC}, {POLL_MAX}'); a(f's_cbranch_scc1 {lp}')
        a(f'{ld}:')
    def spoll(self, base, offs, zero=False, sleep=2, ge=None):
        a = self.a; lp = self.lab('LS'); ld = self.lab('LT')
        a(f's_mov_b32 {POLLC}, 0'); a(f'{lp}:')
        for i, o in enumerate(offs): a(f's_load_dword s{88+i}, {base}, {o:#x} glc')
        a('s_waitcnt lgkmcnt(0)')
        if ge is not None:
            a('s_and_b32 s89, s88, 0x3f'); a(f's_cmp_ge_u32 s89, {ge}')
        else:
            for i in range(1, len(offs)): a(f's_{"min" if zero else "max"}_u32 s88, s88, s{88+i}')
            a(f's_cmp_lg_u32 s88, {0 if zero else -1}')
        a(f's_cbranch_scc1 {ld}')
        if sleep: a(f's_sleep {sleep}')
        a(f's_add_u32 {POLLC}, {POLLC}, 1'); a(f's_cmp_lt_u32 {POLLC}, {POLL_MAX}'); a(f's_cbranch_scc1 {lp}')
        a(f'{ld}:')
    def tag_load(self):
        self.a(f's_load_dword {EPO}, s[16:17], 0x0')
    def tag_make(self):
        a = self.a
        a('s_waitcnt lgkmcnt(0)'); a(f's_mul_i32 {TAG}, {EPO}, 0x9e3779b1'); a(f's_add_u32 {TAG}, {TAG}, 0x85ebca6b')
    def tpoll(self, loads, tagregs, sleep=0):
        a = self.a; lp = self.lab('LQ'); ld = self.lab('LR')
        a(f's_mov_b32 {POLLC}, 0'); a(f'{lp}:')
        for s_ in loads: a(s_)
        a('s_waitcnt vmcnt(0)')
        for i, r in enumerate(tagregs):
            if i == 0: a(f'v_cmp_ne_u32 vcc, {TAG}, v{r}')
            else: a(f'v_cmp_ne_u32 s[88:89], {TAG}, v{r}'); a('s_or_b64 vcc, vcc, s[88:89]')
        a('s_cmp_eq_u64 vcc, 0'); a(f's_cbranch_scc1 {ld}')
        if sleep: a(f's_sleep {sleep}')
        a(f's_add_u32 {POLLC}, {POLLC}, 1'); a(f's_cmp_lt_u32 {POLLC}, {POLL_MAX}'); a(f's_cbranch_scc1 {lp}')
        a(f'{ld}:')
    def tpoll_pipe(self, mk, nld, base, dst, sets, gap):
        a = self.a; lp = self.lab('LU'); ld = self.lab('LV'); outs = [self.lab('LO') for _ in range(sets)]
        for k in range(sets - 1):
            for s_ in mk(base + 4 * nld * k): a(s_)
            if gap: a(f's_sleep {gap}')
        a(f's_mov_b32 {POLLC}, 0'); a(f'{lp}:')
        for k in range(sets):
            kn = (k + sets - 1) % sets
            for s_ in mk(base + 4 * nld * kn): a(s_)
            a(f's_waitcnt vmcnt({nld * (sets - 1)})')
            b = base + 4 * nld * k
            for i in range(2 * nld):
                if i == 0: a(f'v_cmp_ne_u32 vcc, {TAG}, v{b+1}')
                else: a(f'v_cmp_ne_u32 s[88:89], {TAG}, v{b+1+2*i}'); a('s_or_b64 vcc, vcc, s[88:89]')
            a('s_cmp_eq_u64 vcc, 0'); a(f's_cbranch_scc1 {outs[k]}')
            if gap: a(f's_sleep {gap}')
        a(f's_add_u32 {POLLC}, {POLLC}, 1'); a(f's_cmp_lt_u32 {POLLC}, {POLL_MAX}'); a(f's_cbranch_scc1 {lp}')
        for k in range(sets):
            a(f'{outs[k]}:')
            b = base + 4 * nld * k
            for i in range(nld): a(f'v_mov_b32 v{dst+2*i}, v{b+4*i}'); a(f'v_mov_b32 v{dst+2*i+1}, v{b+4*i+2}')
            if k < sets - 1: a(f's_branch {ld}')
        a(f'{ld}:')
    def ex(self, lo, hi):
        self.a(f's_and_b32 exec_lo, {lo:#x}, s94'); self.a(f's_and_b32 exec_hi, {hi:#x}, s95')
    def exfull(self): self.a('s_mov_b64 exec, s[94:95]')
    def bar(self):
        if not (self.dry or self.warm): self.a('s_barrier'); return
        l = self.lab('LB'); self.a(f's_cbranch_execz {l}'); self.a('s_barrier'); self.a(f'{l}:')
    def dry_begin(self, label):
        a = self.a
        if not self.dry: a('s_mov_b64 s[94:95], -1'); return
        a('s_mov_b64 s[94:95], 0'); a('s_mov_b64 exec, s[94:95]'); a(f'{label}:')
    def dry_end(self, label):
        a = self.a; l = self.lab('LN')
        if not self.dry: return
        a(f's_cbranch_execnz {l}'); a('s_mov_b64 s[94:95], -1'); a('s_mov_b64 exec, -1'); a(f's_branch {label}'); a(f'{l}:')
    def ppoll(self, mk, nld, nregs, bases, tmp, consume, delay=0):
        a = self.a; lp = self.lab('LP'); ld = self.lab('LD'); o = [self.lab('LO') for _ in bases]
        if self.pipe < 2:
            if delay: a(f's_sleep {delay}')
            self.poll(mk(bases[0]), range(bases[0], bases[0] + nregs), tmp, sleep=self.tsleep); consume(bases[0]); return
        for s_ in mk(bases[0]): a(s_)
        a(f's_mov_b32 {POLLC}, 0'); a(f'{lp}:')
        for k, b in enumerate(bases):
            for s_ in mk(bases[1 - k]): a(s_)
            a(f's_waitcnt vmcnt({nld})')
            rs = list(range(b, b + nregs))
            if len(rs) % 2 == 0: a(f'v_max_u32 v{tmp}, v{rs[0]}, v{rs[1]}'); rs = rs[2:]
            else: a(f'v_max3_u32 v{tmp}, v{rs[0]}, v{rs[1]}, v{rs[2]}'); rs = rs[3:]
            while rs: a(f'v_max3_u32 v{tmp}, v{tmp}, v{rs[0]}, v{rs[1]}'); rs = rs[2:]
            a(f'v_cmp_eq_u32 vcc, -1, v{tmp}'); a(f's_cbranch_vccz {o[k]}')
        a(f's_add_u32 {POLLC}, {POLLC}, 1'); a(f's_cmp_lt_u32 {POLLC}, {POLL_MAX}'); a(f's_cbranch_scc1 {lp}')
        a(f'{o[1]}:'); consume(bases[1]); a(f's_branch {ld}')
        a(f'{o[0]}:'); consume(bases[0])
        a(f'{ld}:')
    def arrive(self, c, t0, t1, val=1):
        a = self.a
        a(f'v_mov_b32 v{t0}, {CNT + c}'); a(f'v_mov_b32 v{t1}, {val}' if isinstance(val, int) else f'v_mov_b32 v{t1}, {val}')
        a('s_mov_b64 exec, 1'); a(f'ds_add_u32 v{t0}, v{t1}'); a('s_mov_b64 exec, -1')
    def waitc(self, c, target, t0, t1, dst=STMP):
        a = self.a; lp = self.lab('LW'); ld = self.lab('LX')
        a(f'v_mov_b32 v{t0}, {CNT + c}'); a(f's_mov_b32 {POLLC}, 0'); a(f'{lp}:')
        a(f'ds_read_b32 v{t1}, v{t0}'); a('s_waitcnt lgkmcnt(0)'); a(f'v_readfirstlane_b32 {dst}, v{t1}')
        a(f's_cmp_ge_u32 {dst}, {target}'); a(f's_cbranch_scc1 {ld}')
        a('s_sleep 1'); a(f's_add_u32 {POLLC}, {POLLC}, 1'); a(f's_cmp_lt_u32 {POLLC}, {POLL_MAX*8}'); a(f's_cbranch_scc1 {lp}')
        a(f'{ld}:')
    def pub(self, ins):
        a = self.a; lf = self.lab('LF'); ld = self.lab('LG')
        a(f's_cbranch_scc0 {lf}'); a(ins); a(f'{ld}:')
        self.late.append([f'{lf}:', ins + ' sc1', f's_branch {ld}'])
    def pub_pre(self): self.a(f's_cmp_eq_u32 {SMODE}, 2')
    def flush_late(self):
        for blk in self.late:
            for l in blk: self.a(l)
        self.late = []
    def npoll(self, loads, regs, tmp, compute, res, pre=False):
        a = self.a; lp = self.lab('LP'); ld = self.lab('LD'); lc = self.lab('LC')
        a(f's_mov_b32 {POLLC}, 0')
        if pre: a(f's_branch {lc}')
        a(f'{lp}:')
        for s_ in loads: a(s_)
        a(f'{lc}:')
        a('s_waitcnt vmcnt(0)')
        compute()
        a(f'v_cmp_u_f32 vcc, v{res}, v{res+1}'); a(f'v_cmp_u_f32 s[92:93], v{res+2}, v{res+3}'); a('s_or_b64 vcc, vcc, s[92:93]')
        a(f's_cbranch_vccnz {ld}_r'); a(f'{ld}:')
        rs = list(regs); blk = [f'{ld}_r:', f's_add_u32 {POLLC}, {POLLC}, 1', f's_and_b32 s5, {POLLC}, 31', f's_cbranch_scc1 {lp}',
                                f'v_max_u32 v{tmp}, v{rs[0]}, v{rs[1]}']
        rs = rs[2:]
        while rs: blk.append(f'v_max3_u32 v{tmp}, v{tmp}, v{rs[0]}, v{rs[1]}'); rs = rs[2:]
        blk += [f'v_cmp_eq_u32 vcc, -1, v{tmp}', f's_cbranch_vccz {ld}', f's_cmp_lt_u32 {POLLC}, {POLL_MAX}', f's_cbranch_scc1 {lp}', f's_branch {ld}']
        self.late.append(blk)
        return lc
    def npoll2(self, mk, nld, bases, nregs, tmp, compute, res, pre=False):
        a = self.a; lp = self.lab('LP'); ld = self.lab('LD'); l2 = self.lab('LE')
        if not pre:
            for s_ in mk(bases[0]): a(s_)
        a(f's_mov_b32 {POLLC}, 0'); a(f'{lp}:')
        def rnd(k):
            for s_ in mk(bases[1 - k]): a(s_)
            a(f's_waitcnt vmcnt({nld})')
            compute(bases[k])
            a(f'v_cmp_u_f32 vcc, v{res}, v{res+1}'); a(f'v_cmp_u_f32 s[92:93], v{res+2}, v{res+3}'); a('s_or_b64 vcc, vcc, s[92:93]')
        rnd(0); a(f's_cbranch_vccz {ld}')
        rnd(1); a(f's_cbranch_vccnz {ld}_r'); a(f'{ld}:')
        rs = list(range(bases[1], bases[1] + nregs))
        blk = [f'{ld}_r:', f's_add_u32 {POLLC}, {POLLC}, 1', f's_and_b32 s5, {POLLC}, 31', f's_cbranch_scc1 {lp}', f'v_max_u32 v{tmp}, v{rs[0]}, v{rs[1]}']
        rs = rs[2:]
        while rs: blk.append(f'v_max3_u32 v{tmp}, v{tmp}, v{rs[0]}, v{rs[1]}'); rs = rs[2:]
        blk += [f'v_cmp_eq_u32 vcc, -1, v{tmp}', f's_cbranch_vccz {ld}', f's_cmp_lt_u32 {POLLC}, {POLL_MAX}', f's_cbranch_scc1 {lp}', f's_branch {ld}']
        self.late.append(blk)
    def rnd2(self, x, y, t):
        a = self.a
        a(f'v_cvt_pk_bf16_f32 v{t}, v{x}, v{y}'); a(f'v_lshlrev_b32 v{x}, 16, v{t}'); a(f'v_and_b32 v{y}, {HIM}, v{t}')
    def rowsum(self, x, op='add'):
        for n in (8, 4, 2, 1): self.a(f'v_{op}_f32_dpp v{x}, v{x}, v{x} row_ror:{n} row_mask:0xf bank_mask:0xf')
    def xrows(self, x, t, op='add'):
        a = self.a
        a(f'v_mov_b32 v{t}, v{x}'); a(f'v_permlane16_swap_b32 v{x}, v{t}'); a(f'v_{op}_f32 v{x}, v{x}, v{t}')
        a(f'v_mov_b32 v{t}, v{x}'); a(f'v_permlane32_swap_b32 v{x}, v{t}'); a(f'v_{op}_f32 v{x}, v{x}, v{t}')
    def wavesum(self, x, t): self.rowsum(x); self.xrows(x, t)
    def red4rows(self, o):
        a = self.a
        a(f'v_permlane32_swap_b32 v{o}, v{o+2}'); a(f'v_permlane32_swap_b32 v{o+1}, v{o+3}')
        a(f'v_add_f32 v{o}, v{o}, v{o+2}'); a(f'v_add_f32 v{o+1}, v{o+1}, v{o+3}')
        a(f'v_permlane16_swap_b32 v{o}, v{o+1}'); a(f'v_add_f32 v{o}, v{o}, v{o+1}')
    def silu4(self, r, t):
        a = self.a
        a('s_mov_b32 s99, 0x7e800000')
        for i in range(4):
            lo, hi, e0, e1 = t, t + 1, t + 2, t + 3
            a(f'v_lshlrev_b32 v{lo}, 16, v{r+i}'); a(f'v_and_b32 v{hi}, {HIM}, v{r+i}')
            a(f'v_mul_f32 v{e0}, {LOG2E}, v{lo}'); a(f'v_mul_f32 v{e1}, {LOG2E}, v{hi}')
            a(f'v_exp_f32 v{e0}, -v{e0}'); a(f'v_exp_f32 v{e1}, -v{e1}')
            a(f'v_add_f32 v{e0}, 1.0, v{e0}'); a(f'v_add_f32 v{e1}, 1.0, v{e1}')
            r0, r1, q0, q1 = t + 4, t + 5, t + 6, t + 7
            a(f'v_rcp_f32 v{r0}, v{e0}'); a(f'v_rcp_f32 v{r1}, v{e1}')
            a(f'v_mul_f32 v{q0}, v{lo}, v{r0}'); a(f'v_mul_f32 v{q1}, v{hi}, v{r1}')
            a(f'v_cmp_gt_f32 s[88:89], s99, v{e0}'); a(f'v_fma_f32 v{lo}, -v{q0}, v{e0}, v{lo}'); a(f'v_fma_f32 v{lo}, v{lo}, v{r0}, v{q0}')
            a(f'v_cndmask_b32 v{lo}, v{q0}, v{lo}, s[88:89]')
            a(f'v_cmp_gt_f32 s[90:91], s99, v{e1}'); a(f'v_fma_f32 v{hi}, -v{q1}, v{e1}, v{hi}'); a(f'v_fma_f32 v{hi}, v{hi}, v{r1}, v{q1}')
            a(f'v_cndmask_b32 v{hi}, v{q1}, v{hi}, s[90:91]')
            a(f'v_cvt_pk_bf16_f32 v{r+i}, v{lo}, v{hi}')
    def transpose(self, raw, dst, jjs=range(4), rs=4, ds=4):
        for jj in jjs:
            for m in range(8):
                self.a(f'v_perm_b32 v{dst+ds*m+jj}, v{raw+rs*(2*jj+1)+(m>>1)}, v{raw+rs*(2*jj)+(m>>1)}, {SEL[m&1]}')
    def sxaddr(self, dst, bstride, base, t):
        a = self.a
        self.xvoff(dst, bstride, base, t); a(f'v_bfe_u32 v{t}, v1, 1, 1'); a(f'v_lshl_add_u32 v{dst}, v{t}, 6, v{dst}')
    def sidx(self, dst):
        self.a(f'v_mov_b32 v{dst}, 0x4444'); self.a(f'v_mov_b32 v{dst+1}, 0xeeee'); self.a(f'v_cndmask_b32 v{dst}, v{dst}, v{dst+1}, {ML2}')
    def gemv_fly(self, raw, xrep, first, xv=8, T=12, acc=20):
        a = self.a
        for u in range(4):
            for i in range(4): a(f'v_cndmask_b32 v{xv+i}, 0, v{xrep+i}, {BM[u]}')
            for e in range(2):
                for jj in range(4):
                    a(f'v_perm_b32 v{T+4*e+jj}, v{raw+4*(2*jj+1)+u}, v{raw+4*(2*jj)+u}, {SEL[e]}')
            for e in range(2):
                c = '0' if (first and u == 0) else v(acc + 4 * e, 4)
                a(f'v_mfma_f32_16x16x32_bf16 {v(acc+4*e,4)}, {v(T+4*e,4)}, {v(xv,4)}, {c}')
    def merge(self, acc, pre=False):
        if pre: self.pub_pre()
        for r in range(4): self.a(f'v_cndmask_b32 v{acc+r}, v{acc+r}, v{acc+4+r}, {ML2}')
    def sanitize(self, r, n):
        pass
    def unit_loads(self, raw, voff, srd, sbase, rs, rows=None, pol=None, depth=None, prior=99, hook=None, qs=4):
        a = self.a; pol = self.wpol if pol is None else pol
        for j in range(8):
            off = (rows[j] if rows else j) * rs
            if depth and prior + j >= depth: a(f's_waitcnt vmcnt({depth-1})')
            if off < 4096: a(f'buffer_load_dwordx4 {v(raw+qs*j,4)}, v{voff}, {srd}, {sbase} offen offset:{off} {pol}')
            else:
                a(f's_add_u32 s7, {sbase}, {off}')
                a(f'buffer_load_dwordx4 {v(raw+qs*j,4)}, v{voff}, {srd}, s7 offen {pol}')
            if hook and j == min(hook[0], 7): a(hook[1])
    def wvoff(self, dst, rs, t):
        a = self.a
        a(f'v_lshrrev_b32 v{dst}, 4, v1'); a(f'v_mul_u32_u24 v{dst}, {8*rs}, v{dst}')
        a(f'v_and_b32 v{t}, 15, v1'); a(f'v_lshl_add_u32 v{dst}, v{t}, 4, v{dst}')
    def xvoff(self, dst, bstride, base, t):
        a = self.a
        a(f'v_and_b32 v{dst}, 1, v1'); a(f'v_mul_u32_u24 v{dst}, {bstride}, v{dst}')
        a(f'v_lshrrev_b32 v{t}, 4, v1'); a(f'v_lshl_add_u32 v{dst}, v{t}, 4, v{dst}')
        if base: a(f'v_add_u32 v{dst}, {base}, v{dst}')

    def attention(self):
        a = self.a
        a('s_mov_b32 s5, 0x15555556'); a('s_mul_hi_u32 s80, s4, s5')
        a('s_mul_i32 s5, s80, 12'); a('s_sub_u32 s81, s4, s5')
        a('s_cmp_lt_u32 s81, 8'); a('s_cselect_b32 s82, 11, 10')
        a('s_cmp_ge_u32 s3, 11'); a('s_cbranch_scc1 L_att_ctl')
        a('s_cmp_ge_u32 s3, s82'); a('s_cbranch_scc1 L_exit')
        a('s_min_u32 s5, s81, 8'); a('s_mul_i32 s6, s81, 10'); a('s_add_u32 s5, s5, s6'); a('s_lshl_b32 s5, s5, 14')
        a('s_lshl_b32 s6, s80, 21'); a('s_add_u32 s5, s5, s6'); a('s_lshl_b32 s6, s3, 10'); a('s_add_u32 s83, s5, s6')
        a('s_lshl_b32 s84, s82, 10')
        a('v_bfe_u32 v3, v1, 2, 2'); a('v_lshlrev_b32 v3, 8, v3'); a('v_lshrrev_b32 v4, 4, v1'); a('v_lshl_add_u32 v3, v4, 6, v3')
        a('v_and_b32 v4, 3, v1'); a('v_lshl_add_u32 v3, v4, 4, v3')
        a('v_lshlrev_b32 v2, 4, v1')
        a('s_mov_b32 s85, s83')
        a('s_waitcnt lgkmcnt(0)')
        KB, VB = 32, 96
        issued = [0]
        def thr(d):
            if self.ydeep < 11 and issued[0] >= d:
                l = self.lab('LJ')
                a(f's_cmp_ge_u32 s3, {self.ydeep}'); a(f's_cbranch_scc1 {l}'); a(f's_waitcnt vmcnt({d-1})'); a(f'{l}:'); a(f's_waitcnt vmcnt({d})')
            elif issued[0] >= d: a(f's_waitcnt vmcnt({d-1})')
        for t in range(16):
            ng = sum(t < self.nfirst - self.nstep * g for g in range(3))
            if 0 < ng < 3 and issued[0] >= self.thr0:
                l = self.lab('LI')
                a(f's_cmp_ge_u32 s3, {4*ng}'); a(f's_cbranch_scc1 {l}'); a(f's_waitcnt vmcnt({self.thr0-1})'); a(f'{l}:'); thr(self.thr)
            else: thr(1 if t < self.n1st else self.thr0 if ng else self.thr)
            a(f'buffer_load_dwordx4 {v(KB+4*t,4)}, v3, {K_}, s85 offen {self.kvpol}')
            if t < 15: a('s_add_u32 s85, s85, s84')
            issued[0] += 1
            if t == 0: self.stamp(10)
            if t == 7: self.stamp(7)
            if t == 15: self.stamp(8)
            if t == (0 if self.n1st else min(self.thr, self.thr0) - 1):
                self.consts()
                a('v_and_b32 v28, 3, v1'); a('v_lshlrev_b32 v29, 8, v28'); a('v_lshrrev_b32 v30, 2, v1'); a('v_lshl_add_u32 v29, v30, 4, v29')
                a('s_lshl_b32 s5, s3, 5'); a('v_lshl_add_u32 v28, v28, 3, s5')
                a(f'v_mov_b32 v27, {AF}')
                a('s_mov_b32 s86, 0x3db504f3'); a('s_mov_b32 s92, 0'); a('s_mov_b64 s[94:95], -1')
                a(f's_cmp_ge_u32 s3, {self.ydeep}'); a(f's_cselect_b32 s88, {self.thr+1}, {self.thr}')
                a('s_barrier')
        vorder = [8 * bk + x for bk in range(2) for x in (0, 4, 1, 5, 2, 6, 3, 7)]
        for i in range(16):
            if i >= self.thr + (self.ydeep < 11): a('s_call_b64 s[90:91], L_att_chk')
            else: thr(self.thr)
            a(f's_mul_i32 s85, s84, {vorder[i]}'); a('s_add_u32 s85, s85, s83')
            a(f'buffer_load_dwordx4 {v(VB+4*i,4)}, v2, {V_}, s85 offen {self.kvpol}')
            if i == 7: self.stamp(9)
        self.stamp(1)
        a('s_cmp_lt_i32 s92, 0'); a('s_cbranch_scc1 L_att_pv')
        self.lspin(27, 0, 1, 26)
        a('s_call_b64 s[90:91], L_att_qk')
        a('L_att_pv:')
        a('s_lshl_b32 s5, s3, 11'); a(f's_add_u32 s5, s5, {PART}'); a('v_add_u32 v3, s5, v2')
        a('s_cmp_lg_u32 s3, 0'); a('s_cbranch_scc1 L_att_pv2')
        self.att_red_addr(0)
        self.att_factors()
        a('L_att_pv2:')
        for bk in range(2):
            raw = VB + 32 * bk; T = 64 if bk == 0 else 96
            for jj in range(4):
                a(f's_waitcnt vmcnt({16 - 8*bk - 2*jj - 2})')
                self.transpose(raw, T, [jj])
            if bk == 1: self.stamp(4)
            for m in range(8):
                c = '0' if (bk == 0 and m < 2) else v(160 + 4 * (m & 1), 4)
                a(f'v_mfma_f32_16x16x32_bf16 {v(160+4*(m&1),4)}, {v(T+4*m,4)}, {v(KB+16*bk+4*(m>>1),4)}, {c}')
        a('ds_write_b128 v3, v[160:163]'); a('ds_write_b128 v3, v[164:167] offset:1024')
        a('s_waitcnt lgkmcnt(0)')
        a('s_cbranch_execz L_att_red')
        a('s_cmp_eq_u32 s3, 0'); a('s_cbranch_scc1 L_att_red')
        a('s_barrier')
        self.end()
        a('L_att_chk:')
        a('s_cmp_lt_i32 s92, 0'); a('s_cbranch_scc1 L_att_w2')
        a('s_cmp_gt_i32 s92, 0'); a('s_cbranch_scc1 L_att_cd')
        a('s_mov_b32 s93, 0')
        a('L_att_sp:')
        a('ds_read_b32 v26, v27'); a('s_waitcnt lgkmcnt(0)'); a('v_readfirstlane_b32 s5, v26')
        a('s_cmp_lg_u32 s5, 0'); a('s_cbranch_scc1 L_att_fl')
        if self.ibsts:
            a('s_getreg_b32 s5, hwreg(HW_REG_IB_STS, 0, 4)'); a('s_cmp_lt_u32 s5, s88'); a('s_cbranch_scc1 L_att_wt')
            a('s_add_u32 s93, s93, 1'); a('s_cmp_lt_u32 s93, 24'); a('s_cbranch_scc1 L_att_sp')
        a('L_att_wt:')
        thr(self.thr)
        a('s_setpc_b64 s[90:91]')
        a('L_att_w2:')
        thr(self.thr2)
        a('s_setpc_b64 s[90:91]')
        a('L_att_fl:')
        if self.vgrad: a('s_lshr_b32 s92, s3, 2'); a(f's_mul_i32 s92, s92, {self.vgrad}'); a('s_lshr_b32 s92, s92, 1'); a(f's_add_u32 s92, s92, {self.vextra + 1}')
        else: a(f's_mov_b32 s92, {self.vextra + 1}')
        a('L_att_cd:')
        a('s_sub_u32 s92, s92, 1'); a('s_cmp_eq_u32 s92, 0'); a('s_cbranch_scc1 L_att_qk')
        a('s_setpc_b64 s[90:91]')
        a('L_att_qk:')
        self.stamp(2)
        a(f'ds_read_b128 v[4:7], v29 offset:{QL}')
        a('s_mov_b32 s92, -1')
        a('s_waitcnt lgkmcnt(0)')
        Dr = lambda t: 12 + 4 * t if t < 3 else KB + 4 * (t - 3)
        def dpp(dst, s0, s1, n, bm=0xf): a(f'v_add_f32_dpp v{dst}, v{s0}, v{s1} row_ror:{n} row_mask:0xf bank_mask:{bm:#x}')
        def lvl1(t):
            u = t & 3; D = Dr(t)
            dpp(D + u, D + ((u + 1) & 3), D + u, 12); dpp(D + ((u + 2) & 3), D + ((u + 3) & 3), D + ((u + 2) & 3), 12)
        def lvl2(t):
            u = t & 3; D = Dr(t)
            dpp(8 + (t >> 2), D + ((u + 2) & 3), D + u, 8, 1 << u)
        for t in range(21):
            if t < 16: a(f'v_mfma_f32_16x16x32_bf16 {v(Dr(t),4)}, {v(KB+4*t,4)}, v[4:7], 0')
            if 4 <= t < 20: lvl1(t - 4)
            if t >= 5: lvl2(t - 5)
        def rnd4():
            a('v_cvt_pk_bf16_f32 v12, v8, v9'); a('v_cvt_pk_bf16_f32 v13, v10, v11')
            a('v_lshlrev_b32 v8, 16, v12'); a(f'v_and_b32 v9, {HIM}, v12'); a('v_lshlrev_b32 v10, 16, v13'); a(f'v_and_b32 v11, {HIM}, v13')
        rnd4()
        for i in range(4): a(f'v_mul_f32 v{8+i}, s86, v{8+i}')
        rnd4()
        a('v_max3_f32 v12, v8, v9, v10'); a('v_max_f32 v12, v12, v11')
        a('v_max_f32_dpp v12, v12, v12 row_ror:4 row_mask:0xf bank_mask:0xf')
        a('v_max_f32_dpp v12, v12, v12 row_ror:8 row_mask:0xf bank_mask:0xf')
        self.xrows(12, 13, 'max')
        a(f'v_mul_f32 v14, {LOG2E}, v12')
        for i in range(4): a(f'v_fma_f32 v{8+i}, v{8+i}, {LOG2E}, -v14')
        for i in range(4): a(f'v_exp_f32 v{8+i}, v{8+i}')
        for u in range(4): a(f'v_cndmask_b32 v{20+u}, 0, -1, {BM[u]}')
        a('v_cvt_pk_bf16_f32 v16, v8, v9'); a('v_add_f32 v13, v8, v9'); a('v_cvt_pk_bf16_f32 v17, v10, v11'); a('v_add_f32 v18, v10, v11')
        chain = ['v_add_f32 v13, v13, v18', 'v_add_f32_dpp v13, v13, v13 row_ror:4 row_mask:0xf bank_mask:0xf',
                 'v_add_f32_dpp v13, v13, v13 row_ror:8 row_mask:0xf bank_mask:0xf', 'v_mov_b32 v18, v13', 'v_permlane16_swap_b32 v13, v18',
                 'v_add_f32 v13, v13, v18', 'v_mov_b32 v18, v13', 'v_permlane32_swap_b32 v13, v18', 'v_add_f32 v13, v13, v18', 'v_mov_b32 v14, 1']
        cnt = 0
        for u in range(4):
            for bk in range(2):
                for jj in range(4):
                    n = (4 * (u - jj)) % 16
                    c = f'row_ror:{n}' if n else 'quad_perm:[0,1,2,3]'
                    a(f'v_and_b32_dpp v{KB+16*bk+4*u+jj}, v{16+bk}, v{20+u} {c} row_mask:0xf bank_mask:0xf')
                    cnt += 1
                    if cnt % 3 == 0 and chain: a(chain.pop(0))
        self.ex(0xf, 0); a(f'ds_write_b64 v28, v[12:13] offset:{MW}')
        self.ex(1, 0); a('ds_add_u32 v27, v14 offset:4'); self.exfull()
        self.stamp(3)
        a('s_setpc_b64 s[90:91]')
        a('L_att_ctl:')
        a('s_setprio 3')
        a('v_lshlrev_b32 v2, 4, v1')
        a('v_mov_b32 v16, 0xff800000'); a('v_mov_b32 v17, 0'); a('v_lshlrev_b32 v6, 3, v1'); a(f'ds_write_b64 v6, v[16:17] offset:{MW}')
        for i in range(4): a(f'v_mov_b32 v{8+i}, -1'); a(f'v_mov_b32 v{12+i}, 0')
        a(f'v_mov_b32 v27, {AF}'); a('ds_write_b128 v27, v[12:15]')
        a(f'ds_write_b128 v2, v[12:15] offset:{PART+10*2048}'); a(f'ds_write_b128 v2, v[12:15] offset:{PART+10*2048+1024}')
        a('s_waitcnt lgkmcnt(0)')
        a('s_barrier')
        self.tag_load()
        self.att_red_addr(1)
        a('s_and_b32 s84, s80, 7'); a('s_lshl_b32 s84, s84, 2'); a(f's_mul_i32 s84, s84, {ASTR}'); a(f's_add_u32 s84, s84, {AUXREG}')
        a('s_lshr_b32 s85, s80, 3')
        a(f'buffer_store_dwordx4 v[8:11], v2, {WS}, s87 offen sc1'); a(f'buffer_store_dwordx4 v[8:11], v2, {WS}, s87 offen offset:1024 sc1')
        if self.warm:
            a('v_mov_b32 v29, 0'); a('v_mov_b32 v28, 0'); a('v_mov_b32 v3, 0')
            a('s_mov_b64 s[94:95], 0'); a('s_mov_b64 exec, 0')
            a('s_call_b64 s[90:91], L_att_qk')
            a('s_branch L_att_pv2')
            a('L_att_wd:')
            a('s_mov_b64 exec, -1')
        a('s_mov_b64 s[94:95], -1')
        a('v_mov_b32 v12, 0'); a('v_lshlrev_b32 v6, 3, v1'); a(f'v_mov_b32 v27, {AF}')
        a('v_lshrrev_b32 v7, 5, v1'); a(f'v_mul_u32_u24 v24, {ASTR}, v7'); a('v_and_b32 v16, 31, v1'); a('v_lshl_add_u32 v24, v16, 4, v24')
        a('v_lshlrev_b32 v25, 8, v7'); a('v_lshl_add_u32 v25, v16, 3, v25')
        a('s_lshl_b32 s5, s85, 9'); a('s_add_u32 s86, s84, s5'); a(f's_add_u32 s86, s86, {Q_OFF}'); a(f's_add_u32 s83, s86, {2*ASTR}')
        a(f's_mov_b32 {LOG2E}, {LOG2E_F:#x}')
        self.tag_make()
        if self.qdelay: a(f's_sleep {self.qdelay}')
        self.stamp(1)
        if not self.fakeq: self.tpoll_pipe(lambda b: [f'buffer_load_dwordx4 {v(b,4)}, v24, {WS}, s86 offen sc1', f'buffer_load_dwordx4 {v(b+4,4)}, v24, {WS}, s83 offen sc1'],
                        2, 80, 16, self.qsets, self.qsleep)
        a('v_mov_b32 v26, 1')
        a(f'ds_write_b64 v25, v[16:17] offset:{QL}'); a(f'ds_write_b64 v25, v[18:19] offset:{QL+512}')
        a('ds_write_b32 v27, v26')
        self.stamp(2)
        a('s_mov_b64 exec, 1')
        self.poll([f'buffer_load_dword v16, v12, {DBG}, 0 offen offset:128 sc1'], [16], 17, zero=True, sleep=2)
        a('s_mov_b64 exec, -1')
        a('v_and_b32 v3, 3, v1'); a(f'v_mul_u32_u24 v7, {ASTR}, v3')
        a('s_mul_i32 s5, s85, 12'); a('s_add_u32 s5, s5, s81'); a('s_lshl_b32 s5, s5, 3'); a('s_add_u32 s5, s5, s84'); a(f's_add_u32 s86, s5, {ST_OFF}')
        self.lspin(27, 4, 's82', 26)
        a(f'ds_read_b64 v[18:19], v6 offset:{MW}'); a('s_waitcnt lgkmcnt(0)')
        a('v_max_f32_dpp v16, v18, v18 row_ror:4 row_mask:0xf bank_mask:0xf')
        a('v_max_f32_dpp v16, v16, v16 row_ror:8 row_mask:0xf bank_mask:0xf')
        self.xrows(16, 17, 'max')
        a('v_sub_f32 v18, v18, v16'); a(f'v_mul_f32 v18, {LOG2E}, v18'); a('v_exp_f32 v18, v18')
        a('v_lshlrev_b32 v6, 2, v1'); a('v_mul_f32 v17, v18, v19')
        a(f'ds_write_b32 v6, v18 offset:{FW}'); a('v_mov_b32 v26, 1'); a('ds_write_b32 v27, v26 offset:8')
        a('v_add_f32_dpp v17, v17, v17 row_ror:4 row_mask:0xf bank_mask:0xf')
        a('v_add_f32_dpp v17, v17, v17 row_ror:8 row_mask:0xf bank_mask:0xf')
        self.xrows(17, 18)
        self.sanitize(16, 2)
        a('s_mov_b64 exec, 0xf'); a(f'buffer_store_dwordx2 v[16:17], v7, {WS}, s86 offen sc1'); a('s_mov_b64 exec, -1')
        self.stamp(3)
        self.att_factors()
        a('L_att_red:')
        self.bar()
        self.stamp(5)
        for w in range(11): a(f'ds_read_b128 {v(32+4*w,4)}, v31 offset:{2048*w}')
        for w in range(11):
            a(f's_waitcnt lgkmcnt({10-w})')
            for r in range(4):
                if w == 0: a(f'v_mul_f32 v{32+r}, v{32+r}, v12')
                else: a(f'v_fmac_f32 v{32+r}, v{32+4*w+r}, v{12+w}')
        self.sanitize(32, 4)
        a(f'buffer_store_dwordx4 v[32:35], v30, {WS}, s87 offen sc1')
        if self.warm: a('s_cbranch_execz L_att_wd')
        self.stamp(6)
        if self.dbg: a('s_waitcnt vmcnt(0)')
        self.end()

    def lspin(self, va, off, target, t):
        a = self.a; lp = self.lab('LY'); ld = self.lab('LZ')
        a(f's_mov_b32 {POLLC}, 0'); a(f'{lp}:')
        a(f'ds_read_b32 v{t}, v{va} offset:{off}'); a('s_waitcnt lgkmcnt(0)'); a(f'v_readfirstlane_b32 {STMP}, v{t}')
        a(f's_cmp_ge_u32 {STMP}, {target}'); a(f's_cbranch_scc1 {ld}')
        a('s_sleep 1'); a(f's_add_u32 {POLLC}, {POLLC}, 1'); a(f's_cmp_lt_u32 {POLLC}, {POLL_MAX*8}'); a(f's_cbranch_scc1 {lp}')
        a(f'{ld}:')

    def att_factors(self):
        a = self.a
        self.lspin(27, 8, 1, 26)
        a('v_and_b32 v26, 3, v1'); a('v_lshlrev_b32 v26, 2, v26')
        for w in range(11): a(f'ds_read_b32 v{12+w}, v26 offset:{FW+16*w}')
        a('s_waitcnt lgkmcnt(0)')

    def code_touch(self, hi, nbytes, t):
        a = self.a; here = self.lab('LH')
        a('s_getpc_b64 s[92:93]'); a(f'{here}:')
        a(f's_mov_b32 s94, {hi}-{here}'); a('s_mov_b32 s95, 0x20000')
        a(f'v_lshlrev_b32 v{t}, 6, v1')
        for i in range(0, nbytes, 4096):
            a(f's_mov_b32 s5, {i}'); a(f'buffer_load_dword v{t+1}, v{t}, s[92:95], s5 offen')

    def code_touch2(self, lo, hi, t):
        a = self.a; here = self.lab('LH')
        a('s_getpc_b64 s[92:93]'); a(f'{here}:')
        a(f's_mov_b32 s94, {hi}-{here}'); a('s_mov_b32 s95, 0x20000'); a(f's_mov_b32 s5, {lo}-{here}')
        a(f'v_lshlrev_b32 v{t}, 6, v1')
        a(f'buffer_load_dword v{t+1}, v{t}, s[92:95], s5 offen')

    def att_red_addr(self, e):
        a = self.a
        a('s_lshl_b32 s87, s4, 11'); a(f's_add_u32 s87, s87, {MO_BASE}')
        a('v_and_b32 v30, 3, v1'); a('v_lshlrev_b32 v30, 9, v30'); a('v_lshrrev_b32 v31, 2, v1'); a('v_lshl_add_u32 v30, v31, 4, v30')
        if e: a(f'v_add_u32 v30, {256*e}, v30')
        a(f'v_add_u32 v31, {PART + 1024*e}, v2')

    def xcc_inc(self, dst):
        a = self.a
        a('s_getreg_b32 s5, hwreg(HW_REG_XCC_ID)'); a('s_and_b32 s5, s5, 7')
        a('s_mul_i32 s6, s5, s5'); a('s_lshl_b32 s6, s6, 16'); a('s_lshl_b32 s5, s5, 8'); a('s_add_u32 s5, s5, s6'); a(f's_add_u32 {dst}, s5, 1')

    def lds_init(self):
        a = self.a
        a('v_mov_b32 v8, 0'); a('v_lshlrev_b32 v9, 2, v1'); a(f'v_add_u32 v10, {ZR}, v9'); a('ds_write_b32 v10, v8')
        a(f'v_add_u32 v10, {CNT}, v9'); a('s_mov_b64 exec, 0xffff'); a('ds_write_b32 v10, v8'); a('s_mov_b64 exec, -1')

    def reduce_parts(self, base, n, dst=96):
        a = self.a
        a(f'v_add_u32 v3, {base}, v2')
        for w in range(n): a(f'ds_read_b128 {v(dst+4*w,4)}, v3 offset:{1024*w}')
        a('s_waitcnt lgkmcnt(0)')
        for w in range(1, n):
            for r in range(4): a(f'v_add_f32 v{dst+r}, v{dst+r}, v{dst+4*w+r}')

    def ln_x(self):
        a = self.a
        for i in range(4): a(f'v_lshlrev_b32 v{12+2*i}, 16, v{40+i}'); a(f'v_and_b32 v{13+2*i}, {HIM}, v{40+i}')
        a('v_add_f32 v20, v12, v13')
        for i in range(2, 8): a(f'v_add_f32 v20, v20, v{12+i}')
        self.wavesum(20, 21)
        a('v_mul_f32 v20, 0x3b000000, v20')
        a('v_mov_b32 v22, 0')
        for i in range(8): a(f'v_sub_f32 v21, v{12+i}, v20'); a('v_fmac_f32 v22, v21, v21')
        self.wavesum(22, 21)
        a('v_mul_f32 v22, 0x3b000000, v22')
        self.rnd2(20, 22, 21)
        a('v_add_f32 v22, 0x3727c5ac, v22'); self.rnd2(22, 23, 21)
        a('v_sqrt_f32 v22, v22'); self.rnd2(22, 23, 21)
        a('v_rcp_f32 v23, v22')
        for i in range(8): a(f'v_sub_f32 v{12+i}, v{12+i}, v20')
        for i in range(4): self.rnd2(12 + 2 * i, 13 + 2 * i, 21)
        for i in range(8):
            a(f'v_mul_f32 v24, v{12+i}, v23'); a(f'v_fma_f32 v25, -v24, v22, v{12+i}'); a(f'v_fma_f32 v{12+i}, v25, v23, v24')
        for i in range(4): self.rnd2(12 + 2 * i, 13 + 2 * i, 21)
        a('v_lshlrev_b32 v21, 5, v1'); a('s_lshl_b32 s5, s81, 1'); a(f's_add_u32 s5, s5, {LNX}'); a('v_add_u32 v21, s5, v21')
        a('ds_write_b128 v21, v[12:15]'); a('ds_write_b128 v21, v[16:19] offset:16')
        self.arrive(C_LN, 8, 9)

    def head(self):
        a = self.a
        a(f's_mul_i32 s80, s4, {ASTR}'); a(f's_add_u32 s80, s80, {AUXREG}')
        a('v_lshlrev_b32 v2, 4, v1')
        a('s_cmp_ge_u32 s3, 4'); a('s_cbranch_scc1 L_h_q')
        self.srd(['WM', 'C']); self.consts()
        self.wvoff(5, 6144, 4); self.xvoff(6, 1024, 0, 4)
        a('s_and_b32 s5, s4, 1'); a('s_lshl_b32 s5, s5, 8'); a('s_lshl_b32 s6, s3, 6'); a('s_add_u32 s85, s5, s6')
        a('s_mul_i32 s5, s85, 6144'); a('s_lshr_b32 s6, s4, 1'); a('s_lshl_b32 s6, s6, 8'); a('s_add_u32 s86, s5, s6'); a('s_add_u32 s86, s86, 2048')
        a('s_lshl_b32 s85, s85, 1')
        for i in range(4): a(f'v_mov_b32 v{8+i}, -1')
        a(f's_add_u32 s5, s80, {MR_OFF}')
        a('s_waitcnt lgkmcnt(0)')
        a('s_cmp_lg_u32 s3, 0'); a('s_cbranch_scc1 L_h_nc')
        a(f'buffer_store_dwordx4 v[8:11], v2, {WS}, s5 offen sc1')
        self.tag_load()
        a('L_h_nc:')
        a(f'buffer_load_dwordx4 v[160:163], v6, {C_}, s85 offen'); a(f'buffer_load_dwordx4 v[164:167], v6, {C_}, s85 offen offset:64')
        a('s_cmp_lg_u32 s3, 3'); a('s_cbranch_scc1 L_h_ni')
        self.lds_init(); a('s_waitcnt lgkmcnt(0)')
        a('L_h_ni:')
        a('s_barrier')
        a('s_cmp_lg_u32 s3, 0'); a('s_cbranch_scc1 L_h_wh')
        a('v_mov_b32 v12, 1'); a('v_mov_b32 v13, 0')
        a('v_lshrrev_b32 v3, 3, v1'); a(f'v_mul_u32_u24 v4, {ASTR}, v3'); a('v_and_b32 v7, 7, v1'); a('v_lshl_add_u32 v4, v7, 4, v4')
        a('v_lshlrev_b32 v3, 5, v3'); a('v_bfe_u32 v7, v1, 2, 1'); a(f'v_mul_u32_u24 v7, {HSTR}, v7'); a('v_add_u32 v3, v3, v7'); a('v_and_b32 v7, 3, v1'); a('v_lshl_add_u32 v3, v7, 3, v3')
        a(f'v_add_u32 v3, {H_}, v3')
        self.tag_make()
        a('s_waitcnt vmcnt(2)')
        if not self.nohello: a('s_mov_b64 exec, 1'); a(f'buffer_atomic_add v12, v13, {DBG}, 0 offen sc1'); a('s_mov_b64 exec, -1')
        self.stamp(1)
        for i in range(4): a(f's_mov_b32 s{81+i}, {AUXREG+H_OFF+8*i*ASTR}')
        self.tpoll_pipe(lambda b: [f'buffer_load_dwordx4 {v(b+4*i,4)}, v4, {WS}, s{81+i} offen sc1' for i in range(4)], 4, 32, 16, self.hsets, self.hsleep)
        for i in range(4): a(f'ds_write_b64 v3, {v(16+2*i,2)} offset:{256*i}')
        self.arrive(C_H, 8, 9)
        self.stamp(3)
        a('L_h_wh:')
        a('s_waitcnt vmcnt(0)')
        self.silu4(160, 8); self.silu4(164, 8)
        if self.mrearly: self.waitc(C_LN, 8, 8, 9)
        else: self.waitc(C_W1, 1, 8, 9)
        self.unit_loads(96, 5, WM, 's86', 6144, depth=self.dwo, prior=0)
        a(f's_add_u32 s86, s86, {32*6144}'); self.unit_loads(64, 5, WM, 's86', 6144, depth=self.dwo, prior=8)
        a('s_waitcnt vmcnt(8)')
        self.gemv_fly(96, 160, True)
        a('s_waitcnt vmcnt(0)')
        self.gemv_fly(64, 164, False)
        a('s_lshl_b32 s5, s3, 10'); a(f's_add_u32 s5, s5, {RP}'); a('v_add_u32 v3, s5, v2')
        self.merge(20); a('ds_write_b128 v3, v[20:23]')
        self.arrive(C_MR, 8, 9)
        a('s_cmp_lg_u32 s3, 1'); a('s_cbranch_scc1 L_h_end')
        self.waitc(C_MR, 4, 8, 9); self.reduce_parts(RP, 4); self.sanitize(96, 4)
        a(f's_add_u32 s5, s80, {MR_OFF}'); a(f'buffer_store_dwordx4 v[96:99], v2, {WS}, s5 offen sc1')
        self.stamp(8)
        a('L_h_end:')
        self.end()
        a('L_h_q:')
        self.srd(['WQ']); self.consts()
        a('v_lshrrev_b32 v3, 4, v1'); a('v_lshlrev_b32 v3, 14, v3'); a('v_and_b32 v4, 15, v1'); a('v_lshl_add_u32 v3, v4, 4, v3')
        qrows = [8 * (j & 3) + (j >> 2) for j in range(8)]
        a('s_sub_u32 s81, s3, 4')
        a('s_lshl_b32 s5, s81, 19'); a('s_lshl_b32 s6, s4, 8'); a('s_add_u32 s82, s5, s6')
        a('s_waitcnt lgkmcnt(0)')
        self.tag_load()
        self.stamp(1)
        self.unit_loads(32, 3, WQ, 's82', 8192, qrows, pol=self.qpol, depth=self.dq, prior=0, hook=(self.dq - 1, 's_barrier'))
        a(f's_add_u32 s82, s82, {32*8192}'); self.unit_loads(64, 3, WQ, 's82', 8192, qrows, pol=self.qpol, depth=self.dq, prior=8)
        self.stamp(2)
        a('s_waitcnt vmcnt(8)'); self.transpose(32, 96)
        a('s_waitcnt vmcnt(0)')
        if self.mrearly: self.arrive(C_LN, 8, 9)
        self.transpose(64, 128)
        self.stamp(3)
        self.xvoff(28, HSTR, H_, 29)
        a('s_lshl_b32 s6, s81, 7'); a('v_add_u32 v28, s6, v28'); a(f'v_mov_b32 v29, {ZR}')
        for u in range(4): a(f'v_cndmask_b32 v{24+u}, v29, v28, {BM[u]}')
        a('s_lshl_b32 s5, s81, 10'); a(f's_add_u32 s5, s5, {QP}'); a('v_add_u32 v3, s5, v2')
        self.waitc(C_H, 1, 8, 9)
        self.stamp(4)
        self.gemv2(24, 32, 96, 64)
        self.merge(64); a('ds_write_b128 v3, v[64:67]')
        self.arrive(C_Q, 8, 9)
        a('s_cmp_lg_u32 s3, 4'); a('s_cbranch_scc1 L_h_end')
        a('v_lshrrev_b32 v10, 4, v1'); a('v_lshlrev_b32 v10, 5, v10'); a('v_bfe_u32 v11, v1, 1, 3'); a('v_add_u32 v10, v10, v11')
        a('v_and_b32 v11, 1, v1'); a('v_lshl_add_u32 v10, v11, 7, v10'); a('v_lshlrev_b32 v10, 1, v10'); a(f'v_add_u32 v10, {QT}, v10')
        a('v_lshlrev_b32 v11, 3, v1'); a(f'v_add_u32 v11, {QT}, v11')
        self.tag_make()
        self.waitc(C_Q, 8, 8, 9); self.reduce_parts(QP, 8)
        a('v_cvt_pk_bf16_f32 v96, v96, v97'); a('v_cvt_pk_bf16_f32 v98, v98, v99')
        a('ds_write_b16 v10, v96'); a('ds_write_b16_d16_hi v10, v96 offset:16')
        a('ds_write_b16 v10, v98 offset:32'); a('ds_write_b16_d16_hi v10, v98 offset:48')
        a('s_waitcnt lgkmcnt(0)'); a('ds_read_b64 v[100:101], v11')
        a(f'v_mov_b32 v97, {TAG}'); a(f'v_mov_b32 v99, {TAG}')
        a(f's_add_u32 s5, s80, {Q_OFF}')
        a('s_waitcnt lgkmcnt(0)')
        a('v_mov_b32 v96, v100'); a('v_mov_b32 v98, v101')
        a(f'buffer_store_dwordx4 v[96:99], v2, {WS}, s5 offen sc1')
        self.arrive(C_W1, 8, 9)
        self.stamp(5)
        self.end()

    def pollcnt(self, off):
        a = self.a; lp = self.lab('LC'); ld = self.lab('LE')
        a(f's_mov_b32 {POLLC}, 0'); a(f'{lp}:')
        a(f'buffer_load_dword v14, v13, {DBG}, 0 offen offset:{off} sc1'); a('s_waitcnt vmcnt(0)')
        a('v_and_b32 v15, 63, v14'); a('v_cmp_gt_u32 vcc, 32, v15'); a(f's_cbranch_vccz {ld}')
        a('s_sleep 1'); a(f's_add_u32 {POLLC}, {POLLC}, 1'); a(f's_cmp_lt_u32 {POLLC}, {POLL_MAX}'); a(f's_cbranch_scc1 {lp}')
        a(f'{ld}:')

    def gemv2(self, xa, xr, T, acc):
        a = self.a
        for kb in range(2):
            for u in range(4): a(f'ds_read_b128 {v(xr+16*kb+4*u,4)}, v{xa+u} offset:{64*kb}')
        for kb in range(2):
            for m in range(8):
                if m % 2 == 0: a(f's_waitcnt lgkmcnt({7 - 4*kb - m//2})')
                c = '0' if (kb == 0 and m < 2) else v(acc + 4 * (m & 1), 4)
                a(f'v_mfma_f32_16x16x32_bf16 {v(acc+4*(m&1),4)}, {v(T+32*kb+4*m,4)}, {v(xr+16*kb+4*(m>>1),4)}, {c}')

    def getmode(self):
        self.waitc(C_MODE, 1, 8, 9, SMODE)

    def tail(self):
        a = self.a
        a(f's_mul_i32 s80, s4, {ASTR}'); a(f's_add_u32 s80, s80, {AUXREG}')
        a('v_lshlrev_b32 v2, 4, v1')
        a('s_cmp_ge_u32 s3, 8'); a('s_cbranch_scc1 L_tail_c')
        a('s_cmp_ge_u32 s3, 4'); a('s_cbranch_scc1 L_tail_b')
        self.tail_a()
        if self.lighth: self.h1()
        self.tail_b(); self.tail_c()

    def tail_a(self):
        a = self.a
        self.srd(['WO', 'OUT', 'X']); self.consts()
        a('s_sub_u32 s5, s3, 1'); a('s_and_b32 s5, s5, 1'); a('s_lshl_b32 s81, s5, 10')
        a('s_waitcnt lgkmcnt(0)')
        a(f'buffer_load_dwordx4 v[40:43], v2, {X_}, s81 offen')
        self.tag_load()
        if self.touch2:
            a('s_cmp_lg_u32 s3, 3'); a('s_cbranch_scc1 L_a_t2')
            self.code_touch2('L_tail_c', 'L_c_w1', 32); self.code_touch2(*(('L_h1', 'L_tail_b') if self.lighth else ('L_a_h1', 'L_a_wo')), 32)
            a('L_a_t2:')
        a('s_barrier')
        rows = [8 * (j & 3) + 2 * (j >> 2) for j in range(8)]
        a('v_lshrrev_b32 v3, 5, v1'); a('v_lshlrev_b32 v3, 15, v3'); a('v_bfe_u32 v4, v1, 4, 1'); a('v_lshl_add_u32 v3, v4, 12, v3')
        a('v_and_b32 v4, 15, v1'); a('v_lshl_add_u32 v35, v4, 4, v3')
        a('s_lshl_b32 s5, s4, 17'); a('s_lshl_b32 s6, s3, 8'); a('s_add_u32 s87, s5, s6')
        if self.early:
            a(f's_add_u32 s82, s87, {(64 + 1)*1024}')
            self.unit_loads(136, 35, WO, 's82', 1024, rows)
        if self.lighth:
            a('s_cmp_lt_u32 s4, 28'); a('s_cbranch_scc1 L_a_wo')
            a('s_cmp_eq_u32 s3, 0'); a('s_cbranch_scc1 L_a_h1'); a('s_cmp_eq_u32 s3, 3'); a('s_cbranch_scc1 L_a_h1')
            a(f's_waitcnt vmcnt({8 if self.early else 0})')
            self.ln_x()
        else:
            a('s_cmp_eq_u32 s3, 0'); a('s_cbranch_scc1 L_a_h1'); a('s_cmp_eq_u32 s3, 3'); a('s_cbranch_scc1 L_a_wo')
            a(f's_waitcnt vmcnt({8 if self.early else 0})')
            self.ln_x()
            a('s_branch L_a_wo')
        if self.lighth:
            a('L_a_h1:')
            a('s_call_b64 s[90:91], L_h1')
            self.waitc(C_H, 9, 8, 9)
        else:
            a('L_a_h1:'); a('s_mov_b32 s93, s4')
            self.h1_body()
        a('L_a_wo:')
        if self.wo_wait: self.waitc(C_H, 1, 8, 9)
        if self.touch:
            a('s_cmp_lg_u32 s3, 3'); a('s_cbranch_scc1 L_a_nt')
            self.code_touch('L_exit', 12288, 32)
            a('L_a_nt:')
        for kb in ([0, 1, 2] if self.early else [3, 0, 1, 2]):
            a(f's_add_u32 s82, s87, {(64*(kb&1) + (kb>>1))*1024}')
            S = [8, 12, 72, 76, 136]
            self.unit_loads(S[kb + 1], 35, WO, 's82', 1024, rows, depth=self.dl0, prior=0 if kb == 3 else 99, qs=4 if kb == 3 else 8)
        if self.w1pf: self.arrive(C_CLR, 8, 9)
        for kb in range(4):
            if kb < 3: a(f's_waitcnt vmcnt({16 - 8*kb})')
            self.transpose(S[kb + 1], S[kb], rs=4 if kb == 3 else 8, ds=8)
        self.stamp(1)
        self.sxaddr(164, OSTR, OB, 165)
        a(f'v_mov_b32 v165, {ZR}')
        for u in range(4): a(f'v_cndmask_b32 v{160+u}, v165, v164, {BM[u]}')
        self.sidx(164)
        for i in range(8): a(f'v_mov_b32 v{152+i}, 0')
        a('s_lshl_b32 s5, s3, 10'); a('s_add_u32 s81, s80, s5')
        self.waitc(C_MODE, 1, 166, 167, SMODE)
        a('s_cmp_eq_u32 s3, 0'); a('s_cbranch_scc0 L_a_pt')
        a('v_lshrrev_b32 v3, 3, v1'); a(f'v_mul_u32_u24 v3, {ASTR}, v3'); a('v_and_b32 v4, 7, v1'); a('v_lshl_add_u32 v3, v4, 4, v3')
        a('v_lshrrev_b32 v5, 4, v1'); a('v_lshlrev_b32 v5, 2, v5'); a('v_lshl_add_u32 v4, v4, 4, v5')
        a(f'v_add_u32 v7, {SMALL}, v4')
        a('s_lshl_b32 s5, s4, 7')
        for i in range(4): a(f's_add_u32 s{82+i}, s5, {AUXREG + 8*i*ASTR + A_OFF}'); a(f's_add_u32 s{86+i}, s5, {AUXREG + 8*i*ASTR + P2_OFF}')
        a('s_and_b32 s5, s4, 0x18'); a('s_and_b32 s6, s4, 1'); a('s_lshl_b32 s6, s6, 2'); a('s_add_u32 s5, s5, s6'); a('s_bfe_u32 s6, s4, 0x10002'); a('s_add_u32 s5, s5, s6')
        a('s_lshl_b32 s5, s5, 6'); a('s_and_b32 s6, s4, 2'); a('s_lshl_b32 s6, s6, 4'); a('s_add_u32 s5, s5, s6'); a(f's_add_u32 s90, s5, {X1G}')
        a('v_bfe_u32 v4, v1, 2, 1'); a('v_lshlrev_b32 v4, 7, v4'); a('v_lshrrev_b32 v5, 5, v1'); a('v_lshl_add_u32 v4, v5, 4, v4')
        a('v_and_b32 v6, 3, v1'); a('v_lshl_add_u32 v4, v6, 2, v4'); a('v_lshrrev_b32 v5, 4, v1'); a('v_and_b32 v6, 1, v5'); a('v_lshl_add_u32 v4, v6, 11, v4')
        self.own_n('s91')
        a('v_and_b32 v6, 7, v1'); a('v_lshlrev_b32 v6, 3, v6'); a('v_lshrrev_b32 v165, 5, v1'); a('v_add_u32 v6, v6, v165')
        a('v_and_b32 v5, 1, v5'); a('v_lshl_add_u32 v5, v5, 9, v6'); a('v_lshlrev_b32 v5, 1, v5')
        a(f's_add_u32 s5, {EPO}, 1'); a('v_mov_b32 v166, s5'); a('v_mov_b32 v167, 0')
        for i in range(8): a(f'buffer_load_dwordx4 v[136:139], v3, {WS}, s{82+i} offen sc1')
        a('s_branch L_a_pu')
        a('L_a_pt:')
        a('s_sub_u32 s5, s3, 1'); a('s_and_b32 s5, s5, 1'); a('s_lshl_b32 s6, s5, 4'); a('v_mov_b32 v5, v2')
        a('s_lshl_b32 s82, s5, 11'); a(f's_add_u32 s82, s82, {X1G}'); a('s_add_u32 s83, s82, 1024')
        a('v_lshlrev_b32 v6, 5, v1'); a(f's_add_u32 s6, s6, {IMA}'); a('v_add_u32 v6, s6, v6')
        a('v_lshrrev_b32 v7, 4, v1'); a('v_lshlrev_b32 v7, 7, v7'); a('v_and_b32 v4, 15, v1'); a('v_lshl_add_u32 v7, v4, 2, v7'); a(f's_mul_i32 s5, s5, {YSTR}'); a(f's_add_u32 s5, s5, {YB}'); a('v_add_u32 v7, s5, v7')
        a('s_mov_b32 s84, 0x3b000000'); a('v_mov_b32 v3, 0x3727c5ac')
        for i in range(2): a(f'buffer_load_dwordx4 v[136:139], v5, {WS}, s{82+i} offen sc1')
        a('L_a_pu:')
        a('s_waitcnt vmcnt(0)')
        self.stamp(2)
        self.dry_begin('L_a_go')
        if self.ta_cnt:
            a(f'v_mov_b32 v164, {CNT + C_Q}'); a(f's_mov_b32 {POLLC}, 0'); a('L_a_sp:')
            a('ds_read_b32 v165, v164'); a('s_waitcnt lgkmcnt(0)'); a('v_cmp_gt_u32 vcc, 4, v165'); a('s_cbranch_vccz L_a_sq')
            a(f's_add_u32 {POLLC}, {POLLC}, 1'); a(f's_cmp_lt_u32 {POLLC}, {POLL_MAX*16}'); a('s_cbranch_scc1 L_a_sp'); a('L_a_sq:')
        else: self.bar()
        self.stamp(3)
        X = [136, 8]
        def xread(p):
            for u in range(4): a(f'ds_read_b128 {v(X[p]+4*u,4)}, v{160+u} offset:{128*p}')
        xread(0)
        for p in range(2):
            for m in range(8):
                if m % 2 == 0: a(f's_waitcnt lgkmcnt({3 - m//2 + (4 if p == 0 and m else 0)})')
                a(f'v_smfmac_f32_16x16x64_bf16 {v(152+4*(m&1),4)}, {v(X[p]+4*(m>>1),4)}, {v(8+64*p+8*m,8)}, v164')
                if p == 0 and m == 1: xread(1)
        self.pub_pre()
        a('v_pk_add_f32 v[152:153], v[152:153], v[154:155]'); a('v_pk_add_f32 v[154:155], v[156:157], v[158:159]')
        self.pub(f'buffer_store_dwordx4 v[152:155], v2, {WS}, s81 offen')
        self.stamp(4)
        a('s_cmp_lg_u32 s3, 0'); a('s_cbranch_scc1 L_a_ln')
        if self.ta_cnt: self.waitc(C_MR, 3, 164, 165)
        for k in range(4): a(f'ds_read_b32 v{72+k}, v7 offset:{128*k}')
        def rs(s0, last_half):
            def mk(b):
                L = [f'buffer_load_dwordx4 {v(b+4*i,4)}, v3, {WS}, s{s0+i} offen sc1' for i in range(4)]
                if last_half: L = L[:3] + ['s_mov_b32 exec_hi, 0', L[3], 's_mov_b32 exec_hi, s95']
                return L
            b = 8 if not last_half else 80
            def consume(b=b):
                a(f'v_pk_add_f32 v[156:157], {v(b,2)}, {v(b+4,2)}'); a(f'v_pk_add_f32 v[158:159], {v(b+2,2)}, {v(b+6,2)}')
                a(f'v_pk_add_f32 v[152:153], {v(b+8,2)}, {v(b+12,2)}'); a(f'v_pk_add_f32 v[154:155], {v(b+10,2)}, {v(b+14,2)}')
                a('v_pk_add_f32 v[156:157], v[156:157], v[152:153]'); a('v_pk_add_f32 v[158:159], v[158:159], v[154:155]')
            if self.pipe: self.npoll2(mk, 4, [b, b + 16], 16, 165, consume, 156)
            else: self.npoll(mk(b), range(b, b + 16), 165, consume, 156)
            self.red4rows(156)
            a('v_add_f32_dpp v156, v156, v156 row_ror:8 row_mask:0xf bank_mask:0xf')
        rs(82, False)
        a('s_waitcnt lgkmcnt(0)')
        self.ex(0x00ff00ff, 0x00ff00ff); self.pub_pre()
        a('v_fma_f32 v76, v72, v156, v73')
        self.pub(f'buffer_store_dword v76, v4, {WS}, s90 offen')
        self.exfull()
        self.stamp(5)
        for r in range(4): a(f'v_mov_b32 v{92+r}, 0'); a(f'v_mov_b32 v{108+r}, 0')
        a('v_fmac_f32 v76, v74, v75')
        self.bar(); self.bar()
        self.stamp(6)
        rs(86, True)
        self.ex(0x00ff00ff, 0x00ff00ff)
        a('v_fmac_f32 v76, v74, v156'); a('v_cvt_pk_bf16_f32 v76, v76, v76')
        a(f'buffer_store_short v76, v5, {OUT}, s91 offen')
        a('s_cmp_lg_u32 s4, 0'); a('s_cbranch_scc1 L_a_end')
        self.ex(1, 0); a(f'buffer_store_dword v166, v167, {WS}, 0 offen sc1')
        a('L_a_end:')
        self.dry_end('L_a_go')
        self.end()
        a('L_a_ln:')
        a('s_cmp_eq_u32 s3, 3'); a('s_cbranch_scc1 L_a_end')
        a('s_cmp_ge_u32 s4, 28'); a('s_cbranch_scc1 L_a_end')
        if self.ta_cnt: self.waitc(C_MR, 3, 164, 165)
        a('ds_read_b128 v[72:75], v6'); a('ds_read_b128 v[76:79], v6 offset:2048')
        a(f'ds_read_b128 v[80:83], v6 offset:{IMS-IMA}'); a(f'ds_read_b128 v[84:87], v6 offset:{IMS-IMA+2048}')
        def shift(b):
            a(f'v_readfirstlane_b32 s6, v{b}')
            for i in range(4): a(f'v_pk_add_f32 {v(88+2*i,2)}, {v(b+2*i,2)}, s[6:7] op_sel_hi:[1,0] neg_lo:[0,1] neg_hi:[0,1]')
        self.ppoll(lambda b: [f'buffer_load_dwordx4 {v(b,4)}, v5, {WS}, s82 offen sc1', f'buffer_load_dwordx4 {v(b+4,4)}, v5, {WS}, s83 offen sc1'],
                   2, 8, [8, 16], 165, shift, delay=self.agdelay)
        self.stamp(5)
        def stats():
            a('v_pk_mul_f32 v[98:99], v[88:89], v[88:89]'); a('v_pk_add_f32 v[96:97], v[88:89], v[90:91]')
            a('v_pk_fma_f32 v[98:99], v[90:91], v[90:91], v[98:99]'); a('v_pk_add_f32 v[100:101], v[92:93], v[94:95]')
            a('v_pk_fma_f32 v[98:99], v[92:93], v[92:93], v[98:99]'); a('v_pk_add_f32 v[96:97], v[96:97], v[100:101]')
            a('v_pk_fma_f32 v[98:99], v[94:95], v[94:95], v[98:99]')
            a('v_add_f32 v156, v96, v97'); a('v_add_f32 v157, v98, v99')
            a('v_permlane32_swap_b32 v156, v157'); a('v_add_f32 v156, v156, v157')
            a('v_mov_b32 v157, v156'); a('v_permlane16_swap_b32 v156, v157'); a('v_add_f32 v156, v156, v157')
            self.rowsum(156)
            a('v_readlane_b32 s6, v156, 0'); a('v_readlane_b32 s5, v156, 32')
            a('v_mov_b32 v159, s84')
            a('v_mul_f32 v156, s6, v159'); a('v_fma_f32 v158, s5, v159, v3')
            a('v_fma_f32 v158, -v156, v156, v158'); a('v_max_f32 v158, v158, v3'); a('v_rsq_f32 v158, v158')
            for i in range(4): a(f'v_pk_add_f32 {v(88+2*i,2)}, {v(88+2*i,2)}, v[156:157] op_sel_hi:[1,0] neg_lo:[0,1] neg_hi:[0,1]')
        stats()
        a('s_waitcnt lgkmcnt(0)')
        for i in range(4): a(f'v_pk_mul_f32 {v(88+2*i,2)}, {v(88+2*i,2)}, {v(72+2*i,2)}')
        for i in range(4): a(f'v_pk_fma_f32 {v(88+2*i,2)}, {v(88+2*i,2)}, v[158:159], {v(80+2*i,2)} op_sel_hi:[1,0,1]')
        stats()
        for i in range(4): a(f'v_pk_mul_f32 {v(88+2*i,2)}, {v(88+2*i,2)}, v[158:159] op_sel_hi:[1,0]')
        for i in range(4): a(f'v_cvt_pk_bf16_f32 v{88+i}, v{88+2*i}, v{89+2*i}')
        a('ds_write2_b32 v7, v88, v89 offset1:16'); a('ds_write2_b32 v7, v90, v91 offset0:128 offset1:144')
        a('s_waitcnt lgkmcnt(0)')
        self.stamp(6)
        self.bar()
        a('s_branch L_a_end')
        self.flush_late()

    def h1_body(self):
        a = self.a
        a('v_lshrrev_b32 v3, 5, v1'); a('v_lshlrev_b32 v3, 4, v3'); a('v_bfe_u32 v4, v1, 3, 2'); a('v_add_u32 v3, v3, v4'); a(f'v_mul_u32_u24 v3, {ASTR}, v3')
        a('v_and_b32 v4, 7, v1'); a('v_lshl_add_u32 v3, v4, 4, v3')
        a('s_lshr_b32 s5, s93, 3'); a(f's_mul_i32 s5, s5, {4*ASTR}'); a('s_and_b32 s6, s93, 7'); a('s_lshl_b32 s6, s6, 7'); a('s_add_u32 s5, s5, s6')
        a(f's_add_u32 s82, s5, {AUXREG+MC_OFF}')
        a('s_lshr_b32 s5, s93, 1'); a('s_lshl_b32 s5, s5, 5'); a('s_and_b32 s6, s93, 1'); a('s_lshl_b32 s6, s6, 2'); a('s_add_u32 s5, s5, s6'); a('s_lshl_b32 s5, s5, 2')
        a(f's_add_u32 s5, s5, {LNX}')
        a('v_bfe_u32 v5, v1, 1, 2'); a('v_and_b32 v6, 1, v1'); a('v_lshlrev_b32 v7, 4, v5'); a('v_lshl_add_u32 v7, v6, 6, v7')
        a('v_lshl_add_u32 v5, v6, 9, v5'); a('v_lshlrev_b32 v5, 2, v5'); a('v_add_u32 v5, s5, v5')
        a(f's_mul_i32 s83, s93, {ASTR}'); a(f's_add_u32 s83, s83, {AUXREG+H_OFF}')
        self.waitc(C_LN, 2, 8, 9)
        for r in range(4): a(f'ds_read_b32 v{24+r}, v5 offset:{32*r}')
        self.tag_make()
        self.stamp(7)
        a(f's_mov_b32 {POLLC}, 0'); a('L_a_mp:')
        a(f's_and_b32 s5, {POLLC}, 63'); a('s_cmp_eq_u32 s5, 63'); a('s_cselect_b32 s5, 2048, 0'); a('s_add_u32 s5, s5, s82')
        a(f'buffer_load_dwordx4 v[16:19], v3, {WS}, s5 offen sc1'); a(f'buffer_load_dwordx4 v[20:23], v3, {WS}, s5 offen offset:1024 sc1')
        a('s_waitcnt vmcnt(0)')
        for i, r in enumerate([17, 19, 21, 23]):
            if i == 0: a(f'v_cmp_ne_u32 vcc, {TAG}, v{r}')
            else: a(f'v_cmp_ne_u32 s[88:89], {TAG}, v{r}'); a('s_or_b64 vcc, vcc, s[88:89]')
        a('s_cmp_eq_u64 vcc, 0'); a('s_cbranch_scc1 L_a_mq')
        a(f's_add_u32 {POLLC}, {POLLC}, 1'); a(f's_cmp_lt_u32 {POLLC}, {POLL_MAX}'); a('s_cbranch_scc1 L_a_mp')
        a('L_a_mq:')
        self.stamp(8)
        for r in range(4): a(f'v_add_f32_dpp v{12+r}, v{16+2*r}, v{16+2*r} row_ror:8 row_mask:0xf bank_mask:0xf')
        for r in range(4): a(f'v_mov_b32 v{16+r}, v{12+r}')
        for r in range(4): a(f'v_permlane16_swap_b32 v{12+r}, v{16+r}')
        for r in range(4): a(f'v_add_f32 v{12+r}, v{12+r}, v{16+r}')
        for r in range(4): a(f'v_mov_b32 v{16+r}, v{12+r}')
        for r in range(4): a(f'v_permlane32_swap_b32 v{12+r}, v{16+r}')
        for p in (12, 14, 16, 18): self.rnd2(p, p + 1, 8)
        for r in range(4): a(f'v_add_f32 v{16+r}, 1.0, v{16+r}')
        self.rnd2(16, 17, 8); self.rnd2(18, 19, 8)
        for r in range(4): a(f'v_mul_f32 v{24+r}, v{24+r}, v{16+r}')
        self.rnd2(24, 25, 8); self.rnd2(26, 27, 8)
        for r in range(4): a(f'v_add_f32 v{24+r}, v{24+r}, v{12+r}')
        a('v_cvt_pk_bf16_f32 v24, v24, v25'); a('v_cvt_pk_bf16_f32 v26, v26, v27'); a(f'v_mov_b32 v25, {TAG}'); a(f'v_mov_b32 v27, {TAG}')
        a('s_mov_b64 exec, 0xff'); a(f'buffer_store_dwordx4 v[24:27], v7, {WS}, s83 offen sc1'); a('s_mov_b64 exec, -1')
        self.arrive(C_H, 8, 9)
        self.stamp(9)

    def h1(self):
        a = self.a
        a('L_h1:')
        a('s_sub_u32 s93, s4, 28'); a('s_lshl_b32 s93, s93, 3'); a('s_add_u32 s93, s93, s3')
        self.h1_body()
        a('s_setpc_b64 s[90:91]')

    def own_n(self, dst):
        a = self.a
        a('s_and_b32 s5, s4, 0x18'); a('s_lshl_b32 s5, s5, 5'); a('s_and_b32 s6, s4, 1'); a('s_lshl_b32 s6, s6, 7'); a('s_add_u32 s5, s5, s6')
        a('s_and_b32 s6, s4, 6'); a('s_lshl_b32 s6, s6, 1'); a(f's_add_u32 {dst}, s5, s6')

    def tail_b(self):
        a = self.a
        a('L_tail_b:')
        self.srd(['W2']); self.consts()
        a('s_sub_u32 s81, s3, 4')
        self.wvoff(3, 1024, 4)
        a('s_lshl_b32 s5, s4, 16'); a('s_lshl_b32 s6, s81, 8'); a('s_add_u32 s82, s5, s6')
        a('s_waitcnt lgkmcnt(0)')
        if self.lighth: self.tag_load()
        a('s_cmp_eq_u32 s3, 5'); a('s_cbranch_scc0 L_b_ni')
        self.lds_init(); a('s_waitcnt lgkmcnt(0)')
        a('L_b_ni:')
        a('s_cmp_eq_u32 s3, 4'); a('s_cbranch_scc0 L_b_nc')
        for i in range(4): a(f'v_mov_b32 v{8+i}, -1')
        for i in range(8):
            if i % 4 == 0: a(f's_add_u32 s5, s80, {(i//4)*4096}')
            a(f'buffer_store_dwordx4 v[8:11], v2, {WS}, s5 offen offset:{(i%4)*1024} sc1')
        a(f's_add_u32 s5, s80, {ST_OFF}'); a('s_lshl_b32 s6, s4, 7'); a(f's_add_u32 s6, s6, {X1G}')
        a('s_mov_b64 exec, 0xffff'); a(f'buffer_store_dwordx4 v[8:11], v2, {WS}, s5 offen sc1')
        a('s_mov_b64 exec, 0xff'); a(f'buffer_store_dwordx4 v[8:11], v2, {WS}, s6 offen sc1'); a('s_mov_b64 exec, -1')
        a('s_barrier')
        self.xcc_inc('s85')
        a('v_mov_b32 v12, s85'); a('v_mov_b32 v13, 0')
        a('s_waitcnt vmcnt(0)')
        if not self.nohello: a('s_mov_b64 exec, 1'); a(f'buffer_atomic_add v12, v13, {DBG}, 0 offen offset:4 sc1'); a('s_mov_b64 exec, -1')
        self.stamp(1)
        if self.lighth:
            a('s_cmp_lt_u32 s4, 28'); a('s_cbranch_scc1 L_b_nh')
            a('s_call_b64 s[90:91], L_h1')
            a('v_mov_b32 v13, 0')
            a('L_b_nh:')
        a('s_mov_b64 exec, 1')
        a('s_cmp_lg_u32 s4, 0'); a('s_cbranch_scc1 L_b_fl')
        if self.nohello: a('s_mov_b32 s85, 2'); a('s_sleep 64')
        else:
            self.pollcnt(4)
            a('v_readfirstlane_b32 s6, v14')
            a('s_lshl_b32 s85, s85, 5'); a('s_cmp_eq_u32 s85, s6'); a(f's_cselect_b32 s85, {1 if self.force_slow else 2}, 1')
            self.pollcnt(0)
        a('v_mov_b32 v16, s85'); a(f'buffer_store_dword v16, v13, {DBG}, 0 offen offset:128 sc1')
        a('s_branch L_b_fm')
        a('L_b_fl:')
        self.poll([f'buffer_load_dword v16, v13, {DBG}, 0 offen offset:128 sc1'], [16], 17, zero=True, sleep=8)
        a('L_b_fm:')
        a('v_readfirstlane_b32 s5, v16'); a('s_mov_b64 exec, -1')
        self.arrive(C_MODE, 8, 9, 's5')
        self.stamp(7)
        a('s_branch L_b_w2')
        a('L_b_nc:')
        a('s_barrier')
        if self.lighth:
            a('s_cmp_lt_u32 s4, 28'); a('s_cbranch_scc1 L_b_w2')
            a('s_call_b64 s[90:91], L_h1')
        a('L_b_w2:')
        if self.prio: a('s_setprio 2')
        a('s_cmp_ge_u32 s4, 28'); a('s_cbranch_scc1 L_b_now2')
        if self.early2:
            a('s_cmp_eq_u32 s3, 4'); a('s_cbranch_scc1 L_b_e4')
            self.unit_loads(32, 3, W2, 's82', 1024)
            self.waitc(C_H, 1, 8, 9)
            a('s_branch L_b_e5')
            a('L_b_e4:')
            self.unit_loads(32, 3, W2, 's82', 1024)
            a('L_b_e5:')
        else:
            self.waitc(C_H, 1, 8, 9)
            self.unit_loads(32, 3, W2, 's82', 1024, depth=self.dl, prior=1)
        a(f's_add_u32 s82, s82, {32*1024}'); self.unit_loads(64, 3, W2, 's82', 1024, depth=self.dl)
        a('s_waitcnt vmcnt(0)')
        self.transpose(32, 96, ds=8); self.transpose(64, 100, ds=8)
        a('L_b_now2:')
        self.stamp(2)
        self.getmode()
        a('s_lshr_b32 s82, s81, 1')
        a('v_lshrrev_b32 v4, 4, v1')
        for i in range(3): a(f'v_add_u32 v{8+i}, {4*i}, v4')
        for i in range(3): a(f'v_lshlrev_b32 v{17+i}, 3, v{8+i}')
        a('s_mul_i32 s5, s82, 96'); a('s_add_u32 s85, s80, s5'); a(f's_add_u32 s85, s85, {ST_OFF}')
        a('v_and_b32 v5, 15, v1')
        for i in range(3): a(f'v_lshlrev_b32 v{12+i}, 11, v{8+i}'); a(f'v_lshl_add_u32 v{12+i}, v5, 4, v{12+i}')
        a('s_lshl_b32 s5, s82, 3'); a('s_lshr_b32 s6, s4, 2'); a('s_add_u32 s5, s5, s6'); a(f's_mul_i32 s5, s5, {12*2048}')
        a('s_and_b32 s6, s4, 3'); a('s_lshl_b32 s6, s6, 9'); a('s_add_u32 s5, s5, s6')
        a('s_and_b32 s6, s81, 1'); a('s_lshl_b32 s6, s6, 8'); a('s_add_u32 s5, s5, s6'); a(f's_add_u32 s83, s5, {MO_BASE}')
        a('v_and_b32 v6, 1, v4'); a('v_lshl_add_u32 v6, v5, 1, v6'); a('v_lshlrev_b32 v6, 1, v6'); a('v_lshrrev_b32 v7, 1, v4'); a('v_lshl_add_u32 v6, v7, 6, v6'); a('s_and_b32 s5, s81, 1'); a('s_lshl_b32 s5, s5, 7'); a(f's_mul_i32 s6, s82, {OSTR}'); a('s_add_u32 s5, s5, s6'); a(f's_add_u32 s5, s5, {OB}'); a('v_add_u32 v6, s5, v6')
        self.sxaddr(20, OSTR, HB, 21); a(f'v_mov_b32 v21, {ZR}')
        for u in range(4): a(f'v_cndmask_b32 v{24+u}, v21, v20, {BM[u]}')
        self.sidx(20)
        for i in range(8): a(f'v_mov_b32 v{84+i}, 0')
        a('s_lshl_b32 s5, s81, 10'); a('s_add_u32 s84, s80, s5'); a(f's_add_u32 s84, s84, {P2_OFF}')
        a(f'v_mov_b32 v22, {CNT + C_Q}'); a('v_mov_b32 v23, 1')
        t1 = [f'buffer_load_dwordx4 {v(32+4*i,4)}, v{12+i}, {WS}, s83 offen sc1' for i in range(3)]
        self.poll([f'buffer_load_dwordx2 {v(52+2*i,2)}, v{17+i}, {WS}, s85 offen sc1' for i in range(3)], range(52, 58), 16, sleep=self.ssleep)
        for s_ in t1: a(s_)
        self.stamp(4)
        a('v_max3_f32 v16, v52, v54, v56'); self.xrows(16, 17, 'max')
        for i in range(3): a(f'v_sub_f32 v{48+i}, v{52+2*i}, v16')
        for i in range(3): a(f'v_mul_f32 v{48+i}, {LOG2E}, v{48+i}')
        for i in range(3): a(f'v_exp_f32 v{48+i}, v{48+i}')
        a('v_mul_f32 v16, v48, v53')
        for i in range(1, 3): a(f'v_fmac_f32 v16, v{48+i}, v{53+2*i}')
        self.xrows(16, 17)
        a('v_rcp_f32 v16, v16')
        for i in range(3): a(f'v_mul_f32 v{48+i}, v{48+i}, v16')
        a('s_mov_b64 s[94:95], -1')
        def comb(b=32):
            for h in range(2): a(f'v_pk_mul_f32 {v(28+2*h,2)}, {v(b+2*h,2)}, v[48:49] op_sel_hi:[1,0]')
            for h in range(2): a(f'v_pk_fma_f32 {v(28+2*h,2)}, {v(b+4+2*h,2)}, v[48:49], {v(28+2*h,2)} op_sel:[0,1,0] op_sel_hi:[1,1,1]')
            for h in range(2): a(f'v_pk_fma_f32 {v(28+2*h,2)}, {v(b+8+2*h,2)}, v[50:51], {v(28+2*h,2)} op_sel_hi:[1,0,1]')
        if self.pipet1:
            self.npoll2(lambda b: [f'buffer_load_dwordx4 {v(b+4*i,4)}, v{12+i}, {WS}, s83 offen sc1' for i in range(3)], 3, [32, 60], 12, 16, comb, 28, pre=True)
        else: self.npoll(t1, range(32, 44), 16, comb, 28, pre=True)
        self.stamp(5)
        self.red4rows(28)
        a('v_cvt_pk_bf16_f32 v28, v28, v28'); a('ds_write_b16 v6, v28')
        if self.ta_cnt: a('s_mov_b64 exec, 1'); a('ds_add_u32 v22, v23'); a('s_mov_b64 exec, -1')
        else: a('s_waitcnt lgkmcnt(0)'); a('s_barrier')
        a('s_cmp_ge_u32 s4, 28'); a('s_cbranch_scc1 L_b_end')
        a('s_waitcnt vmcnt(0)')
        a('s_barrier'); a('s_barrier')
        for u in range(4): a(f'ds_read_b128 {v(60+4*u,4)}, v{24+u}')
        for m in range(8):
            if m % 2 == 0: a(f's_waitcnt lgkmcnt({3 - m//2})')
            a(f'v_smfmac_f32_16x16x64_bf16 {v(84+4*(m&1),4)}, {v(60+4*(m>>1),4)}, {v(96+8*m,8)}, v20')
        self.pub_pre()
        a('v_pk_add_f32 v[84:85], v[84:85], v[86:87]'); a('v_pk_add_f32 v[86:87], v[88:89], v[90:91]')
        self.pub(f'buffer_store_dwordx4 v[84:87], v2, {WS}, s84 offen')
        self.stamp(6)
        a('L_b_end:')
        self.end()
        self.flush_late()

    def tail_c(self):
        a = self.a
        a('L_tail_c:')
        self.srd(['WM', 'C', 'W1', 'B1', 'X', 'B2']); self.consts()
        a('s_sub_u32 s81, s3, 8')
        self.wvoff(5, 6144, 4); self.xvoff(6, 1024, 0, 4)
        a('s_and_b32 s5, s4, 3'); a('s_lshl_b32 s5, s5, 7'); a('s_lshl_b32 s6, s81, 5'); a('s_add_u32 s83, s5, s6')
        a('s_mul_i32 s5, s83, 6144'); a('s_lshr_b32 s6, s4, 2'); a('s_lshl_b32 s6, s6, 8'); a('s_add_u32 s84, s5, s6')
        a('s_lshl_b32 s83, s83, 1')
        a('s_waitcnt lgkmcnt(0)')
        a(f'buffer_load_dwordx4 v[156:159], v6, {C_}, s83 offen')
        self.unit_loads(96, 5, WM, 's84', 6144, pol=self.mcpol)
        self.tag_load()
        self.stamp(4)
        a('s_barrier')
        a('s_waitcnt vmcnt(8)')
        self.silu4(156, 8)
        a('s_waitcnt vmcnt(0)')
        self.stamp(5)
        self.gemv_fly(96, 156, True)
        a('s_lshl_b32 s5, s81, 10'); a(f's_add_u32 s5, s5, {MP}'); a('v_add_u32 v4, s5, v2')
        self.merge(20); a('ds_write_b128 v4, v[20:23]')
        self.arrive(C_MC, 8, 9)
        a('s_cmp_lg_u32 s3, 8'); a('s_cbranch_scc1 L_c_w1')
        self.tag_make()
        for i in range(4): a(f'v_mov_b32 v{33+2*i}, {TAG}')
        self.waitc(C_MC, 4, 8, 9); self.reduce_parts(MP, 4)
        for i in range(4): a(f'v_mov_b32 v{32+2*i}, v{96+i}')
        a(f's_add_u32 s5, s80, {MC_OFF}')
        a(f'buffer_store_dwordx4 v[32:35], v2, {WS}, s5 offen'); a(f'buffer_store_dwordx4 v[36:39], v2, {WS}, s5 offen offset:1024')
        a(f'buffer_store_dwordx4 v[32:35], v2, {WS}, s5 offen offset:2048 sc1'); a(f'buffer_store_dwordx4 v[36:39], v2, {WS}, s5 offen offset:3072 sc1')
        if self.lighth: self.arrive(C_H, 8, 9)
        self.stamp(6)
        a('L_c_w1:')
        if self.prio: a('s_setprio 1')
        self.waitc(C_H, 1, 8, 9)
        if self.w1pf:
            a('s_cmp_eq_u32 s3, 8'); a('s_cbranch_scc1 L_c_pw')
            a('s_setprio 3')
            a(f's_mul_i32 s5, s4, {16*3584}'); a('s_sub_u32 s6, s3, 9'); a('s_lshl_b32 s6, s6, 10'); a('s_add_u32 s5, s5, s6')
            for i in range(19):
                if i == 18: a('s_cmp_eq_u32 s3, 11'); a('s_cbranch_scc1 L_c_pd')
                if i >= self.w1pf: a(f's_waitcnt vmcnt({self.w1pf-1})')
                a(f'buffer_load_dwordx4 v[32:35], v2, {W1}, s5 offen'); a('s_add_u32 s5, s5, 3072')
            a('L_c_pd:')
            a('s_branch L_c_gm')
            a('L_c_pw:')
            self.waitc(C_CLR, 4, 8, 9)
            a('s_branch L_c_fin')
            a('L_c_gm:')
        else:
            a('s_cmp_eq_u32 s3, 8'); a('s_cbranch_scc1 L_c_fin')
        self.getmode()
        self.stamp(1)
        a('s_cmp_lg_u32 s3, 9'); a('s_cbranch_scc1 L_c_img')
        a('v_and_b32 v4, 7, v1'); a('v_lshrrev_b32 v5, 4, v1')
        self.own_n('s84')
        a('v_lshlrev_b32 v6, 3, v4'); a('v_lshrrev_b32 v7, 1, v5'); a('v_add_u32 v6, v6, v7'); a('v_lshlrev_b32 v6, 1, v6')
        a('v_and_b32 v7, 1, v5'); a('v_lshl_add_u32 v7, v7, 10, v6')
        a(f'buffer_load_ushort v113, v7, {X_}, s84 offen'); a(f'buffer_load_ushort v115, v6, {B2}, s84 offen')
        a('v_lshrrev_b32 v6, 2, v4'); a('v_lshlrev_b32 v6, 8, v6'); a('v_lshl_add_u32 v6, v5, 4, v6'); a('v_and_b32 v7, 3, v4'); a('v_lshl_add_u32 v6, v7, 2, v6')
        a('s_lshr_b32 s5, s4, 3'); a(f's_mul_i32 s5, s5, {2*ASTR}'); a('s_and_b32 s6, s4, 1'); a('s_lshl_b32 s6, s6, 9'); a('s_add_u32 s5, s5, s6')
        a('s_and_b32 s6, s4, 6'); a('s_lshl_b32 s6, s6, 5'); a('s_add_u32 s5, s5, s6'); a(f's_add_u32 s85, s5, {AUXREG+MR_OFF}')
        loads = []
        for q in range(2):
            for ks in range(2):
                loads.append(f's_add_u32 s6, s85, {(24*q+ks)*ASTR}')
                loads.append(f'buffer_load_dword v{96+2*q+ks}, v6, {WS}, s6 offen sc1')
        self.poll(loads, range(96, 100), 8, sleep=self.psleep)
        a('v_add_f32 v112, v96, v97'); a('v_add_f32 v114, v98, v99')
        self.rnd2(112, 114, 8)
        a('v_lshlrev_b32 v113, 16, v113'); a('v_lshlrev_b32 v115, 16, v115')
        a('v_lshlrev_b32 v5, 2, v5'); a('v_lshl_add_u32 v5, v4, 4, v5'); a(f'v_add_u32 v5, {SMALL}, v5')
        for k in range(4): a(f'ds_write_b32 v5, v{112+k} offset:{128*k}')
        a('s_branch L_c_fa' if self.ta_cnt else 's_branch L_c_fin')
        a('L_c_img:')
        a('s_sub_u32 s5, s3, 10'); a('s_lshl_b32 s5, s5, 4')
        a('v_and_b32 v4, 31, v1'); a('v_lshlrev_b32 v4, 5, v4'); a('v_lshrrev_b32 v5, 5, v1'); a(f'v_mul_u32_u24 v5, {2*ASTR}, v5'); a('v_add_u32 v4, v4, v5'); a('v_add_u32 v4, s5, v4')
        a('v_lshlrev_b32 v5, 5, v1'); a('v_add_u32 v5, s5, v5'); a(f'v_add_u32 v5, {IMA}, v5')
        loads = []
        for q in range(2):
            for i in range(2):
                for ks in range(2):
                    loads.append(f's_mov_b32 s6, {AUXREG + MR_OFF + ((4+4*q+2*i)*2+ks)*ASTR}')
                    loads.append(f'buffer_load_dwordx4 {v(96+16*q+8*i+4*ks,4)}, v4, {WS}, s6 offen sc1')
        self.poll(loads, range(96, 128), 8, sleep=self.psleep)
        for q in range(2):
            for i in range(2):
                for r in range(4): a(f'v_add_f32 v{128+8*q+4*i+r}, v{96+16*q+8*i+r}, v{100+16*q+8*i+r}')
        for p in range(128, 144, 2): self.rnd2(p, p + 1, 8)
        for i in range(8): a(f'v_add_f32 v{136+i}, 1.0, v{136+i}')
        for p in range(136, 144, 2): self.rnd2(p, p + 1, 8)
        a('v_add_f32 v10, v128, v129')
        for i in range(2, 8): a(f'v_add_f32 v10, v10, v{128+i}')
        self.wavesum(10, 11); a('v_mul_f32 v10, 0x3b000000, v10')
        for i in range(8): a(f'v_sub_f32 v{128+i}, v{128+i}, v10')
        a('ds_write_b128 v5, v[136:139]'); a('ds_write_b128 v5, v[140:143] offset:2048')
        a(f'ds_write_b128 v5, v[128:131] offset:{IMS-IMA}'); a(f'ds_write_b128 v5, v[132:135] offset:{IMS-IMA+2048}')
        if self.ta_cnt:
            a('L_c_fa:'); self.arrive(C_MR, 8, 9)
        a('L_c_fin:')
        self.stamp(7)
        a('s_cmp_ge_u32 s4, 28'); a('s_cbranch_scc1 L_c_last')
        a('v_bfe_u32 v3, v1, 3, 2'); a('v_lshlrev_b32 v3, 3, v3'); a('v_lshrrev_b32 v4, 5, v1'); a('v_add_u32 v3, v3, v4')
        a('v_mul_u32_u24 v3, 3584, v3'); a('v_and_b32 v4, 7, v1'); a('v_lshl_add_u32 v3, v4, 4, v3')
        a('s_cmp_lg_u32 s3, 8'); a('s_cbranch_scc1 L_c_b1')
        a('s_lshl_b32 s82, s4, 7'); a('s_mov_b32 s83, 0')
        a('L_c_dma:')
        for i in range(4):
            if i: a(f's_add_u32 s5, s82, {2*i*3584}')
            a(f's_add_u32 m0, s83, {1024*i}')
            a(f's_waitcnt vmcnt({self.dw1-1})')
            a(f'buffer_load_dwordx4 v3, {W1}, {"s5" if i else "s82"} offen {"" if self.w1pf else self.wpol} lds')
        a(f's_add_u32 s82, s82, {32*3584}'); a('s_add_u32 s83, s83, 4096'); a('s_cmp_lt_u32 s83, 65536'); a('s_cbranch_scc1 L_c_dma')
        a('L_c_b1:')
        a('v_and_b32 v4, 15, v1'); a('v_lshlrev_b32 v4, 1, v4'); a('s_lshl_b32 s5, s4, 7'); a('s_lshl_b32 s6, s81, 5'); a('s_add_u32 s5, s5, s6')
        a(f'buffer_load_ushort v24, v4, {B1}, s5 offen')
        a('s_waitcnt lgkmcnt(0)')
        self.stamp(2)
        if not self.ta_cnt: a('s_barrier')
        a('s_waitcnt vmcnt(0)')
        self.arrive(C_W1, 8, 9); self.waitc(C_W1, 4, 8, 9)
        a('v_lshrrev_b32 v3, 4, v1'); a('v_lshlrev_b32 v3, 10, v3'); a('v_bfe_u32 v4, v1, 2, 2'); a('v_lshl_add_u32 v3, v4, 7, v3')
        a('v_and_b32 v4, 3, v1'); a('v_lshl_add_u32 v3, v4, 3, v3'); a('s_lshl_b32 s5, s81, 5'); a('v_add_u32 v3, s5, v3')
        for kb in range(16):
            a(f'ds_read_b64_tr_b16 {v(32+4*kb,2)}, v3 offset:{4096*kb}'); a(f'ds_read_b64_tr_b16 {v(34+4*kb,2)}, v3 offset:{4096*kb+512}')
            if kb % 4 == 3: a('s_waitcnt lgkmcnt(0)')
        a('v_lshlrev_b32 v20, 16, v24'); a('v_mov_b32 v21, v20'); a('v_mov_b32 v22, 0'); a('v_mov_b32 v23, 0')
        for i in range(4): a(f'v_mov_b32 v{24+i}, 0')
        self.sxaddr(3, YSTR, YB, 4); self.sidx(6)
        a('v_bfe_u32 v4, v1, 1, 1'); a('v_lshlrev_b32 v4, 6, v4'); a('v_bfe_u32 v5, v1, 2, 2'); a('v_lshl_add_u32 v4, v5, 2, v4'); a('v_and_b32 v5, 1, v1'); a('v_lshl_add_u32 v4, v5, 1, v4')
        a('s_lshl_b32 s5, s81, 4'); a(f's_add_u32 s5, s5, {HB}'); a('v_add_u32 v4, s5, v4')
        c0 = -2.0 * 1.4426950408889634 * 0.7978845608028654
        import struct
        f2u = lambda x: struct.unpack('<I', struct.pack('<f', x))[0]
        a(f's_mov_b32 s82, {f2u(c0):#x}'); a(f'v_mov_b32 v5, {f2u(c0*0.044715):#x}')
        self.stamp(8)
        self.dry_begin('L_c_go')
        self.bar()
        for kb in range(8): a(f'ds_read_b128 {v(96+4*kb,4)}, v3 offset:{128*kb}')
        for kb in range(8):
            a(f's_waitcnt lgkmcnt({7-kb})')
            a(f'v_smfmac_f32_16x16x64_bf16 v[20:23], {v(96+4*kb,4)}, {v(32+8*kb,8)}, v6')
        self.ex(0xffff, 0)
        a('v_pk_add_f32 v[20:21], v[20:21], v[22:23]')
        for r in range(2): a(f'v_mul_f32 v{8+r}, v{20+r}, v{20+r}')
        for r in range(2): a(f'v_fma_f32 v{8+r}, v{8+r}, v5, s82')
        for r in range(2): a(f'v_mul_f32 v{8+r}, v{8+r}, v{20+r}')
        for r in range(2): a(f'v_exp_f32 v{8+r}, v{8+r}')
        for r in range(2): a(f'v_add_f32 v{8+r}, 1.0, v{8+r}')
        for r in range(2): a(f'v_rcp_f32 v{8+r}, v{8+r}')
        for r in range(2): a(f'v_mul_f32 v{8+r}, v{8+r}, v{20+r}')
        a('v_cvt_pk_bf16_f32 v8, v8, v9')
        a('ds_write_b16 v4, v8'); a(f'ds_write_b16_d16_hi v4, v8 offset:{OSTR}')
        a('s_waitcnt lgkmcnt(0)')
        self.stamp(3)
        self.bar()
        self.dry_end('L_c_go')
        self.end()
        a('L_c_last:')
        if not self.ta_cnt: a('s_waitcnt lgkmcnt(0)'); a('s_barrier')
        self.end()

    def build(self):
        a = self.a
        a(f'; @launch grid=(256,1,1) block=(768,1,1) lds={LDS_BYTES}')
        a('.amdgcn_target "amdgcn-amd-amdhsa--gfx950"'); a('.text'); a(f'.globl {KNAME}'); a('.p2align 8'); a(f'.type {KNAME},@function'); a(f'{KNAME}:')
        a('s_cmp_ge_u32 s2, 256'); a('s_cbranch_scc1 L_exit')
        self.srd(['K', 'V', 'WS', 'DBG'])
        a('v_lshrrev_b32 v2, 6, v0'); a('v_and_b32 v1, 63, v0'); a('v_readfirstlane_b32 s3, v2')
        self.stamp_init()
        a('s_and_b32 s5, s2, 7'); a('s_lshr_b32 s4, s2, 3'); a('s_cmp_eq_u32 s5, 0'); a('s_cbranch_scc1 L_tail')
        a('s_mul_i32 s6, s4, 37'); a('s_lshr_b32 s6, s6, 8'); a('s_mul_i32 s6, s6, 7'); a('s_sub_u32 s6, s4, s6'); a('s_add_u32 s6, s6, 1')
        a('s_cmp_eq_u32 s5, s6'); a('s_cbranch_scc1 L_head')
        a('s_cmp_gt_u32 s5, s6'); a('s_cselect_b32 s6, 2, 1')
        a('s_mul_i32 s4, s4, 6'); a('s_add_u32 s4, s4, s5'); a('s_sub_u32 s4, s4, s6')
        self.attention()
        a('L_head:')
        self.head()
        a('L_tail:')
        self.tail()
        a('L_exit:'); a('s_endpgm')
        nn = a.fix()
        a('.section .rodata,"a"'); a('.p2align 6'); a(f'.amdhsa_kernel {KNAME}')
        for l in ['next_free_vgpr 168', 'next_free_sgpr 102', 'accum_offset 168', 'group_segment_fixed_size 0', 'kernarg_size 120',
                  'user_sgpr_count 2', 'user_sgpr_kernarg_segment_ptr 1', 'system_sgpr_workgroup_id_x 1']:
            a.L.append(f'  .amdhsa_{l}')
        a('.end_amdhsa_kernel')
        return a.text(), nn

if __name__ == '__main__':
    import argparse
    p = argparse.ArgumentParser()
    p.add_argument('-o', default='k.s'); p.add_argument('--dbg', action='store_true'); p.add_argument('--slow', action='store_true')
    p.add_argument('--thr', type=int, default=3); p.add_argument('--vpre', type=int, default=6); p.add_argument('--vextra', type=int, default=0)
    p.add_argument('--dq', type=int, default=4); p.add_argument('--dwo', type=int, default=16); p.add_argument('--dl', type=int, default=4)
    p.add_argument('--n1', type=int, default=2); p.add_argument('--n2', type=int, default=2); p.add_argument('--qsleep', type=int, default=0); p.add_argument('--qdelay', type=int, default=0); p.add_argument('--mcpol', default='nt'); p.add_argument('--dl0', type=int, default=8); p.add_argument('--wowait', type=int, default=1); p.add_argument('--thr2', type=int, default=3); p.add_argument('--nlast', type=int, default=0); p.add_argument('--early', type=int, default=0); p.add_argument('--dw1', type=int, default=40); p.add_argument('--qsets', type=int, default=1); p.add_argument('--hsets', type=int, default=1); p.add_argument('--hsleep', type=int, default=1); p.add_argument('--prio', type=int, default=0); p.add_argument('--early2', type=int, default=1); p.add_argument('--fakeq', type=int, default=0); p.add_argument('--dbg2', default=None); p.add_argument('--lite', type=int, default=0); p.add_argument('--touch', type=int, default=1); p.add_argument('--dry', type=int, default=0); p.add_argument('--pipe', type=int, default=1); p.add_argument('--thr0', type=int, default=2); p.add_argument('--nfirst', type=int, default=6); p.add_argument('--ibsts', type=int, default=1); p.add_argument('--warm', type=int, default=0); p.add_argument('--nohello', type=int, default=0); p.add_argument('--vgrad', type=int, default=2); p.add_argument('--touch2', type=int, default=1); p.add_argument('--psleep', type=int, default=16); p.add_argument('--ssleep', type=int, default=8); p.add_argument('--mrearly', type=int, default=0); p.add_argument('--n1st', type=int, default=0); p.add_argument('--w1pf', type=int, default=0); p.add_argument('--tsleep', type=int, default=0); p.add_argument('--agdelay', type=int, default=0); p.add_argument('--rsdelay', type=int, default=0); p.add_argument('--ydeep', type=int, default=99); p.add_argument('--nstep', type=int, default=0); p.add_argument('--tacnt', type=int, default=0); p.add_argument('--lighth', type=int, default=1); p.add_argument('--pipet1', type=int, default=0); p.add_argument('--qpol', default='nt')
    p.add_argument('--wpol', default='nt'); p.add_argument('--kvpol', default='nt')
    g = p.parse_args()
    t, nn = Gen(dbg=g.dbg, thr=g.thr, vpre=g.vpre, vextra=g.vextra, force_slow=g.slow, wpol=g.wpol, kvpol=g.kvpol, dq=g.dq, dwo=g.dwo, dl=g.dl, n1=g.n1, n2=g.n2, qsleep=g.qsleep, qdelay=g.qdelay, mcpol=g.mcpol, dl0=g.dl0, wo_wait=g.wowait, thr2=g.thr2, nlast=g.nlast, early=g.early, dw1=g.dw1, qsets=g.qsets, hsets=g.hsets, hsleep=g.hsleep, prio=g.prio, early2=g.early2, fakeq=g.fakeq, dbg2=tuple(map(int, g.dbg2.split(','))) if g.dbg2 else None, lite=g.lite, touch=g.touch, dry=g.dry, pipe=g.pipe, thr0=g.thr0, nfirst=g.nfirst, ibsts=g.ibsts, warm=g.warm, nohello=g.nohello, vgrad=g.vgrad, touch2=g.touch2, psleep=g.psleep, ssleep=g.ssleep, mrearly=g.mrearly, n1st=g.n1st, w1pf=g.w1pf, tsleep=g.tsleep, agdelay=g.agdelay, rsdelay=g.rsdelay, ydeep=g.ydeep, nstep=g.nstep, ta_cnt=g.tacnt, lighth=g.lighth, pipet1=g.pipet1, qpol=g.qpol).build()
    open(g.o, 'w').write(t)
    print('wrote', g.o, 'lines', t.count('\n'), 'nop states', nn)
```

```python
import sys
from asmlib import Asm
KNAME = 'adaLN_cond__gqa_block_cached__mixer_channel_mlp__decode_kernel'

AUXREG = 0x8000
ASTR = 117 * 128
A_OFF, P2_OFF, MR_OFF, Q_OFF, X1_OFF, ST_OFF, H_OFF, MC_OFF = 0, 4096, 8192, 9216, 10240, 10368, 10624, 10752
MO_BASE = 0x80000
X1G = 0x7e000
MS_BASE = 0xe0000
TS_BASE = 0x200000
WS_NREC = 0x400000
L0 = 65536
H_, LNX, QP, MP, RP, IMA, IMS, YB, QT, OB, ZR, HB, SMALL, CNT = [L0 + x for x in
    (0, 2304, 6400, 14592, 18688, 22784, 26880, 30976, 33280, 33792, 34464, 34816, 35328, 35840)]
YSTR, OSTR, HSTR = 1152, 384, 1088
C_MODE, C_CLR, C_LN, C_MC, C_H, C_Q, C_MR, C_W1 = [4 * i for i in range(8)]
LDS_BYTES = L0 + 35904
QL, MW, FW, AF, PART = 0, 1024, 1536, 1792, 2048
K_, V_, WS, DBG, X_, WQ, WO, W1, B1, W2, B2, C_, WM, OUT = [f's[{8+4*i}:{11+4*i}]' for i in range(14)]
SRDN = dict(K=8, V=12, WS=16, DBG=20, X=24, WQ=28, WO=32, W1=36, B1=40, W2=44, B2=48, C=52, WM=56, OUT=60)
KOFF = dict(X=0, K=8, V=16, WQ=24, WO=32, W1=48, B1=56, W2=64, B2=72, C=80, WM=88, OUT=96, DBG=104, WS=112)
NREC = dict(X=2048, K=0x2000000, V=0x2000000, WQ=0x400000, WO=0x400000, W1=1835008, B1=3584, W2=1835008, B2=1024,
            C=2048, WM=3145728, OUT=2048, DBG=256, WS=WS_NREC)
BM = [f's[{64+2*u}:{65+2*u}]' for u in range(4)]
ML2 = 's[72:73]'
SEL = ['s74', 's75']
HIM = 's76'
LOG2E = 's77'
SMODE = 's78'
STMP = 's79'
EPO = 's96'
TAG = 's97'
POLLC = 's98'
POLL_MAX = 40000
LOG2E_F = 0x3fb8aa3b

def v(b, n=1): return f'v{b}' if n == 1 else f'v[{b}:{b+n-1}]'

class Gen:
    def __init__(self, dbg=False, thr=3, vpre=8, vextra=4, force_slow=False, wpol='nt', kvpol='nt', dq=16, dwo=8, dl=4, n1=2, n2=2, qsleep=0, qdelay=0, mcpol='nt', dl0=4, wo_wait=1, thr2=3, nlast=0, early=0, dw1=16, qsets=4, hsets=2, hsleep=4, prio=1, early2=1, fakeq=0, dbg2=None, lite=0, touch=0, dry=1, pipe=0, thr0=3, nfirst=0, ibsts=1, warm=1, nohello=0, vgrad=0, touch2=0, psleep=16, ssleep=8, mrearly=0, n1st=0, w1pf=0, tsleep=0, agdelay=0, rsdelay=0, ydeep=99, nstep=0, ta_cnt=1, lighth=0, pipet1=0, qpol='nt', ss2=1, hold=5):
        self.a = Asm(); self.n = 0; self.late = []; self.dbg = dbg; self.thr = thr; self.vpre = vpre; self.vextra = vextra
        self.n1 = n1; self.n2 = n2; self.qsleep = qsleep; self.qdelay = qdelay; self.mcpol = mcpol; self.dl0 = dl0; self.wo_wait = wo_wait; self.thr2 = thr2; self.nlast = nlast; self.early = early; self.dw1 = dw1; self.qsets = qsets; self.hsets = hsets; self.hsleep = hsleep; self.prio = prio; self.early2 = early2; self.fakeq = fakeq; self.dbg2 = dbg2; self.lite = lite; self.touch = touch; self.dry = dry; self.pipe = pipe; self.thr0 = thr0; self.nfirst = nfirst; self.ibsts = ibsts; self.warm = warm; self.nohello = nohello; self.vgrad = vgrad; self.touch2 = touch2; self.psleep = psleep; self.ssleep = ssleep; self.mrearly = mrearly; self.n1st = n1st; self.w1pf = w1pf; self.tsleep = tsleep; self.agdelay = agdelay; self.rsdelay = rsdelay; self.ydeep = ydeep; self.nstep = nstep; self.ta_cnt = ta_cnt; self.lighth = lighth; self.pipet1 = pipet1; self.qpol = qpol; self.ss2 = ss2; self.hold = hold; self.dq = dq; self.dwo = dwo; self.dl = dl; self.force_slow = force_slow; self.wpol = wpol; self.kvpol = kvpol
    def lab(self, p='L'):
        self.n += 1; return f'{p}_{self.n}'
    def srd(self, names):
        a = self.a
        for nm in names: a(f's_load_dwordx2 s[{SRDN[nm]}:{SRDN[nm]+1}], s[0:1], {KOFF[nm]}')
        for nm in names:
            a(f's_mov_b32 s{SRDN[nm]+2}, {NREC[nm]:#x}'); a(f's_mov_b32 s{SRDN[nm]+3}, 0x20000')
    def consts(self):
        a = self.a
        for u in range(4):
            m = 0x000f000f << (4 * u)
            a(f's_mov_b32 s{64+2*u}, {m:#x}'); a(f's_mov_b32 s{65+2*u}, {m:#x}')
        a('s_mov_b32 s72, 0xcccccccc'); a('s_mov_b32 s73, 0xcccccccc')
        a('s_mov_b32 s74, 0x05040100'); a('s_mov_b32 s75, 0x07060302')
        a('s_mov_b32 s76, 0xffff0000'); a(f's_mov_b32 s77, {LOG2E_F:#x}')
    def stamp(self, i):
        if not self.dbg: return
        if self.lite and i not in (0, 15): return
        self.a(f's_memrealtime s[100:101]\ns_waitcnt lgkmcnt(0)\nv_writelane_b32 v0, s100, {i}')
    def cstamp(self, i):
        if not self.dbg: return
        self.a(f's_memtime s[100:101]\ns_waitcnt lgkmcnt(0)\nv_writelane_b32 v0, s100, {i}')
    def stamp_init(self):
        if not self.dbg: return
        self.a('v_mov_b32 v0, 0')
        self.stamp(0); self.cstamp(13)
    def end(self):
        a = self.a
        if self.dbg:
            self.stamp(15); self.cstamp(14)
            a('s_mov_b64 exec, 0xffff')
            a('s_mul_i32 s5, s2, 12'); a('s_add_u32 s5, s5, s3'); a('s_lshl_b32 s5, s5, 6'); a(f's_add_u32 s5, s5, {TS_BASE}')
            a('v_lshlrev_b32 v2, 2, v1')
            a(f'buffer_store_dword v0, v2, {WS}, s5 offen')
            if self.dbg2:
                l = self.lab('LK')
                a(f's_cmp_lg_u32 s2, {self.dbg2[0]}'); a(f's_cbranch_scc1 {l}'); a(f's_cmp_lg_u32 s3, {self.dbg2[1]}'); a(f's_cbranch_scc1 {l}')
                a('v_readlane_b32 s5, v0, 0'); a('v_subrev_u32 v0, s5, v0')
                a('s_mov_b64 exec, 0xfffc'); a(f'buffer_store_dword v0, v2, {DBG}, 0 offen')
                a(f'{l}:')
        a('s_endpgm')
    def poll(self, loads, regs, tmp, zero=False, sleep=0, pre=None):
        a = self.a; lp = self.lab('LP'); ld = self.lab('LD'); lc = self.lab('LC')
        a(f's_mov_b32 {POLLC}, 0')
        if pre: a(f's_branch {lc}')
        a(f'{lp}:')
        for s in loads: a(s)
        a('s_waitcnt vmcnt(0)')
        if pre: a(f'{lc}:')
        op = 'min' if zero else 'max'
        rs = list(regs)
        if len(rs) == 1: src = rs[0]
        else:
            src = tmp
            if len(rs) % 2 == 0: a(f'v_{op}_u32 v{tmp}, v{rs[0]}, v{rs[1]}'); rs = rs[2:]
            else: a(f'v_{op}3_u32 v{tmp}, v{rs[0]}, v{rs[1]}, v{rs[2]}'); rs = rs[3:]
            while rs: a(f'v_{op}3_u32 v{tmp}, v{tmp}, v{rs[0]}, v{rs[1]}'); rs = rs[2:]
        a(f'v_cmp_eq_u32 vcc, {0 if zero else -1}, v{src}')
        a(f's_cbranch_vccz {ld}')
        if sleep: a(f's_sleep {sleep}')
        a(f's_add_u32 {POLLC}, {POLLC}, 1'); a(f's_cmp_lt_u32 {POLLC}, {POLL_MAX}'); a(f's_cbranch_scc1 {lp}')
        a(f'{ld}:')
    def spoll(self, base, offs, zero=False, sleep=2, ge=None):
        a = self.a; lp = self.lab('LS'); ld = self.lab('LT')
        a(f's_mov_b32 {POLLC}, 0'); a(f'{lp}:')
        for i, o in enumerate(offs): a(f's_load_dword s{88+i}, {base}, {o:#x} glc')
        a('s_waitcnt lgkmcnt(0)')
        if ge is not None:
            a('s_and_b32 s89, s88, 0x3f'); a(f's_cmp_ge_u32 s89, {ge}')
        else:
            for i in range(1, len(offs)): a(f's_{"min" if zero else "max"}_u32 s88, s88, s{88+i}')
            a(f's_cmp_lg_u32 s88, {0 if zero else -1}')
        a(f's_cbranch_scc1 {ld}')
        if sleep: a(f's_sleep {sleep}')
        a(f's_add_u32 {POLLC}, {POLLC}, 1'); a(f's_cmp_lt_u32 {POLLC}, {POLL_MAX}'); a(f's_cbranch_scc1 {lp}')
        a(f'{ld}:')
    def tag_load(self):
        self.a(f's_load_dword {EPO}, s[16:17], 0x0')
    def tag_make(self):
        a = self.a
        a('s_waitcnt lgkmcnt(0)'); a(f's_mul_i32 {TAG}, {EPO}, 0x9e3779b1'); a(f's_add_u32 {TAG}, {TAG}, 0x85ebca6b')
    def tpoll(self, loads, tagregs, sleep=0):
        a = self.a; lp = self.lab('LQ'); ld = self.lab('LR')
        a(f's_mov_b32 {POLLC}, 0'); a(f'{lp}:')
        for s_ in loads: a(s_)
        a('s_waitcnt vmcnt(0)')
        for i, r in enumerate(tagregs):
            if i == 0: a(f'v_cmp_ne_u32 vcc, {TAG}, v{r}')
            else: a(f'v_cmp_ne_u32 s[88:89], {TAG}, v{r}'); a('s_or_b64 vcc, vcc, s[88:89]')
        a('s_cmp_eq_u64 vcc, 0'); a(f's_cbranch_scc1 {ld}')
        if sleep: a(f's_sleep {sleep}')
        a(f's_add_u32 {POLLC}, {POLLC}, 1'); a(f's_cmp_lt_u32 {POLLC}, {POLL_MAX}'); a(f's_cbranch_scc1 {lp}')
        a(f'{ld}:')
    def tpoll_pipe(self, mk, nld, base, dst, sets, gap):
        a = self.a; lp = self.lab('LU'); ld = self.lab('LV'); outs = [self.lab('LO') for _ in range(sets)]
        for k in range(sets - 1):
            for s_ in mk(base + 4 * nld * k): a(s_)
            if gap: a(f's_sleep {gap}')
        a(f's_mov_b32 {POLLC}, 0'); a(f'{lp}:')
        for k in range(sets):
            kn = (k + sets - 1) % sets
            for s_ in mk(base + 4 * nld * kn): a(s_)
            a(f's_waitcnt vmcnt({nld * (sets - 1)})')
            b = base + 4 * nld * k
            for i in range(2 * nld):
                if i == 0: a(f'v_cmp_ne_u32 vcc, {TAG}, v{b+1}')
                else: a(f'v_cmp_ne_u32 s[88:89], {TAG}, v{b+1+2*i}'); a('s_or_b64 vcc, vcc, s[88:89]')
            a('s_cmp_eq_u64 vcc, 0'); a(f's_cbranch_scc1 {outs[k]}')
            if gap: a(f's_sleep {gap}')
        a(f's_add_u32 {POLLC}, {POLLC}, 1'); a(f's_cmp_lt_u32 {POLLC}, {POLL_MAX}'); a(f's_cbranch_scc1 {lp}')
        for k in range(sets):
            a(f'{outs[k]}:')
            b = base + 4 * nld * k
            for i in range(nld): a(f'v_mov_b32 v{dst+2*i}, v{b+4*i}'); a(f'v_mov_b32 v{dst+2*i+1}, v{b+4*i+2}')
            if k < sets - 1: a(f's_branch {ld}')
        a(f'{ld}:')
    def ex(self, lo, hi):
        self.a(f's_and_b32 exec_lo, {lo:#x}, s94'); self.a(f's_and_b32 exec_hi, {hi:#x}, s95')
    def exfull(self): self.a('s_mov_b64 exec, s[94:95]')
    def bar(self):
        if not (self.dry or self.warm): self.a('s_barrier'); return
        l = self.lab('LB'); self.a(f's_cbranch_execz {l}'); self.a('s_barrier'); self.a(f'{l}:')
    def dry_begin(self, label):
        a = self.a
        if not self.dry: a('s_mov_b64 s[94:95], -1'); return
        a('s_mov_b64 s[94:95], 0'); a('s_mov_b64 exec, s[94:95]'); a(f'{label}:')
    def dry_end(self, label):
        a = self.a; l = self.lab('LN')
        if not self.dry: return
        a(f's_cbranch_execnz {l}'); a('s_mov_b64 s[94:95], -1'); a('s_mov_b64 exec, -1'); a(f's_branch {label}'); a(f'{l}:')
    def ppoll(self, mk, nld, nregs, bases, tmp, consume, delay=0):
        a = self.a; lp = self.lab('LP'); ld = self.lab('LD'); o = [self.lab('LO') for _ in bases]
        if self.pipe < 2:
            if delay: a(f's_sleep {delay}')
            self.poll(mk(bases[0]), range(bases[0], bases[0] + nregs), tmp, sleep=self.tsleep); consume(bases[0]); return
        for s_ in mk(bases[0]): a(s_)
        a(f's_mov_b32 {POLLC}, 0'); a(f'{lp}:')
        for k, b in enumerate(bases):
            for s_ in mk(bases[1 - k]): a(s_)
            a(f's_waitcnt vmcnt({nld})')
            rs = list(range(b, b + nregs))
            if len(rs) % 2 == 0: a(f'v_max_u32 v{tmp}, v{rs[0]}, v{rs[1]}'); rs = rs[2:]
            else: a(f'v_max3_u32 v{tmp}, v{rs[0]}, v{rs[1]}, v{rs[2]}'); rs = rs[3:]
            while rs: a(f'v_max3_u32 v{tmp}, v{tmp}, v{rs[0]}, v{rs[1]}'); rs = rs[2:]
            a(f'v_cmp_eq_u32 vcc, -1, v{tmp}'); a(f's_cbranch_vccz {o[k]}')
        a(f's_add_u32 {POLLC}, {POLLC}, 1'); a(f's_cmp_lt_u32 {POLLC}, {POLL_MAX}'); a(f's_cbranch_scc1 {lp}')
        a(f'{o[1]}:'); consume(bases[1]); a(f's_branch {ld}')
        a(f'{o[0]}:'); consume(bases[0])
        a(f'{ld}:')
    def arrive(self, c, t0, t1, val=1):
        a = self.a
        a(f'v_mov_b32 v{t0}, {CNT + c}'); a(f'v_mov_b32 v{t1}, {val}' if isinstance(val, int) else f'v_mov_b32 v{t1}, {val}')
        a('s_mov_b64 exec, 1'); a(f'ds_add_u32 v{t0}, v{t1}'); a('s_mov_b64 exec, -1')
    def waitc(self, c, target, t0, t1, dst=STMP):
        a = self.a; lp = self.lab('LW'); ld = self.lab('LX')
        a(f'v_mov_b32 v{t0}, {CNT + c}'); a(f's_mov_b32 {POLLC}, 0'); a(f'{lp}:')
        a(f'ds_read_b32 v{t1}, v{t0}'); a('s_waitcnt lgkmcnt(0)'); a(f'v_readfirstlane_b32 {dst}, v{t1}')
        a(f's_cmp_ge_u32 {dst}, {target}'); a(f's_cbranch_scc1 {ld}')
        a('s_sleep 1'); a(f's_add_u32 {POLLC}, {POLLC}, 1'); a(f's_cmp_lt_u32 {POLLC}, {POLL_MAX*8}'); a(f's_cbranch_scc1 {lp}')
        a(f'{ld}:')
    def pub(self, ins):
        a = self.a; lf = self.lab('LF'); ld = self.lab('LG')
        a(f's_cbranch_scc0 {lf}'); a(ins); a(f'{ld}:')
        self.late.append([f'{lf}:', ins + ' sc1', f's_branch {ld}'])
    def pub_pre(self): self.a(f's_cmp_eq_u32 {SMODE}, 2')
    def flush_late(self):
        for blk in self.late:
            for l in blk: self.a(l)
        self.late = []
    def npoll(self, loads, regs, tmp, compute, res, pre=False):
        a = self.a; lp = self.lab('LP'); ld = self.lab('LD'); lc = self.lab('LC')
        a(f's_mov_b32 {POLLC}, 0')
        if pre: a(f's_branch {lc}')
        a(f'{lp}:')
        for s_ in loads: a(s_)
        a(f'{lc}:')
        a('s_waitcnt vmcnt(0)')
        compute()
        a(f'v_cmp_u_f32 vcc, v{res}, v{res+1}'); a(f'v_cmp_u_f32 s[92:93], v{res+2}, v{res+3}'); a('s_or_b64 vcc, vcc, s[92:93]')
        a(f's_cbranch_vccnz {ld}_r'); a(f'{ld}:')
        rs = list(regs); blk = [f'{ld}_r:', f's_add_u32 {POLLC}, {POLLC}, 1', f's_and_b32 s5, {POLLC}, 31', f's_cbranch_scc1 {lp}',
                                f'v_max_u32 v{tmp}, v{rs[0]}, v{rs[1]}']
        rs = rs[2:]
        while rs: blk.append(f'v_max3_u32 v{tmp}, v{tmp}, v{rs[0]}, v{rs[1]}'); rs = rs[2:]
        blk += [f'v_cmp_eq_u32 vcc, -1, v{tmp}', f's_cbranch_vccz {ld}', f's_cmp_lt_u32 {POLLC}, {POLL_MAX}', f's_cbranch_scc1 {lp}', f's_branch {ld}']
        self.late.append(blk)
        return lc
    def npoll2(self, mk, nld, bases, nregs, tmp, compute, res, pre=False):
        a = self.a; lp = self.lab('LP'); ld = self.lab('LD'); l2 = self.lab('LE')
        if not pre:
            for s_ in mk(bases[0]): a(s_)
        a(f's_mov_b32 {POLLC}, 0'); a(f'{lp}:')
        def rnd(k):
            for s_ in mk(bases[1 - k]): a(s_)
            a(f's_waitcnt vmcnt({nld})')
            compute(bases[k])
            a(f'v_cmp_u_f32 vcc, v{res}, v{res+1}'); a(f'v_cmp_u_f32 s[92:93], v{res+2}, v{res+3}'); a('s_or_b64 vcc, vcc, s[92:93]')
        rnd(0); a(f's_cbranch_vccz {ld}')
        rnd(1); a(f's_cbranch_vccnz {ld}_r'); a(f'{ld}:')
        rs = list(range(bases[1], bases[1] + nregs))
        blk = [f'{ld}_r:', f's_add_u32 {POLLC}, {POLLC}, 1', f's_and_b32 s5, {POLLC}, 31', f's_cbranch_scc1 {lp}', f'v_max_u32 v{tmp}, v{rs[0]}, v{rs[1]}']
        rs = rs[2:]
        while rs: blk.append(f'v_max3_u32 v{tmp}, v{tmp}, v{rs[0]}, v{rs[1]}'); rs = rs[2:]
        blk += [f'v_cmp_eq_u32 vcc, -1, v{tmp}', f's_cbranch_vccz {ld}', f's_cmp_lt_u32 {POLLC}, {POLL_MAX}', f's_cbranch_scc1 {lp}', f's_branch {ld}']
        self.late.append(blk)
    def rnd2(self, x, y, t):
        a = self.a
        a(f'v_cvt_pk_bf16_f32 v{t}, v{x}, v{y}'); a(f'v_lshlrev_b32 v{x}, 16, v{t}'); a(f'v_and_b32 v{y}, {HIM}, v{t}')
    def rowsum(self, x, op='add'):
        for n in (8, 4, 2, 1): self.a(f'v_{op}_f32_dpp v{x}, v{x}, v{x} row_ror:{n} row_mask:0xf bank_mask:0xf')
    def xrows(self, x, t, op='add'):
        a = self.a
        a(f'v_mov_b32 v{t}, v{x}'); a(f'v_permlane16_swap_b32 v{x}, v{t}'); a(f'v_{op}_f32 v{x}, v{x}, v{t}')
        a(f'v_mov_b32 v{t}, v{x}'); a(f'v_permlane32_swap_b32 v{x}, v{t}'); a(f'v_{op}_f32 v{x}, v{x}, v{t}')
    def wavesum(self, x, t): self.rowsum(x); self.xrows(x, t)
    def red4rows(self, o):
        a = self.a
        a(f'v_permlane32_swap_b32 v{o}, v{o+2}'); a(f'v_permlane32_swap_b32 v{o+1}, v{o+3}')
        a(f'v_add_f32 v{o}, v{o}, v{o+2}'); a(f'v_add_f32 v{o+1}, v{o+1}, v{o+3}')
        a(f'v_permlane16_swap_b32 v{o}, v{o+1}'); a(f'v_add_f32 v{o}, v{o}, v{o+1}')
    def silu4(self, r, t):
        a = self.a
        a('s_mov_b32 s99, 0x7e800000')
        for i in range(4):
            lo, hi, e0, e1 = t, t + 1, t + 2, t + 3
            a(f'v_lshlrev_b32 v{lo}, 16, v{r+i}'); a(f'v_and_b32 v{hi}, {HIM}, v{r+i}')
            a(f'v_mul_f32 v{e0}, {LOG2E}, v{lo}'); a(f'v_mul_f32 v{e1}, {LOG2E}, v{hi}')
            a(f'v_exp_f32 v{e0}, -v{e0}'); a(f'v_exp_f32 v{e1}, -v{e1}')
            a(f'v_add_f32 v{e0}, 1.0, v{e0}'); a(f'v_add_f32 v{e1}, 1.0, v{e1}')
            r0, r1, q0, q1 = t + 4, t + 5, t + 6, t + 7
            a(f'v_rcp_f32 v{r0}, v{e0}'); a(f'v_rcp_f32 v{r1}, v{e1}')
            a(f'v_mul_f32 v{q0}, v{lo}, v{r0}'); a(f'v_mul_f32 v{q1}, v{hi}, v{r1}')
            a(f'v_cmp_gt_f32 s[88:89], s99, v{e0}'); a(f'v_fma_f32 v{lo}, -v{q0}, v{e0}, v{lo}'); a(f'v_fma_f32 v{lo}, v{lo}, v{r0}, v{q0}')
            a(f'v_cndmask_b32 v{lo}, v{q0}, v{lo}, s[88:89]')
            a(f'v_cmp_gt_f32 s[90:91], s99, v{e1}'); a(f'v_fma_f32 v{hi}, -v{q1}, v{e1}, v{hi}'); a(f'v_fma_f32 v{hi}, v{hi}, v{r1}, v{q1}')
            a(f'v_cndmask_b32 v{hi}, v{q1}, v{hi}, s[90:91]')
            a(f'v_cvt_pk_bf16_f32 v{r+i}, v{lo}, v{hi}')
    def transpose(self, raw, dst, jjs=range(4), rs=4, ds=4):
        for jj in jjs:
            for m in range(8):
                self.a(f'v_perm_b32 v{dst+ds*m+jj}, v{raw+rs*(2*jj+1)+(m>>1)}, v{raw+rs*(2*jj)+(m>>1)}, {SEL[m&1]}')
    def sxaddr(self, dst, bstride, base, t):
        a = self.a
        self.xvoff(dst, bstride, base, t); a(f'v_bfe_u32 v{t}, v1, 1, 1'); a(f'v_lshl_add_u32 v{dst}, v{t}, 6, v{dst}')
    def sidx(self, dst):
        self.a(f'v_mov_b32 v{dst}, 0x4444'); self.a(f'v_mov_b32 v{dst+1}, 0xeeee'); self.a(f'v_cndmask_b32 v{dst}, v{dst}, v{dst+1}, {ML2}')
    def gemv_fly(self, raw, xrep, first, xv=8, T=12, acc=20):
        a = self.a
        for u in range(4):
            for i in range(4): a(f'v_cndmask_b32 v{xv+i}, 0, v{xrep+i}, {BM[u]}')
            for e in range(2):
                for jj in range(4):
                    a(f'v_perm_b32 v{T+4*e+jj}, v{raw+4*(2*jj+1)+u}, v{raw+4*(2*jj)+u}, {SEL[e]}')
            for e in range(2):
                c = '0' if (first and u == 0) else v(acc + 4 * e, 4)
                a(f'v_mfma_f32_16x16x32_bf16 {v(acc+4*e,4)}, {v(T+4*e,4)}, {v(xv,4)}, {c}')
    def merge(self, acc, pre=False):
        if pre: self.pub_pre()
        for r in range(4): self.a(f'v_cndmask_b32 v{acc+r}, v{acc+r}, v{acc+4+r}, {ML2}')
    def sanitize(self, r, n):
        pass
    def unit_loads(self, raw, voff, srd, sbase, rs, rows=None, pol=None, depth=None, prior=99, hook=None, qs=4):
        a = self.a; pol = self.wpol if pol is None else pol
        for j in range(8):
            off = (rows[j] if rows else j) * rs
            if depth and prior + j >= depth: a(f's_waitcnt vmcnt({depth-1})')
            if off < 4096: a(f'buffer_load_dwordx4 {v(raw+qs*j,4)}, v{voff}, {srd}, {sbase} offen offset:{off} {pol}')
            else:
                a(f's_add_u32 s7, {sbase}, {off}')
                a(f'buffer_load_dwordx4 {v(raw+qs*j,4)}, v{voff}, {srd}, s7 offen {pol}')
            if hook and j == min(hook[0], 7): a(hook[1])
    def wvoff(self, dst, rs, t):
        a = self.a
        a(f'v_lshrrev_b32 v{dst}, 4, v1'); a(f'v_mul_u32_u24 v{dst}, {8*rs}, v{dst}')
        a(f'v_and_b32 v{t}, 15, v1'); a(f'v_lshl_add_u32 v{dst}, v{t}, 4, v{dst}')
    def xvoff(self, dst, bstride, base, t):
        a = self.a
        a(f'v_and_b32 v{dst}, 1, v1'); a(f'v_mul_u32_u24 v{dst}, {bstride}, v{dst}')
        a(f'v_lshrrev_b32 v{t}, 4, v1'); a(f'v_lshl_add_u32 v{dst}, v{t}, 4, v{dst}')
        if base: a(f'v_add_u32 v{dst}, {base}, v{dst}')

    def attention(self):
        a = self.a
        a('s_mov_b32 s5, 0x15555556'); a('s_mul_hi_u32 s80, s4, s5')
        a('s_mul_i32 s5, s80, 12'); a('s_sub_u32 s81, s4, s5')
        a('s_cmp_lt_u32 s81, 8'); a('s_cselect_b32 s82, 11, 10')
        a('s_cmp_ge_u32 s3, 11'); a('s_cbranch_scc1 L_att_ctl')
        a('s_cmp_ge_u32 s3, s82'); a('s_cbranch_scc1 L_exit')
        a('s_min_u32 s5, s81, 8'); a('s_mul_i32 s6, s81, 10'); a('s_add_u32 s5, s5, s6'); a('s_lshl_b32 s5, s5, 14')
        a('s_lshl_b32 s6, s80, 21'); a('s_add_u32 s5, s5, s6'); a('s_lshl_b32 s6, s3, 10'); a('s_add_u32 s83, s5, s6')
        a('s_lshl_b32 s84, s82, 10')
        a('v_bfe_u32 v3, v1, 2, 2'); a('v_lshlrev_b32 v3, 8, v3'); a('v_lshrrev_b32 v4, 4, v1'); a('v_lshl_add_u32 v3, v4, 6, v3')
        a('v_and_b32 v4, 3, v1'); a('v_lshl_add_u32 v3, v4, 4, v3')
        a('v_lshlrev_b32 v2, 4, v1')
        a('s_mov_b32 s85, s83')
        a('s_waitcnt lgkmcnt(0)')
        KB, VB = 32, 96
        issued = [0]
        def thr(d):
            if self.ydeep < 11 and issued[0] >= d:
                l = self.lab('LJ')
                a(f's_cmp_ge_u32 s3, {self.ydeep}'); a(f's_cbranch_scc1 {l}'); a(f's_waitcnt vmcnt({d-1})'); a(f'{l}:'); a(f's_waitcnt vmcnt({d})')
            elif issued[0] >= d: a(f's_waitcnt vmcnt({d-1})')
        for t in range(16):
            ng = sum(t < self.nfirst - self.nstep * g for g in range(3))
            if 0 < ng < 3 and issued[0] >= self.thr0:
                l = self.lab('LI')
                a(f's_cmp_ge_u32 s3, {4*ng}'); a(f's_cbranch_scc1 {l}'); a(f's_waitcnt vmcnt({self.thr0-1})'); a(f'{l}:'); thr(self.thr)
            else: thr(1 if t < self.n1st else self.thr0 if ng else self.thr)
            a(f'buffer_load_dwordx4 {v(KB+4*t,4)}, v3, {K_}, s85 offen {self.kvpol}')
            if t < 15: a('s_add_u32 s85, s85, s84')
            issued[0] += 1
            if t == 0: self.stamp(10)
            if t == 7: self.stamp(7)
            if t == 15: self.stamp(8)
            if t == (0 if self.n1st else min(self.thr, self.thr0) - 1):
                self.consts()
                a('v_and_b32 v28, 3, v1'); a('v_lshlrev_b32 v29, 8, v28'); a('v_lshrrev_b32 v30, 2, v1'); a('v_lshl_add_u32 v29, v30, 4, v29')
                a('s_lshl_b32 s5, s3, 5'); a('v_lshl_add_u32 v28, v28, 3, s5')
                a(f'v_mov_b32 v27, {AF}')
                a('s_mov_b32 s86, 0x3db504f3'); a('s_mov_b32 s92, 0'); a('s_mov_b64 s[94:95], -1')
                a(f's_cmp_ge_u32 s3, {self.ydeep}'); a(f's_cselect_b32 s88, {self.thr+1}, {self.thr}')
                a('s_barrier')
        vorder = [8 * bk + x for bk in range(2) for x in (0, 4, 1, 5, 2, 6, 3, 7)]
        for i in range(16):
            if i >= self.thr + (self.ydeep < 11): a('s_call_b64 s[90:91], L_att_chk')
            else: thr(self.thr)
            a(f's_mul_i32 s85, s84, {vorder[i]}'); a('s_add_u32 s85, s85, s83')
            a(f'buffer_load_dwordx4 {v(VB+4*i,4)}, v2, {V_}, s85 offen {self.kvpol}')
            if i == 7: self.stamp(9)
        self.stamp(1)
        a('s_cmp_lt_i32 s92, 0'); a('s_cbranch_scc1 L_att_pv')
        self.lspin(27, 0, 1, 26)
        a('s_call_b64 s[90:91], L_att_qk')
        a('L_att_pv:')
        a('s_lshl_b32 s5, s3, 11'); a(f's_add_u32 s5, s5, {PART}'); a('v_add_u32 v3, s5, v2')
        a('s_cmp_lg_u32 s3, 0'); a('s_cbranch_scc1 L_att_pv2')
        self.att_red_addr(0)
        self.att_factors()
        a('L_att_pv2:')
        for p in range(8):
            raw = VB + 8 * p; T = 64 + 8 * (p & 3)
            a(f's_waitcnt vmcnt({14 - 2*p})')
            for m in range(8):
                a(f'v_perm_b32 v{T+m}, v{raw+4+(m>>1)}, v{raw+(m>>1)}, {SEL[m&1]}')
                if m == 5: a(f'v_mfma_f32_16x16x32_bf16 v[160:163], {v(T,4)}, {v(KB+4*p,4)}, {"v[160:163]" if p else 0}')
            if p == 7: self.stamp(4)
            a(f'v_mfma_f32_16x16x32_bf16 v[164:167], {v(T+4,4)}, {v(KB+4*p,4)}, {"v[164:167]" if p else 0}')
        a('ds_write_b128 v3, v[160:163]'); a('ds_write_b128 v3, v[164:167] offset:1024')
        a('s_waitcnt lgkmcnt(0)')
        a('s_cbranch_execz L_att_red')
        a('s_cmp_eq_u32 s3, 0'); a('s_cbranch_scc1 L_att_red')
        a('s_barrier')
        self.end()
        a('L_att_chk:')
        a('s_cmp_lt_i32 s92, 0'); a('s_cbranch_scc1 L_att_w2')
        a('s_cmp_gt_i32 s92, 0'); a('s_cbranch_scc1 L_att_cd')
        a('s_mov_b32 s93, 0')
        a('L_att_sp:')
        a('ds_read_b32 v26, v27'); a('s_waitcnt lgkmcnt(0)'); a('v_readfirstlane_b32 s5, v26')
        a('s_cmp_lg_u32 s5, 0'); a('s_cbranch_scc1 L_att_fl')
        if self.ibsts:
            a('s_getreg_b32 s5, hwreg(HW_REG_IB_STS, 0, 4)'); a('s_cmp_lt_u32 s5, s88'); a('s_cbranch_scc1 L_att_wt')
            a('s_add_u32 s93, s93, 1'); a('s_cmp_lt_u32 s93, 24'); a('s_cbranch_scc1 L_att_sp')
        a('L_att_wt:')
        thr(self.thr)
        a('s_setpc_b64 s[90:91]')
        a('L_att_w2:')
        thr(self.thr2)
        a('s_setpc_b64 s[90:91]')
        a('L_att_fl:')
        if self.vgrad: a('s_lshr_b32 s92, s3, 2'); a(f's_mul_i32 s92, s92, {self.vgrad}'); a('s_lshr_b32 s92, s92, 1'); a(f's_add_u32 s92, s92, {self.vextra + 1}')
        else: a(f's_mov_b32 s92, {self.vextra + 1}')
        a('L_att_cd:')
        a('s_sub_u32 s92, s92, 1'); a('s_cmp_eq_u32 s92, 0'); a('s_cbranch_scc1 L_att_qk')
        a('s_setpc_b64 s[90:91]')
        a('L_att_qk:')
        self.stamp(2)
        a(f'ds_read_b128 v[4:7], v29 offset:{QL}')
        a('s_mov_b32 s92, -1')
        a('s_waitcnt lgkmcnt(0)')
        Dr = lambda t: 12 + 4 * t if t < 3 else KB + 4 * (t - 3)
        def dpp(dst, s0, s1, n, bm=0xf): a(f'v_add_f32_dpp v{dst}, v{s0}, v{s1} row_ror:{n} row_mask:0xf bank_mask:{bm:#x}')
        def lvl1(t):
            u = t & 3; D = Dr(t)
            dpp(D + u, D + ((u + 1) & 3), D + u, 12); dpp(D + ((u + 2) & 3), D + ((u + 3) & 3), D + ((u + 2) & 3), 12)
        def lvl2(t):
            u = t & 3; D = Dr(t)
            dpp(8 + (t >> 2), D + ((u + 2) & 3), D + u, 8, 1 << u)
        for t in range(21):
            if t < 16: a(f'v_mfma_f32_16x16x32_bf16 {v(Dr(t),4)}, {v(KB+4*t,4)}, v[4:7], 0')
            if 4 <= t < 20: lvl1(t - 4)
            if t >= 5: lvl2(t - 5)
        def rnd4():
            a('v_cvt_pk_bf16_f32 v12, v8, v9'); a('v_cvt_pk_bf16_f32 v13, v10, v11')
            a('v_lshlrev_b32 v8, 16, v12'); a(f'v_and_b32 v9, {HIM}, v12'); a('v_lshlrev_b32 v10, 16, v13'); a(f'v_and_b32 v11, {HIM}, v13')
        rnd4()
        for i in range(4): a(f'v_mul_f32 v{8+i}, s86, v{8+i}')
        rnd4()
        a('v_max3_f32 v12, v8, v9, v10'); a('v_max_f32 v12, v12, v11')
        a('v_max_f32_dpp v12, v12, v12 row_ror:4 row_mask:0xf bank_mask:0xf')
        a('v_max_f32_dpp v12, v12, v12 row_ror:8 row_mask:0xf bank_mask:0xf')
        self.xrows(12, 13, 'max')
        a(f'v_mul_f32 v14, {LOG2E}, v12')
        for i in range(4): a(f'v_fma_f32 v{8+i}, v{8+i}, {LOG2E}, -v14')
        for i in range(4): a(f'v_exp_f32 v{8+i}, v{8+i}')
        for u in range(4): a(f'v_cndmask_b32 v{20+u}, 0, -1, {BM[u]}')
        a('v_cvt_pk_bf16_f32 v16, v8, v9'); a('v_add_f32 v13, v8, v9'); a('v_cvt_pk_bf16_f32 v17, v10, v11'); a('v_add_f32 v18, v10, v11')
        chain = ['v_add_f32 v13, v13, v18', 'v_add_f32_dpp v13, v13, v13 row_ror:4 row_mask:0xf bank_mask:0xf',
                 'v_add_f32_dpp v13, v13, v13 row_ror:8 row_mask:0xf bank_mask:0xf', 'v_mov_b32 v18, v13', 'v_permlane16_swap_b32 v13, v18',
                 'v_add_f32 v13, v13, v18', 'v_mov_b32 v18, v13', 'v_permlane32_swap_b32 v13, v18', 'v_add_f32 v13, v13, v18', 'v_mov_b32 v14, 1']
        cnt = 0
        for u in range(4):
            for bk in range(2):
                for jj in range(4):
                    n = (4 * (u - jj)) % 16
                    c = f'row_ror:{n}' if n else 'quad_perm:[0,1,2,3]'
                    a(f'v_and_b32_dpp v{KB+16*bk+4*jj+u}, v{16+bk}, v{20+u} {c} row_mask:0xf bank_mask:0xf')
                    cnt += 1
                    if cnt % 3 == 0 and chain: a(chain.pop(0))
        self.ex(0xf, 0); a(f'ds_write_b64 v28, v[12:13] offset:{MW}')
        self.ex(1, 0); a('ds_add_u32 v27, v14 offset:4'); self.exfull()
        self.stamp(3)
        a('s_setpc_b64 s[90:91]')
        a('L_att_ctl:')
        a('s_setprio 3')
        a('v_lshlrev_b32 v2, 4, v1')
        a('v_mov_b32 v16, 0xff800000'); a('v_mov_b32 v17, 0'); a('v_lshlrev_b32 v6, 3, v1'); a(f'ds_write_b64 v6, v[16:17] offset:{MW}')
        for i in range(4): a(f'v_mov_b32 v{8+i}, -1'); a(f'v_mov_b32 v{12+i}, 0')
        a(f'v_mov_b32 v27, {AF}'); a('ds_write_b128 v27, v[12:15]')
        a(f'ds_write_b128 v2, v[12:15] offset:{PART+10*2048}'); a(f'ds_write_b128 v2, v[12:15] offset:{PART+10*2048+1024}')
        a('s_waitcnt lgkmcnt(0)')
        a('s_barrier')
        self.tag_load()
        self.att_red_addr(1)
        a('s_and_b32 s84, s80, 7'); a('s_lshl_b32 s84, s84, 2'); a(f's_mul_i32 s84, s84, {ASTR}'); a(f's_add_u32 s84, s84, {AUXREG}')
        a('s_lshr_b32 s85, s80, 3')
        a(f'buffer_store_dwordx4 v[8:11], v2, {WS}, s87 offen sc1'); a(f'buffer_store_dwordx4 v[8:11], v2, {WS}, s87 offen offset:1024 sc1')
        a('s_lshl_b32 s93, s4, 7'); a(f's_add_u32 s93, s93, {MS_BASE}')
        a('s_mov_b64 exec, 3'); a(f'buffer_store_dwordx4 v[8:11], v2, {WS}, s93 offen sc1'); a('s_mov_b64 exec, -1')
        if self.warm:
            a('v_mov_b32 v29, 0'); a('v_mov_b32 v28, 0'); a('v_mov_b32 v3, 0')
            a('s_mov_b64 s[94:95], 0'); a('s_mov_b64 exec, 0')
            a('s_call_b64 s[90:91], L_att_qk')
            a('s_branch L_att_pv2')
            a('L_att_wd:')
            a('s_mov_b64 exec, -1')
        a('s_mov_b64 s[94:95], -1')
        a('v_mov_b32 v12, 0'); a('v_lshlrev_b32 v6, 3, v1'); a(f'v_mov_b32 v27, {AF}')
        a('v_lshrrev_b32 v7, 5, v1'); a(f'v_mul_u32_u24 v24, {ASTR}, v7'); a('v_and_b32 v16, 31, v1'); a('v_lshl_add_u32 v24, v16, 4, v24')
        a('v_lshlrev_b32 v25, 8, v7'); a('v_lshl_add_u32 v25, v16, 3, v25')
        a('s_lshl_b32 s5, s85, 9'); a('s_add_u32 s86, s84, s5'); a(f's_add_u32 s86, s86, {Q_OFF}'); a(f's_add_u32 s83, s86, {2*ASTR}')
        a(f's_mov_b32 {LOG2E}, {LOG2E_F:#x}')
        self.tag_make()
        if self.qdelay: a(f's_sleep {self.qdelay}')
        self.stamp(1)
        if not self.fakeq: self.tpoll_pipe(lambda b: [f'buffer_load_dwordx4 {v(b,4)}, v24, {WS}, s86 offen sc1', f'buffer_load_dwordx4 {v(b+4,4)}, v24, {WS}, s83 offen sc1'],
                        2, 80, 16, self.qsets, self.qsleep)
        a('v_mov_b32 v26, 1')
        a(f'ds_write_b64 v25, v[16:17] offset:{QL}'); a(f'ds_write_b64 v25, v[18:19] offset:{QL+512}')
        a('ds_write_b32 v27, v26')
        self.stamp(2)
        a('s_mov_b64 exec, 1')
        self.poll([f'buffer_load_dword v16, v12, {DBG}, 0 offen offset:128 sc1'], [16], 17, zero=True, sleep=2)
        a('s_mov_b64 exec, -1')
        a('v_and_b32 v3, 3, v1'); a(f'v_mul_u32_u24 v7, {ASTR}, v3')
        a('s_mul_i32 s5, s85, 12'); a('s_add_u32 s5, s5, s81'); a('s_lshl_b32 s5, s5, 3'); a('s_add_u32 s5, s5, s84'); a(f's_add_u32 s86, s5, {ST_OFF}')
        a('v_mov_b32 v13, 0'); a('s_mov_b64 exec, 0xf'); a(f'buffer_store_dwordx2 v[12:13], v7, {WS}, s86 offen sc1'); a('s_mov_b64 exec, -1')
        a('v_lshlrev_b32 v7, 3, v3')
        self.lspin(27, 4, 's82', 26)
        a(f'ds_read_b64 v[18:19], v6 offset:{MW}'); a('s_waitcnt lgkmcnt(0)')
        a('v_max_f32_dpp v16, v18, v18 row_ror:4 row_mask:0xf bank_mask:0xf')
        a('v_max_f32_dpp v16, v16, v16 row_ror:8 row_mask:0xf bank_mask:0xf')
        self.xrows(16, 17, 'max')
        a('v_sub_f32 v18, v18, v16'); a(f'v_mul_f32 v18, {LOG2E}, v18'); a('v_exp_f32 v18, v18')
        a('v_lshlrev_b32 v6, 2, v1'); a('v_mul_f32 v17, v18, v19')
        a(f'ds_write_b32 v6, v18 offset:{FW}'); a('v_mov_b32 v26, 1'); a('ds_write_b32 v27, v26 offset:8')
        a('v_add_f32_dpp v17, v17, v17 row_ror:4 row_mask:0xf bank_mask:0xf')
        a('v_add_f32_dpp v17, v17, v17 row_ror:8 row_mask:0xf bank_mask:0xf')
        self.xrows(17, 18)
        self.sanitize(16, 2)
        a('s_mov_b64 exec, 0xf'); a(f'buffer_store_dwordx2 v[16:17], v7, {WS}, s93 offen sc1'); a('s_mov_b64 exec, -1')
        self.stamp(3)
        self.att_factors()
        a('L_att_red:')
        self.bar()
        self.stamp(5)
        for w in range(11): a(f'ds_read_b128 {v(32+4*w,4)}, v31 offset:{2048*w}')
        for w in range(11):
            a(f's_waitcnt lgkmcnt({10-w})')
            f = v(12 + (w & ~1), 2); sel = 'op_sel:[0,1,0] op_sel_hi:[1,1,1]' if w & 1 else 'op_sel_hi:[1,0,1]'
            for h in range(2):
                if w == 0: a(f'v_pk_mul_f32 {v(32+2*h,2)}, {v(32+2*h,2)}, {f} op_sel_hi:[1,0]')
                else: a(f'v_pk_fma_f32 {v(32+2*h,2)}, {v(32+4*w+2*h,2)}, {f}, {v(32+2*h,2)} {sel}')
        self.sanitize(32, 4)
        a(f'buffer_store_dwordx4 v[32:35], v30, {WS}, s87 offen sc1')
        if self.warm: a('s_cbranch_execz L_att_wd')
        self.stamp(6)
        if self.dbg: a('s_waitcnt vmcnt(0)')
        self.end()

    def lspin(self, va, off, target, t):
        a = self.a; lp = self.lab('LY'); ld = self.lab('LZ')
        a(f's_mov_b32 {POLLC}, 0'); a(f'{lp}:')
        a(f'ds_read_b32 v{t}, v{va} offset:{off}'); a('s_waitcnt lgkmcnt(0)'); a(f'v_readfirstlane_b32 {STMP}, v{t}')
        a(f's_cmp_ge_u32 {STMP}, {target}'); a(f's_cbranch_scc1 {ld}')
        a('s_sleep 1'); a(f's_add_u32 {POLLC}, {POLLC}, 1'); a(f's_cmp_lt_u32 {POLLC}, {POLL_MAX*8}'); a(f's_cbranch_scc1 {lp}')
        a(f'{ld}:')

    def att_factors(self):
        a = self.a
        self.lspin(27, 8, 1, 26)
        a('v_and_b32 v26, 3, v1'); a('v_lshlrev_b32 v26, 2, v26')
        for w in range(11): a(f'ds_read_b32 v{12+w}, v26 offset:{FW+16*w}')
        a('s_waitcnt lgkmcnt(0)')

    def code_touch(self, hi, nbytes, t):
        a = self.a; here = self.lab('LH')
        a('s_getpc_b64 s[92:93]'); a(f'{here}:')
        a(f's_mov_b32 s94, {hi}-{here}'); a('s_mov_b32 s95, 0x20000')
        a(f'v_lshlrev_b32 v{t}, 6, v1')
        for i in range(0, nbytes, 4096):
            a(f's_mov_b32 s5, {i}'); a(f'buffer_load_dword v{t+1}, v{t}, s[92:95], s5 offen')

    def code_touch2(self, lo, hi, t):
        a = self.a; here = self.lab('LH')
        a('s_getpc_b64 s[92:93]'); a(f'{here}:')
        a(f's_mov_b32 s94, {hi}-{here}'); a('s_mov_b32 s95, 0x20000'); a(f's_mov_b32 s5, {lo}-{here}')
        a(f'v_lshlrev_b32 v{t}, 6, v1')
        a(f'buffer_load_dword v{t+1}, v{t}, s[92:95], s5 offen')

    def att_red_addr(self, e):
        a = self.a
        a('s_lshl_b32 s87, s4, 11'); a(f's_add_u32 s87, s87, {MO_BASE}')
        a('v_and_b32 v30, 3, v1'); a('v_lshlrev_b32 v30, 9, v30'); a('v_lshrrev_b32 v31, 2, v1'); a('v_lshl_add_u32 v30, v31, 4, v30')
        if e: a(f'v_add_u32 v30, {256*e}, v30')
        a(f'v_add_u32 v31, {PART + 1024*e}, v2')

    def xcc_inc(self, dst):
        a = self.a
        a('s_getreg_b32 s5, hwreg(HW_REG_XCC_ID)'); a('s_and_b32 s5, s5, 7')
        a('s_mul_i32 s6, s5, s5'); a('s_lshl_b32 s6, s6, 16'); a('s_lshl_b32 s5, s5, 8'); a('s_add_u32 s5, s5, s6'); a(f's_add_u32 {dst}, s5, 1')

    def lds_init(self):
        a = self.a
        a('v_mov_b32 v8, 0'); a('v_lshlrev_b32 v9, 2, v1'); a(f'v_add_u32 v10, {ZR}, v9'); a('ds_write_b32 v10, v8')
        a(f'v_add_u32 v10, {CNT}, v9'); a('s_mov_b64 exec, 0xffff'); a('ds_write_b32 v10, v8'); a('s_mov_b64 exec, -1')

    def reduce_parts(self, base, n, dst=96):
        a = self.a
        a(f'v_add_u32 v3, {base}, v2')
        for w in range(n): a(f'ds_read_b128 {v(dst+4*w,4)}, v3 offset:{1024*w}')
        a('s_waitcnt lgkmcnt(0)')
        for w in range(1, n):
            for r in range(4): a(f'v_add_f32 v{dst+r}, v{dst+r}, v{dst+4*w+r}')

    def ln_x(self):
        a = self.a
        for i in range(4): a(f'v_lshlrev_b32 v{12+2*i}, 16, v{40+i}'); a(f'v_and_b32 v{13+2*i}, {HIM}, v{40+i}')
        a('v_add_f32 v20, v12, v13')
        for i in range(2, 8): a(f'v_add_f32 v20, v20, v{12+i}')
        self.wavesum(20, 21)
        a('v_mul_f32 v20, 0x3b000000, v20')
        a('v_mov_b32 v22, 0')
        for i in range(8): a(f'v_sub_f32 v21, v{12+i}, v20'); a('v_fmac_f32 v22, v21, v21')
        self.wavesum(22, 21)
        a('v_mul_f32 v22, 0x3b000000, v22')
        self.rnd2(20, 22, 21)
        a('v_add_f32 v22, 0x3727c5ac, v22'); self.rnd2(22, 23, 21)
        a('v_sqrt_f32 v22, v22'); self.rnd2(22, 23, 21)
        a('v_rcp_f32 v23, v22')
        for i in range(8): a(f'v_sub_f32 v{12+i}, v{12+i}, v20')
        for i in range(4): self.rnd2(12 + 2 * i, 13 + 2 * i, 21)
        for i in range(8):
            a(f'v_mul_f32 v24, v{12+i}, v23'); a(f'v_fma_f32 v25, -v24, v22, v{12+i}'); a(f'v_fma_f32 v{12+i}, v25, v23, v24')
        for i in range(4): self.rnd2(12 + 2 * i, 13 + 2 * i, 21)
        a('v_lshlrev_b32 v21, 5, v1'); a('s_lshl_b32 s5, s81, 1'); a(f's_add_u32 s5, s5, {LNX}'); a('v_add_u32 v21, s5, v21')
        a('ds_write_b128 v21, v[12:15]'); a('ds_write_b128 v21, v[16:19] offset:16')
        self.arrive(C_LN, 8, 9)

    def head(self):
        a = self.a
        a(f's_mul_i32 s80, s4, {ASTR}'); a(f's_add_u32 s80, s80, {AUXREG}')
        a('v_lshlrev_b32 v2, 4, v1')
        a('s_cmp_ge_u32 s3, 4'); a('s_cbranch_scc1 L_h_q')
        self.srd(['WM', 'C']); self.consts()
        self.wvoff(5, 6144, 4); self.xvoff(6, 1024, 0, 4)
        a('s_and_b32 s5, s4, 1'); a('s_lshl_b32 s5, s5, 8'); a('s_lshl_b32 s6, s3, 6'); a('s_add_u32 s85, s5, s6')
        a('s_mul_i32 s5, s85, 6144'); a('s_lshr_b32 s6, s4, 1'); a('s_lshl_b32 s6, s6, 8'); a('s_add_u32 s86, s5, s6'); a('s_add_u32 s86, s86, 2048')
        a('s_lshl_b32 s85, s85, 1')
        for i in range(4): a(f'v_mov_b32 v{8+i}, -1')
        a(f's_add_u32 s5, s80, {MR_OFF}')
        a('s_waitcnt lgkmcnt(0)')
        a('s_cmp_lg_u32 s3, 0'); a('s_cbranch_scc1 L_h_nc')
        a(f'buffer_store_dwordx4 v[8:11], v2, {WS}, s5 offen sc1')
        self.tag_load()
        a('L_h_nc:')
        a(f'buffer_load_dwordx4 v[160:163], v6, {C_}, s85 offen'); a(f'buffer_load_dwordx4 v[164:167], v6, {C_}, s85 offen offset:64')
        a('s_cmp_lg_u32 s3, 3'); a('s_cbranch_scc1 L_h_ni')
        self.lds_init(); a('s_waitcnt lgkmcnt(0)')
        a('L_h_ni:')
        a('s_barrier')
        a('s_cmp_lg_u32 s3, 0'); a('s_cbranch_scc1 L_h_wh')
        a('v_mov_b32 v12, 1'); a('v_mov_b32 v13, 0')
        a('v_lshrrev_b32 v3, 3, v1'); a(f'v_mul_u32_u24 v4, {ASTR}, v3'); a('v_and_b32 v7, 7, v1'); a('v_lshl_add_u32 v4, v7, 4, v4')
        a('v_lshlrev_b32 v3, 5, v3'); a('v_bfe_u32 v7, v1, 2, 1'); a(f'v_mul_u32_u24 v7, {HSTR}, v7'); a('v_add_u32 v3, v3, v7'); a('v_and_b32 v7, 3, v1'); a('v_lshl_add_u32 v3, v7, 3, v3')
        a(f'v_add_u32 v3, {H_}, v3')
        self.tag_make()
        a('s_waitcnt vmcnt(2)')
        if not self.nohello: a('s_mov_b64 exec, 1'); a(f'buffer_atomic_add v12, v13, {DBG}, 0 offen sc1'); a('s_mov_b64 exec, -1')
        self.stamp(1)
        for i in range(4): a(f's_mov_b32 s{81+i}, {AUXREG+H_OFF+8*i*ASTR}')
        self.tpoll_pipe(lambda b: [f'buffer_load_dwordx4 {v(b+4*i,4)}, v4, {WS}, s{81+i} offen sc1' for i in range(4)], 4, 32, 16, self.hsets, self.hsleep)
        for i in range(4): a(f'ds_write_b64 v3, {v(16+2*i,2)} offset:{256*i}')
        self.arrive(C_H, 8, 9)
        self.stamp(3)
        a('L_h_wh:')
        a('s_waitcnt vmcnt(0)')
        self.silu4(160, 8); self.silu4(164, 8)
        if self.mrearly: self.waitc(C_LN, 8, 8, 9)
        else: self.waitc(C_W1, 1, 8, 9)
        self.unit_loads(96, 5, WM, 's86', 6144, depth=self.dwo, prior=0)
        a(f's_add_u32 s86, s86, {32*6144}'); self.unit_loads(64, 5, WM, 's86', 6144, depth=self.dwo, prior=8)
        a('s_waitcnt vmcnt(8)')
        self.gemv_fly(96, 160, True)
        a('s_waitcnt vmcnt(0)')
        self.gemv_fly(64, 164, False)
        a('s_lshl_b32 s5, s3, 10'); a(f's_add_u32 s5, s5, {RP}'); a('v_add_u32 v3, s5, v2')
        self.merge(20); a('ds_write_b128 v3, v[20:23]')
        self.arrive(C_MR, 8, 9)
        a('s_cmp_lg_u32 s3, 1'); a('s_cbranch_scc1 L_h_end')
        self.waitc(C_MR, 4, 8, 9); self.reduce_parts(RP, 4); self.sanitize(96, 4)
        a(f's_add_u32 s5, s80, {MR_OFF}'); a(f'buffer_store_dwordx4 v[96:99], v2, {WS}, s5 offen sc1')
        self.stamp(8)
        a('L_h_end:')
        self.end()
        a('L_h_q:')
        self.srd(['WQ']); self.consts()
        a('v_lshrrev_b32 v3, 4, v1'); a('v_lshlrev_b32 v3, 14, v3'); a('v_and_b32 v4, 15, v1'); a('v_lshl_add_u32 v3, v4, 4, v3')
        qrows = [8 * (j & 3) + (j >> 2) for j in range(8)]
        a('s_sub_u32 s81, s3, 4')
        a('s_lshl_b32 s5, s81, 19'); a('s_lshl_b32 s6, s4, 8'); a('s_add_u32 s82, s5, s6')
        a('s_waitcnt lgkmcnt(0)')
        self.tag_load()
        self.stamp(1)
        self.unit_loads(32, 3, WQ, 's82', 8192, qrows, pol=self.qpol, depth=self.dq, prior=0, hook=(self.dq - 1, 's_barrier'))
        a(f's_add_u32 s82, s82, {32*8192}'); self.unit_loads(64, 3, WQ, 's82', 8192, qrows, pol=self.qpol, depth=self.dq, prior=8)
        self.stamp(2)
        a('s_waitcnt vmcnt(8)'); self.transpose(32, 96)
        a('s_waitcnt vmcnt(0)')
        if self.mrearly: self.arrive(C_LN, 8, 9)
        self.transpose(64, 128)
        self.stamp(3)
        self.xvoff(28, HSTR, H_, 29)
        a('s_lshl_b32 s6, s81, 7'); a('v_add_u32 v28, s6, v28'); a(f'v_mov_b32 v29, {ZR}')
        for u in range(4): a(f'v_cndmask_b32 v{24+u}, v29, v28, {BM[u]}')
        a('s_lshl_b32 s5, s81, 10'); a(f's_add_u32 s5, s5, {QP}'); a('v_add_u32 v3, s5, v2')
        self.waitc(C_H, 1, 8, 9)
        self.stamp(4)
        self.gemv2(24, 32, 96, 64)
        self.merge(64); a('ds_write_b128 v3, v[64:67]')
        self.arrive(C_Q, 8, 9)
        a('s_cmp_lg_u32 s3, 4'); a('s_cbranch_scc1 L_h_end')
        a('v_lshrrev_b32 v10, 4, v1'); a('v_lshlrev_b32 v10, 5, v10'); a('v_bfe_u32 v11, v1, 1, 3'); a('v_add_u32 v10, v10, v11')
        a('v_and_b32 v11, 1, v1'); a('v_lshl_add_u32 v10, v11, 7, v10'); a('v_lshlrev_b32 v10, 1, v10'); a(f'v_add_u32 v10, {QT}, v10')
        a('v_lshlrev_b32 v11, 3, v1'); a(f'v_add_u32 v11, {QT}, v11')
        self.tag_make()
        self.waitc(C_Q, 8, 8, 9); self.reduce_parts(QP, 8)
        a('v_cvt_pk_bf16_f32 v96, v96, v97'); a('v_cvt_pk_bf16_f32 v98, v98, v99')
        a('ds_write_b16 v10, v96'); a('ds_write_b16_d16_hi v10, v96 offset:16')
        a('ds_write_b16 v10, v98 offset:32'); a('ds_write_b16_d16_hi v10, v98 offset:48')
        a('s_waitcnt lgkmcnt(0)'); a('ds_read_b64 v[100:101], v11')
        a(f'v_mov_b32 v97, {TAG}'); a(f'v_mov_b32 v99, {TAG}')
        a(f's_add_u32 s5, s80, {Q_OFF}')
        a('s_waitcnt lgkmcnt(0)')
        a('v_mov_b32 v96, v100'); a('v_mov_b32 v98, v101')
        a(f'buffer_store_dwordx4 v[96:99], v2, {WS}, s5 offen sc1')
        self.arrive(C_W1, 8, 9)
        self.stamp(5)
        self.end()

    def pollcnt(self, off):
        a = self.a; lp = self.lab('LC'); ld = self.lab('LE')
        a(f's_mov_b32 {POLLC}, 0'); a(f'{lp}:')
        a(f'buffer_load_dword v14, v13, {DBG}, 0 offen offset:{off} sc1'); a('s_waitcnt vmcnt(0)')
        a('v_and_b32 v15, 63, v14'); a('v_cmp_gt_u32 vcc, 32, v15'); a(f's_cbranch_vccz {ld}')
        a('s_sleep 1'); a(f's_add_u32 {POLLC}, {POLLC}, 1'); a(f's_cmp_lt_u32 {POLLC}, {POLL_MAX}'); a(f's_cbranch_scc1 {lp}')
        a(f'{ld}:')

    def gemv2(self, xa, xr, T, acc):
        a = self.a
        for kb in range(2):
            for u in range(4): a(f'ds_read_b128 {v(xr+16*kb+4*u,4)}, v{xa+u} offset:{64*kb}')
        for kb in range(2):
            for m in range(8):
                if m % 2 == 0: a(f's_waitcnt lgkmcnt({7 - 4*kb - m//2})')
                c = '0' if (kb == 0 and m < 2) else v(acc + 4 * (m & 1), 4)
                a(f'v_mfma_f32_16x16x32_bf16 {v(acc+4*(m&1),4)}, {v(T+32*kb+4*m,4)}, {v(xr+16*kb+4*(m>>1),4)}, {c}')

    def getmode(self):
        self.waitc(C_MODE, 1, 8, 9, SMODE)

    def tail(self):
        a = self.a
        a(f's_mul_i32 s80, s4, {ASTR}'); a(f's_add_u32 s80, s80, {AUXREG}')
        a('v_lshlrev_b32 v2, 4, v1')
        a('s_cmp_ge_u32 s3, 8'); a('s_cbranch_scc1 L_tail_c')
        a('s_cmp_ge_u32 s3, 4'); a('s_cbranch_scc1 L_tail_b')
        self.tail_a()
        if self.lighth: self.h1()
        self.tail_b(); self.tail_c()

    def tail_a(self):
        a = self.a
        self.srd(['WO', 'OUT', 'X']); self.consts()
        a('s_sub_u32 s5, s3, 1'); a('s_and_b32 s5, s5, 1'); a('s_lshl_b32 s81, s5, 10')
        a('s_waitcnt lgkmcnt(0)')
        a(f'buffer_load_dwordx4 v[40:43], v2, {X_}, s81 offen')
        self.tag_load()
        if self.touch2:
            a('s_cmp_lg_u32 s3, 3'); a('s_cbranch_scc1 L_a_t2')
            self.code_touch2('L_tail_c', 'L_c_w1', 32); self.code_touch2(*(('L_h1', 'L_tail_b') if self.lighth else ('L_a_h1', 'L_a_wo')), 32)
            a('L_a_t2:')
        a('s_barrier')
        rows = [8 * (j & 3) + (j >> 2) for j in range(8)]
        a('v_lshrrev_b32 v3, 5, v1'); a('v_lshlrev_b32 v3, 15, v3'); a('v_bfe_u32 v4, v1, 4, 1'); a('v_lshl_add_u32 v3, v4, 11, v3')
        a('v_and_b32 v4, 15, v1'); a('v_lshl_add_u32 v35, v4, 4, v3')
        a('s_lshl_b32 s5, s4, 17'); a('s_lshl_b32 s6, s3, 8'); a('s_add_u32 s87, s5, s6')
        if self.early:
            a(f's_add_u32 s82, s87, {(64 + 4)*1024}')
            self.unit_loads(136, 35, WO, 's82', 1024, rows)
        if self.lighth:
            a('s_cmp_lt_u32 s4, 28'); a('s_cbranch_scc1 L_a_wo')
            a('s_cmp_eq_u32 s3, 0'); a('s_cbranch_scc1 L_a_h1'); a('s_cmp_eq_u32 s3, 3'); a('s_cbranch_scc1 L_a_h1')
            a(f's_waitcnt vmcnt({8 if self.early else 0})')
            self.ln_x()
        else:
            a('s_cmp_eq_u32 s3, 0'); a('s_cbranch_scc1 L_a_h1'); a('s_cmp_eq_u32 s3, 3'); a('s_cbranch_scc1 L_a_wo')
            a(f's_waitcnt vmcnt({8 if self.early else 0})')
            self.ln_x()
            a('s_branch L_a_wo')
        if self.lighth:
            a('L_a_h1:')
            a('s_call_b64 s[90:91], L_h1')
            self.waitc(C_H, 9, 8, 9)
        else:
            a('L_a_h1:'); a('s_mov_b32 s93, s4')
            self.h1_body()
        a('L_a_wo:')
        if self.wo_wait: self.waitc(C_H, 1, 8, 9)
        if self.touch:
            a('s_cmp_lg_u32 s3, 3'); a('s_cbranch_scc1 L_a_nt')
            self.code_touch('L_exit', 12288, 32)
            a('L_a_nt:')
        for kb in ([0, 1, 2] if self.early else [3, 0, 1, 2]):
            a(f's_add_u32 s82, s87, {(64*(kb&1) + 4*(kb>>1))*1024}')
            S = [8, 12, 72, 76, 136]
            self.unit_loads(S[kb + 1], 35, WO, 's82', 1024, rows, depth=self.dl0, prior=0 if kb == 3 else 99, qs=4 if kb == 3 else 8)
        if self.w1pf or self.hold: self.arrive(C_CLR, 8, 9)
        for kb in range(4):
            if kb < 3: a(f's_waitcnt vmcnt({16 - 8*kb})')
            self.transpose(S[kb + 1], S[kb], rs=4 if kb == 3 else 8, ds=8)
        self.stamp(1)
        self.sxaddr(164, OSTR, OB, 165)
        a(f'v_mov_b32 v165, {ZR}')
        for u in range(4): a(f'v_cndmask_b32 v{160+u}, v165, v164, {BM[u]}')
        self.sidx(164)
        for i in range(8): a(f'v_mov_b32 v{152+i}, 0')
        a('s_lshl_b32 s5, s3, 10'); a('s_add_u32 s81, s80, s5')
        self.waitc(C_MODE, 1, 166, 167, SMODE)
        a('s_cmp_eq_u32 s3, 0'); a('s_cbranch_scc0 L_a_pt')
        a('v_lshrrev_b32 v3, 3, v1'); a(f'v_mul_u32_u24 v3, {ASTR}, v3'); a('v_and_b32 v4, 7, v1'); a('v_lshl_add_u32 v3, v4, 4, v3')
        a('v_lshrrev_b32 v5, 4, v1'); a('v_lshlrev_b32 v5, 2, v5'); a('v_lshl_add_u32 v4, v4, 4, v5')
        a(f'v_add_u32 v7, {SMALL}, v4')
        a('s_lshl_b32 s5, s4, 7')
        for i in range(4): a(f's_add_u32 s{82+i}, s5, {AUXREG + 8*i*ASTR + A_OFF}'); a(f's_add_u32 s{86+i}, s5, {AUXREG + 8*i*ASTR + P2_OFF}')
        a('s_and_b32 s5, s4, 0x18'); a('s_and_b32 s6, s4, 1'); a('s_lshl_b32 s6, s6, 2'); a('s_add_u32 s5, s5, s6'); a('s_bfe_u32 s6, s4, 0x10002'); a('s_add_u32 s5, s5, s6')
        a('s_lshl_b32 s5, s5, 6'); a('s_and_b32 s6, s4, 2'); a('s_lshl_b32 s6, s6, 4'); a('s_add_u32 s5, s5, s6'); a(f's_add_u32 s90, s5, {X1G}')
        a('v_bfe_u32 v4, v1, 2, 1'); a('v_lshlrev_b32 v4, 7, v4'); a('v_lshrrev_b32 v5, 5, v1'); a('v_lshl_add_u32 v4, v5, 4, v4')
        a('v_and_b32 v6, 3, v1'); a('v_lshl_add_u32 v4, v6, 2, v4'); a('v_lshrrev_b32 v5, 4, v1'); a('v_and_b32 v6, 1, v5'); a('v_lshl_add_u32 v4, v6, 11, v4')
        self.own_n('s91')
        a('v_and_b32 v6, 7, v1'); a('v_lshlrev_b32 v6, 3, v6'); a('v_lshrrev_b32 v165, 5, v1'); a('v_add_u32 v6, v6, v165')
        a('v_and_b32 v5, 1, v5'); a('v_lshl_add_u32 v5, v5, 9, v6'); a('v_lshlrev_b32 v5, 1, v5')
        a(f's_add_u32 s5, {EPO}, 1'); a('v_mov_b32 v166, s5'); a('v_mov_b32 v167, 0')
        for i in range(8): a(f'buffer_load_dwordx4 v[136:139], v3, {WS}, s{82+i} offen sc1')
        a('s_branch L_a_pu')
        a('L_a_pt:')
        a('s_sub_u32 s5, s3, 1'); a('s_and_b32 s5, s5, 1'); a('s_lshl_b32 s6, s5, 4'); a('v_mov_b32 v5, v2')
        a('s_lshl_b32 s82, s5, 11'); a(f's_add_u32 s82, s82, {X1G}'); a('s_add_u32 s83, s82, 1024')
        a('v_lshlrev_b32 v6, 5, v1'); a(f's_add_u32 s6, s6, {IMA}'); a('v_add_u32 v6, s6, v6')
        a('v_lshrrev_b32 v7, 4, v1'); a('v_lshlrev_b32 v7, 7, v7'); a('v_and_b32 v4, 15, v1'); a('v_lshl_add_u32 v7, v4, 2, v7'); a(f's_mul_i32 s5, s5, {YSTR}'); a(f's_add_u32 s5, s5, {YB}'); a('v_add_u32 v7, s5, v7')
        a('s_mov_b32 s84, 0x3b000000'); a('v_mov_b32 v3, 0x3727c5ac')
        for i in range(2): a(f'buffer_load_dwordx4 v[136:139], v5, {WS}, s{82+i} offen sc1')
        a('L_a_pu:')
        a('s_waitcnt vmcnt(0)')
        self.stamp(2)
        self.dry_begin('L_a_go')
        if self.ta_cnt:
            a(f'v_mov_b32 v164, {CNT + C_Q}'); a(f's_mov_b32 {POLLC}, 0'); a('L_a_sp:')
            a('ds_read_b32 v165, v164'); a('s_waitcnt lgkmcnt(0)'); a('v_cmp_gt_u32 vcc, 4, v165'); a('s_cbranch_vccz L_a_sq')
            a(f's_add_u32 {POLLC}, {POLLC}, 1'); a(f's_cmp_lt_u32 {POLLC}, {POLL_MAX*16}'); a('s_cbranch_scc1 L_a_sp'); a('L_a_sq:')
        else: self.bar()
        self.stamp(3)
        X = [136, 8]
        def xread(p):
            for u in range(4): a(f'ds_read_b128 {v(X[p]+4*u,4)}, v{160+u} offset:{128*p}')
        xread(0)
        for p in range(2):
            for m in range(8):
                if m % 2 == 0: a(f's_waitcnt lgkmcnt({3 - m//2 + (4 if p == 0 and m else 0)})')
                a(f'v_smfmac_f32_16x16x64_bf16 {v(152+4*(m&1),4)}, {v(X[p]+4*(m>>1),4)}, {v(8+64*p+8*m,8)}, v164')
                if p == 0 and m == 1: xread(1)
        self.pub_pre()
        a('v_pk_add_f32 v[152:153], v[152:153], v[154:155]'); a('v_pk_add_f32 v[154:155], v[156:157], v[158:159]')
        self.pub(f'buffer_store_dwordx4 v[152:155], v2, {WS}, s81 offen')
        self.stamp(4)
        a('s_cmp_lg_u32 s3, 0'); a('s_cbranch_scc1 L_a_ln')
        if self.ta_cnt: self.waitc(C_MR, 3, 164, 165)
        for k in range(4): a(f'ds_read_b32 v{72+k}, v7 offset:{128*k}')
        def rs(s0, last_half):
            def mk(b):
                L = [f'buffer_load_dwordx4 {v(b+4*i,4)}, v3, {WS}, s{s0+i} offen sc1' for i in range(4)]
                if last_half: L = L[:3] + ['s_mov_b32 exec_hi, 0', L[3], 's_mov_b32 exec_hi, s95']
                return L
            b = 8 if not last_half else 80
            def consume(b=b):
                a(f'v_pk_add_f32 v[156:157], {v(b,2)}, {v(b+4,2)}'); a(f'v_pk_add_f32 v[158:159], {v(b+2,2)}, {v(b+6,2)}')
                a(f'v_pk_add_f32 v[152:153], {v(b+8,2)}, {v(b+12,2)}'); a(f'v_pk_add_f32 v[154:155], {v(b+10,2)}, {v(b+14,2)}')
                a('v_pk_add_f32 v[156:157], v[156:157], v[152:153]'); a('v_pk_add_f32 v[158:159], v[158:159], v[154:155]')
            if self.pipe: self.npoll2(mk, 4, [b, b + 16], 16, 165, consume, 156)
            else: self.npoll(mk(b), range(b, b + 16), 165, consume, 156)
            self.red4rows(156)
            a('v_add_f32_dpp v156, v156, v156 row_ror:8 row_mask:0xf bank_mask:0xf')
        rs(82, False)
        a('s_waitcnt lgkmcnt(0)')
        self.ex(0x00ff00ff, 0x00ff00ff); self.pub_pre()
        a('v_fma_f32 v76, v72, v156, v73')
        self.pub(f'buffer_store_dword v76, v4, {WS}, s90 offen')
        self.exfull()
        self.stamp(5)
        for r in range(4): a(f'v_mov_b32 v{92+r}, 0'); a(f'v_mov_b32 v{108+r}, 0')
        a('v_fmac_f32 v76, v74, v75')
        self.bar(); self.bar()
        self.stamp(6)
        rs(86, True)
        self.ex(0x00ff00ff, 0x00ff00ff)
        a('v_fmac_f32 v76, v74, v156'); a('v_cvt_pk_bf16_f32 v76, v76, v76')
        a(f'buffer_store_short v76, v5, {OUT}, s91 offen')
        a('s_cmp_lg_u32 s4, 0'); a('s_cbranch_scc1 L_a_end')
        self.ex(1, 0); a(f'buffer_store_dword v166, v167, {WS}, 0 offen sc1')
        a('L_a_end:')
        self.dry_end('L_a_go')
        self.end()
        a('L_a_ln:')
        a('s_cmp_eq_u32 s3, 3'); a('s_cbranch_scc1 L_a_end')
        a('s_cmp_ge_u32 s4, 28'); a('s_cbranch_scc1 L_a_end')
        if self.ta_cnt: self.waitc(C_MR, 3, 164, 165)
        a('ds_read_b128 v[72:75], v6'); a('ds_read_b128 v[76:79], v6 offset:2048')
        a(f'ds_read_b128 v[80:83], v6 offset:{IMS-IMA}'); a(f'ds_read_b128 v[84:87], v6 offset:{IMS-IMA+2048}')
        def shift(b):
            a(f'v_readfirstlane_b32 s6, v{b}')
            for i in range(4): a(f'v_pk_add_f32 {v(88+2*i,2)}, {v(b+2*i,2)}, s[6:7] op_sel_hi:[1,0] neg_lo:[0,1] neg_hi:[0,1]')
        self.ppoll(lambda b: [f'buffer_load_dwordx4 {v(b,4)}, v5, {WS}, s82 offen sc1', f'buffer_load_dwordx4 {v(b+4,4)}, v5, {WS}, s83 offen sc1'],
                   2, 8, [8, 16], 165, shift, delay=self.agdelay)
        self.stamp(5)
        def stats():
            a('v_pk_mul_f32 v[98:99], v[88:89], v[88:89]'); a('v_pk_add_f32 v[96:97], v[88:89], v[90:91]')
            a('v_pk_fma_f32 v[98:99], v[90:91], v[90:91], v[98:99]'); a('v_pk_add_f32 v[100:101], v[92:93], v[94:95]')
            a('v_pk_fma_f32 v[98:99], v[92:93], v[92:93], v[98:99]'); a('v_pk_add_f32 v[96:97], v[96:97], v[100:101]')
            a('v_pk_fma_f32 v[98:99], v[94:95], v[94:95], v[98:99]')
            a('v_add_f32 v156, v96, v97'); a('v_add_f32 v157, v98, v99')
            a('v_permlane32_swap_b32 v156, v157'); a('v_add_f32 v156, v156, v157')
            a('v_mov_b32 v157, v156'); a('v_permlane16_swap_b32 v156, v157'); a('v_add_f32 v156, v156, v157')
            self.rowsum(156)
            a('v_readlane_b32 s6, v156, 0'); a('v_readlane_b32 s5, v156, 32')
            a('v_mov_b32 v159, s84')
            a('v_mul_f32 v156, s6, v159'); a('v_fma_f32 v158, s5, v159, v3')
            a('v_fma_f32 v158, -v156, v156, v158'); a('v_max_f32 v158, v158, v3'); a('v_rsq_f32 v158, v158')
            for i in range(4): a(f'v_pk_add_f32 {v(88+2*i,2)}, {v(88+2*i,2)}, v[156:157] op_sel_hi:[1,0] neg_lo:[0,1] neg_hi:[0,1]')
        stats()
        a('s_waitcnt lgkmcnt(0)')
        for i in range(4): a(f'v_pk_mul_f32 {v(88+2*i,2)}, {v(88+2*i,2)}, {v(72+2*i,2)}')
        for i in range(4): a(f'v_pk_fma_f32 {v(88+2*i,2)}, {v(88+2*i,2)}, v[158:159], {v(80+2*i,2)} op_sel_hi:[1,0,1]')
        stats()
        for i in range(4): a(f'v_pk_mul_f32 {v(88+2*i,2)}, {v(88+2*i,2)}, v[158:159] op_sel_hi:[1,0]')
        for i in range(4): a(f'v_cvt_pk_bf16_f32 v{88+i}, v{88+2*i}, v{89+2*i}')
        a('ds_write2_b32 v7, v88, v89 offset1:16'); a('ds_write2_b32 v7, v90, v91 offset0:128 offset1:144')
        a('s_waitcnt lgkmcnt(0)')
        self.stamp(6)
        self.bar()
        a('s_branch L_a_end')
        self.flush_late()

    def h1_body(self):
        a = self.a
        a('v_lshrrev_b32 v3, 5, v1'); a('v_lshlrev_b32 v3, 4, v3'); a('v_bfe_u32 v4, v1, 3, 2'); a('v_add_u32 v3, v3, v4'); a(f'v_mul_u32_u24 v3, {ASTR}, v3')
        a('v_and_b32 v4, 7, v1'); a('v_lshl_add_u32 v3, v4, 4, v3')
        a('s_lshr_b32 s5, s93, 3'); a(f's_mul_i32 s5, s5, {4*ASTR}'); a('s_and_b32 s6, s93, 7'); a('s_lshl_b32 s6, s6, 7'); a('s_add_u32 s5, s5, s6')
        a(f's_add_u32 s82, s5, {AUXREG+MC_OFF}')
        a('s_lshr_b32 s5, s93, 1'); a('s_lshl_b32 s5, s5, 5'); a('s_and_b32 s6, s93, 1'); a('s_lshl_b32 s6, s6, 2'); a('s_add_u32 s5, s5, s6'); a('s_lshl_b32 s5, s5, 2')
        a(f's_add_u32 s5, s5, {LNX}')
        a('v_bfe_u32 v5, v1, 1, 2'); a('v_and_b32 v6, 1, v1'); a('v_lshlrev_b32 v7, 4, v5'); a('v_lshl_add_u32 v7, v6, 6, v7')
        a('v_lshl_add_u32 v5, v6, 9, v5'); a('v_lshlrev_b32 v5, 2, v5'); a('v_add_u32 v5, s5, v5')
        a(f's_mul_i32 s83, s93, {ASTR}'); a(f's_add_u32 s83, s83, {AUXREG+H_OFF}')
        self.waitc(C_LN, 2, 8, 9)
        for r in range(4): a(f'ds_read_b32 v{24+r}, v5 offset:{32*r}')
        self.tag_make()
        self.stamp(7)
        a(f's_mov_b32 {POLLC}, 0'); a('L_a_mp:')
        a(f's_and_b32 s5, {POLLC}, 63'); a('s_cmp_eq_u32 s5, 63'); a('s_cselect_b32 s5, 2048, 0'); a('s_add_u32 s5, s5, s82')
        a(f'buffer_load_dwordx4 v[16:19], v3, {WS}, s5 offen sc1'); a(f'buffer_load_dwordx4 v[20:23], v3, {WS}, s5 offen offset:1024 sc1')
        a('s_waitcnt vmcnt(0)')
        for i, r in enumerate([17, 19, 21, 23]):
            if i == 0: a(f'v_cmp_ne_u32 vcc, {TAG}, v{r}')
            else: a(f'v_cmp_ne_u32 s[88:89], {TAG}, v{r}'); a('s_or_b64 vcc, vcc, s[88:89]')
        a('s_cmp_eq_u64 vcc, 0'); a('s_cbranch_scc1 L_a_mq')
        a(f's_add_u32 {POLLC}, {POLLC}, 1'); a(f's_cmp_lt_u32 {POLLC}, {POLL_MAX}'); a('s_cbranch_scc1 L_a_mp')
        a('L_a_mq:')
        self.stamp(8)
        for r in range(4): a(f'v_add_f32_dpp v{12+r}, v{16+2*r}, v{16+2*r} row_ror:8 row_mask:0xf bank_mask:0xf')
        for r in range(4): a(f'v_mov_b32 v{16+r}, v{12+r}')
        for r in range(4): a(f'v_permlane16_swap_b32 v{12+r}, v{16+r}')
        for r in range(4): a(f'v_add_f32 v{12+r}, v{12+r}, v{16+r}')
        for r in range(4): a(f'v_mov_b32 v{16+r}, v{12+r}')
        for r in range(4): a(f'v_permlane32_swap_b32 v{12+r}, v{16+r}')
        for p in (12, 14, 16, 18): self.rnd2(p, p + 1, 8)
        for r in range(4): a(f'v_add_f32 v{16+r}, 1.0, v{16+r}')
        self.rnd2(16, 17, 8); self.rnd2(18, 19, 8)
        for r in range(4): a(f'v_mul_f32 v{24+r}, v{24+r}, v{16+r}')
        self.rnd2(24, 25, 8); self.rnd2(26, 27, 8)
        for r in range(4): a(f'v_add_f32 v{24+r}, v{24+r}, v{12+r}')
        a('v_cvt_pk_bf16_f32 v24, v24, v25'); a('v_cvt_pk_bf16_f32 v26, v26, v27'); a(f'v_mov_b32 v25, {TAG}'); a(f'v_mov_b32 v27, {TAG}')
        a('s_mov_b64 exec, 0xff'); a(f'buffer_store_dwordx4 v[24:27], v7, {WS}, s83 offen sc1'); a('s_mov_b64 exec, -1')
        self.arrive(C_H, 8, 9)
        self.stamp(9)

    def h1(self):
        a = self.a
        a('L_h1:')
        a('s_sub_u32 s93, s4, 28'); a('s_lshl_b32 s93, s93, 3'); a('s_add_u32 s93, s93, s3')
        self.h1_body()
        a('s_setpc_b64 s[90:91]')

    def own_n(self, dst):
        a = self.a
        a('s_and_b32 s5, s4, 0x18'); a('s_lshl_b32 s5, s5, 5'); a('s_and_b32 s6, s4, 1'); a('s_lshl_b32 s6, s6, 7'); a('s_add_u32 s5, s5, s6')
        a('s_and_b32 s6, s4, 6'); a('s_lshl_b32 s6, s6, 1'); a(f's_add_u32 {dst}, s5, s6')

    def tail_b(self):
        a = self.a
        a('L_tail_b:')
        self.srd(['W2']); self.consts()
        a('s_sub_u32 s81, s3, 4')
        self.wvoff(3, 1024, 4)
        a('s_lshl_b32 s5, s4, 16'); a('s_lshl_b32 s6, s81, 8'); a('s_add_u32 s82, s5, s6')
        a('s_waitcnt lgkmcnt(0)')
        if self.lighth: self.tag_load()
        a('s_cmp_eq_u32 s3, 5'); a('s_cbranch_scc0 L_b_ni')
        self.lds_init(); a('s_waitcnt lgkmcnt(0)')
        a('L_b_ni:')
        a('s_cmp_eq_u32 s3, 4'); a('s_cbranch_scc0 L_b_nc')
        for i in range(4): a(f'v_mov_b32 v{8+i}, -1')
        for i in range(8):
            if i % 4 == 0: a(f's_add_u32 s5, s80, {(i//4)*4096}')
            a(f'buffer_store_dwordx4 v[8:11], v2, {WS}, s5 offen offset:{(i%4)*1024} sc1')
        a(f's_add_u32 s5, s80, {ST_OFF}'); a('s_lshl_b32 s6, s4, 7'); a(f's_add_u32 s6, s6, {X1G}')
        a('s_mov_b64 exec, 0xffff'); a(f'buffer_store_dwordx4 v[8:11], v2, {WS}, s5 offen sc1')
        a('s_mov_b64 exec, 0xff'); a(f'buffer_store_dwordx4 v[8:11], v2, {WS}, s6 offen sc1'); a('s_mov_b64 exec, -1')
        a('s_barrier')
        self.xcc_inc('s85')
        a('v_mov_b32 v12, s85'); a('v_mov_b32 v13, 0')
        a('s_waitcnt vmcnt(0)')
        if not self.nohello: a('s_mov_b64 exec, 1'); a(f'buffer_atomic_add v12, v13, {DBG}, 0 offen offset:4 sc1'); a('s_mov_b64 exec, -1')
        self.stamp(1)
        if self.lighth:
            a('s_cmp_lt_u32 s4, 28'); a('s_cbranch_scc1 L_b_nh')
            a('s_call_b64 s[90:91], L_h1')
            a('v_mov_b32 v13, 0')
            a('L_b_nh:')
        a('s_mov_b64 exec, 1')
        a('s_cmp_lg_u32 s4, 0'); a('s_cbranch_scc1 L_b_fl')
        if self.nohello: a('s_mov_b32 s85, 2'); a('s_sleep 64')
        else:
            self.pollcnt(4)
            a('v_readfirstlane_b32 s6, v14')
            a('s_lshl_b32 s85, s85, 5'); a('s_cmp_eq_u32 s85, s6'); a(f's_cselect_b32 s85, {1 if self.force_slow else 2}, 1')
            self.pollcnt(0)
        a('v_mov_b32 v16, s85'); a(f'buffer_store_dword v16, v13, {DBG}, 0 offen offset:128 sc1')
        a('s_branch L_b_fm')
        a('L_b_fl:')
        self.poll([f'buffer_load_dword v16, v13, {DBG}, 0 offen offset:128 sc1'], [16], 17, zero=True, sleep=8)
        a('L_b_fm:')
        a('v_readfirstlane_b32 s5, v16'); a('s_mov_b64 exec, -1')
        self.arrive(C_MODE, 8, 9, 's5')
        self.stamp(7)
        a('s_branch L_b_w2')
        a('L_b_nc:')
        a('s_barrier')
        if self.lighth:
            a('s_cmp_lt_u32 s4, 28'); a('s_cbranch_scc1 L_b_w2')
            a('s_call_b64 s[90:91], L_h1')
        a('L_b_w2:')
        if self.prio: a('s_setprio 2')
        a('s_cmp_ge_u32 s4, 28'); a('s_cbranch_scc1 L_b_now2')
        if self.early2:
            a('s_cmp_eq_u32 s3, 4'); a('s_cbranch_scc1 L_b_e4')
            self.unit_loads(32, 3, W2, 's82', 1024)
            self.waitc(C_H, 1, 8, 9)
            a('s_branch L_b_e5')
            a('L_b_e4:')
            self.unit_loads(32, 3, W2, 's82', 1024)
            a('L_b_e5:')
        else:
            self.waitc(C_H, 1, 8, 9)
            self.unit_loads(32, 3, W2, 's82', 1024, depth=self.dl, prior=1)
        a(f's_add_u32 s82, s82, {32*1024}'); self.unit_loads(64, 3, W2, 's82', 1024, depth=self.dl)
        a('s_waitcnt vmcnt(0)')
        self.transpose(32, 96, ds=8); self.transpose(64, 100, ds=8)
        a('L_b_now2:')
        self.stamp(2)
        self.getmode()
        a('s_lshr_b32 s82, s81, 1')
        a('v_lshrrev_b32 v4, 4, v1')
        for i in range(3): a(f'v_add_u32 v{8+i}, {4*i}, v4')
        for i in range(3): a(f'v_lshlrev_b32 v{17+i}, 3, v{8+i}')
        a('s_mul_i32 s5, s82, 96'); a('s_add_u32 s85, s80, s5'); a(f's_add_u32 s85, s85, {ST_OFF}')
        a('v_and_b32 v5, 15, v1')
        for i in range(3): a(f'v_lshlrev_b32 v{12+i}, 11, v{8+i}'); a(f'v_lshl_add_u32 v{12+i}, v5, 4, v{12+i}')
        a('s_lshl_b32 s5, s82, 3'); a('s_lshr_b32 s6, s4, 2'); a('s_add_u32 s5, s5, s6'); a(f's_mul_i32 s5, s5, {12*2048}')
        a('s_and_b32 s6, s4, 3'); a('s_lshl_b32 s6, s6, 9'); a('s_add_u32 s5, s5, s6')
        a('s_and_b32 s6, s81, 1'); a('s_lshl_b32 s6, s6, 8'); a('s_add_u32 s5, s5, s6'); a(f's_add_u32 s83, s5, {MO_BASE}')
        a('v_and_b32 v6, 1, v4'); a('v_lshl_add_u32 v6, v5, 1, v6'); a('v_lshlrev_b32 v6, 1, v6'); a('v_lshrrev_b32 v7, 1, v4'); a('v_lshl_add_u32 v6, v7, 6, v6'); a('s_and_b32 s5, s81, 1'); a('s_lshl_b32 s5, s5, 7'); a(f's_mul_i32 s6, s82, {OSTR}'); a('s_add_u32 s5, s5, s6'); a(f's_add_u32 s5, s5, {OB}'); a('v_add_u32 v6, s5, v6')
        self.sxaddr(20, OSTR, HB, 21); a(f'v_mov_b32 v21, {ZR}')
        for u in range(4): a(f'v_cndmask_b32 v{24+u}, v21, v20, {BM[u]}')
        self.sidx(20)
        for i in range(8): a(f'v_mov_b32 v{84+i}, 0')
        a('s_lshl_b32 s5, s81, 10'); a('s_add_u32 s84, s80, s5'); a(f's_add_u32 s84, s84, {P2_OFF}')
        a(f'v_mov_b32 v22, {CNT + C_Q}'); a('v_mov_b32 v23, 1')
        t1 = [f'buffer_load_dwordx4 {v(32+4*i,4)}, v{12+i}, {WS}, s83 offen sc1' for i in range(3)]
        if self.hold: self.waitc(C_CLR, self.hold, 44, 45)
        self.poll([f'buffer_load_dwordx2 {v(52+2*i,2)}, v{17+i}, {WS}, s85 offen sc1' for i in range(3)], range(52, 58), 16, sleep=self.ssleep)
        for i in range(3): a(f'v_lshlrev_b32 v{17+i}, 7, v{8+i}')
        a('s_lshl_b32 s5, s82, 3'); a('s_lshr_b32 s6, s4, 2'); a('s_add_u32 s5, s5, s6'); a(f's_mul_i32 s5, s5, {12*128}')
        a('s_and_b32 s6, s4, 3'); a('s_lshl_b32 s6, s6, 3'); a('s_add_u32 s5, s5, s6'); a(f's_add_u32 s85, s5, {MS_BASE}')
        self.stamp(3)
        self.poll([f'buffer_load_dwordx2 {v(52+2*i,2)}, v{17+i}, {WS}, s85 offen sc1' for i in range(3)], range(52, 58), 16, sleep=self.ss2)
        for s_ in t1: a(s_)
        self.stamp(4)
        a('v_max3_f32 v16, v52, v54, v56'); self.xrows(16, 17, 'max')
        for i in range(3): a(f'v_sub_f32 v{48+i}, v{52+2*i}, v16')
        for i in range(3): a(f'v_mul_f32 v{48+i}, {LOG2E}, v{48+i}')
        for i in range(3): a(f'v_exp_f32 v{48+i}, v{48+i}')
        a('v_mul_f32 v16, v48, v53')
        for i in range(1, 3): a(f'v_fmac_f32 v16, v{48+i}, v{53+2*i}')
        self.xrows(16, 17)
        a('v_rcp_f32 v16, v16')
        for i in range(3): a(f'v_mul_f32 v{48+i}, v{48+i}, v16')
        a('s_mov_b64 s[94:95], -1')
        def comb(b=32):
            for h in range(2): a(f'v_pk_mul_f32 {v(28+2*h,2)}, {v(b+2*h,2)}, v[48:49] op_sel_hi:[1,0]')
            for h in range(2): a(f'v_pk_fma_f32 {v(28+2*h,2)}, {v(b+4+2*h,2)}, v[48:49], {v(28+2*h,2)} op_sel:[0,1,0] op_sel_hi:[1,1,1]')
            for h in range(2): a(f'v_pk_fma_f32 {v(28+2*h,2)}, {v(b+8+2*h,2)}, v[50:51], {v(28+2*h,2)} op_sel_hi:[1,0,1]')
        if self.pipet1:
            self.npoll2(lambda b: [f'buffer_load_dwordx4 {v(b+4*i,4)}, v{12+i}, {WS}, s83 offen sc1' for i in range(3)], 3, [32, 60], 12, 16, comb, 28, pre=True)
        else: self.npoll(t1, range(32, 44), 16, comb, 28, pre=True)
        self.stamp(5)
        self.red4rows(28)
        a('v_cvt_pk_bf16_f32 v28, v28, v28'); a('ds_write_b16 v6, v28')
        if self.ta_cnt: a('s_mov_b64 exec, 1'); a('ds_add_u32 v22, v23'); a('s_mov_b64 exec, -1')
        else: a('s_waitcnt lgkmcnt(0)'); a('s_barrier')
        a('s_cmp_ge_u32 s4, 28'); a('s_cbranch_scc1 L_b_end')
        a('s_waitcnt vmcnt(0)')
        a('s_barrier'); a('s_barrier')
        for u in range(4): a(f'ds_read_b128 {v(60+4*u,4)}, v{24+u}')
        for m in range(8):
            if m % 2 == 0: a(f's_waitcnt lgkmcnt({3 - m//2})')
            a(f'v_smfmac_f32_16x16x64_bf16 {v(84+4*(m&1),4)}, {v(60+4*(m>>1),4)}, {v(96+8*m,8)}, v20')
        self.pub_pre()
        a('v_pk_add_f32 v[84:85], v[84:85], v[86:87]'); a('v_pk_add_f32 v[86:87], v[88:89], v[90:91]')
        self.pub(f'buffer_store_dwordx4 v[84:87], v2, {WS}, s84 offen')
        self.stamp(6)
        a('L_b_end:')
        self.end()
        self.flush_late()

    def tail_c(self):
        a = self.a
        a('L_tail_c:')
        self.srd(['WM', 'C', 'W1', 'B1', 'X', 'B2']); self.consts()
        a('s_sub_u32 s81, s3, 8')
        self.wvoff(5, 6144, 4); self.xvoff(6, 1024, 0, 4)
        a('s_and_b32 s5, s4, 3'); a('s_lshl_b32 s5, s5, 7'); a('s_lshl_b32 s6, s81, 5'); a('s_add_u32 s83, s5, s6')
        a('s_mul_i32 s5, s83, 6144'); a('s_lshr_b32 s6, s4, 2'); a('s_lshl_b32 s6, s6, 8'); a('s_add_u32 s84, s5, s6')
        a('s_lshl_b32 s83, s83, 1')
        a('s_waitcnt lgkmcnt(0)')
        a(f'buffer_load_dwordx4 v[156:159], v6, {C_}, s83 offen')
        self.unit_loads(96, 5, WM, 's84', 6144, pol=self.mcpol)
        self.tag_load()
        self.stamp(4)
        a('s_barrier')
        a('s_waitcnt vmcnt(8)')
        self.silu4(156, 8)
        a('s_waitcnt vmcnt(0)')
        self.stamp(5)
        self.gemv_fly(96, 156, True)
        a('s_lshl_b32 s5, s81, 10'); a(f's_add_u32 s5, s5, {MP}'); a('v_add_u32 v4, s5, v2')
        self.merge(20); a('ds_write_b128 v4, v[20:23]')
        self.arrive(C_MC, 8, 9)
        a('s_cmp_lg_u32 s3, 8'); a('s_cbranch_scc1 L_c_w1')
        self.tag_make()
        for i in range(4): a(f'v_mov_b32 v{33+2*i}, {TAG}')
        self.waitc(C_MC, 4, 8, 9); self.reduce_parts(MP, 4)
        for i in range(4): a(f'v_mov_b32 v{32+2*i}, v{96+i}')
        a(f's_add_u32 s5, s80, {MC_OFF}')
        a(f'buffer_store_dwordx4 v[32:35], v2, {WS}, s5 offen'); a(f'buffer_store_dwordx4 v[36:39], v2, {WS}, s5 offen offset:1024')
        a(f'buffer_store_dwordx4 v[32:35], v2, {WS}, s5 offen offset:2048 sc1'); a(f'buffer_store_dwordx4 v[36:39], v2, {WS}, s5 offen offset:3072 sc1')
        if self.lighth: self.arrive(C_H, 8, 9)
        self.stamp(6)
        a('L_c_w1:')
        if self.prio: a('s_setprio 1')
        self.waitc(C_H, 1, 8, 9)
        if self.w1pf:
            a('s_cmp_eq_u32 s3, 8'); a('s_cbranch_scc1 L_c_pw')
            a('s_setprio 3')
            a(f's_mul_i32 s5, s4, {16*3584}'); a('s_sub_u32 s6, s3, 9'); a('s_lshl_b32 s6, s6, 10'); a('s_add_u32 s5, s5, s6')
            for i in range(19):
                if i == 18: a('s_cmp_eq_u32 s3, 11'); a('s_cbranch_scc1 L_c_pd')
                if i >= self.w1pf: a(f's_waitcnt vmcnt({self.w1pf-1})')
                a(f'buffer_load_dwordx4 v[32:35], v2, {W1}, s5 offen'); a('s_add_u32 s5, s5, 3072')
            a('L_c_pd:')
            a('s_branch L_c_gm')
            a('L_c_pw:')
            self.waitc(C_CLR, 4, 8, 9)
            a('s_branch L_c_fin')
            a('L_c_gm:')
        else:
            a('s_cmp_eq_u32 s3, 8'); a('s_cbranch_scc1 L_c_fin')
        self.getmode()
        if self.hold: self.waitc(C_CLR, self.hold, 8, 9)
        self.stamp(1)
        a('s_cmp_lg_u32 s3, 9'); a('s_cbranch_scc1 L_c_img')
        a('v_and_b32 v4, 7, v1'); a('v_lshrrev_b32 v5, 4, v1')
        self.own_n('s84')
        a('v_lshlrev_b32 v6, 3, v4'); a('v_lshrrev_b32 v7, 1, v5'); a('v_add_u32 v6, v6, v7'); a('v_lshlrev_b32 v6, 1, v6')
        a('v_and_b32 v7, 1, v5'); a('v_lshl_add_u32 v7, v7, 10, v6')
        a(f'buffer_load_ushort v113, v7, {X_}, s84 offen'); a(f'buffer_load_ushort v115, v6, {B2}, s84 offen')
        a('v_lshrrev_b32 v6, 2, v4'); a('v_lshlrev_b32 v6, 8, v6'); a('v_lshl_add_u32 v6, v5, 4, v6'); a('v_and_b32 v7, 3, v4'); a('v_lshl_add_u32 v6, v7, 2, v6')
        a('s_lshr_b32 s5, s4, 3'); a(f's_mul_i32 s5, s5, {2*ASTR}'); a('s_and_b32 s6, s4, 1'); a('s_lshl_b32 s6, s6, 9'); a('s_add_u32 s5, s5, s6')
        a('s_and_b32 s6, s4, 6'); a('s_lshl_b32 s6, s6, 5'); a('s_add_u32 s5, s5, s6'); a(f's_add_u32 s85, s5, {AUXREG+MR_OFF}')
        loads = []
        for q in range(2):
            for ks in range(2):
                loads.append(f's_add_u32 s6, s85, {(24*q+ks)*ASTR}')
                loads.append(f'buffer_load_dword v{96+2*q+ks}, v6, {WS}, s6 offen sc1')
        self.poll(loads, range(96, 100), 8, sleep=self.psleep)
        a('v_add_f32 v112, v96, v97'); a('v_add_f32 v114, v98, v99')
        self.rnd2(112, 114, 8)
        a('v_lshlrev_b32 v113, 16, v113'); a('v_lshlrev_b32 v115, 16, v115')
        a('v_lshlrev_b32 v5, 2, v5'); a('v_lshl_add_u32 v5, v4, 4, v5'); a(f'v_add_u32 v5, {SMALL}, v5')
        for k in range(4): a(f'ds_write_b32 v5, v{112+k} offset:{128*k}')
        a('s_branch L_c_fa' if self.ta_cnt else 's_branch L_c_fin')
        a('L_c_img:')
        a('s_sub_u32 s5, s3, 10'); a('s_lshl_b32 s5, s5, 4')
        a('v_and_b32 v4, 31, v1'); a('v_lshlrev_b32 v4, 5, v4'); a('v_lshrrev_b32 v5, 5, v1'); a(f'v_mul_u32_u24 v5, {2*ASTR}, v5'); a('v_add_u32 v4, v4, v5'); a('v_add_u32 v4, s5, v4')
        a('v_lshlrev_b32 v5, 5, v1'); a('v_add_u32 v5, s5, v5'); a(f'v_add_u32 v5, {IMA}, v5')
        loads = []
        for q in range(2):
            for i in range(2):
                for ks in range(2):
                    loads.append(f's_mov_b32 s6, {AUXREG + MR_OFF + ((4+4*q+2*i)*2+ks)*ASTR}')
                    loads.append(f'buffer_load_dwordx4 {v(96+16*q+8*i+4*ks,4)}, v4, {WS}, s6 offen sc1')
        self.poll(loads, range(96, 128), 8, sleep=self.psleep)
        for q in range(2):
            for i in range(2):
                for r in range(4): a(f'v_add_f32 v{128+8*q+4*i+r}, v{96+16*q+8*i+r}, v{100+16*q+8*i+r}')
        for p in range(128, 144, 2): self.rnd2(p, p + 1, 8)
        for i in range(8): a(f'v_add_f32 v{136+i}, 1.0, v{136+i}')
        for p in range(136, 144, 2): self.rnd2(p, p + 1, 8)
        a('v_add_f32 v10, v128, v129')
        for i in range(2, 8): a(f'v_add_f32 v10, v10, v{128+i}')
        self.wavesum(10, 11); a('v_mul_f32 v10, 0x3b000000, v10')
        for i in range(8): a(f'v_sub_f32 v{128+i}, v{128+i}, v10')
        a('ds_write_b128 v5, v[136:139]'); a('ds_write_b128 v5, v[140:143] offset:2048')
        a(f'ds_write_b128 v5, v[128:131] offset:{IMS-IMA}'); a(f'ds_write_b128 v5, v[132:135] offset:{IMS-IMA+2048}')
        if self.ta_cnt:
            a('L_c_fa:'); self.arrive(C_MR, 8, 9)
        a('L_c_fin:')
        self.stamp(7)
        a('s_cmp_ge_u32 s4, 28'); a('s_cbranch_scc1 L_c_last')
        a('v_bfe_u32 v3, v1, 3, 2'); a('v_lshlrev_b32 v3, 3, v3'); a('v_lshrrev_b32 v4, 5, v1'); a('v_add_u32 v3, v3, v4')
        a('v_mul_u32_u24 v3, 3584, v3'); a('v_and_b32 v4, 7, v1'); a('v_lshl_add_u32 v3, v4, 4, v3')
        a('s_cmp_lg_u32 s3, 8'); a('s_cbranch_scc1 L_c_b1')
        a('s_lshl_b32 s82, s4, 7'); a('s_mov_b32 s83, 0')
        a('L_c_dma:')
        for i in range(4):
            if i: a(f's_add_u32 s5, s82, {2*i*3584}')
            a(f's_add_u32 m0, s83, {1024*i}')
            a(f's_waitcnt vmcnt({self.dw1-1})')
            a(f'buffer_load_dwordx4 v3, {W1}, {"s5" if i else "s82"} offen {"" if self.w1pf else self.wpol} lds')
        a(f's_add_u32 s82, s82, {32*3584}'); a('s_add_u32 s83, s83, 4096'); a('s_cmp_lt_u32 s83, 65536'); a('s_cbranch_scc1 L_c_dma')
        if self.hold: self.arrive(C_CLR, 8, 9)
        a('L_c_b1:')
        a('v_and_b32 v4, 15, v1'); a('v_lshlrev_b32 v4, 1, v4'); a('s_lshl_b32 s5, s4, 7'); a('s_lshl_b32 s6, s81, 5'); a('s_add_u32 s5, s5, s6')
        a(f'buffer_load_ushort v24, v4, {B1}, s5 offen')
        a('s_waitcnt lgkmcnt(0)')
        self.stamp(2)
        if not self.ta_cnt: a('s_barrier')
        a('s_waitcnt vmcnt(0)')
        self.arrive(C_W1, 8, 9); self.waitc(C_W1, 4, 8, 9)
        a('v_lshrrev_b32 v3, 4, v1'); a('v_lshlrev_b32 v3, 10, v3'); a('v_bfe_u32 v4, v1, 2, 2'); a('v_lshl_add_u32 v3, v4, 7, v3')
        a('v_and_b32 v4, 3, v1'); a('v_lshl_add_u32 v3, v4, 3, v3'); a('s_lshl_b32 s5, s81, 5'); a('v_add_u32 v3, s5, v3')
        for kb in range(16):
            a(f'ds_read_b64_tr_b16 {v(32+4*kb,2)}, v3 offset:{4096*kb}'); a(f'ds_read_b64_tr_b16 {v(34+4*kb,2)}, v3 offset:{4096*kb+512}')
            if kb % 4 == 3: a('s_waitcnt lgkmcnt(0)')
        a('v_lshlrev_b32 v20, 16, v24'); a('v_mov_b32 v21, v20'); a('v_mov_b32 v22, 0'); a('v_mov_b32 v23, 0')
        for i in range(4): a(f'v_mov_b32 v{24+i}, 0')
        self.sxaddr(3, YSTR, YB, 4); self.sidx(6)
        a('v_bfe_u32 v4, v1, 1, 1'); a('v_lshlrev_b32 v4, 6, v4'); a('v_bfe_u32 v5, v1, 2, 2'); a('v_lshl_add_u32 v4, v5, 2, v4'); a('v_and_b32 v5, 1, v1'); a('v_lshl_add_u32 v4, v5, 1, v4')
        a('s_lshl_b32 s5, s81, 4'); a(f's_add_u32 s5, s5, {HB}'); a('v_add_u32 v4, s5, v4')
        c0 = -2.0 * 1.4426950408889634 * 0.7978845608028654
        import struct
        f2u = lambda x: struct.unpack('<I', struct.pack('<f', x))[0]
        a(f's_mov_b32 s82, {f2u(c0):#x}'); a(f'v_mov_b32 v5, {f2u(c0*0.044715):#x}')
        self.stamp(8)
        self.dry_begin('L_c_go')
        self.bar()
        for kb in range(8): a(f'ds_read_b128 {v(96+4*kb,4)}, v3 offset:{128*kb}')
        for kb in range(8):
            a(f's_waitcnt lgkmcnt({7-kb})')
            a(f'v_smfmac_f32_16x16x64_bf16 v[20:23], {v(96+4*kb,4)}, {v(32+8*kb,8)}, v6')
        self.ex(0xffff, 0)
        a('v_pk_add_f32 v[20:21], v[20:21], v[22:23]')
        for r in range(2): a(f'v_mul_f32 v{8+r}, v{20+r}, v{20+r}')
        for r in range(2): a(f'v_fma_f32 v{8+r}, v{8+r}, v5, s82')
        for r in range(2): a(f'v_mul_f32 v{8+r}, v{8+r}, v{20+r}')
        for r in range(2): a(f'v_exp_f32 v{8+r}, v{8+r}')
        for r in range(2): a(f'v_add_f32 v{8+r}, 1.0, v{8+r}')
        for r in range(2): a(f'v_rcp_f32 v{8+r}, v{8+r}')
        for r in range(2): a(f'v_mul_f32 v{8+r}, v{8+r}, v{20+r}')
        a('v_cvt_pk_bf16_f32 v8, v8, v9')
        a('ds_write_b16 v4, v8'); a(f'ds_write_b16_d16_hi v4, v8 offset:{OSTR}')
        a('s_waitcnt lgkmcnt(0)')
        self.stamp(3)
        self.bar()
        self.dry_end('L_c_go')
        self.end()
        a('L_c_last:')
        if self.hold:
            a('s_cmp_lg_u32 s3, 8'); a('s_cbranch_scc1 L_c_l2'); self.arrive(C_CLR, 8, 9); a('L_c_l2:')
        if not self.ta_cnt: a('s_waitcnt lgkmcnt(0)'); a('s_barrier')
        self.end()

    def build(self):
        a = self.a
        a(f'; @launch grid=(256,1,1) block=(768,1,1) lds={LDS_BYTES}')
        a('.amdgcn_target "amdgcn-amd-amdhsa--gfx950"'); a('.text'); a(f'.globl {KNAME}'); a('.p2align 8'); a(f'.type {KNAME},@function'); a(f'{KNAME}:')
        a('s_cmp_ge_u32 s2, 256'); a('s_cbranch_scc1 L_exit')
        self.srd(['K', 'V', 'WS', 'DBG'])
        a('v_lshrrev_b32 v2, 6, v0'); a('v_and_b32 v1, 63, v0'); a('v_readfirstlane_b32 s3, v2')
        self.stamp_init()
        a('s_and_b32 s5, s2, 7'); a('s_lshr_b32 s4, s2, 3'); a('s_cmp_eq_u32 s5, 0'); a('s_cbranch_scc1 L_tail')
        a('s_mul_i32 s6, s4, 37'); a('s_lshr_b32 s6, s6, 8'); a('s_mul_i32 s6, s6, 7'); a('s_sub_u32 s6, s4, s6'); a('s_add_u32 s6, s6, 1')
        a('s_cmp_eq_u32 s5, s6'); a('s_cbranch_scc1 L_head')
        a('s_cmp_gt_u32 s5, s6'); a('s_cselect_b32 s6, 2, 1')
        a('s_mul_i32 s4, s4, 6'); a('s_add_u32 s4, s4, s5'); a('s_sub_u32 s4, s4, s6')
        self.attention()
        a('L_head:')
        self.head()
        a('L_tail:')
        self.tail()
        a('L_exit:'); a('s_endpgm')
        nn = a.fix()
        a('.section .rodata,"a"'); a('.p2align 6'); a(f'.amdhsa_kernel {KNAME}')
        for l in ['next_free_vgpr 168', 'next_free_sgpr 102', 'accum_offset 168', 'group_segment_fixed_size 0', 'kernarg_size 120',
                  'user_sgpr_count 2', 'user_sgpr_kernarg_segment_ptr 1', 'system_sgpr_workgroup_id_x 1']:
            a.L.append(f'  .amdhsa_{l}')
        a('.end_amdhsa_kernel')
        return a.text(), nn

if __name__ == '__main__':
    import argparse
    p = argparse.ArgumentParser()
    p.add_argument('-o', default='k.s'); p.add_argument('--dbg', action='store_true'); p.add_argument('--slow', action='store_true')
    p.add_argument('--thr', type=int, default=3); p.add_argument('--vpre', type=int, default=6); p.add_argument('--vextra', type=int, default=0)
    p.add_argument('--dq', type=int, default=4); p.add_argument('--dwo', type=int, default=16); p.add_argument('--dl', type=int, default=4)
    p.add_argument('--n1', type=int, default=2); p.add_argument('--n2', type=int, default=2); p.add_argument('--qsleep', type=int, default=0); p.add_argument('--qdelay', type=int, default=0); p.add_argument('--mcpol', default='nt'); p.add_argument('--dl0', type=int, default=8); p.add_argument('--wowait', type=int, default=1); p.add_argument('--thr2', type=int, default=3); p.add_argument('--nlast', type=int, default=0); p.add_argument('--early', type=int, default=0); p.add_argument('--dw1', type=int, default=40); p.add_argument('--qsets', type=int, default=1); p.add_argument('--hsets', type=int, default=1); p.add_argument('--hsleep', type=int, default=1); p.add_argument('--prio', type=int, default=0); p.add_argument('--early2', type=int, default=1); p.add_argument('--fakeq', type=int, default=0); p.add_argument('--dbg2', default=None); p.add_argument('--lite', type=int, default=0); p.add_argument('--touch', type=int, default=1); p.add_argument('--dry', type=int, default=0); p.add_argument('--pipe', type=int, default=1); p.add_argument('--thr0', type=int, default=2); p.add_argument('--nfirst', type=int, default=6); p.add_argument('--ibsts', type=int, default=1); p.add_argument('--warm', type=int, default=0); p.add_argument('--nohello', type=int, default=0); p.add_argument('--vgrad', type=int, default=2); p.add_argument('--touch2', type=int, default=1); p.add_argument('--psleep', type=int, default=16); p.add_argument('--ssleep', type=int, default=8); p.add_argument('--mrearly', type=int, default=0); p.add_argument('--n1st', type=int, default=0); p.add_argument('--w1pf', type=int, default=0); p.add_argument('--tsleep', type=int, default=0); p.add_argument('--agdelay', type=int, default=0); p.add_argument('--rsdelay', type=int, default=0); p.add_argument('--ydeep', type=int, default=99); p.add_argument('--nstep', type=int, default=0); p.add_argument('--tacnt', type=int, default=0); p.add_argument('--lighth', type=int, default=1); p.add_argument('--pipet1', type=int, default=0); p.add_argument('--qpol', default='nt'); p.add_argument('--ss2', type=int, default=1); p.add_argument('--hold', type=int, default=5)
    p.add_argument('--wpol', default='nt'); p.add_argument('--kvpol', default='nt')
    g = p.parse_args()
    t, nn = Gen(dbg=g.dbg, thr=g.thr, vpre=g.vpre, vextra=g.vextra, force_slow=g.slow, wpol=g.wpol, kvpol=g.kvpol, dq=g.dq, dwo=g.dwo, dl=g.dl, n1=g.n1, n2=g.n2, qsleep=g.qsleep, qdelay=g.qdelay, mcpol=g.mcpol, dl0=g.dl0, wo_wait=g.wowait, thr2=g.thr2, nlast=g.nlast, early=g.early, dw1=g.dw1, qsets=g.qsets, hsets=g.hsets, hsleep=g.hsleep, prio=g.prio, early2=g.early2, fakeq=g.fakeq, dbg2=tuple(map(int, g.dbg2.split(','))) if g.dbg2 else None, lite=g.lite, touch=g.touch, dry=g.dry, pipe=g.pipe, thr0=g.thr0, nfirst=g.nfirst, ibsts=g.ibsts, warm=g.warm, nohello=g.nohello, vgrad=g.vgrad, touch2=g.touch2, psleep=g.psleep, ssleep=g.ssleep, mrearly=g.mrearly, n1st=g.n1st, w1pf=g.w1pf, tsleep=g.tsleep, agdelay=g.agdelay, rsdelay=g.rsdelay, ydeep=g.ydeep, nstep=g.nstep, ta_cnt=g.tacnt, lighth=g.lighth, pipet1=g.pipet1, qpol=g.qpol, ss2=g.ss2, hold=g.hold).build()
    open(g.o, 'w').write(t)
    print('wrote', g.o, 'lines', t.count('\n'), 'nop states', nn)
```

```python
import sys
from asmlib import Asm
KNAME = 'adaLN_cond__gqa_block_cached__mixer_channel_mlp__decode_kernel'

AUXREG = 0x8000
ASTR = 117 * 128
A_OFF, P2_OFF, MR_OFF, Q_OFF, X1_OFF, ST_OFF, H_OFF, MC_OFF = 0, 4096, 8192, 9216, 10240, 10368, 10624, 10752
MO_BASE = 0x80000
X1G = 0x7e000
MS_BASE = 0xe0000
TS_BASE = 0x200000
WS_NREC = 0x400000
L0 = 65536
H_, LNX, QP, MP, RP, IMA, IMS, YB, QT, OB, ZR, HB, SMALL, CNT = [L0 + x for x in
    (0, 2304, 6400, 14592, 18688, 22784, 26880, 30976, 33280, 33792, 34464, 34816, 35328, 35840)]
YSTR, OSTR, HSTR = 1152, 384, 1088
C_MODE, C_CLR, C_LN, C_MC, C_H, C_Q, C_MR, C_W1 = [4 * i for i in range(8)]
LDS_BYTES = L0 + 35904
QL, MW, FW, AF, PART = 0, 1024, 1536, 1792, 2048
K_, V_, WS, DBG, X_, WQ, WO, W1, B1, W2, B2, C_, WM, OUT = [f's[{8+4*i}:{11+4*i}]' for i in range(14)]
SRDN = dict(K=8, V=12, WS=16, DBG=20, X=24, WQ=28, WO=32, W1=36, B1=40, W2=44, B2=48, C=52, WM=56, OUT=60)
KOFF = dict(X=0, K=8, V=16, WQ=24, WO=32, W1=48, B1=56, W2=64, B2=72, C=80, WM=88, OUT=96, DBG=104, WS=112)
NREC = dict(X=2048, K=0x2000000, V=0x2000000, WQ=0x400000, WO=0x400000, W1=1835008, B1=3584, W2=1835008, B2=1024,
            C=2048, WM=3145728, OUT=2048, DBG=256, WS=WS_NREC)
BM = [f's[{64+2*u}:{65+2*u}]' for u in range(4)]
ML2 = 's[72:73]'
SEL = ['s74', 's75']
HIM = 's76'
LOG2E = 's77'
SMODE = 's78'
STMP = 's79'
EPO = 's96'
TAG = 's97'
POLLC = 's98'
POLL_MAX = 40000
LOG2E_F = 0x3fb8aa3b

def v(b, n=1): return f'v{b}' if n == 1 else f'v[{b}:{b+n-1}]'

class Gen:
    def __init__(self, dbg=False, thr=3, vpre=8, vextra=4, force_slow=False, wpol='nt', kvpol='nt', dq=16, dwo=8, dl=4, n1=2, n2=2, qsleep=0, qdelay=0, mcpol='nt', dl0=4, wo_wait=1, thr2=3, nlast=0, early=0, dw1=16, qsets=4, hsets=2, hsleep=4, prio=1, early2=1, fakeq=0, dbg2=None, lite=0, touch=0, dry=1, pipe=0, thr0=3, nfirst=0, ibsts=1, warm=1, nohello=0, vgrad=0, touch2=0, psleep=16, ssleep=8, mrearly=0, n1st=0, w1pf=0, tsleep=0, agdelay=0, rsdelay=0, ydeep=99, nstep=0, ta_cnt=1, lighth=0, pipet1=0, qpol='nt', ss2=1, hold=5, padto=0):
        self.a = Asm(); self.n = 0; self.late = []; self.dbg = dbg; self.thr = thr; self.vpre = vpre; self.vextra = vextra
        self.n1 = n1; self.n2 = n2; self.qsleep = qsleep; self.qdelay = qdelay; self.mcpol = mcpol; self.dl0 = dl0; self.wo_wait = wo_wait; self.thr2 = thr2; self.nlast = nlast; self.early = early; self.dw1 = dw1; self.qsets = qsets; self.hsets = hsets; self.hsleep = hsleep; self.prio = prio; self.early2 = early2; self.fakeq = fakeq; self.dbg2 = dbg2; self.lite = lite; self.touch = touch; self.dry = dry; self.pipe = pipe; self.thr0 = thr0; self.nfirst = nfirst; self.ibsts = ibsts; self.warm = warm; self.nohello = nohello; self.vgrad = vgrad; self.touch2 = touch2; self.psleep = psleep; self.ssleep = ssleep; self.mrearly = mrearly; self.n1st = n1st; self.w1pf = w1pf; self.tsleep = tsleep; self.agdelay = agdelay; self.rsdelay = rsdelay; self.ydeep = ydeep; self.nstep = nstep; self.ta_cnt = ta_cnt; self.lighth = lighth; self.pipet1 = pipet1; self.qpol = qpol; self.ss2 = ss2; self.hold = hold; self.padto = padto; self.dq = dq; self.dwo = dwo; self.dl = dl; self.force_slow = force_slow; self.wpol = wpol; self.kvpol = kvpol
    def lab(self, p='L'):
        self.n += 1; return f'{p}_{self.n}'
    def srd(self, names):
        a = self.a
        for nm in names: a(f's_load_dwordx2 s[{SRDN[nm]}:{SRDN[nm]+1}], s[0:1], {KOFF[nm]}')
        for nm in names:
            a(f's_mov_b32 s{SRDN[nm]+2}, {NREC[nm]:#x}'); a(f's_mov_b32 s{SRDN[nm]+3}, 0x20000')
    def consts(self):
        a = self.a
        for u in range(4):
            m = 0x000f000f << (4 * u)
            a(f's_mov_b32 s{64+2*u}, {m:#x}'); a(f's_mov_b32 s{65+2*u}, {m:#x}')
        a('s_mov_b32 s72, 0xcccccccc'); a('s_mov_b32 s73, 0xcccccccc')
        a('s_mov_b32 s74, 0x05040100'); a('s_mov_b32 s75, 0x07060302')
        a('s_mov_b32 s76, 0xffff0000'); a(f's_mov_b32 s77, {LOG2E_F:#x}')
    def stamp(self, i):
        if not self.dbg: return
        if self.lite and i not in (0, 15): return
        self.a(f's_memrealtime s[100:101]\ns_waitcnt lgkmcnt(0)\nv_writelane_b32 v0, s100, {i}')
    def cstamp(self, i):
        if not self.dbg: return
        self.a(f's_memtime s[100:101]\ns_waitcnt lgkmcnt(0)\nv_writelane_b32 v0, s100, {i}')
    def stamp_init(self):
        if not self.dbg: return
        self.a('v_mov_b32 v0, 0')
        self.stamp(0); self.cstamp(13)
    def end(self):
        a = self.a
        if self.dbg:
            self.stamp(15); self.cstamp(14)
            a('s_mov_b64 exec, 0xffff')
            a('s_mul_i32 s5, s2, 12'); a('s_add_u32 s5, s5, s3'); a('s_lshl_b32 s5, s5, 6'); a(f's_add_u32 s5, s5, {TS_BASE}')
            a('v_lshlrev_b32 v2, 2, v1')
            a(f'buffer_store_dword v0, v2, {WS}, s5 offen')
            if self.dbg2:
                l = self.lab('LK')
                a(f's_cmp_lg_u32 s2, {self.dbg2[0]}'); a(f's_cbranch_scc1 {l}'); a(f's_cmp_lg_u32 s3, {self.dbg2[1]}'); a(f's_cbranch_scc1 {l}')
                a('v_readlane_b32 s5, v0, 0'); a('v_subrev_u32 v0, s5, v0')
                a('s_mov_b64 exec, 0xfffc'); a(f'buffer_store_dword v0, v2, {DBG}, 0 offen')
                a(f'{l}:')
        a('s_endpgm')
    def poll(self, loads, regs, tmp, zero=False, sleep=0, pre=None):
        a = self.a; lp = self.lab('LP'); ld = self.lab('LD'); lc = self.lab('LC')
        a(f's_mov_b32 {POLLC}, 0')
        if pre: a(f's_branch {lc}')
        a(f'{lp}:')
        for s in loads: a(s)
        a('s_waitcnt vmcnt(0)')
        if pre: a(f'{lc}:')
        op = 'min' if zero else 'max'
        rs = list(regs)
        if len(rs) == 1: src = rs[0]
        else:
            src = tmp
            if len(rs) % 2 == 0: a(f'v_{op}_u32 v{tmp}, v{rs[0]}, v{rs[1]}'); rs = rs[2:]
            else: a(f'v_{op}3_u32 v{tmp}, v{rs[0]}, v{rs[1]}, v{rs[2]}'); rs = rs[3:]
            while rs: a(f'v_{op}3_u32 v{tmp}, v{tmp}, v{rs[0]}, v{rs[1]}'); rs = rs[2:]
        a(f'v_cmp_eq_u32 vcc, {0 if zero else -1}, v{src}')
        a(f's_cbranch_vccz {ld}')
        if sleep: a(f's_sleep {sleep}')
        a(f's_add_u32 {POLLC}, {POLLC}, 1'); a(f's_cmp_lt_u32 {POLLC}, {POLL_MAX}'); a(f's_cbranch_scc1 {lp}')
        a(f'{ld}:')
    def spoll(self, base, offs, zero=False, sleep=2, ge=None):
        a = self.a; lp = self.lab('LS'); ld = self.lab('LT')
        a(f's_mov_b32 {POLLC}, 0'); a(f'{lp}:')
        for i, o in enumerate(offs): a(f's_load_dword s{88+i}, {base}, {o:#x} glc')
        a('s_waitcnt lgkmcnt(0)')
        if ge is not None:
            a('s_and_b32 s89, s88, 0x3f'); a(f's_cmp_ge_u32 s89, {ge}')
        else:
            for i in range(1, len(offs)): a(f's_{"min" if zero else "max"}_u32 s88, s88, s{88+i}')
            a(f's_cmp_lg_u32 s88, {0 if zero else -1}')
        a(f's_cbranch_scc1 {ld}')
        if sleep: a(f's_sleep {sleep}')
        a(f's_add_u32 {POLLC}, {POLLC}, 1'); a(f's_cmp_lt_u32 {POLLC}, {POLL_MAX}'); a(f's_cbranch_scc1 {lp}')
        a(f'{ld}:')
    def tag_load(self):
        self.a(f's_load_dword {EPO}, s[16:17], 0x0')
    def tag_make(self):
        a = self.a
        a('s_waitcnt lgkmcnt(0)'); a(f's_mul_i32 {TAG}, {EPO}, 0x9e3779b1'); a(f's_add_u32 {TAG}, {TAG}, 0x85ebca6b')
    def tpoll(self, loads, tagregs, sleep=0):
        a = self.a; lp = self.lab('LQ'); ld = self.lab('LR')
        a(f's_mov_b32 {POLLC}, 0'); a(f'{lp}:')
        for s_ in loads: a(s_)
        a('s_waitcnt vmcnt(0)')
        for i, r in enumerate(tagregs):
            if i == 0: a(f'v_cmp_ne_u32 vcc, {TAG}, v{r}')
            else: a(f'v_cmp_ne_u32 s[88:89], {TAG}, v{r}'); a('s_or_b64 vcc, vcc, s[88:89]')
        a('s_cmp_eq_u64 vcc, 0'); a(f's_cbranch_scc1 {ld}')
        if sleep: a(f's_sleep {sleep}')
        a(f's_add_u32 {POLLC}, {POLLC}, 1'); a(f's_cmp_lt_u32 {POLLC}, {POLL_MAX}'); a(f's_cbranch_scc1 {lp}')
        a(f'{ld}:')
    def tpoll_pipe(self, mk, nld, base, dst, sets, gap):
        a = self.a; lp = self.lab('LU'); ld = self.lab('LV'); outs = [self.lab('LO') for _ in range(sets)]
        for k in range(sets - 1):
            for s_ in mk(base + 4 * nld * k): a(s_)
            if gap: a(f's_sleep {gap}')
        a(f's_mov_b32 {POLLC}, 0'); a(f'{lp}:')
        for k in range(sets):
            kn = (k + sets - 1) % sets
            for s_ in mk(base + 4 * nld * kn): a(s_)
            a(f's_waitcnt vmcnt({nld * (sets - 1)})')
            b = base + 4 * nld * k
            for i in range(2 * nld):
                if i == 0: a(f'v_cmp_ne_u32 vcc, {TAG}, v{b+1}')
                else: a(f'v_cmp_ne_u32 s[88:89], {TAG}, v{b+1+2*i}'); a('s_or_b64 vcc, vcc, s[88:89]')
            a('s_cmp_eq_u64 vcc, 0'); a(f's_cbranch_scc1 {outs[k]}')
            if gap: a(f's_sleep {gap}')
        a(f's_add_u32 {POLLC}, {POLLC}, 1'); a(f's_cmp_lt_u32 {POLLC}, {POLL_MAX}'); a(f's_cbranch_scc1 {lp}')
        for k in range(sets):
            a(f'{outs[k]}:')
            b = base + 4 * nld * k
            for i in range(nld): a(f'v_mov_b32 v{dst+2*i}, v{b+4*i}'); a(f'v_mov_b32 v{dst+2*i+1}, v{b+4*i+2}')
            if k < sets - 1: a(f's_branch {ld}')
        a(f'{ld}:')
    def ex(self, lo, hi):
        self.a(f's_and_b32 exec_lo, {lo:#x}, s94'); self.a(f's_and_b32 exec_hi, {hi:#x}, s95')
    def exfull(self): self.a('s_mov_b64 exec, s[94:95]')
    def bar(self):
        if not (self.dry or self.warm): self.a('s_barrier'); return
        l = self.lab('LB'); self.a(f's_cbranch_execz {l}'); self.a('s_barrier'); self.a(f'{l}:')
    def dry_begin(self, label):
        a = self.a
        if not self.dry: a('s_mov_b64 s[94:95], -1'); return
        a('s_mov_b64 s[94:95], 0'); a('s_mov_b64 exec, s[94:95]'); a(f'{label}:')
    def dry_end(self, label):
        a = self.a; l = self.lab('LN')
        if not self.dry: return
        a(f's_cbranch_execnz {l}'); a('s_mov_b64 s[94:95], -1'); a('s_mov_b64 exec, -1'); a(f's_branch {label}'); a(f'{l}:')
    def ppoll(self, mk, nld, nregs, bases, tmp, consume, delay=0):
        a = self.a; lp = self.lab('LP'); ld = self.lab('LD'); o = [self.lab('LO') for _ in bases]
        if self.pipe < 2:
            if delay: a(f's_sleep {delay}')
            self.poll(mk(bases[0]), range(bases[0], bases[0] + nregs), tmp, sleep=self.tsleep); consume(bases[0]); return
        for s_ in mk(bases[0]): a(s_)
        a(f's_mov_b32 {POLLC}, 0'); a(f'{lp}:')
        for k, b in enumerate(bases):
            for s_ in mk(bases[1 - k]): a(s_)
            a(f's_waitcnt vmcnt({nld})')
            rs = list(range(b, b + nregs))
            if len(rs) % 2 == 0: a(f'v_max_u32 v{tmp}, v{rs[0]}, v{rs[1]}'); rs = rs[2:]
            else: a(f'v_max3_u32 v{tmp}, v{rs[0]}, v{rs[1]}, v{rs[2]}'); rs = rs[3:]
            while rs: a(f'v_max3_u32 v{tmp}, v{tmp}, v{rs[0]}, v{rs[1]}'); rs = rs[2:]
            a(f'v_cmp_eq_u32 vcc, -1, v{tmp}'); a(f's_cbranch_vccz {o[k]}')
        a(f's_add_u32 {POLLC}, {POLLC}, 1'); a(f's_cmp_lt_u32 {POLLC}, {POLL_MAX}'); a(f's_cbranch_scc1 {lp}')
        a(f'{o[1]}:'); consume(bases[1]); a(f's_branch {ld}')
        a(f'{o[0]}:'); consume(bases[0])
        a(f'{ld}:')
    def arrive(self, c, t0, t1, val=1):
        a = self.a
        a(f'v_mov_b32 v{t0}, {CNT + c}'); a(f'v_mov_b32 v{t1}, {val}' if isinstance(val, int) else f'v_mov_b32 v{t1}, {val}')
        a('s_mov_b64 exec, 1'); a(f'ds_add_u32 v{t0}, v{t1}'); a('s_mov_b64 exec, -1')
    def waitc(self, c, target, t0, t1, dst=STMP):
        a = self.a; lp = self.lab('LW'); ld = self.lab('LX')
        a(f'v_mov_b32 v{t0}, {CNT + c}'); a(f's_mov_b32 {POLLC}, 0'); a(f'{lp}:')
        a(f'ds_read_b32 v{t1}, v{t0}'); a('s_waitcnt lgkmcnt(0)'); a(f'v_readfirstlane_b32 {dst}, v{t1}')
        a(f's_cmp_ge_u32 {dst}, {target}'); a(f's_cbranch_scc1 {ld}')
        a('s_sleep 1'); a(f's_add_u32 {POLLC}, {POLLC}, 1'); a(f's_cmp_lt_u32 {POLLC}, {POLL_MAX*8}'); a(f's_cbranch_scc1 {lp}')
        a(f'{ld}:')
    def pub(self, ins):
        a = self.a; lf = self.lab('LF'); ld = self.lab('LG')
        a(f's_cbranch_scc0 {lf}'); a(ins); a(f'{ld}:')
        self.late.append([f'{lf}:', ins + ' sc1', f's_branch {ld}'])
    def pub_pre(self): self.a(f's_cmp_eq_u32 {SMODE}, 2')
    def flush_late(self):
        for blk in self.late:
            for l in blk: self.a(l)
        self.late = []
    def npoll(self, loads, regs, tmp, compute, res, pre=False):
        a = self.a; lp = self.lab('LP'); ld = self.lab('LD'); lc = self.lab('LC')
        a(f's_mov_b32 {POLLC}, 0')
        if pre: a(f's_branch {lc}')
        a(f'{lp}:')
        for s_ in loads: a(s_)
        a(f'{lc}:')
        a('s_waitcnt vmcnt(0)')
        compute()
        a(f'v_cmp_u_f32 vcc, v{res}, v{res+1}'); a(f'v_cmp_u_f32 s[92:93], v{res+2}, v{res+3}'); a('s_or_b64 vcc, vcc, s[92:93]')
        a(f's_cbranch_vccnz {ld}_r'); a(f'{ld}:')
        rs = list(regs); blk = [f'{ld}_r:', f's_add_u32 {POLLC}, {POLLC}, 1', f's_and_b32 s5, {POLLC}, 31', f's_cbranch_scc1 {lp}',
                                f'v_max_u32 v{tmp}, v{rs[0]}, v{rs[1]}']
        rs = rs[2:]
        while rs: blk.append(f'v_max3_u32 v{tmp}, v{tmp}, v{rs[0]}, v{rs[1]}'); rs = rs[2:]
        blk += [f'v_cmp_eq_u32 vcc, -1, v{tmp}', f's_cbranch_vccz {ld}', f's_cmp_lt_u32 {POLLC}, {POLL_MAX}', f's_cbranch_scc1 {lp}', f's_branch {ld}']
        self.late.append(blk)
        return lc
    def npoll2(self, mk, nld, bases, nregs, tmp, compute, res, pre=False):
        a = self.a; lp = self.lab('LP'); ld = self.lab('LD'); l2 = self.lab('LE')
        if not pre:
            for s_ in mk(bases[0]): a(s_)
        a(f's_mov_b32 {POLLC}, 0'); a(f'{lp}:')
        def rnd(k):
            for s_ in mk(bases[1 - k]): a(s_)
            a(f's_waitcnt vmcnt({nld})')
            compute(bases[k])
            a(f'v_cmp_u_f32 vcc, v{res}, v{res+1}'); a(f'v_cmp_u_f32 s[92:93], v{res+2}, v{res+3}'); a('s_or_b64 vcc, vcc, s[92:93]')
        rnd(0); a(f's_cbranch_vccz {ld}')
        rnd(1); a(f's_cbranch_vccnz {ld}_r'); a(f'{ld}:')
        rs = list(range(bases[1], bases[1] + nregs))
        blk = [f'{ld}_r:', f's_add_u32 {POLLC}, {POLLC}, 1', f's_and_b32 s5, {POLLC}, 31', f's_cbranch_scc1 {lp}', f'v_max_u32 v{tmp}, v{rs[0]}, v{rs[1]}']
        rs = rs[2:]
        while rs: blk.append(f'v_max3_u32 v{tmp}, v{tmp}, v{rs[0]}, v{rs[1]}'); rs = rs[2:]
        blk += [f'v_cmp_eq_u32 vcc, -1, v{tmp}', f's_cbranch_vccz {ld}', f's_cmp_lt_u32 {POLLC}, {POLL_MAX}', f's_cbranch_scc1 {lp}', f's_branch {ld}']
        self.late.append(blk)
    def rnd2(self, x, y, t):
        a = self.a
        a(f'v_cvt_pk_bf16_f32 v{t}, v{x}, v{y}'); a(f'v_lshlrev_b32 v{x}, 16, v{t}'); a(f'v_and_b32 v{y}, {HIM}, v{t}')
    def rowsum(self, x, op='add'):
        for n in (8, 4, 2, 1): self.a(f'v_{op}_f32_dpp v{x}, v{x}, v{x} row_ror:{n} row_mask:0xf bank_mask:0xf')
    def xrows(self, x, t, op='add'):
        a = self.a
        a(f'v_mov_b32 v{t}, v{x}'); a(f'v_permlane16_swap_b32 v{x}, v{t}'); a(f'v_{op}_f32 v{x}, v{x}, v{t}')
        a(f'v_mov_b32 v{t}, v{x}'); a(f'v_permlane32_swap_b32 v{x}, v{t}'); a(f'v_{op}_f32 v{x}, v{x}, v{t}')
    def wavesum(self, x, t): self.rowsum(x); self.xrows(x, t)
    def red4rows(self, o):
        a = self.a
        a(f'v_permlane32_swap_b32 v{o}, v{o+2}'); a(f'v_permlane32_swap_b32 v{o+1}, v{o+3}')
        a(f'v_add_f32 v{o}, v{o}, v{o+2}'); a(f'v_add_f32 v{o+1}, v{o+1}, v{o+3}')
        a(f'v_permlane16_swap_b32 v{o}, v{o+1}'); a(f'v_add_f32 v{o}, v{o}, v{o+1}')
    def silu4(self, r, t):
        a = self.a
        a('s_mov_b32 s99, 0x7e800000')
        for i in range(4):
            lo, hi, e0, e1 = t, t + 1, t + 2, t + 3
            a(f'v_lshlrev_b32 v{lo}, 16, v{r+i}'); a(f'v_and_b32 v{hi}, {HIM}, v{r+i}')
            a(f'v_mul_f32 v{e0}, {LOG2E}, v{lo}'); a(f'v_mul_f32 v{e1}, {LOG2E}, v{hi}')
            a(f'v_exp_f32 v{e0}, -v{e0}'); a(f'v_exp_f32 v{e1}, -v{e1}')
            a(f'v_add_f32 v{e0}, 1.0, v{e0}'); a(f'v_add_f32 v{e1}, 1.0, v{e1}')
            r0, r1, q0, q1 = t + 4, t + 5, t + 6, t + 7
            a(f'v_rcp_f32 v{r0}, v{e0}'); a(f'v_rcp_f32 v{r1}, v{e1}')
            a(f'v_mul_f32 v{q0}, v{lo}, v{r0}'); a(f'v_mul_f32 v{q1}, v{hi}, v{r1}')
            a(f'v_cmp_gt_f32 s[88:89], s99, v{e0}'); a(f'v_fma_f32 v{lo}, -v{q0}, v{e0}, v{lo}'); a(f'v_fma_f32 v{lo}, v{lo}, v{r0}, v{q0}')
            a(f'v_cndmask_b32 v{lo}, v{q0}, v{lo}, s[88:89]')
            a(f'v_cmp_gt_f32 s[90:91], s99, v{e1}'); a(f'v_fma_f32 v{hi}, -v{q1}, v{e1}, v{hi}'); a(f'v_fma_f32 v{hi}, v{hi}, v{r1}, v{q1}')
            a(f'v_cndmask_b32 v{hi}, v{q1}, v{hi}, s[90:91]')
            a(f'v_cvt_pk_bf16_f32 v{r+i}, v{lo}, v{hi}')
    def transpose(self, raw, dst, jjs=range(4), rs=4, ds=4):
        for jj in jjs:
            for m in range(8):
                self.a(f'v_perm_b32 v{dst+ds*m+jj}, v{raw+rs*(2*jj+1)+(m>>1)}, v{raw+rs*(2*jj)+(m>>1)}, {SEL[m&1]}')
    def sxaddr(self, dst, bstride, base, t):
        a = self.a
        self.xvoff(dst, bstride, base, t); a(f'v_bfe_u32 v{t}, v1, 1, 1'); a(f'v_lshl_add_u32 v{dst}, v{t}, 6, v{dst}')
    def sidx(self, dst):
        self.a(f'v_mov_b32 v{dst}, 0x4444'); self.a(f'v_mov_b32 v{dst+1}, 0xeeee'); self.a(f'v_cndmask_b32 v{dst}, v{dst}, v{dst+1}, {ML2}')
    def gemv_fly(self, raw, xrep, first, xv=8, T=12, acc=20):
        a = self.a
        for u in range(4):
            for i in range(4): a(f'v_cndmask_b32 v{xv+i}, 0, v{xrep+i}, {BM[u]}')
            for e in range(2):
                for jj in range(4):
                    a(f'v_perm_b32 v{T+4*e+jj}, v{raw+4*(2*jj+1)+u}, v{raw+4*(2*jj)+u}, {SEL[e]}')
            for e in range(2):
                c = '0' if (first and u == 0) else v(acc + 4 * e, 4)
                a(f'v_mfma_f32_16x16x32_bf16 {v(acc+4*e,4)}, {v(T+4*e,4)}, {v(xv,4)}, {c}')
    def merge(self, acc, pre=False):
        if pre: self.pub_pre()
        for r in range(4): self.a(f'v_cndmask_b32 v{acc+r}, v{acc+r}, v{acc+4+r}, {ML2}')
    def sanitize(self, r, n):
        pass
    def unit_loads(self, raw, voff, srd, sbase, rs, rows=None, pol=None, depth=None, prior=99, hook=None, qs=4):
        a = self.a; pol = self.wpol if pol is None else pol
        for j in range(8):
            off = (rows[j] if rows else j) * rs
            if depth and prior + j >= depth: a(f's_waitcnt vmcnt({depth-1})')
            if off < 4096: a(f'buffer_load_dwordx4 {v(raw+qs*j,4)}, v{voff}, {srd}, {sbase} offen offset:{off} {pol}')
            else:
                a(f's_add_u32 s7, {sbase}, {off}')
                a(f'buffer_load_dwordx4 {v(raw+qs*j,4)}, v{voff}, {srd}, s7 offen {pol}')
            if hook and j == min(hook[0], 7): a(hook[1])
    def wvoff(self, dst, rs, t):
        a = self.a
        a(f'v_lshrrev_b32 v{dst}, 4, v1'); a(f'v_mul_u32_u24 v{dst}, {8*rs}, v{dst}')
        a(f'v_and_b32 v{t}, 15, v1'); a(f'v_lshl_add_u32 v{dst}, v{t}, 4, v{dst}')
    def xvoff(self, dst, bstride, base, t):
        a = self.a
        a(f'v_and_b32 v{dst}, 1, v1'); a(f'v_mul_u32_u24 v{dst}, {bstride}, v{dst}')
        a(f'v_lshrrev_b32 v{t}, 4, v1'); a(f'v_lshl_add_u32 v{dst}, v{t}, 4, v{dst}')
        if base: a(f'v_add_u32 v{dst}, {base}, v{dst}')

    def attention(self):
        a = self.a
        a('s_mov_b32 s5, 0x15555556'); a('s_mul_hi_u32 s80, s4, s5')
        a('s_mul_i32 s5, s80, 12'); a('s_sub_u32 s81, s4, s5')
        a('s_cmp_lt_u32 s81, 8'); a('s_cselect_b32 s82, 11, 10')
        a('s_cmp_ge_u32 s3, 11'); a('s_cbranch_scc1 L_att_ctl')
        a('s_cmp_ge_u32 s3, s82'); a('s_cbranch_scc1 L_exit')
        a('s_min_u32 s5, s81, 8'); a('s_mul_i32 s6, s81, 10'); a('s_add_u32 s5, s5, s6'); a('s_lshl_b32 s5, s5, 14')
        a('s_lshl_b32 s6, s80, 21'); a('s_add_u32 s5, s5, s6'); a('s_lshl_b32 s6, s3, 10'); a('s_add_u32 s83, s5, s6')
        a('s_lshl_b32 s84, s82, 10')
        a('v_bfe_u32 v3, v1, 2, 2'); a('v_lshlrev_b32 v3, 8, v3'); a('v_lshrrev_b32 v4, 4, v1'); a('v_lshl_add_u32 v3, v4, 6, v3')
        a('v_and_b32 v4, 3, v1'); a('v_lshl_add_u32 v3, v4, 4, v3')
        a('v_lshlrev_b32 v2, 4, v1')
        a('s_mov_b32 s85, s83')
        a('s_waitcnt lgkmcnt(0)')
        KB, VB = 32, 96
        issued = [0]
        def thr(d):
            if self.ydeep < 11 and issued[0] >= d:
                l = self.lab('LJ')
                a(f's_cmp_ge_u32 s3, {self.ydeep}'); a(f's_cbranch_scc1 {l}'); a(f's_waitcnt vmcnt({d-1})'); a(f'{l}:'); a(f's_waitcnt vmcnt({d})')
            elif issued[0] >= d: a(f's_waitcnt vmcnt({d-1})')
        for t in range(16):
            ng = sum(t < self.nfirst - self.nstep * g for g in range(3))
            if 0 < ng < 3 and issued[0] >= self.thr0:
                l = self.lab('LI')
                a(f's_cmp_ge_u32 s3, {4*ng}'); a(f's_cbranch_scc1 {l}'); a(f's_waitcnt vmcnt({self.thr0-1})'); a(f'{l}:'); thr(self.thr)
            else: thr(1 if t < self.n1st else self.thr0 if ng else self.thr)
            a(f'buffer_load_dwordx4 {v(KB+4*t,4)}, v3, {K_}, s85 offen {self.kvpol}')
            if t < 15: a('s_add_u32 s85, s85, s84')
            issued[0] += 1
            if t == 0: self.stamp(10)
            if t == 7: self.stamp(7)
            if t == 15: self.stamp(8)
            if t == (0 if self.n1st else min(self.thr, self.thr0) - 1):
                self.consts()
                a('v_and_b32 v28, 3, v1'); a('v_lshlrev_b32 v29, 8, v28'); a('v_lshrrev_b32 v30, 2, v1'); a('v_lshl_add_u32 v29, v30, 4, v29')
                a('s_lshl_b32 s5, s3, 5'); a('v_lshl_add_u32 v28, v28, 3, s5')
                a(f'v_mov_b32 v27, {AF}')
                a('s_mov_b32 s86, 0x3db504f3'); a('s_mov_b32 s92, 0'); a('s_mov_b64 s[94:95], -1')
                a(f's_cmp_ge_u32 s3, {self.ydeep}'); a(f's_cselect_b32 s88, {self.thr+1}, {self.thr}')
                a('s_barrier')
        vorder = [8 * bk + x for bk in range(2) for x in (0, 4, 1, 5, 2, 6, 3, 7)]
        for i in range(16):
            if i >= self.thr + (self.ydeep < 11): a('s_call_b64 s[90:91], L_att_chk')
            else: thr(self.thr)
            a(f's_mul_i32 s85, s84, {vorder[i]}'); a('s_add_u32 s85, s85, s83')
            a(f'buffer_load_dwordx4 {v(VB+4*i,4)}, v2, {V_}, s85 offen {self.kvpol}')
            if i == 7: self.stamp(9)
        self.stamp(1)
        a('s_cmp_lt_i32 s92, 0'); a('s_cbranch_scc1 L_att_pv')
        self.lspin(27, 0, 1, 26)
        a('s_call_b64 s[90:91], L_att_qk')
        a('L_att_pv:')
        a('s_lshl_b32 s5, s3, 11'); a(f's_add_u32 s5, s5, {PART}'); a('v_add_u32 v3, s5, v2')
        a('s_cmp_lg_u32 s3, 0'); a('s_cbranch_scc1 L_att_pv2')
        self.att_red_addr(0)
        self.att_factors()
        a('L_att_pv2:')
        for p in range(8):
            raw = VB + 8 * p; T = 64 + 8 * (p & 3)
            a(f's_waitcnt vmcnt({14 - 2*p})')
            for m in range(8):
                a(f'v_perm_b32 v{T+m}, v{raw+4+(m>>1)}, v{raw+(m>>1)}, {SEL[m&1]}')
                if m == 5: a(f'v_mfma_f32_16x16x32_bf16 v[160:163], {v(T,4)}, {v(KB+4*p,4)}, {"v[160:163]" if p else 0}')
            if p == 7: self.stamp(4)
            a(f'v_mfma_f32_16x16x32_bf16 v[164:167], {v(T+4,4)}, {v(KB+4*p,4)}, {"v[164:167]" if p else 0}')
        a('ds_write_b128 v3, v[160:163]'); a('ds_write_b128 v3, v[164:167] offset:1024')
        a('s_waitcnt lgkmcnt(0)')
        a('s_cbranch_execz L_att_red')
        a('s_cmp_eq_u32 s3, 0'); a('s_cbranch_scc1 L_att_red')
        a('s_barrier')
        self.end()
        a('L_att_chk:')
        a('s_cmp_lt_i32 s92, 0'); a('s_cbranch_scc1 L_att_w2')
        a('s_cmp_gt_i32 s92, 0'); a('s_cbranch_scc1 L_att_cd')
        a('s_mov_b32 s93, 0')
        a('L_att_sp:')
        a('ds_read_b32 v26, v27'); a('s_waitcnt lgkmcnt(0)'); a('v_readfirstlane_b32 s5, v26')
        a('s_cmp_lg_u32 s5, 0'); a('s_cbranch_scc1 L_att_fl')
        if self.ibsts:
            a('s_getreg_b32 s5, hwreg(HW_REG_IB_STS, 0, 4)'); a('s_cmp_lt_u32 s5, s88'); a('s_cbranch_scc1 L_att_wt')
            a('s_add_u32 s93, s93, 1'); a('s_cmp_lt_u32 s93, 24'); a('s_cbranch_scc1 L_att_sp')
        a('L_att_wt:')
        thr(self.thr)
        a('s_setpc_b64 s[90:91]')
        a('L_att_w2:')
        thr(self.thr2)
        a('s_setpc_b64 s[90:91]')
        a('L_att_fl:')
        if self.vgrad: a('s_lshr_b32 s92, s3, 2'); a(f's_mul_i32 s92, s92, {self.vgrad}'); a('s_lshr_b32 s92, s92, 1'); a(f's_add_u32 s92, s92, {self.vextra + 1}')
        else: a(f's_mov_b32 s92, {self.vextra + 1}')
        a('L_att_cd:')
        a('s_sub_u32 s92, s92, 1'); a('s_cmp_eq_u32 s92, 0'); a('s_cbranch_scc1 L_att_qk')
        a('s_setpc_b64 s[90:91]')
        a('L_att_qk:')
        self.stamp(2)
        a(f'ds_read_b128 v[4:7], v29 offset:{QL}')
        a('s_mov_b32 s92, -1')
        a('s_waitcnt lgkmcnt(0)')
        Dr = lambda t: 12 + 4 * t if t < 3 else KB + 4 * (t - 3)
        def dpp(dst, s0, s1, n, bm=0xf): a(f'v_add_f32_dpp v{dst}, v{s0}, v{s1} row_ror:{n} row_mask:0xf bank_mask:{bm:#x}')
        def lvl1(t):
            u = t & 3; D = Dr(t)
            dpp(D + u, D + ((u + 1) & 3), D + u, 12); dpp(D + ((u + 2) & 3), D + ((u + 3) & 3), D + ((u + 2) & 3), 12)
        def lvl2(t):
            u = t & 3; D = Dr(t)
            dpp(8 + (t >> 2), D + ((u + 2) & 3), D + u, 8, 1 << u)
        for t in range(21):
            if t < 16: a(f'v_mfma_f32_16x16x32_bf16 {v(Dr(t),4)}, {v(KB+4*t,4)}, v[4:7], 0')
            if 4 <= t < 20: lvl1(t - 4)
            if t >= 5: lvl2(t - 5)
        def rnd4():
            a('v_cvt_pk_bf16_f32 v12, v8, v9'); a('v_cvt_pk_bf16_f32 v13, v10, v11')
            a('v_lshlrev_b32 v8, 16, v12'); a(f'v_and_b32 v9, {HIM}, v12'); a('v_lshlrev_b32 v10, 16, v13'); a(f'v_and_b32 v11, {HIM}, v13')
        rnd4()
        for i in range(4): a(f'v_mul_f32 v{8+i}, s86, v{8+i}')
        rnd4()
        a('v_max3_f32 v12, v8, v9, v10'); a('v_max_f32 v12, v12, v11')
        a('v_max_f32_dpp v12, v12, v12 row_ror:4 row_mask:0xf bank_mask:0xf')
        a('v_max_f32_dpp v12, v12, v12 row_ror:8 row_mask:0xf bank_mask:0xf')
        self.xrows(12, 13, 'max')
        a(f'v_mul_f32 v14, {LOG2E}, v12')
        for i in range(4): a(f'v_fma_f32 v{8+i}, v{8+i}, {LOG2E}, -v14')
        for i in range(4): a(f'v_exp_f32 v{8+i}, v{8+i}')
        for u in range(4): a(f'v_cndmask_b32 v{20+u}, 0, -1, {BM[u]}')
        a('v_cvt_pk_bf16_f32 v16, v8, v9'); a('v_add_f32 v13, v8, v9'); a('v_cvt_pk_bf16_f32 v17, v10, v11'); a('v_add_f32 v18, v10, v11')
        chain = ['v_add_f32 v13, v13, v18', 'v_add_f32_dpp v13, v13, v13 row_ror:4 row_mask:0xf bank_mask:0xf',
                 'v_add_f32_dpp v13, v13, v13 row_ror:8 row_mask:0xf bank_mask:0xf', 'v_mov_b32 v18, v13', 'v_permlane16_swap_b32 v13, v18',
                 'v_add_f32 v13, v13, v18', 'v_mov_b32 v18, v13', 'v_permlane32_swap_b32 v13, v18', 'v_add_f32 v13, v13, v18', 'v_mov_b32 v14, 1']
        cnt = 0
        for u in range(4):
            for bk in range(2):
                for jj in range(4):
                    n = (4 * (u - jj)) % 16
                    c = f'row_ror:{n}' if n else 'quad_perm:[0,1,2,3]'
                    a(f'v_and_b32_dpp v{KB+16*bk+4*jj+u}, v{16+bk}, v{20+u} {c} row_mask:0xf bank_mask:0xf')
                    cnt += 1
                    if cnt % 3 == 0 and chain: a(chain.pop(0))
        self.ex(0xf, 0); a(f'ds_write_b64 v28, v[12:13] offset:{MW}')
        self.ex(1, 0); a('ds_add_u32 v27, v14 offset:4'); self.exfull()
        self.stamp(3)
        a('s_setpc_b64 s[90:91]')
        a('L_att_ctl:')
        a('s_setprio 3')
        a('v_lshlrev_b32 v2, 4, v1')
        a('v_mov_b32 v16, 0xff800000'); a('v_mov_b32 v17, 0'); a('v_lshlrev_b32 v6, 3, v1'); a(f'ds_write_b64 v6, v[16:17] offset:{MW}')
        for i in range(4): a(f'v_mov_b32 v{8+i}, -1'); a(f'v_mov_b32 v{12+i}, 0')
        a(f'v_mov_b32 v27, {AF}'); a('ds_write_b128 v27, v[12:15]')
        a(f'ds_write_b128 v2, v[12:15] offset:{PART+10*2048}'); a(f'ds_write_b128 v2, v[12:15] offset:{PART+10*2048+1024}')
        a('s_waitcnt lgkmcnt(0)')
        a('s_barrier')
        self.tag_load()
        self.att_red_addr(1)
        a('s_and_b32 s84, s80, 7'); a('s_lshl_b32 s84, s84, 2'); a(f's_mul_i32 s84, s84, {ASTR}'); a(f's_add_u32 s84, s84, {AUXREG}')
        a('s_lshr_b32 s85, s80, 3')
        a(f'buffer_store_dwordx4 v[8:11], v2, {WS}, s87 offen sc1'); a(f'buffer_store_dwordx4 v[8:11], v2, {WS}, s87 offen offset:1024 sc1')
        a('s_lshl_b32 s93, s4, 7'); a(f's_add_u32 s93, s93, {MS_BASE}')
        a('s_mov_b64 exec, 3'); a(f'buffer_store_dwordx4 v[8:11], v2, {WS}, s93 offen sc1'); a('s_mov_b64 exec, -1')
        if self.warm:
            a('v_mov_b32 v29, 0'); a('v_mov_b32 v28, 0'); a('v_mov_b32 v3, 0')
            a('s_mov_b64 s[94:95], 0'); a('s_mov_b64 exec, 0')
            a('s_call_b64 s[90:91], L_att_qk')
            a('s_branch L_att_pv2')
            a('L_att_wd:')
            a('s_mov_b64 exec, -1')
        a('s_mov_b64 s[94:95], -1')
        a('v_mov_b32 v12, 0'); a('v_lshlrev_b32 v6, 3, v1'); a(f'v_mov_b32 v27, {AF}')
        a('v_lshrrev_b32 v7, 5, v1'); a(f'v_mul_u32_u24 v24, {ASTR}, v7'); a('v_and_b32 v16, 31, v1'); a('v_lshl_add_u32 v24, v16, 4, v24')
        a('v_lshlrev_b32 v25, 8, v7'); a('v_lshl_add_u32 v25, v16, 3, v25')
        a('s_lshl_b32 s5, s85, 9'); a('s_add_u32 s86, s84, s5'); a(f's_add_u32 s86, s86, {Q_OFF}'); a(f's_add_u32 s83, s86, {2*ASTR}')
        a(f's_mov_b32 {LOG2E}, {LOG2E_F:#x}')
        self.tag_make()
        if self.qdelay: a(f's_sleep {self.qdelay}')
        self.stamp(1)
        if not self.fakeq: self.tpoll_pipe(lambda b: [f'buffer_load_dwordx4 {v(b,4)}, v24, {WS}, s86 offen sc1', f'buffer_load_dwordx4 {v(b+4,4)}, v24, {WS}, s83 offen sc1'],
                        2, 80, 16, self.qsets, self.qsleep)
        a('v_mov_b32 v26, 1')
        a(f'ds_write_b64 v25, v[16:17] offset:{QL}'); a(f'ds_write_b64 v25, v[18:19] offset:{QL+512}')
        a('ds_write_b32 v27, v26')
        self.stamp(2)
        a('s_mov_b64 exec, 1')
        self.poll([f'buffer_load_dword v16, v12, {DBG}, 0 offen offset:128 sc1'], [16], 17, zero=True, sleep=2)
        a('s_mov_b64 exec, -1')
        a('v_and_b32 v3, 3, v1'); a(f'v_mul_u32_u24 v7, {ASTR}, v3')
        a('s_mul_i32 s5, s85, 12'); a('s_add_u32 s5, s5, s81'); a('s_lshl_b32 s5, s5, 3'); a('s_add_u32 s5, s5, s84'); a(f's_add_u32 s86, s5, {ST_OFF}')
        a('v_mov_b32 v13, 0'); a('s_mov_b64 exec, 0xf'); a(f'buffer_store_dwordx2 v[12:13], v7, {WS}, s86 offen sc1'); a('s_mov_b64 exec, -1')
        a('v_lshlrev_b32 v7, 3, v3')
        self.lspin(27, 4, 's82', 26)
        a(f'ds_read_b64 v[18:19], v6 offset:{MW}'); a('s_waitcnt lgkmcnt(0)')
        a('v_max_f32_dpp v16, v18, v18 row_ror:4 row_mask:0xf bank_mask:0xf')
        a('v_max_f32_dpp v16, v16, v16 row_ror:8 row_mask:0xf bank_mask:0xf')
        self.xrows(16, 17, 'max')
        a('v_sub_f32 v18, v18, v16'); a(f'v_mul_f32 v18, {LOG2E}, v18'); a('v_exp_f32 v18, v18')
        a('v_lshlrev_b32 v6, 2, v1'); a('v_mul_f32 v17, v18, v19')
        a(f'ds_write_b32 v6, v18 offset:{FW}'); a('v_mov_b32 v26, 1'); a('ds_write_b32 v27, v26 offset:8')
        a('v_add_f32_dpp v17, v17, v17 row_ror:4 row_mask:0xf bank_mask:0xf')
        a('v_add_f32_dpp v17, v17, v17 row_ror:8 row_mask:0xf bank_mask:0xf')
        self.xrows(17, 18)
        self.sanitize(16, 2)
        a('s_mov_b64 exec, 0xf'); a(f'buffer_store_dwordx2 v[16:17], v7, {WS}, s93 offen sc1'); a('s_mov_b64 exec, -1')
        self.stamp(3)
        self.att_factors()
        a('L_att_red:')
        self.bar()
        self.stamp(5)
        for w in range(11): a(f'ds_read_b128 {v(32+4*w,4)}, v31 offset:{2048*w}')
        for w in range(11):
            a(f's_waitcnt lgkmcnt({10-w})')
            f = v(12 + (w & ~1), 2); sel = 'op_sel:[0,1,0] op_sel_hi:[1,1,1]' if w & 1 else 'op_sel_hi:[1,0,1]'
            for h in range(2):
                if w == 0: a(f'v_pk_mul_f32 {v(32+2*h,2)}, {v(32+2*h,2)}, {f} op_sel_hi:[1,0]')
                else: a(f'v_pk_fma_f32 {v(32+2*h,2)}, {v(32+4*w+2*h,2)}, {f}, {v(32+2*h,2)} {sel}')
        self.sanitize(32, 4)
        a(f'buffer_store_dwordx4 v[32:35], v30, {WS}, s87 offen sc1')
        if self.warm: a('s_cbranch_execz L_att_wd')
        self.stamp(6)
        if self.dbg: a('s_waitcnt vmcnt(0)')
        self.end()

    def lspin(self, va, off, target, t):
        a = self.a; lp = self.lab('LY'); ld = self.lab('LZ')
        a(f's_mov_b32 {POLLC}, 0'); a(f'{lp}:')
        a(f'ds_read_b32 v{t}, v{va} offset:{off}'); a('s_waitcnt lgkmcnt(0)'); a(f'v_readfirstlane_b32 {STMP}, v{t}')
        a(f's_cmp_ge_u32 {STMP}, {target}'); a(f's_cbranch_scc1 {ld}')
        a('s_sleep 1'); a(f's_add_u32 {POLLC}, {POLLC}, 1'); a(f's_cmp_lt_u32 {POLLC}, {POLL_MAX*8}'); a(f's_cbranch_scc1 {lp}')
        a(f'{ld}:')

    def att_factors(self):
        a = self.a
        self.lspin(27, 8, 1, 26)
        a('v_and_b32 v26, 3, v1'); a('v_lshlrev_b32 v26, 2, v26')
        for w in range(11): a(f'ds_read_b32 v{12+w}, v26 offset:{FW+16*w}')
        a('s_waitcnt lgkmcnt(0)')

    def code_touch(self, hi, nbytes, t):
        a = self.a; here = self.lab('LH')
        a('s_getpc_b64 s[92:93]'); a(f'{here}:')
        a(f's_mov_b32 s94, {hi}-{here}'); a('s_mov_b32 s95, 0x20000')
        a(f'v_lshlrev_b32 v{t}, 6, v1')
        for i in range(0, nbytes, 4096):
            a(f's_mov_b32 s5, {i}'); a(f'buffer_load_dword v{t+1}, v{t}, s[92:95], s5 offen')

    def code_touch2(self, lo, hi, t):
        a = self.a; here = self.lab('LH')
        a('s_getpc_b64 s[92:93]'); a(f'{here}:')
        a(f's_mov_b32 s94, {hi}-{here}'); a('s_mov_b32 s95, 0x20000'); a(f's_mov_b32 s5, {lo}-{here}')
        a(f'v_lshlrev_b32 v{t}, 6, v1')
        a(f'buffer_load_dword v{t+1}, v{t}, s[92:95], s5 offen')

    def att_red_addr(self, e):
        a = self.a
        a('s_lshl_b32 s87, s4, 11'); a(f's_add_u32 s87, s87, {MO_BASE}')
        a('v_and_b32 v30, 3, v1'); a('v_lshlrev_b32 v30, 9, v30'); a('v_lshrrev_b32 v31, 2, v1'); a('v_lshl_add_u32 v30, v31, 4, v30')
        if e: a(f'v_add_u32 v30, {256*e}, v30')
        a(f'v_add_u32 v31, {PART + 1024*e}, v2')

    def xcc_inc(self, dst):
        a = self.a
        a('s_getreg_b32 s5, hwreg(HW_REG_XCC_ID)'); a('s_and_b32 s5, s5, 7')
        a('s_mul_i32 s6, s5, s5'); a('s_lshl_b32 s6, s6, 16'); a('s_lshl_b32 s5, s5, 8'); a('s_add_u32 s5, s5, s6'); a(f's_add_u32 {dst}, s5, 1')

    def lds_init(self):
        a = self.a
        a('v_mov_b32 v8, 0'); a('v_lshlrev_b32 v9, 2, v1'); a(f'v_add_u32 v10, {ZR}, v9'); a('ds_write_b32 v10, v8')
        a(f'v_add_u32 v10, {CNT}, v9'); a('s_mov_b64 exec, 0xffff'); a('ds_write_b32 v10, v8'); a('s_mov_b64 exec, -1')

    def reduce_parts(self, base, n, dst=96):
        a = self.a
        a(f'v_add_u32 v3, {base}, v2')
        for w in range(n): a(f'ds_read_b128 {v(dst+4*w,4)}, v3 offset:{1024*w}')
        a('s_waitcnt lgkmcnt(0)')
        for w in range(1, n):
            for r in range(4): a(f'v_add_f32 v{dst+r}, v{dst+r}, v{dst+4*w+r}')

    def ln_x(self):
        a = self.a
        for i in range(4): a(f'v_lshlrev_b32 v{12+2*i}, 16, v{40+i}'); a(f'v_and_b32 v{13+2*i}, {HIM}, v{40+i}')
        a('v_add_f32 v20, v12, v13')
        for i in range(2, 8): a(f'v_add_f32 v20, v20, v{12+i}')
        self.wavesum(20, 21)
        a('v_mul_f32 v20, 0x3b000000, v20')
        a('v_mov_b32 v22, 0')
        for i in range(8): a(f'v_sub_f32 v21, v{12+i}, v20'); a('v_fmac_f32 v22, v21, v21')
        self.wavesum(22, 21)
        a('v_mul_f32 v22, 0x3b000000, v22')
        self.rnd2(20, 22, 21)
        a('v_add_f32 v22, 0x3727c5ac, v22'); self.rnd2(22, 23, 21)
        a('v_sqrt_f32 v22, v22'); self.rnd2(22, 23, 21)
        a('v_rcp_f32 v23, v22')
        for i in range(8): a(f'v_sub_f32 v{12+i}, v{12+i}, v20')
        for i in range(4): self.rnd2(12 + 2 * i, 13 + 2 * i, 21)
        for i in range(8):
            a(f'v_mul_f32 v24, v{12+i}, v23'); a(f'v_fma_f32 v25, -v24, v22, v{12+i}'); a(f'v_fma_f32 v{12+i}, v25, v23, v24')
        for i in range(4): self.rnd2(12 + 2 * i, 13 + 2 * i, 21)
        a('v_lshlrev_b32 v21, 5, v1'); a('s_lshl_b32 s5, s81, 1'); a(f's_add_u32 s5, s5, {LNX}'); a('v_add_u32 v21, s5, v21')
        a('ds_write_b128 v21, v[12:15]'); a('ds_write_b128 v21, v[16:19] offset:16')
        self.arrive(C_LN, 8, 9)

    def head(self):
        a = self.a
        a(f's_mul_i32 s80, s4, {ASTR}'); a(f's_add_u32 s80, s80, {AUXREG}')
        a('v_lshlrev_b32 v2, 4, v1')
        a('s_cmp_ge_u32 s3, 4'); a('s_cbranch_scc1 L_h_q')
        self.srd(['WM', 'C']); self.consts()
        self.wvoff(5, 6144, 4); self.xvoff(6, 1024, 0, 4)
        a('s_and_b32 s5, s4, 1'); a('s_lshl_b32 s5, s5, 8'); a('s_lshl_b32 s6, s3, 6'); a('s_add_u32 s85, s5, s6')
        a('s_mul_i32 s5, s85, 6144'); a('s_lshr_b32 s6, s4, 1'); a('s_lshl_b32 s6, s6, 8'); a('s_add_u32 s86, s5, s6'); a('s_add_u32 s86, s86, 2048')
        a('s_lshl_b32 s85, s85, 1')
        for i in range(4): a(f'v_mov_b32 v{8+i}, -1')
        a(f's_add_u32 s5, s80, {MR_OFF}')
        a('s_waitcnt lgkmcnt(0)')
        a('s_cmp_lg_u32 s3, 0'); a('s_cbranch_scc1 L_h_nc')
        a(f'buffer_store_dwordx4 v[8:11], v2, {WS}, s5 offen sc1')
        self.tag_load()
        a('L_h_nc:')
        a(f'buffer_load_dwordx4 v[160:163], v6, {C_}, s85 offen'); a(f'buffer_load_dwordx4 v[164:167], v6, {C_}, s85 offen offset:64')
        a('s_cmp_lg_u32 s3, 3'); a('s_cbranch_scc1 L_h_ni')
        self.lds_init(); a('s_waitcnt lgkmcnt(0)')
        a('L_h_ni:')
        a('s_barrier')
        a('s_cmp_lg_u32 s3, 0'); a('s_cbranch_scc1 L_h_wh')
        a('v_mov_b32 v12, 1'); a('v_mov_b32 v13, 0')
        a('v_lshrrev_b32 v3, 3, v1'); a(f'v_mul_u32_u24 v4, {ASTR}, v3'); a('v_and_b32 v7, 7, v1'); a('v_lshl_add_u32 v4, v7, 4, v4')
        a('v_lshlrev_b32 v3, 5, v3'); a('v_bfe_u32 v7, v1, 2, 1'); a(f'v_mul_u32_u24 v7, {HSTR}, v7'); a('v_add_u32 v3, v3, v7'); a('v_and_b32 v7, 3, v1'); a('v_lshl_add_u32 v3, v7, 3, v3')
        a(f'v_add_u32 v3, {H_}, v3')
        self.tag_make()
        a('s_waitcnt vmcnt(2)')
        if not self.nohello: a('s_mov_b64 exec, 1'); a(f'buffer_atomic_add v12, v13, {DBG}, 0 offen sc1'); a('s_mov_b64 exec, -1')
        self.stamp(1)
        for i in range(4): a(f's_mov_b32 s{81+i}, {AUXREG+H_OFF+8*i*ASTR}')
        self.tpoll_pipe(lambda b: [f'buffer_load_dwordx4 {v(b+4*i,4)}, v4, {WS}, s{81+i} offen sc1' for i in range(4)], 4, 32, 16, self.hsets, self.hsleep)
        for i in range(4): a(f'ds_write_b64 v3, {v(16+2*i,2)} offset:{256*i}')
        self.arrive(C_H, 8, 9)
        self.stamp(3)
        a('L_h_wh:')
        a('s_waitcnt vmcnt(0)')
        self.silu4(160, 8); self.silu4(164, 8)
        if self.mrearly: self.waitc(C_LN, 8, 8, 9)
        else: self.waitc(C_W1, 1, 8, 9)
        self.unit_loads(96, 5, WM, 's86', 6144, depth=self.dwo, prior=0)
        a(f's_add_u32 s86, s86, {32*6144}'); self.unit_loads(64, 5, WM, 's86', 6144, depth=self.dwo, prior=8)
        a('s_waitcnt vmcnt(8)')
        self.gemv_fly(96, 160, True)
        a('s_waitcnt vmcnt(0)')
        self.gemv_fly(64, 164, False)
        a('s_lshl_b32 s5, s3, 10'); a(f's_add_u32 s5, s5, {RP}'); a('v_add_u32 v3, s5, v2')
        self.merge(20); a('ds_write_b128 v3, v[20:23]')
        self.arrive(C_MR, 8, 9)
        a('s_cmp_lg_u32 s3, 1'); a('s_cbranch_scc1 L_h_end')
        self.waitc(C_MR, 4, 8, 9); self.reduce_parts(RP, 4); self.sanitize(96, 4)
        a(f's_add_u32 s5, s80, {MR_OFF}'); a(f'buffer_store_dwordx4 v[96:99], v2, {WS}, s5 offen sc1')
        self.stamp(8)
        a('L_h_end:')
        self.end()
        a('L_h_q:')
        self.srd(['WQ']); self.consts()
        a('v_lshrrev_b32 v3, 4, v1'); a('v_lshlrev_b32 v3, 14, v3'); a('v_and_b32 v4, 15, v1'); a('v_lshl_add_u32 v3, v4, 4, v3')
        qrows = [8 * (j & 3) + (j >> 2) for j in range(8)]
        a('s_sub_u32 s81, s3, 4')
        a('s_lshl_b32 s5, s81, 19'); a('s_lshl_b32 s6, s4, 8'); a('s_add_u32 s82, s5, s6')
        a('s_waitcnt lgkmcnt(0)')
        self.tag_load()
        self.stamp(1)
        self.unit_loads(32, 3, WQ, 's82', 8192, qrows, pol=self.qpol, depth=self.dq, prior=0, hook=(self.dq - 1, 's_barrier'))
        a(f's_add_u32 s82, s82, {32*8192}'); self.unit_loads(64, 3, WQ, 's82', 8192, qrows, pol=self.qpol, depth=self.dq, prior=8)
        self.stamp(2)
        a('s_waitcnt vmcnt(8)'); self.transpose(32, 96)
        a('s_waitcnt vmcnt(0)')
        if self.mrearly: self.arrive(C_LN, 8, 9)
        self.transpose(64, 128)
        self.stamp(3)
        self.xvoff(28, HSTR, H_, 29)
        a('s_lshl_b32 s6, s81, 7'); a('v_add_u32 v28, s6, v28'); a(f'v_mov_b32 v29, {ZR}')
        for u in range(4): a(f'v_cndmask_b32 v{24+u}, v29, v28, {BM[u]}')
        a('s_lshl_b32 s5, s81, 10'); a(f's_add_u32 s5, s5, {QP}'); a('v_add_u32 v3, s5, v2')
        self.waitc(C_H, 1, 8, 9)
        self.stamp(4)
        self.gemv2(24, 32, 96, 64)
        self.merge(64); a('ds_write_b128 v3, v[64:67]')
        self.arrive(C_Q, 8, 9)
        a('s_cmp_lg_u32 s3, 4'); a('s_cbranch_scc1 L_h_end')
        a('v_lshrrev_b32 v10, 4, v1'); a('v_lshlrev_b32 v10, 5, v10'); a('v_bfe_u32 v11, v1, 1, 3'); a('v_add_u32 v10, v10, v11')
        a('v_and_b32 v11, 1, v1'); a('v_lshl_add_u32 v10, v11, 7, v10'); a('v_lshlrev_b32 v10, 1, v10'); a(f'v_add_u32 v10, {QT}, v10')
        a('v_lshlrev_b32 v11, 3, v1'); a(f'v_add_u32 v11, {QT}, v11')
        self.tag_make()
        self.waitc(C_Q, 8, 8, 9); self.reduce_parts(QP, 8)
        a('v_cvt_pk_bf16_f32 v96, v96, v97'); a('v_cvt_pk_bf16_f32 v98, v98, v99')
        a('ds_write_b16 v10, v96'); a('ds_write_b16_d16_hi v10, v96 offset:16')
        a('ds_write_b16 v10, v98 offset:32'); a('ds_write_b16_d16_hi v10, v98 offset:48')
        a('s_waitcnt lgkmcnt(0)'); a('ds_read_b64 v[100:101], v11')
        a(f'v_mov_b32 v97, {TAG}'); a(f'v_mov_b32 v99, {TAG}')
        a(f's_add_u32 s5, s80, {Q_OFF}')
        a('s_waitcnt lgkmcnt(0)')
        a('v_mov_b32 v96, v100'); a('v_mov_b32 v98, v101')
        a(f'buffer_store_dwordx4 v[96:99], v2, {WS}, s5 offen sc1')
        self.arrive(C_W1, 8, 9)
        self.stamp(5)
        self.end()

    def pollcnt(self, off):
        a = self.a; lp = self.lab('LC'); ld = self.lab('LE')
        a(f's_mov_b32 {POLLC}, 0'); a(f'{lp}:')
        a(f'buffer_load_dword v14, v13, {DBG}, 0 offen offset:{off} sc1'); a('s_waitcnt vmcnt(0)')
        a('v_and_b32 v15, 63, v14'); a('v_cmp_gt_u32 vcc, 32, v15'); a(f's_cbranch_vccz {ld}')
        a('s_sleep 1'); a(f's_add_u32 {POLLC}, {POLLC}, 1'); a(f's_cmp_lt_u32 {POLLC}, {POLL_MAX}'); a(f's_cbranch_scc1 {lp}')
        a(f'{ld}:')

    def gemv2(self, xa, xr, T, acc):
        a = self.a
        for kb in range(2):
            for u in range(4): a(f'ds_read_b128 {v(xr+16*kb+4*u,4)}, v{xa+u} offset:{64*kb}')
        for kb in range(2):
            for m in range(8):
                if m % 2 == 0: a(f's_waitcnt lgkmcnt({7 - 4*kb - m//2})')
                c = '0' if (kb == 0 and m < 2) else v(acc + 4 * (m & 1), 4)
                a(f'v_mfma_f32_16x16x32_bf16 {v(acc+4*(m&1),4)}, {v(T+32*kb+4*m,4)}, {v(xr+16*kb+4*(m>>1),4)}, {c}')

    def getmode(self):
        self.waitc(C_MODE, 1, 8, 9, SMODE)

    def tail(self):
        a = self.a
        a(f's_mul_i32 s80, s4, {ASTR}'); a(f's_add_u32 s80, s80, {AUXREG}')
        a('v_lshlrev_b32 v2, 4, v1')
        a('s_cmp_ge_u32 s3, 8'); a('s_cbranch_scc1 L_tail_c')
        a('s_cmp_ge_u32 s3, 4'); a('s_cbranch_scc1 L_tail_b')
        self.tail_a()
        if self.lighth: self.h1()
        self.tail_b(); self.tail_c()

    def tail_a(self):
        a = self.a
        self.srd(['WO', 'OUT', 'X']); self.consts()
        a('s_sub_u32 s5, s3, 1'); a('s_and_b32 s5, s5, 1'); a('s_lshl_b32 s81, s5, 10')
        a('s_waitcnt lgkmcnt(0)')
        a(f'buffer_load_dwordx4 v[40:43], v2, {X_}, s81 offen')
        self.tag_load()
        if self.touch2:
            a('s_cmp_lg_u32 s3, 3'); a('s_cbranch_scc1 L_a_t2')
            self.code_touch2('L_tail_c', 'L_c_w1', 32); self.code_touch2(*(('L_h1', 'L_tail_b') if self.lighth else ('L_a_h1', 'L_a_wo')), 32)
            a('L_a_t2:')
        a('s_barrier')
        rows = [8 * (j & 3) + (j >> 2) for j in range(8)]
        a('v_lshrrev_b32 v3, 5, v1'); a('v_lshlrev_b32 v3, 15, v3'); a('v_bfe_u32 v4, v1, 4, 1'); a('v_lshl_add_u32 v3, v4, 11, v3')
        a('v_and_b32 v4, 15, v1'); a('v_lshl_add_u32 v35, v4, 4, v3')
        a('s_lshl_b32 s5, s4, 17'); a('s_lshl_b32 s6, s3, 8'); a('s_add_u32 s87, s5, s6')
        if self.early:
            a(f's_add_u32 s82, s87, {(64 + 4)*1024}')
            self.unit_loads(136, 35, WO, 's82', 1024, rows)
        if self.lighth:
            a('s_cmp_lt_u32 s4, 28'); a('s_cbranch_scc1 L_a_wo')
            a('s_cmp_eq_u32 s3, 0'); a('s_cbranch_scc1 L_a_h1'); a('s_cmp_eq_u32 s3, 3'); a('s_cbranch_scc1 L_a_h1')
            a(f's_waitcnt vmcnt({8 if self.early else 0})')
            self.ln_x()
        else:
            a('s_cmp_eq_u32 s3, 0'); a('s_cbranch_scc1 L_a_h1'); a('s_cmp_eq_u32 s3, 3'); a('s_cbranch_scc1 L_a_wo')
            a(f's_waitcnt vmcnt({8 if self.early else 0})')
            self.ln_x()
            a('s_branch L_a_wo')
        if self.lighth:
            a('L_a_h1:')
            a('s_call_b64 s[90:91], L_h1')
            self.waitc(C_H, 9, 8, 9)
        else:
            a('L_a_h1:'); a('s_mov_b32 s93, s4')
            self.h1_body()
        a('L_a_wo:')
        if self.wo_wait: self.waitc(C_H, 1, 8, 9)
        if self.touch:
            a('s_cmp_lg_u32 s3, 3'); a('s_cbranch_scc1 L_a_nt')
            self.code_touch('L_exit', 12288, 32)
            a('L_a_nt:')
        for kb in ([0, 1, 2] if self.early else [3, 0, 1, 2]):
            a(f's_add_u32 s82, s87, {(64*(kb&1) + 4*(kb>>1))*1024}')
            S = [8, 12, 72, 76, 136]
            self.unit_loads(S[kb + 1], 35, WO, 's82', 1024, rows, depth=self.dl0, prior=0 if kb == 3 else 99, qs=4 if kb == 3 else 8)
        if self.w1pf or self.hold: self.arrive(C_CLR, 8, 9)
        for kb in range(4):
            if kb < 3: a(f's_waitcnt vmcnt({16 - 8*kb})')
            self.transpose(S[kb + 1], S[kb], rs=4 if kb == 3 else 8, ds=8)
        self.stamp(1)
        self.sxaddr(164, OSTR, OB, 165)
        a(f'v_mov_b32 v165, {ZR}')
        for u in range(4): a(f'v_cndmask_b32 v{160+u}, v165, v164, {BM[u]}')
        self.sidx(164)
        for i in range(8): a(f'v_mov_b32 v{152+i}, 0')
        a('s_lshl_b32 s5, s3, 10'); a('s_add_u32 s81, s80, s5')
        self.waitc(C_MODE, 1, 166, 167, SMODE)
        a('s_cmp_eq_u32 s3, 0'); a('s_cbranch_scc0 L_a_pt')
        a('v_lshrrev_b32 v3, 3, v1'); a(f'v_mul_u32_u24 v3, {ASTR}, v3'); a('v_and_b32 v4, 7, v1'); a('v_lshl_add_u32 v3, v4, 4, v3')
        a('v_lshrrev_b32 v5, 4, v1'); a('v_lshlrev_b32 v5, 2, v5'); a('v_lshl_add_u32 v4, v4, 4, v5')
        a(f'v_add_u32 v7, {SMALL}, v4')
        a('s_lshl_b32 s5, s4, 7')
        for i in range(4): a(f's_add_u32 s{82+i}, s5, {AUXREG + 8*i*ASTR + A_OFF}'); a(f's_add_u32 s{86+i}, s5, {AUXREG + 8*i*ASTR + P2_OFF}')
        a('s_and_b32 s5, s4, 0x18'); a('s_and_b32 s6, s4, 1'); a('s_lshl_b32 s6, s6, 2'); a('s_add_u32 s5, s5, s6'); a('s_bfe_u32 s6, s4, 0x10002'); a('s_add_u32 s5, s5, s6')
        a('s_lshl_b32 s5, s5, 6'); a('s_and_b32 s6, s4, 2'); a('s_lshl_b32 s6, s6, 4'); a('s_add_u32 s5, s5, s6'); a(f's_add_u32 s90, s5, {X1G}')
        a('v_bfe_u32 v4, v1, 2, 1'); a('v_lshlrev_b32 v4, 7, v4'); a('v_lshrrev_b32 v5, 5, v1'); a('v_lshl_add_u32 v4, v5, 4, v4')
        a('v_and_b32 v6, 3, v1'); a('v_lshl_add_u32 v4, v6, 2, v4'); a('v_lshrrev_b32 v5, 4, v1'); a('v_and_b32 v6, 1, v5'); a('v_lshl_add_u32 v4, v6, 11, v4')
        self.own_n('s91')
        a('v_and_b32 v6, 7, v1'); a('v_lshlrev_b32 v6, 3, v6'); a('v_lshrrev_b32 v165, 5, v1'); a('v_add_u32 v6, v6, v165')
        a('v_and_b32 v5, 1, v5'); a('v_lshl_add_u32 v5, v5, 9, v6'); a('v_lshlrev_b32 v5, 1, v5')
        a(f's_add_u32 s5, {EPO}, 1'); a('v_mov_b32 v166, s5'); a('v_mov_b32 v167, 0')
        for i in range(8): a(f'buffer_load_dwordx4 v[136:139], v3, {WS}, s{82+i} offen sc1')
        a('s_branch L_a_pu')
        a('L_a_pt:')
        a('s_sub_u32 s5, s3, 1'); a('s_and_b32 s5, s5, 1'); a('s_lshl_b32 s6, s5, 4'); a('v_mov_b32 v5, v2')
        a('s_lshl_b32 s82, s5, 11'); a(f's_add_u32 s82, s82, {X1G}'); a('s_add_u32 s83, s82, 1024')
        a('v_lshlrev_b32 v6, 5, v1'); a(f's_add_u32 s6, s6, {IMA}'); a('v_add_u32 v6, s6, v6')
        a('v_lshrrev_b32 v7, 4, v1'); a('v_lshlrev_b32 v7, 7, v7'); a('v_and_b32 v4, 15, v1'); a('v_lshl_add_u32 v7, v4, 2, v7'); a(f's_mul_i32 s5, s5, {YSTR}'); a(f's_add_u32 s5, s5, {YB}'); a('v_add_u32 v7, s5, v7')
        a('s_mov_b32 s84, 0x3b000000'); a('v_mov_b32 v3, 0x3727c5ac')
        for i in range(2): a(f'buffer_load_dwordx4 v[136:139], v5, {WS}, s{82+i} offen sc1')
        a('L_a_pu:')
        a('s_waitcnt vmcnt(0)')
        self.stamp(2)
        self.dry_begin('L_a_go')
        if self.ta_cnt:
            a(f'v_mov_b32 v164, {CNT + C_Q}'); a(f's_mov_b32 {POLLC}, 0'); a('L_a_sp:')
            a('ds_read_b32 v165, v164'); a('s_waitcnt lgkmcnt(0)'); a('v_cmp_gt_u32 vcc, 4, v165'); a('s_cbranch_vccz L_a_sq')
            a(f's_add_u32 {POLLC}, {POLLC}, 1'); a(f's_cmp_lt_u32 {POLLC}, {POLL_MAX*16}'); a('s_cbranch_scc1 L_a_sp'); a('L_a_sq:')
        else: self.bar()
        self.stamp(3)
        X = [136, 8]
        def xread(p):
            for u in range(4): a(f'ds_read_b128 {v(X[p]+4*u,4)}, v{160+u} offset:{128*p}')
        xread(0)
        for p in range(2):
            for m in range(8):
                if m % 2 == 0: a(f's_waitcnt lgkmcnt({3 - m//2 + (4 if p == 0 and m else 0)})')
                a(f'v_smfmac_f32_16x16x64_bf16 {v(152+4*(m&1),4)}, {v(X[p]+4*(m>>1),4)}, {v(8+64*p+8*m,8)}, v164')
                if p == 0 and m == 1: xread(1)
        self.pub_pre()
        a('v_pk_add_f32 v[152:153], v[152:153], v[154:155]'); a('v_pk_add_f32 v[154:155], v[156:157], v[158:159]')
        self.pub(f'buffer_store_dwordx4 v[152:155], v2, {WS}, s81 offen')
        self.stamp(4)
        a('s_cmp_lg_u32 s3, 0'); a('s_cbranch_scc1 L_a_ln')
        if self.ta_cnt: self.waitc(C_MR, 3, 164, 165)
        for k in range(4): a(f'ds_read_b32 v{72+k}, v7 offset:{128*k}')
        def rs(s0, last_half):
            def mk(b):
                L = [f'buffer_load_dwordx4 {v(b+4*i,4)}, v3, {WS}, s{s0+i} offen sc1' for i in range(4)]
                if last_half: L = L[:3] + ['s_mov_b32 exec_hi, 0', L[3], 's_mov_b32 exec_hi, s95']
                return L
            b = 8 if not last_half else 80
            def consume(b=b):
                a(f'v_pk_add_f32 v[156:157], {v(b,2)}, {v(b+4,2)}'); a(f'v_pk_add_f32 v[158:159], {v(b+2,2)}, {v(b+6,2)}')
                a(f'v_pk_add_f32 v[152:153], {v(b+8,2)}, {v(b+12,2)}'); a(f'v_pk_add_f32 v[154:155], {v(b+10,2)}, {v(b+14,2)}')
                a('v_pk_add_f32 v[156:157], v[156:157], v[152:153]'); a('v_pk_add_f32 v[158:159], v[158:159], v[154:155]')
            if self.pipe: self.npoll2(mk, 4, [b, b + 16], 16, 165, consume, 156)
            else: self.npoll(mk(b), range(b, b + 16), 165, consume, 156)
            self.red4rows(156)
            a('v_add_f32_dpp v156, v156, v156 row_ror:8 row_mask:0xf bank_mask:0xf')
        rs(82, False)
        a('s_waitcnt lgkmcnt(0)')
        self.ex(0x00ff00ff, 0x00ff00ff); self.pub_pre()
        a('v_fma_f32 v76, v72, v156, v73')
        self.pub(f'buffer_store_dword v76, v4, {WS}, s90 offen')
        self.exfull()
        self.stamp(5)
        for r in range(4): a(f'v_mov_b32 v{92+r}, 0'); a(f'v_mov_b32 v{108+r}, 0')
        a('v_fmac_f32 v76, v74, v75')
        self.bar(); self.bar()
        self.stamp(6)
        rs(86, True)
        self.ex(0x00ff00ff, 0x00ff00ff)
        a('v_fmac_f32 v76, v74, v156'); a('v_cvt_pk_bf16_f32 v76, v76, v76')
        a(f'buffer_store_short v76, v5, {OUT}, s91 offen')
        a('s_cmp_lg_u32 s4, 0'); a('s_cbranch_scc1 L_a_end')
        self.ex(1, 0); a(f'buffer_store_dword v166, v167, {WS}, 0 offen sc1')
        if self.padto:
            a('L_pad:'); a('s_memrealtime s[6:7]'); a('s_waitcnt lgkmcnt(0)'); a('s_sub_u32 s6, s6, s100'); a(f's_cmp_lt_u32 s6, {self.padto}'); a('s_cbranch_scc1 L_pad')
        a('L_a_end:')
        self.dry_end('L_a_go')
        self.end()
        a('L_a_ln:')
        a('s_cmp_eq_u32 s3, 3'); a('s_cbranch_scc1 L_a_end')
        a('s_cmp_ge_u32 s4, 28'); a('s_cbranch_scc1 L_a_end')
        if self.ta_cnt: self.waitc(C_MR, 3, 164, 165)
        a('ds_read_b128 v[72:75], v6'); a('ds_read_b128 v[76:79], v6 offset:2048')
        a(f'ds_read_b128 v[80:83], v6 offset:{IMS-IMA}'); a(f'ds_read_b128 v[84:87], v6 offset:{IMS-IMA+2048}')
        def shift(b):
            a(f'v_readfirstlane_b32 s6, v{b}')
            for i in range(4): a(f'v_pk_add_f32 {v(88+2*i,2)}, {v(b+2*i,2)}, s[6:7] op_sel_hi:[1,0] neg_lo:[0,1] neg_hi:[0,1]')
        self.ppoll(lambda b: [f'buffer_load_dwordx4 {v(b,4)}, v5, {WS}, s82 offen sc1', f'buffer_load_dwordx4 {v(b+4,4)}, v5, {WS}, s83 offen sc1'],
                   2, 8, [8, 16], 165, shift, delay=self.agdelay)
        self.stamp(5)
        def stats():
            a('v_pk_mul_f32 v[98:99], v[88:89], v[88:89]'); a('v_pk_add_f32 v[96:97], v[88:89], v[90:91]')
            a('v_pk_fma_f32 v[98:99], v[90:91], v[90:91], v[98:99]'); a('v_pk_add_f32 v[100:101], v[92:93], v[94:95]')
            a('v_pk_fma_f32 v[98:99], v[92:93], v[92:93], v[98:99]'); a('v_pk_add_f32 v[96:97], v[96:97], v[100:101]')
            a('v_pk_fma_f32 v[98:99], v[94:95], v[94:95], v[98:99]')
            a('v_add_f32 v156, v96, v97'); a('v_add_f32 v157, v98, v99')
            a('v_permlane32_swap_b32 v156, v157'); a('v_add_f32 v156, v156, v157')
            a('v_mov_b32 v157, v156'); a('v_permlane16_swap_b32 v156, v157'); a('v_add_f32 v156, v156, v157')
            self.rowsum(156)
            a('v_readlane_b32 s6, v156, 0'); a('v_readlane_b32 s5, v156, 32')
            a('v_mov_b32 v159, s84')
            a('v_mul_f32 v156, s6, v159'); a('v_fma_f32 v158, s5, v159, v3')
            a('v_fma_f32 v158, -v156, v156, v158'); a('v_max_f32 v158, v158, v3'); a('v_rsq_f32 v158, v158')
            for i in range(4): a(f'v_pk_add_f32 {v(88+2*i,2)}, {v(88+2*i,2)}, v[156:157] op_sel_hi:[1,0] neg_lo:[0,1] neg_hi:[0,1]')
        stats()
        a('s_waitcnt lgkmcnt(0)')
        for i in range(4): a(f'v_pk_mul_f32 {v(88+2*i,2)}, {v(88+2*i,2)}, {v(72+2*i,2)}')
        for i in range(4): a(f'v_pk_fma_f32 {v(88+2*i,2)}, {v(88+2*i,2)}, v[158:159], {v(80+2*i,2)} op_sel_hi:[1,0,1]')
        stats()
        for i in range(4): a(f'v_pk_mul_f32 {v(88+2*i,2)}, {v(88+2*i,2)}, v[158:159] op_sel_hi:[1,0]')
        for i in range(4): a(f'v_cvt_pk_bf16_f32 v{88+i}, v{88+2*i}, v{89+2*i}')
        a('ds_write2_b32 v7, v88, v89 offset1:16'); a('ds_write2_b32 v7, v90, v91 offset0:128 offset1:144')
        a('s_waitcnt lgkmcnt(0)')
        self.stamp(6)
        self.bar()
        a('s_branch L_a_end')
        self.flush_late()

    def h1_body(self):
        a = self.a
        a('v_lshrrev_b32 v3, 5, v1'); a('v_lshlrev_b32 v3, 4, v3'); a('v_bfe_u32 v4, v1, 3, 2'); a('v_add_u32 v3, v3, v4'); a(f'v_mul_u32_u24 v3, {ASTR}, v3')
        a('v_and_b32 v4, 7, v1'); a('v_lshl_add_u32 v3, v4, 4, v3')
        a('s_lshr_b32 s5, s93, 3'); a(f's_mul_i32 s5, s5, {4*ASTR}'); a('s_and_b32 s6, s93, 7'); a('s_lshl_b32 s6, s6, 7'); a('s_add_u32 s5, s5, s6')
        a(f's_add_u32 s82, s5, {AUXREG+MC_OFF}')
        a('s_lshr_b32 s5, s93, 1'); a('s_lshl_b32 s5, s5, 5'); a('s_and_b32 s6, s93, 1'); a('s_lshl_b32 s6, s6, 2'); a('s_add_u32 s5, s5, s6'); a('s_lshl_b32 s5, s5, 2')
        a(f's_add_u32 s5, s5, {LNX}')
        a('v_bfe_u32 v5, v1, 1, 2'); a('v_and_b32 v6, 1, v1'); a('v_lshlrev_b32 v7, 4, v5'); a('v_lshl_add_u32 v7, v6, 6, v7')
        a('v_lshl_add_u32 v5, v6, 9, v5'); a('v_lshlrev_b32 v5, 2, v5'); a('v_add_u32 v5, s5, v5')
        a(f's_mul_i32 s83, s93, {ASTR}'); a(f's_add_u32 s83, s83, {AUXREG+H_OFF}')
        self.waitc(C_LN, 2, 8, 9)
        for r in range(4): a(f'ds_read_b32 v{24+r}, v5 offset:{32*r}')
        self.tag_make()
        self.stamp(7)
        a(f's_mov_b32 {POLLC}, 0'); a('L_a_mp:')
        a(f's_and_b32 s5, {POLLC}, 63'); a('s_cmp_eq_u32 s5, 63'); a('s_cselect_b32 s5, 2048, 0'); a('s_add_u32 s5, s5, s82')
        a(f'buffer_load_dwordx4 v[16:19], v3, {WS}, s5 offen sc1'); a(f'buffer_load_dwordx4 v[20:23], v3, {WS}, s5 offen offset:1024 sc1')
        a('s_waitcnt vmcnt(0)')
        for i, r in enumerate([17, 19, 21, 23]):
            if i == 0: a(f'v_cmp_ne_u32 vcc, {TAG}, v{r}')
            else: a(f'v_cmp_ne_u32 s[88:89], {TAG}, v{r}'); a('s_or_b64 vcc, vcc, s[88:89]')
        a('s_cmp_eq_u64 vcc, 0'); a('s_cbranch_scc1 L_a_mq')
        a(f's_add_u32 {POLLC}, {POLLC}, 1'); a(f's_cmp_lt_u32 {POLLC}, {POLL_MAX}'); a('s_cbranch_scc1 L_a_mp')
        a('L_a_mq:')
        self.stamp(8)
        for r in range(4): a(f'v_add_f32_dpp v{12+r}, v{16+2*r}, v{16+2*r} row_ror:8 row_mask:0xf bank_mask:0xf')
        for r in range(4): a(f'v_mov_b32 v{16+r}, v{12+r}')
        for r in range(4): a(f'v_permlane16_swap_b32 v{12+r}, v{16+r}')
        for r in range(4): a(f'v_add_f32 v{12+r}, v{12+r}, v{16+r}')
        for r in range(4): a(f'v_mov_b32 v{16+r}, v{12+r}')
        for r in range(4): a(f'v_permlane32_swap_b32 v{12+r}, v{16+r}')
        for p in (12, 14, 16, 18): self.rnd2(p, p + 1, 8)
        for r in range(4): a(f'v_add_f32 v{16+r}, 1.0, v{16+r}')
        self.rnd2(16, 17, 8); self.rnd2(18, 19, 8)
        for r in range(4): a(f'v_mul_f32 v{24+r}, v{24+r}, v{16+r}')
        self.rnd2(24, 25, 8); self.rnd2(26, 27, 8)
        for r in range(4): a(f'v_add_f32 v{24+r}, v{24+r}, v{12+r}')
        a('v_cvt_pk_bf16_f32 v24, v24, v25'); a('v_cvt_pk_bf16_f32 v26, v26, v27'); a(f'v_mov_b32 v25, {TAG}'); a(f'v_mov_b32 v27, {TAG}')
        a('s_mov_b64 exec, 0xff'); a(f'buffer_store_dwordx4 v[24:27], v7, {WS}, s83 offen sc1'); a('s_mov_b64 exec, -1')
        self.arrive(C_H, 8, 9)
        self.stamp(9)

    def h1(self):
        a = self.a
        a('L_h1:')
        a('s_sub_u32 s93, s4, 28'); a('s_lshl_b32 s93, s93, 3'); a('s_add_u32 s93, s93, s3')
        self.h1_body()
        a('s_setpc_b64 s[90:91]')

    def own_n(self, dst):
        a = self.a
        a('s_and_b32 s5, s4, 0x18'); a('s_lshl_b32 s5, s5, 5'); a('s_and_b32 s6, s4, 1'); a('s_lshl_b32 s6, s6, 7'); a('s_add_u32 s5, s5, s6')
        a('s_and_b32 s6, s4, 6'); a('s_lshl_b32 s6, s6, 1'); a(f's_add_u32 {dst}, s5, s6')

    def tail_b(self):
        a = self.a
        a('L_tail_b:')
        self.srd(['W2']); self.consts()
        a('s_sub_u32 s81, s3, 4')
        self.wvoff(3, 1024, 4)
        a('s_lshl_b32 s5, s4, 16'); a('s_lshl_b32 s6, s81, 8'); a('s_add_u32 s82, s5, s6')
        a('s_waitcnt lgkmcnt(0)')
        if self.lighth: self.tag_load()
        a('s_cmp_eq_u32 s3, 5'); a('s_cbranch_scc0 L_b_ni')
        self.lds_init(); a('s_waitcnt lgkmcnt(0)')
        a('L_b_ni:')
        a('s_cmp_eq_u32 s3, 4'); a('s_cbranch_scc0 L_b_nc')
        for i in range(4): a(f'v_mov_b32 v{8+i}, -1')
        for i in range(8):
            if i % 4 == 0: a(f's_add_u32 s5, s80, {(i//4)*4096}')
            a(f'buffer_store_dwordx4 v[8:11], v2, {WS}, s5 offen offset:{(i%4)*1024} sc1')
        a(f's_add_u32 s5, s80, {ST_OFF}'); a('s_lshl_b32 s6, s4, 7'); a(f's_add_u32 s6, s6, {X1G}')
        a('s_mov_b64 exec, 0xffff'); a(f'buffer_store_dwordx4 v[8:11], v2, {WS}, s5 offen sc1')
        a('s_mov_b64 exec, 0xff'); a(f'buffer_store_dwordx4 v[8:11], v2, {WS}, s6 offen sc1'); a('s_mov_b64 exec, -1')
        a('s_barrier')
        self.xcc_inc('s85')
        a('v_mov_b32 v12, s85'); a('v_mov_b32 v13, 0')
        a('s_waitcnt vmcnt(0)')
        if not self.nohello: a('s_mov_b64 exec, 1'); a(f'buffer_atomic_add v12, v13, {DBG}, 0 offen offset:4 sc1'); a('s_mov_b64 exec, -1')
        self.stamp(1)
        if self.lighth:
            a('s_cmp_lt_u32 s4, 28'); a('s_cbranch_scc1 L_b_nh')
            a('s_call_b64 s[90:91], L_h1')
            a('v_mov_b32 v13, 0')
            a('L_b_nh:')
        a('s_mov_b64 exec, 1')
        a('s_cmp_lg_u32 s4, 0'); a('s_cbranch_scc1 L_b_fl')
        if self.nohello: a('s_mov_b32 s85, 2'); a('s_sleep 64')
        else:
            self.pollcnt(4)
            a('v_readfirstlane_b32 s6, v14')
            a('s_lshl_b32 s85, s85, 5'); a('s_cmp_eq_u32 s85, s6'); a(f's_cselect_b32 s85, {1 if self.force_slow else 2}, 1')
            self.pollcnt(0)
        a('v_mov_b32 v16, s85'); a(f'buffer_store_dword v16, v13, {DBG}, 0 offen offset:128 sc1')
        a('s_branch L_b_fm')
        a('L_b_fl:')
        self.poll([f'buffer_load_dword v16, v13, {DBG}, 0 offen offset:128 sc1'], [16], 17, zero=True, sleep=8)
        a('L_b_fm:')
        a('v_readfirstlane_b32 s5, v16'); a('s_mov_b64 exec, -1')
        self.arrive(C_MODE, 8, 9, 's5')
        self.stamp(7)
        a('s_branch L_b_w2')
        a('L_b_nc:')
        a('s_barrier')
        if self.lighth:
            a('s_cmp_lt_u32 s4, 28'); a('s_cbranch_scc1 L_b_w2')
            a('s_call_b64 s[90:91], L_h1')
        a('L_b_w2:')
        if self.prio: a('s_setprio 2')
        a('s_cmp_ge_u32 s4, 28'); a('s_cbranch_scc1 L_b_now2')
        if self.early2:
            a('s_cmp_eq_u32 s3, 4'); a('s_cbranch_scc1 L_b_e4')
            self.unit_loads(32, 3, W2, 's82', 1024)
            self.waitc(C_H, 1, 8, 9)
            a('s_branch L_b_e5')
            a('L_b_e4:')
            self.unit_loads(32, 3, W2, 's82', 1024)
            a('L_b_e5:')
        else:
            self.waitc(C_H, 1, 8, 9)
            self.unit_loads(32, 3, W2, 's82', 1024, depth=self.dl, prior=1)
        a(f's_add_u32 s82, s82, {32*1024}'); self.unit_loads(64, 3, W2, 's82', 1024, depth=self.dl)
        a('s_waitcnt vmcnt(0)')
        self.transpose(32, 96, ds=8); self.transpose(64, 100, ds=8)
        a('L_b_now2:')
        self.stamp(2)
        self.getmode()
        a('s_lshr_b32 s82, s81, 1')
        a('v_lshrrev_b32 v4, 4, v1')
        for i in range(3): a(f'v_add_u32 v{8+i}, {4*i}, v4')
        for i in range(3): a(f'v_lshlrev_b32 v{17+i}, 3, v{8+i}')
        a('s_mul_i32 s5, s82, 96'); a('s_add_u32 s85, s80, s5'); a(f's_add_u32 s85, s85, {ST_OFF}')
        a('v_and_b32 v5, 15, v1')
        for i in range(3): a(f'v_lshlrev_b32 v{12+i}, 11, v{8+i}'); a(f'v_lshl_add_u32 v{12+i}, v5, 4, v{12+i}')
        a('s_lshl_b32 s5, s82, 3'); a('s_lshr_b32 s6, s4, 2'); a('s_add_u32 s5, s5, s6'); a(f's_mul_i32 s5, s5, {12*2048}')
        a('s_and_b32 s6, s4, 3'); a('s_lshl_b32 s6, s6, 9'); a('s_add_u32 s5, s5, s6')
        a('s_and_b32 s6, s81, 1'); a('s_lshl_b32 s6, s6, 8'); a('s_add_u32 s5, s5, s6'); a(f's_add_u32 s83, s5, {MO_BASE}')
        a('v_and_b32 v6, 1, v4'); a('v_lshl_add_u32 v6, v5, 1, v6'); a('v_lshlrev_b32 v6, 1, v6'); a('v_lshrrev_b32 v7, 1, v4'); a('v_lshl_add_u32 v6, v7, 6, v6'); a('s_and_b32 s5, s81, 1'); a('s_lshl_b32 s5, s5, 7'); a(f's_mul_i32 s6, s82, {OSTR}'); a('s_add_u32 s5, s5, s6'); a(f's_add_u32 s5, s5, {OB}'); a('v_add_u32 v6, s5, v6')
        self.sxaddr(20, OSTR, HB, 21); a(f'v_mov_b32 v21, {ZR}')
        for u in range(4): a(f'v_cndmask_b32 v{24+u}, v21, v20, {BM[u]}')
        self.sidx(20)
        for i in range(8): a(f'v_mov_b32 v{84+i}, 0')
        a('s_lshl_b32 s5, s81, 10'); a('s_add_u32 s84, s80, s5'); a(f's_add_u32 s84, s84, {P2_OFF}')
        a(f'v_mov_b32 v22, {CNT + C_Q}'); a('v_mov_b32 v23, 1')
        t1 = [f'buffer_load_dwordx4 {v(32+4*i,4)}, v{12+i}, {WS}, s83 offen sc1' for i in range(3)]
        if self.hold: self.waitc(C_CLR, self.hold, 44, 45)
        self.poll([f'buffer_load_dwordx2 {v(52+2*i,2)}, v{17+i}, {WS}, s85 offen sc1' for i in range(3)], range(52, 58), 16, sleep=self.ssleep)
        for i in range(3): a(f'v_lshlrev_b32 v{17+i}, 7, v{8+i}')
        a('s_lshl_b32 s5, s82, 3'); a('s_lshr_b32 s6, s4, 2'); a('s_add_u32 s5, s5, s6'); a(f's_mul_i32 s5, s5, {12*128}')
        a('s_and_b32 s6, s4, 3'); a('s_lshl_b32 s6, s6, 3'); a('s_add_u32 s5, s5, s6'); a(f's_add_u32 s85, s5, {MS_BASE}')
        self.stamp(3)
        self.poll([f'buffer_load_dwordx2 {v(52+2*i,2)}, v{17+i}, {WS}, s85 offen sc1' for i in range(3)], range(52, 58), 16, sleep=self.ss2)
        for s_ in t1: a(s_)
        self.stamp(4)
        a('v_max3_f32 v16, v52, v54, v56'); self.xrows(16, 17, 'max')
        for i in range(3): a(f'v_sub_f32 v{48+i}, v{52+2*i}, v16')
        for i in range(3): a(f'v_mul_f32 v{48+i}, {LOG2E}, v{48+i}')
        for i in range(3): a(f'v_exp_f32 v{48+i}, v{48+i}')
        a('v_mul_f32 v16, v48, v53')
        for i in range(1, 3): a(f'v_fmac_f32 v16, v{48+i}, v{53+2*i}')
        self.xrows(16, 17)
        a('v_rcp_f32 v16, v16')
        for i in range(3): a(f'v_mul_f32 v{48+i}, v{48+i}, v16')
        a('s_mov_b64 s[94:95], -1')
        def comb(b=32):
            for h in range(2): a(f'v_pk_mul_f32 {v(28+2*h,2)}, {v(b+2*h,2)}, v[48:49] op_sel_hi:[1,0]')
            for h in range(2): a(f'v_pk_fma_f32 {v(28+2*h,2)}, {v(b+4+2*h,2)}, v[48:49], {v(28+2*h,2)} op_sel:[0,1,0] op_sel_hi:[1,1,1]')
            for h in range(2): a(f'v_pk_fma_f32 {v(28+2*h,2)}, {v(b+8+2*h,2)}, v[50:51], {v(28+2*h,2)} op_sel_hi:[1,0,1]')
        if self.pipet1:
            self.npoll2(lambda b: [f'buffer_load_dwordx4 {v(b+4*i,4)}, v{12+i}, {WS}, s83 offen sc1' for i in range(3)], 3, [32, 60], 12, 16, comb, 28, pre=True)
        else: self.npoll(t1, range(32, 44), 16, comb, 28, pre=True)
        self.stamp(5)
        self.red4rows(28)
        a('v_cvt_pk_bf16_f32 v28, v28, v28'); a('ds_write_b16 v6, v28')
        if self.ta_cnt: a('s_mov_b64 exec, 1'); a('ds_add_u32 v22, v23'); a('s_mov_b64 exec, -1')
        else: a('s_waitcnt lgkmcnt(0)'); a('s_barrier')
        a('s_cmp_ge_u32 s4, 28'); a('s_cbranch_scc1 L_b_end')
        a('s_waitcnt vmcnt(0)')
        a('s_barrier'); a('s_barrier')
        for u in range(4): a(f'ds_read_b128 {v(60+4*u,4)}, v{24+u}')
        for m in range(8):
            if m % 2 == 0: a(f's_waitcnt lgkmcnt({3 - m//2})')
            a(f'v_smfmac_f32_16x16x64_bf16 {v(84+4*(m&1),4)}, {v(60+4*(m>>1),4)}, {v(96+8*m,8)}, v20')
        self.pub_pre()
        a('v_pk_add_f32 v[84:85], v[84:85], v[86:87]'); a('v_pk_add_f32 v[86:87], v[88:89], v[90:91]')
        self.pub(f'buffer_store_dwordx4 v[84:87], v2, {WS}, s84 offen')
        self.stamp(6)
        a('L_b_end:')
        self.end()
        self.flush_late()

    def tail_c(self):
        a = self.a
        a('L_tail_c:')
        self.srd(['WM', 'C', 'W1', 'B1', 'X', 'B2']); self.consts()
        a('s_sub_u32 s81, s3, 8')
        self.wvoff(5, 6144, 4); self.xvoff(6, 1024, 0, 4)
        a('s_and_b32 s5, s4, 3'); a('s_lshl_b32 s5, s5, 7'); a('s_lshl_b32 s6, s81, 5'); a('s_add_u32 s83, s5, s6')
        a('s_mul_i32 s5, s83, 6144'); a('s_lshr_b32 s6, s4, 2'); a('s_lshl_b32 s6, s6, 8'); a('s_add_u32 s84, s5, s6')
        a('s_lshl_b32 s83, s83, 1')
        a('s_waitcnt lgkmcnt(0)')
        a(f'buffer_load_dwordx4 v[156:159], v6, {C_}, s83 offen')
        self.unit_loads(96, 5, WM, 's84', 6144, pol=self.mcpol)
        self.tag_load()
        self.stamp(4)
        a('s_barrier')
        a('s_waitcnt vmcnt(8)')
        self.silu4(156, 8)
        a('s_waitcnt vmcnt(0)')
        self.stamp(5)
        self.gemv_fly(96, 156, True)
        a('s_lshl_b32 s5, s81, 10'); a(f's_add_u32 s5, s5, {MP}'); a('v_add_u32 v4, s5, v2')
        self.merge(20); a('ds_write_b128 v4, v[20:23]')
        self.arrive(C_MC, 8, 9)
        a('s_cmp_lg_u32 s3, 8'); a('s_cbranch_scc1 L_c_w1')
        self.tag_make()
        for i in range(4): a(f'v_mov_b32 v{33+2*i}, {TAG}')
        self.waitc(C_MC, 4, 8, 9); self.reduce_parts(MP, 4)
        for i in range(4): a(f'v_mov_b32 v{32+2*i}, v{96+i}')
        a(f's_add_u32 s5, s80, {MC_OFF}')
        a(f'buffer_store_dwordx4 v[32:35], v2, {WS}, s5 offen'); a(f'buffer_store_dwordx4 v[36:39], v2, {WS}, s5 offen offset:1024')
        a(f'buffer_store_dwordx4 v[32:35], v2, {WS}, s5 offen offset:2048 sc1'); a(f'buffer_store_dwordx4 v[36:39], v2, {WS}, s5 offen offset:3072 sc1')
        if self.lighth: self.arrive(C_H, 8, 9)
        self.stamp(6)
        a('L_c_w1:')
        if self.prio: a('s_setprio 1')
        self.waitc(C_H, 1, 8, 9)
        if self.w1pf:
            a('s_cmp_eq_u32 s3, 8'); a('s_cbranch_scc1 L_c_pw')
            a('s_setprio 3')
            a(f's_mul_i32 s5, s4, {16*3584}'); a('s_sub_u32 s6, s3, 9'); a('s_lshl_b32 s6, s6, 10'); a('s_add_u32 s5, s5, s6')
            for i in range(19):
                if i == 18: a('s_cmp_eq_u32 s3, 11'); a('s_cbranch_scc1 L_c_pd')
                if i >= self.w1pf: a(f's_waitcnt vmcnt({self.w1pf-1})')
                a(f'buffer_load_dwordx4 v[32:35], v2, {W1}, s5 offen'); a('s_add_u32 s5, s5, 3072')
            a('L_c_pd:')
            a('s_branch L_c_gm')
            a('L_c_pw:')
            self.waitc(C_CLR, 4, 8, 9)
            a('s_branch L_c_fin')
            a('L_c_gm:')
        else:
            a('s_cmp_eq_u32 s3, 8'); a('s_cbranch_scc1 L_c_fin')
        self.getmode()
        if self.hold: self.waitc(C_CLR, self.hold, 8, 9)
        self.stamp(1)
        a('s_cmp_lg_u32 s3, 9'); a('s_cbranch_scc1 L_c_img')
        a('v_and_b32 v4, 7, v1'); a('v_lshrrev_b32 v5, 4, v1')
        self.own_n('s84')
        a('v_lshlrev_b32 v6, 3, v4'); a('v_lshrrev_b32 v7, 1, v5'); a('v_add_u32 v6, v6, v7'); a('v_lshlrev_b32 v6, 1, v6')
        a('v_and_b32 v7, 1, v5'); a('v_lshl_add_u32 v7, v7, 10, v6')
        a(f'buffer_load_ushort v113, v7, {X_}, s84 offen'); a(f'buffer_load_ushort v115, v6, {B2}, s84 offen')
        a('v_lshrrev_b32 v6, 2, v4'); a('v_lshlrev_b32 v6, 8, v6'); a('v_lshl_add_u32 v6, v5, 4, v6'); a('v_and_b32 v7, 3, v4'); a('v_lshl_add_u32 v6, v7, 2, v6')
        a('s_lshr_b32 s5, s4, 3'); a(f's_mul_i32 s5, s5, {2*ASTR}'); a('s_and_b32 s6, s4, 1'); a('s_lshl_b32 s6, s6, 9'); a('s_add_u32 s5, s5, s6')
        a('s_and_b32 s6, s4, 6'); a('s_lshl_b32 s6, s6, 5'); a('s_add_u32 s5, s5, s6'); a(f's_add_u32 s85, s5, {AUXREG+MR_OFF}')
        loads = []
        for q in range(2):
            for ks in range(2):
                loads.append(f's_add_u32 s6, s85, {(24*q+ks)*ASTR}')
                loads.append(f'buffer_load_dword v{96+2*q+ks}, v6, {WS}, s6 offen sc1')
        self.poll(loads, range(96, 100), 8, sleep=self.psleep)
        a('v_add_f32 v112, v96, v97'); a('v_add_f32 v114, v98, v99')
        self.rnd2(112, 114, 8)
        a('v_lshlrev_b32 v113, 16, v113'); a('v_lshlrev_b32 v115, 16, v115')
        a('v_lshlrev_b32 v5, 2, v5'); a('v_lshl_add_u32 v5, v4, 4, v5'); a(f'v_add_u32 v5, {SMALL}, v5')
        for k in range(4): a(f'ds_write_b32 v5, v{112+k} offset:{128*k}')
        a('s_branch L_c_fa' if self.ta_cnt else 's_branch L_c_fin')
        a('L_c_img:')
        a('s_sub_u32 s5, s3, 10'); a('s_lshl_b32 s5, s5, 4')
        a('v_and_b32 v4, 31, v1'); a('v_lshlrev_b32 v4, 5, v4'); a('v_lshrrev_b32 v5, 5, v1'); a(f'v_mul_u32_u24 v5, {2*ASTR}, v5'); a('v_add_u32 v4, v4, v5'); a('v_add_u32 v4, s5, v4')
        a('v_lshlrev_b32 v5, 5, v1'); a('v_add_u32 v5, s5, v5'); a(f'v_add_u32 v5, {IMA}, v5')
        loads = []
        for q in range(2):
            for i in range(2):
                for ks in range(2):
                    loads.append(f's_mov_b32 s6, {AUXREG + MR_OFF + ((4+4*q+2*i)*2+ks)*ASTR}')
                    loads.append(f'buffer_load_dwordx4 {v(96+16*q+8*i+4*ks,4)}, v4, {WS}, s6 offen sc1')
        self.poll(loads, range(96, 128), 8, sleep=self.psleep)
        for q in range(2):
            for i in range(2):
                for r in range(4): a(f'v_add_f32 v{128+8*q+4*i+r}, v{96+16*q+8*i+r}, v{100+16*q+8*i+r}')
        for p in range(128, 144, 2): self.rnd2(p, p + 1, 8)
        for i in range(8): a(f'v_add_f32 v{136+i}, 1.0, v{136+i}')
        for p in range(136, 144, 2): self.rnd2(p, p + 1, 8)
        a('v_add_f32 v10, v128, v129')
        for i in range(2, 8): a(f'v_add_f32 v10, v10, v{128+i}')
        self.wavesum(10, 11); a('v_mul_f32 v10, 0x3b000000, v10')
        for i in range(8): a(f'v_sub_f32 v{128+i}, v{128+i}, v10')
        a('ds_write_b128 v5, v[136:139]'); a('ds_write_b128 v5, v[140:143] offset:2048')
        a(f'ds_write_b128 v5, v[128:131] offset:{IMS-IMA}'); a(f'ds_write_b128 v5, v[132:135] offset:{IMS-IMA+2048}')
        if self.ta_cnt:
            a('L_c_fa:'); self.arrive(C_MR, 8, 9)
        a('L_c_fin:')
        self.stamp(7)
        a('s_cmp_ge_u32 s4, 28'); a('s_cbranch_scc1 L_c_last')
        a('v_bfe_u32 v3, v1, 3, 2'); a('v_lshlrev_b32 v3, 3, v3'); a('v_lshrrev_b32 v4, 5, v1'); a('v_add_u32 v3, v3, v4')
        a('v_mul_u32_u24 v3, 3584, v3'); a('v_and_b32 v4, 7, v1'); a('v_lshl_add_u32 v3, v4, 4, v3')
        a('s_cmp_lg_u32 s3, 8'); a('s_cbranch_scc1 L_c_b1')
        a('s_lshl_b32 s82, s4, 7'); a('s_mov_b32 s83, 0')
        a('L_c_dma:')
        for i in range(4):
            if i: a(f's_add_u32 s5, s82, {2*i*3584}')
            a(f's_add_u32 m0, s83, {1024*i}')
            a(f's_waitcnt vmcnt({self.dw1-1})')
            a(f'buffer_load_dwordx4 v3, {W1}, {"s5" if i else "s82"} offen {"" if self.w1pf else self.wpol} lds')
        a(f's_add_u32 s82, s82, {32*3584}'); a('s_add_u32 s83, s83, 4096'); a('s_cmp_lt_u32 s83, 65536'); a('s_cbranch_scc1 L_c_dma')
        if self.hold: self.arrive(C_CLR, 8, 9)
        a('L_c_b1:')
        a('v_and_b32 v4, 15, v1'); a('v_lshlrev_b32 v4, 1, v4'); a('s_lshl_b32 s5, s4, 7'); a('s_lshl_b32 s6, s81, 5'); a('s_add_u32 s5, s5, s6')
        a(f'buffer_load_ushort v24, v4, {B1}, s5 offen')
        a('s_waitcnt lgkmcnt(0)')
        self.stamp(2)
        if not self.ta_cnt: a('s_barrier')
        a('s_waitcnt vmcnt(0)')
        self.arrive(C_W1, 8, 9); self.waitc(C_W1, 4, 8, 9)
        a('v_lshrrev_b32 v3, 4, v1'); a('v_lshlrev_b32 v3, 10, v3'); a('v_bfe_u32 v4, v1, 2, 2'); a('v_lshl_add_u32 v3, v4, 7, v3')
        a('v_and_b32 v4, 3, v1'); a('v_lshl_add_u32 v3, v4, 3, v3'); a('s_lshl_b32 s5, s81, 5'); a('v_add_u32 v3, s5, v3')
        for kb in range(16):
            a(f'ds_read_b64_tr_b16 {v(32+4*kb,2)}, v3 offset:{4096*kb}'); a(f'ds_read_b64_tr_b16 {v(34+4*kb,2)}, v3 offset:{4096*kb+512}')
            if kb % 4 == 3: a('s_waitcnt lgkmcnt(0)')
        a('v_lshlrev_b32 v20, 16, v24'); a('v_mov_b32 v21, v20'); a('v_mov_b32 v22, 0'); a('v_mov_b32 v23, 0')
        for i in range(4): a(f'v_mov_b32 v{24+i}, 0')
        self.sxaddr(3, YSTR, YB, 4); self.sidx(6)
        a('v_bfe_u32 v4, v1, 1, 1'); a('v_lshlrev_b32 v4, 6, v4'); a('v_bfe_u32 v5, v1, 2, 2'); a('v_lshl_add_u32 v4, v5, 2, v4'); a('v_and_b32 v5, 1, v1'); a('v_lshl_add_u32 v4, v5, 1, v4')
        a('s_lshl_b32 s5, s81, 4'); a(f's_add_u32 s5, s5, {HB}'); a('v_add_u32 v4, s5, v4')
        c0 = -2.0 * 1.4426950408889634 * 0.7978845608028654
        import struct
        f2u = lambda x: struct.unpack('<I', struct.pack('<f', x))[0]
        a(f's_mov_b32 s82, {f2u(c0):#x}'); a(f'v_mov_b32 v5, {f2u(c0*0.044715):#x}')
        self.stamp(8)
        self.dry_begin('L_c_go')
        self.bar()
        for kb in range(8): a(f'ds_read_b128 {v(96+4*kb,4)}, v3 offset:{128*kb}')
        for kb in range(8):
            a(f's_waitcnt lgkmcnt({7-kb})')
            a(f'v_smfmac_f32_16x16x64_bf16 v[20:23], {v(96+4*kb,4)}, {v(32+8*kb,8)}, v6')
        self.ex(0xffff, 0)
        a('v_pk_add_f32 v[20:21], v[20:21], v[22:23]')
        for r in range(2): a(f'v_mul_f32 v{8+r}, v{20+r}, v{20+r}')
        for r in range(2): a(f'v_fma_f32 v{8+r}, v{8+r}, v5, s82')
        for r in range(2): a(f'v_mul_f32 v{8+r}, v{8+r}, v{20+r}')
        for r in range(2): a(f'v_exp_f32 v{8+r}, v{8+r}')
        for r in range(2): a(f'v_add_f32 v{8+r}, 1.0, v{8+r}')
        for r in range(2): a(f'v_rcp_f32 v{8+r}, v{8+r}')
        for r in range(2): a(f'v_mul_f32 v{8+r}, v{8+r}, v{20+r}')
        a('v_cvt_pk_bf16_f32 v8, v8, v9')
        a('ds_write_b16 v4, v8'); a(f'ds_write_b16_d16_hi v4, v8 offset:{OSTR}')
        a('s_waitcnt lgkmcnt(0)')
        self.stamp(3)
        self.bar()
        self.dry_end('L_c_go')
        self.end()
        a('L_c_last:')
        if self.hold:
            a('s_cmp_lg_u32 s3, 8'); a('s_cbranch_scc1 L_c_l2'); self.arrive(C_CLR, 8, 9); a('L_c_l2:')
        if not self.ta_cnt: a('s_waitcnt lgkmcnt(0)'); a('s_barrier')
        self.end()

    def build(self):
        a = self.a
        a(f'; @launch grid=(256,1,1) block=(768,1,1) lds={LDS_BYTES}')
        a('.amdgcn_target "amdgcn-amd-amdhsa--gfx950"'); a('.text'); a(f'.globl {KNAME}'); a('.p2align 8'); a(f'.type {KNAME},@function'); a(f'{KNAME}:')
        a('s_cmp_ge_u32 s2, 256'); a('s_cbranch_scc1 L_exit')
        self.srd(['K', 'V', 'WS', 'DBG'])
        a('v_lshrrev_b32 v2, 6, v0'); a('v_and_b32 v1, 63, v0'); a('v_readfirstlane_b32 s3, v2')
        self.stamp_init()
        if self.padto: a('s_memrealtime s[100:101]')
        a('s_and_b32 s5, s2, 7'); a('s_lshr_b32 s4, s2, 3'); a('s_cmp_eq_u32 s5, 0'); a('s_cbranch_scc1 L_tail')
        a('s_mul_i32 s6, s4, 37'); a('s_lshr_b32 s6, s6, 8'); a('s_mul_i32 s6, s6, 7'); a('s_sub_u32 s6, s4, s6'); a('s_add_u32 s6, s6, 1')
        a('s_cmp_eq_u32 s5, s6'); a('s_cbranch_scc1 L_head')
        a('s_cmp_gt_u32 s5, s6'); a('s_cselect_b32 s6, 2, 1')
        a('s_mul_i32 s4, s4, 6'); a('s_add_u32 s4, s4, s5'); a('s_sub_u32 s4, s4, s6')
        self.attention()
        a('L_head:')
        self.head()
        a('L_tail:')
        self.tail()
        a('L_exit:'); a('s_endpgm')
        nn = a.fix()
        a('.section .rodata,"a"'); a('.p2align 6'); a(f'.amdhsa_kernel {KNAME}')
        for l in ['next_free_vgpr 168', 'next_free_sgpr 102', 'accum_offset 168', 'group_segment_fixed_size 0', 'kernarg_size 120',
                  'user_sgpr_count 2', 'user_sgpr_kernarg_segment_ptr 1', 'system_sgpr_workgroup_id_x 1']:
            a.L.append(f'  .amdhsa_{l}')
        a('.end_amdhsa_kernel')
        return a.text(), nn

if __name__ == '__main__':
    import argparse
    p = argparse.ArgumentParser()
    p.add_argument('-o', default='k.s'); p.add_argument('--dbg', action='store_true'); p.add_argument('--slow', action='store_true')
    p.add_argument('--thr', type=int, default=3); p.add_argument('--vpre', type=int, default=6); p.add_argument('--vextra', type=int, default=0)
    p.add_argument('--dq', type=int, default=4); p.add_argument('--dwo', type=int, default=16); p.add_argument('--dl', type=int, default=4)
    p.add_argument('--n1', type=int, default=2); p.add_argument('--n2', type=int, default=2); p.add_argument('--qsleep', type=int, default=0); p.add_argument('--qdelay', type=int, default=0); p.add_argument('--mcpol', default='nt'); p.add_argument('--dl0', type=int, default=8); p.add_argument('--wowait', type=int, default=1); p.add_argument('--thr2', type=int, default=3); p.add_argument('--nlast', type=int, default=0); p.add_argument('--early', type=int, default=0); p.add_argument('--dw1', type=int, default=40); p.add_argument('--qsets', type=int, default=1); p.add_argument('--hsets', type=int, default=1); p.add_argument('--hsleep', type=int, default=1); p.add_argument('--prio', type=int, default=0); p.add_argument('--early2', type=int, default=1); p.add_argument('--fakeq', type=int, default=0); p.add_argument('--dbg2', default=None); p.add_argument('--lite', type=int, default=0); p.add_argument('--touch', type=int, default=1); p.add_argument('--dry', type=int, default=0); p.add_argument('--pipe', type=int, default=1); p.add_argument('--thr0', type=int, default=2); p.add_argument('--nfirst', type=int, default=6); p.add_argument('--ibsts', type=int, default=1); p.add_argument('--warm', type=int, default=0); p.add_argument('--nohello', type=int, default=0); p.add_argument('--vgrad', type=int, default=2); p.add_argument('--touch2', type=int, default=1); p.add_argument('--psleep', type=int, default=16); p.add_argument('--ssleep', type=int, default=8); p.add_argument('--mrearly', type=int, default=0); p.add_argument('--n1st', type=int, default=0); p.add_argument('--w1pf', type=int, default=0); p.add_argument('--tsleep', type=int, default=0); p.add_argument('--agdelay', type=int, default=0); p.add_argument('--rsdelay', type=int, default=0); p.add_argument('--ydeep', type=int, default=99); p.add_argument('--nstep', type=int, default=0); p.add_argument('--tacnt', type=int, default=0); p.add_argument('--lighth', type=int, default=1); p.add_argument('--pipet1', type=int, default=0); p.add_argument('--qpol', default='nt'); p.add_argument('--ss2', type=int, default=1); p.add_argument('--hold', type=int, default=5); p.add_argument('--padto', type=int, default=0)
    p.add_argument('--wpol', default='nt'); p.add_argument('--kvpol', default='nt')
    g = p.parse_args()
    t, nn = Gen(dbg=g.dbg, thr=g.thr, vpre=g.vpre, vextra=g.vextra, force_slow=g.slow, wpol=g.wpol, kvpol=g.kvpol, dq=g.dq, dwo=g.dwo, dl=g.dl, n1=g.n1, n2=g.n2, qsleep=g.qsleep, qdelay=g.qdelay, mcpol=g.mcpol, dl0=g.dl0, wo_wait=g.wowait, thr2=g.thr2, nlast=g.nlast, early=g.early, dw1=g.dw1, qsets=g.qsets, hsets=g.hsets, hsleep=g.hsleep, prio=g.prio, early2=g.early2, fakeq=g.fakeq, dbg2=tuple(map(int, g.dbg2.split(','))) if g.dbg2 else None, lite=g.lite, touch=g.touch, dry=g.dry, pipe=g.pipe, thr0=g.thr0, nfirst=g.nfirst, ibsts=g.ibsts, warm=g.warm, nohello=g.nohello, vgrad=g.vgrad, touch2=g.touch2, psleep=g.psleep, ssleep=g.ssleep, mrearly=g.mrearly, n1st=g.n1st, w1pf=g.w1pf, tsleep=g.tsleep, agdelay=g.agdelay, rsdelay=g.rsdelay, ydeep=g.ydeep, nstep=g.nstep, ta_cnt=g.tacnt, lighth=g.lighth, pipet1=g.pipet1, qpol=g.qpol, ss2=g.ss2, hold=g.hold, padto=g.padto).build()
    open(g.o, 'w').write(t)
    print('wrote', g.o, 'lines', t.count('\n'), 'nop states', nn)
```

```python
import sys
from asmlib import Asm
KNAME = 'adaLN_cond__gqa_block_cached__mixer_channel_mlp__decode_kernel'

AUXREG = 0x8000
ASTR = 117 * 128
A_OFF, P2_OFF, MR_OFF, Q_OFF, X1_OFF, ST_OFF, H_OFF, MC_OFF = 0, 4096, 8192, 9216, 10240, 10368, 10624, 10752
MO_BASE = 0x80000
X1G = 0x7e000
MS_BASE = 0xe0000
TS_BASE = 0x200000
WS_NREC = 0x400000
L0 = 65536
H_, LNX, QP, MP, RP, IMA, IMS, YB, QT, OB, ZR, HB, SMALL, CNT = [L0 + x for x in
    (0, 2304, 6400, 14592, 18688, 22784, 26880, 30976, 33280, 33792, 34464, 34816, 35328, 35840)]
YSTR, OSTR, HSTR = 1152, 384, 1088
C_MODE, C_CLR, C_LN, C_MC, C_H, C_Q, C_MR, C_W1 = [4 * i for i in range(8)]
LDS_BYTES = L0 + 35904
QL, MW, FW, AF, PART = 0, 1024, 1536, 1792, 2048
K_, V_, WS, DBG, X_, WQ, WO, W1, B1, W2, B2, C_, WM, OUT = [f's[{8+4*i}:{11+4*i}]' for i in range(14)]
SRDN = dict(K=8, V=12, WS=16, DBG=20, X=24, WQ=28, WO=32, W1=36, B1=40, W2=44, B2=48, C=52, WM=56, OUT=60)
KOFF = dict(X=0, K=8, V=16, WQ=24, WO=32, W1=48, B1=56, W2=64, B2=72, C=80, WM=88, OUT=96, DBG=104, WS=112)
NREC = dict(X=2048, K=0x2000000, V=0x2000000, WQ=0x400000, WO=0x400000, W1=1835008, B1=3584, W2=1835008, B2=1024,
            C=2048, WM=3145728, OUT=2048, DBG=256, WS=WS_NREC)
BM = [f's[{64+2*u}:{65+2*u}]' for u in range(4)]
ML2 = 's[72:73]'
SEL = ['s74', 's75']
HIM = 's76'
LOG2E = 's77'
SMODE = 's78'
STMP = 's79'
EPO = 's96'
TAG = 's97'
POLLC = 's98'
POLL_MAX = 40000
LOG2E_F = 0x3fb8aa3b

HEADER = """
; One launch, 256 workgroups of 12 waves, one per CU. With g = id / 8 and x = id % 8:
;   x == 1 + g % 7 head  g: q of head g, then the rest of the modulation
"""

def v(b, n=1): return f'v{b}' if n == 1 else f'v[{b}:{b+n-1}]'

class Gen:
    def __init__(self, dbg=False, thr=3, vpre=8, vextra=4, force_slow=False, wpol='nt', kvpol='nt', dq=16, dwo=8, dl=4, n1=2, n2=2, qsleep=0, qdelay=0, mcpol='nt', dl0=4, wo_wait=1, thr2=3, nlast=0, early=0, dw1=16, qsets=4, hsets=2, hsleep=4, prio=1, early2=1, fakeq=0, dbg2=None, lite=0, touch=0, dry=1, pipe=0, thr0=3, nfirst=0, ibsts=1, warm=1, nohello=0, vgrad=0, touch2=0, psleep=16, ssleep=8, mrearly=0, n1st=0, w1pf=0, tsleep=0, agdelay=0, rsdelay=0, ydeep=99, nstep=0, ta_cnt=1, lighth=0, pipet1=0, qpol='nt', ss2=1, hold=5, padto=0, vtouch=0, hoist=1, wperm=0):
        self.a = Asm(); self.n = 0; self.late = []; self.preloaded = set(); self.dbg = dbg; self.thr = thr; self.vpre = vpre; self.vextra = vextra
        self.n1 = n1; self.n2 = n2; self.qsleep = qsleep; self.qdelay = qdelay; self.mcpol = mcpol; self.dl0 = dl0; self.wo_wait = wo_wait; self.thr2 = thr2; self.nlast = nlast; self.early = early; self.dw1 = dw1; self.qsets = qsets; self.hsets = hsets; self.hsleep = hsleep; self.prio = prio; self.early2 = early2; self.fakeq = fakeq; self.dbg2 = dbg2; self.lite = lite; self.touch = touch; self.dry = dry; self.pipe = pipe; self.thr0 = thr0; self.nfirst = nfirst; self.ibsts = ibsts; self.warm = warm; self.nohello = nohello; self.vgrad = vgrad; self.touch2 = touch2; self.psleep = psleep; self.ssleep = ssleep; self.mrearly = mrearly; self.n1st = n1st; self.w1pf = w1pf; self.tsleep = tsleep; self.agdelay = agdelay; self.rsdelay = rsdelay; self.ydeep = ydeep; self.nstep = nstep; self.ta_cnt = ta_cnt; self.lighth = lighth; self.pipet1 = pipet1; self.qpol = qpol; self.ss2 = ss2; self.hold = hold; self.padto = padto; self.vtouch = vtouch; self.hoist = hoist; self.wperm = wperm; self.dq = dq; self.dwo = dwo; self.dl = dl; self.force_slow = force_slow; self.wpol = wpol; self.kvpol = kvpol
    def lab(self, p='L'):
        self.n += 1; return f'{p}_{self.n}'
    def srd(self, names):
        a = self.a
        for nm in names:
            if nm not in self.preloaded: a(f's_load_dwordx2 s[{SRDN[nm]}:{SRDN[nm]+1}], s[0:1], {KOFF[nm]}')
        for nm in names:
            a(f's_mov_b32 s{SRDN[nm]+2}, {NREC[nm]:#x}'); a(f's_mov_b32 s{SRDN[nm]+3}, 0x20000')
    def consts(self):
        a = self.a
        for u in range(4):
            m = 0x000f000f << (4 * u)
            a(f's_mov_b32 s{64+2*u}, {m:#x}'); a(f's_mov_b32 s{65+2*u}, {m:#x}')
        a('s_mov_b32 s72, 0xcccccccc'); a('s_mov_b32 s73, 0xcccccccc')
        a('s_mov_b32 s74, 0x05040100'); a('s_mov_b32 s75, 0x07060302')
        a('s_mov_b32 s76, 0xffff0000'); a(f's_mov_b32 s77, {LOG2E_F:#x}')
    def stamp(self, i):
        if not self.dbg: return
        if self.lite and i not in (0, 15): return
        self.a(f's_memrealtime s[100:101]\ns_waitcnt lgkmcnt(0)\nv_writelane_b32 v0, s100, {i}')
    def cstamp(self, i):
        if not self.dbg: return
        self.a(f's_memtime s[100:101]\ns_waitcnt lgkmcnt(0)\nv_writelane_b32 v0, s100, {i}')
    def stamp_init(self):
        if not self.dbg: return
        self.a('v_mov_b32 v0, 0')
        self.stamp(0); self.cstamp(13)
    def end(self):
        a = self.a
        if self.dbg:
            self.stamp(15); self.cstamp(14)
            a('s_mov_b64 exec, 0xffff')
            a('s_mul_i32 s5, s2, 12'); a('s_add_u32 s5, s5, s3'); a('s_lshl_b32 s5, s5, 6'); a(f's_add_u32 s5, s5, {TS_BASE}')
            a('v_lshlrev_b32 v2, 2, v1')
            a(f'buffer_store_dword v0, v2, {WS}, s5 offen')
            if self.dbg2:
                l = self.lab('LK')
                a(f's_cmp_lg_u32 s2, {self.dbg2[0]}'); a(f's_cbranch_scc1 {l}'); a(f's_cmp_lg_u32 s3, {self.dbg2[1]}'); a(f's_cbranch_scc1 {l}')
                a('v_readlane_b32 s5, v0, 0'); a('v_subrev_u32 v0, s5, v0')
                a('s_mov_b64 exec, 0xfffc'); a(f'buffer_store_dword v0, v2, {DBG}, 0 offen')
                a(f'{l}:')
        a('s_endpgm')
    def poll(self, loads, regs, tmp, zero=False, sleep=0, pre=None):
        a = self.a; lp = self.lab('LP'); ld = self.lab('LD'); lc = self.lab('LC')
        a(f's_mov_b32 {POLLC}, 0')
        if pre: a(f's_branch {lc}')
        a(f'{lp}:')
        for s in loads: a(s)
        a('s_waitcnt vmcnt(0)')
        if pre: a(f'{lc}:')
        op = 'min' if zero else 'max'
        rs = list(regs)
        if len(rs) == 1: src = rs[0]
        else:
            src = tmp
            if len(rs) % 2 == 0: a(f'v_{op}_u32 v{tmp}, v{rs[0]}, v{rs[1]}'); rs = rs[2:]
            else: a(f'v_{op}3_u32 v{tmp}, v{rs[0]}, v{rs[1]}, v{rs[2]}'); rs = rs[3:]
            while rs: a(f'v_{op}3_u32 v{tmp}, v{tmp}, v{rs[0]}, v{rs[1]}'); rs = rs[2:]
        a(f'v_cmp_eq_u32 vcc, {0 if zero else -1}, v{src}')
        a(f's_cbranch_vccz {ld}')
        if sleep: a(f's_sleep {sleep}')
        a(f's_add_u32 {POLLC}, {POLLC}, 1'); a(f's_cmp_lt_u32 {POLLC}, {POLL_MAX}'); a(f's_cbranch_scc1 {lp}')
        a(f'{ld}:')
    def spoll(self, base, offs, zero=False, sleep=2, ge=None):
        a = self.a; lp = self.lab('LS'); ld = self.lab('LT')
        a(f's_mov_b32 {POLLC}, 0'); a(f'{lp}:')
        for i, o in enumerate(offs): a(f's_load_dword s{88+i}, {base}, {o:#x} glc')
        a('s_waitcnt lgkmcnt(0)')
        if ge is not None:
            a('s_and_b32 s89, s88, 0x3f'); a(f's_cmp_ge_u32 s89, {ge}')
        else:
            for i in range(1, len(offs)): a(f's_{"min" if zero else "max"}_u32 s88, s88, s{88+i}')
            a(f's_cmp_lg_u32 s88, {0 if zero else -1}')
        a(f's_cbranch_scc1 {ld}')
        if sleep: a(f's_sleep {sleep}')
        a(f's_add_u32 {POLLC}, {POLLC}, 1'); a(f's_cmp_lt_u32 {POLLC}, {POLL_MAX}'); a(f's_cbranch_scc1 {lp}')
        a(f'{ld}:')
    def tag_load(self):
        self.a(f's_load_dword {EPO}, s[16:17], 0x0')
    def tag_make(self):
        a = self.a
        a('s_waitcnt lgkmcnt(0)'); a(f's_mul_i32 {TAG}, {EPO}, 0x9e3779b1'); a(f's_add_u32 {TAG}, {TAG}, 0x85ebca6b')
    def tpoll(self, loads, tagregs, sleep=0):
        a = self.a; lp = self.lab('LQ'); ld = self.lab('LR')
        a(f's_mov_b32 {POLLC}, 0'); a(f'{lp}:')
        for s_ in loads: a(s_)
        a('s_waitcnt vmcnt(0)')
        for i, r in enumerate(tagregs):
            if i == 0: a(f'v_cmp_ne_u32 vcc, {TAG}, v{r}')
            else: a(f'v_cmp_ne_u32 s[88:89], {TAG}, v{r}'); a('s_or_b64 vcc, vcc, s[88:89]')
        a('s_cmp_eq_u64 vcc, 0'); a(f's_cbranch_scc1 {ld}')
        if sleep: a(f's_sleep {sleep}')
        a(f's_add_u32 {POLLC}, {POLLC}, 1'); a(f's_cmp_lt_u32 {POLLC}, {POLL_MAX}'); a(f's_cbranch_scc1 {lp}')
        a(f'{ld}:')
    def tpoll_pipe(self, mk, nld, base, dst, sets, gap):
        a = self.a; lp = self.lab('LU'); ld = self.lab('LV'); outs = [self.lab('LO') for _ in range(sets)]
        for k in range(sets - 1):
            for s_ in mk(base + 4 * nld * k): a(s_)
            if gap: a(f's_sleep {gap}')
        a(f's_mov_b32 {POLLC}, 0'); a(f'{lp}:')
        for k in range(sets):
            kn = (k + sets - 1) % sets
            for s_ in mk(base + 4 * nld * kn): a(s_)
            a(f's_waitcnt vmcnt({nld * (sets - 1)})')
            b = base + 4 * nld * k
            for i in range(2 * nld):
                if i == 0: a(f'v_cmp_ne_u32 vcc, {TAG}, v{b+1}')
                else: a(f'v_cmp_ne_u32 s[88:89], {TAG}, v{b+1+2*i}'); a('s_or_b64 vcc, vcc, s[88:89]')
            a('s_cmp_eq_u64 vcc, 0'); a(f's_cbranch_scc1 {outs[k]}')
            if gap: a(f's_sleep {gap}')
        a(f's_add_u32 {POLLC}, {POLLC}, 1'); a(f's_cmp_lt_u32 {POLLC}, {POLL_MAX}'); a(f's_cbranch_scc1 {lp}')
        for k in range(sets):
            a(f'{outs[k]}:')
            b = base + 4 * nld * k
            for i in range(nld): a(f'v_mov_b32 v{dst+2*i}, v{b+4*i}'); a(f'v_mov_b32 v{dst+2*i+1}, v{b+4*i+2}')
            if k < sets - 1: a(f's_branch {ld}')
        a(f'{ld}:')
    def ex(self, lo, hi):
        self.a(f's_and_b32 exec_lo, {lo:#x}, s94'); self.a(f's_and_b32 exec_hi, {hi:#x}, s95')
    def exfull(self): self.a('s_mov_b64 exec, s[94:95]')
    def bar(self):
        if not (self.dry or self.warm): self.a('s_barrier'); return
        l = self.lab('LB'); self.a(f's_cbranch_execz {l}'); self.a('s_barrier'); self.a(f'{l}:')
    def dry_begin(self, label):
        a = self.a
        if not self.dry: a('s_mov_b64 s[94:95], -1'); return
        a('s_mov_b64 s[94:95], 0'); a('s_mov_b64 exec, s[94:95]'); a(f'{label}:')
    def dry_end(self, label):
        a = self.a; l = self.lab('LN')
        if not self.dry: return
        a(f's_cbranch_execnz {l}'); a('s_mov_b64 s[94:95], -1'); a('s_mov_b64 exec, -1'); a(f's_branch {label}'); a(f'{l}:')
    def ppoll(self, mk, nld, nregs, bases, tmp, consume, delay=0):
        a = self.a; lp = self.lab('LP'); ld = self.lab('LD'); o = [self.lab('LO') for _ in bases]
        if self.pipe < 2:
            if delay: a(f's_sleep {delay}')
            self.poll(mk(bases[0]), range(bases[0], bases[0] + nregs), tmp, sleep=self.tsleep); consume(bases[0]); return
        for s_ in mk(bases[0]): a(s_)
        a(f's_mov_b32 {POLLC}, 0'); a(f'{lp}:')
        for k, b in enumerate(bases):
            for s_ in mk(bases[1 - k]): a(s_)
            a(f's_waitcnt vmcnt({nld})')
            rs = list(range(b, b + nregs))
            if len(rs) % 2 == 0: a(f'v_max_u32 v{tmp}, v{rs[0]}, v{rs[1]}'); rs = rs[2:]
            else: a(f'v_max3_u32 v{tmp}, v{rs[0]}, v{rs[1]}, v{rs[2]}'); rs = rs[3:]
            while rs: a(f'v_max3_u32 v{tmp}, v{tmp}, v{rs[0]}, v{rs[1]}'); rs = rs[2:]
            a(f'v_cmp_eq_u32 vcc, -1, v{tmp}'); a(f's_cbranch_vccz {o[k]}')
        a(f's_add_u32 {POLLC}, {POLLC}, 1'); a(f's_cmp_lt_u32 {POLLC}, {POLL_MAX}'); a(f's_cbranch_scc1 {lp}')
        a(f'{o[1]}:'); consume(bases[1]); a(f's_branch {ld}')
        a(f'{o[0]}:'); consume(bases[0])
        a(f'{ld}:')
    def arrive(self, c, t0, t1, val=1):
        a = self.a
        a(f'v_mov_b32 v{t0}, {CNT + c}'); a(f'v_mov_b32 v{t1}, {val}' if isinstance(val, int) else f'v_mov_b32 v{t1}, {val}')
        a('s_mov_b64 exec, 1'); a(f'ds_add_u32 v{t0}, v{t1}'); a('s_mov_b64 exec, -1')
    def waitc(self, c, target, t0, t1, dst=STMP):
        a = self.a; lp = self.lab('LW'); ld = self.lab('LX')
        a(f'v_mov_b32 v{t0}, {CNT + c}'); a(f's_mov_b32 {POLLC}, 0'); a(f'{lp}:')
        a(f'ds_read_b32 v{t1}, v{t0}'); a('s_waitcnt lgkmcnt(0)'); a(f'v_readfirstlane_b32 {dst}, v{t1}')
        a(f's_cmp_ge_u32 {dst}, {target}'); a(f's_cbranch_scc1 {ld}')
        a('s_sleep 1'); a(f's_add_u32 {POLLC}, {POLLC}, 1'); a(f's_cmp_lt_u32 {POLLC}, {POLL_MAX*8}'); a(f's_cbranch_scc1 {lp}')
        a(f'{ld}:')
    def pub(self, ins):
        a = self.a; lf = self.lab('LF'); ld = self.lab('LG')
        a(f's_cbranch_scc0 {lf}'); a(ins); a(f'{ld}:')
        self.late.append([f'{lf}:', ins + ' sc1', f's_branch {ld}'])
    def pub_pre(self): self.a(f's_cmp_eq_u32 {SMODE}, 2')
    def flush_late(self):
        for blk in self.late:
            for l in blk: self.a(l)
        self.late = []
    def npoll(self, loads, regs, tmp, compute, res, pre=False):
        a = self.a; lp = self.lab('LP'); ld = self.lab('LD'); lc = self.lab('LC')
        a(f's_mov_b32 {POLLC}, 0')
        if pre: a(f's_branch {lc}')
        a(f'{lp}:')
        for s_ in loads: a(s_)
        a(f'{lc}:')
        a('s_waitcnt vmcnt(0)')
        compute()
        a(f'v_cmp_u_f32 vcc, v{res}, v{res+1}'); a(f'v_cmp_u_f32 s[92:93], v{res+2}, v{res+3}'); a('s_or_b64 vcc, vcc, s[92:93]')
        a(f's_cbranch_vccnz {ld}_r'); a(f'{ld}:')
        rs = list(regs); blk = [f'{ld}_r:', f's_add_u32 {POLLC}, {POLLC}, 1', f's_and_b32 s5, {POLLC}, 31', f's_cbranch_scc1 {lp}',
                                f'v_max_u32 v{tmp}, v{rs[0]}, v{rs[1]}']
        rs = rs[2:]
        while rs: blk.append(f'v_max3_u32 v{tmp}, v{tmp}, v{rs[0]}, v{rs[1]}'); rs = rs[2:]
        blk += [f'v_cmp_eq_u32 vcc, -1, v{tmp}', f's_cbranch_vccz {ld}', f's_cmp_lt_u32 {POLLC}, {POLL_MAX}', f's_cbranch_scc1 {lp}', f's_branch {ld}']
        self.late.append(blk)
        return lc
    def npoll2(self, mk, nld, bases, nregs, tmp, compute, res, pre=False):
        a = self.a; lp = self.lab('LP'); ld = self.lab('LD'); l2 = self.lab('LE')
        if not pre:
            for s_ in mk(bases[0]): a(s_)
        a(f's_mov_b32 {POLLC}, 0'); a(f'{lp}:')
        def rnd(k):
            for s_ in mk(bases[1 - k]): a(s_)
            a(f's_waitcnt vmcnt({nld})')
            compute(bases[k])
            a(f'v_cmp_u_f32 vcc, v{res}, v{res+1}'); a(f'v_cmp_u_f32 s[92:93], v{res+2}, v{res+3}'); a('s_or_b64 vcc, vcc, s[92:93]')
        rnd(0); a(f's_cbranch_vccz {ld}')
        rnd(1); a(f's_cbranch_vccnz {ld}_r'); a(f'{ld}:')
        rs = list(range(bases[1], bases[1] + nregs))
        blk = [f'{ld}_r:', f's_add_u32 {POLLC}, {POLLC}, 1', f's_and_b32 s5, {POLLC}, 31', f's_cbranch_scc1 {lp}', f'v_max_u32 v{tmp}, v{rs[0]}, v{rs[1]}']
        rs = rs[2:]
        while rs: blk.append(f'v_max3_u32 v{tmp}, v{tmp}, v{rs[0]}, v{rs[1]}'); rs = rs[2:]
        blk += [f'v_cmp_eq_u32 vcc, -1, v{tmp}', f's_cbranch_vccz {ld}', f's_cmp_lt_u32 {POLLC}, {POLL_MAX}', f's_cbranch_scc1 {lp}', f's_branch {ld}']
        self.late.append(blk)
    def rnd2(self, x, y, t):
        a = self.a
        a(f'v_cvt_pk_bf16_f32 v{t}, v{x}, v{y}'); a(f'v_lshlrev_b32 v{x}, 16, v{t}'); a(f'v_and_b32 v{y}, {HIM}, v{t}')
    def rowsum(self, x, op='add'):
        for n in (8, 4, 2, 1): self.a(f'v_{op}_f32_dpp v{x}, v{x}, v{x} row_ror:{n} row_mask:0xf bank_mask:0xf')
    def xrows(self, x, t, op='add'):
        a = self.a
        a(f'v_mov_b32 v{t}, v{x}'); a(f'v_permlane16_swap_b32 v{x}, v{t}'); a(f'v_{op}_f32 v{x}, v{x}, v{t}')
        a(f'v_mov_b32 v{t}, v{x}'); a(f'v_permlane32_swap_b32 v{x}, v{t}'); a(f'v_{op}_f32 v{x}, v{x}, v{t}')
    def wavesum(self, x, t): self.rowsum(x); self.xrows(x, t)
    def red4rows(self, o):
        a = self.a
        a(f'v_permlane32_swap_b32 v{o}, v{o+2}'); a(f'v_permlane32_swap_b32 v{o+1}, v{o+3}')
        a(f'v_add_f32 v{o}, v{o}, v{o+2}'); a(f'v_add_f32 v{o+1}, v{o+1}, v{o+3}')
        a(f'v_permlane16_swap_b32 v{o}, v{o+1}'); a(f'v_add_f32 v{o}, v{o}, v{o+1}')
    def silu4(self, r, t):
        a = self.a
        a('s_mov_b32 s99, 0x7e800000')
        for i in range(4):
            lo, hi, e0, e1 = t, t + 1, t + 2, t + 3
            a(f'v_lshlrev_b32 v{lo}, 16, v{r+i}'); a(f'v_and_b32 v{hi}, {HIM}, v{r+i}')
            a(f'v_mul_f32 v{e0}, {LOG2E}, v{lo}'); a(f'v_mul_f32 v{e1}, {LOG2E}, v{hi}')
            a(f'v_exp_f32 v{e0}, -v{e0}'); a(f'v_exp_f32 v{e1}, -v{e1}')
            a(f'v_add_f32 v{e0}, 1.0, v{e0}'); a(f'v_add_f32 v{e1}, 1.0, v{e1}')
            r0, r1, q0, q1 = t + 4, t + 5, t + 6, t + 7
            a(f'v_rcp_f32 v{r0}, v{e0}'); a(f'v_rcp_f32 v{r1}, v{e1}')
            a(f'v_mul_f32 v{q0}, v{lo}, v{r0}'); a(f'v_mul_f32 v{q1}, v{hi}, v{r1}')
            a(f'v_cmp_gt_f32 s[88:89], s99, v{e0}'); a(f'v_fma_f32 v{lo}, -v{q0}, v{e0}, v{lo}'); a(f'v_fma_f32 v{lo}, v{lo}, v{r0}, v{q0}')
            a(f'v_cndmask_b32 v{lo}, v{q0}, v{lo}, s[88:89]')
            a(f'v_cmp_gt_f32 s[90:91], s99, v{e1}'); a(f'v_fma_f32 v{hi}, -v{q1}, v{e1}, v{hi}'); a(f'v_fma_f32 v{hi}, v{hi}, v{r1}, v{q1}')
            a(f'v_cndmask_b32 v{hi}, v{q1}, v{hi}, s[90:91]')
            a(f'v_cvt_pk_bf16_f32 v{r+i}, v{lo}, v{hi}')
    def transpose(self, raw, dst, jjs=range(4), rs=4, ds=4):
        for jj in jjs:
            for m in range(8):
                self.a(f'v_perm_b32 v{dst+ds*m+jj}, v{raw+rs*(2*jj+1)+(m>>1)}, v{raw+rs*(2*jj)+(m>>1)}, {SEL[m&1]}')
    def sxaddr(self, dst, bstride, base, t):
        a = self.a
        self.xvoff(dst, bstride, base, t); a(f'v_bfe_u32 v{t}, v1, 1, 1'); a(f'v_lshl_add_u32 v{dst}, v{t}, 6, v{dst}')
    def sidx(self, dst):
        self.a(f'v_mov_b32 v{dst}, 0x4444'); self.a(f'v_mov_b32 v{dst+1}, 0xeeee'); self.a(f'v_cndmask_b32 v{dst}, v{dst}, v{dst+1}, {ML2}')
    def gemv_fly(self, raw, xrep, first, xv=8, T=12, acc=20):
        a = self.a
        for u in range(4):
            for i in range(4): a(f'v_cndmask_b32 v{xv+i}, 0, v{xrep+i}, {BM[u]}')
            for e in range(2):
                for jj in range(4):
                    a(f'v_perm_b32 v{T+4*e+jj}, v{raw+4*(2*jj+1)+u}, v{raw+4*(2*jj)+u}, {SEL[e]}')
            for e in range(2):
                c = '0' if (first and u == 0) else v(acc + 4 * e, 4)
                a(f'v_mfma_f32_16x16x32_bf16 {v(acc+4*e,4)}, {v(T+4*e,4)}, {v(xv,4)}, {c}')
    def merge(self, acc, pre=False):
        if pre: self.pub_pre()
        for r in range(4): self.a(f'v_cndmask_b32 v{acc+r}, v{acc+r}, v{acc+4+r}, {ML2}')
    def sanitize(self, r, n):
        pass
    def unit_loads(self, raw, voff, srd, sbase, rs, rows=None, pol=None, depth=None, prior=99, hook=None, qs=4):
        a = self.a; pol = self.wpol if pol is None else pol
        for j in range(8):
            off = (rows[j] if rows else j) * rs
            if depth and prior + j >= depth: a(f's_waitcnt vmcnt({depth-1})')
            if off < 4096: a(f'buffer_load_dwordx4 {v(raw+qs*j,4)}, v{voff}, {srd}, {sbase} offen offset:{off} {pol}')
            else:
                a(f's_add_u32 s7, {sbase}, {off}')
                a(f'buffer_load_dwordx4 {v(raw+qs*j,4)}, v{voff}, {srd}, s7 offen {pol}')
            if hook and j == min(hook[0], 7): a(hook[1])
    def wvoff(self, dst, rs, t):
        a = self.a
        a(f'v_lshrrev_b32 v{dst}, 4, v1'); a(f'v_mul_u32_u24 v{dst}, {8*rs}, v{dst}')
        a(f'v_and_b32 v{t}, 15, v1'); a(f'v_lshl_add_u32 v{dst}, v{t}, 4, v{dst}')
    def xvoff(self, dst, bstride, base, t):
        a = self.a
        a(f'v_and_b32 v{dst}, 1, v1'); a(f'v_mul_u32_u24 v{dst}, {bstride}, v{dst}')
        a(f'v_lshrrev_b32 v{t}, 4, v1'); a(f'v_lshl_add_u32 v{dst}, v{t}, 4, v{dst}')
        if base: a(f'v_add_u32 v{dst}, {base}, v{dst}')

    def attention(self):
        a = self.a
        a('s_mov_b32 s5, 0x15555556'); a('s_mul_hi_u32 s80, s4, s5')
        a('s_mul_i32 s5, s80, 12'); a('s_sub_u32 s81, s4, s5')
        if self.wperm:
            a(f's_mov_b32 s6, {self.wperm & 0xffffffff:#x}'); a(f's_mov_b32 s7, {self.wperm >> 32:#x}'); a('s_lshl_b32 s5, s81, 2'); a('s_lshr_b64 s[6:7], s[6:7], s5'); a('s_and_b32 s81, s6, 15')
            a('s_mul_i32 s4, s80, 12'); a('s_add_u32 s4, s4, s81')
        a('s_cmp_lt_u32 s81, 8'); a('s_cselect_b32 s82, 11, 10')
        a('s_cmp_ge_u32 s3, 11'); a('s_cbranch_scc1 L_att_ctl')
        a('s_cmp_ge_u32 s3, s82'); a('s_cbranch_scc1 L_exit')
        a('s_min_u32 s5, s81, 8'); a('s_mul_i32 s6, s81, 10'); a('s_add_u32 s5, s5, s6'); a('s_lshl_b32 s5, s5, 14')
        a('s_lshl_b32 s6, s80, 21'); a('s_add_u32 s5, s5, s6'); a('s_lshl_b32 s6, s3, 10'); a('s_add_u32 s83, s5, s6')
        a('s_lshl_b32 s84, s82, 10')
        a('v_bfe_u32 v3, v1, 2, 2'); a('v_lshlrev_b32 v3, 8, v3'); a('v_lshrrev_b32 v4, 4, v1'); a('v_lshl_add_u32 v3, v4, 6, v3')
        a('v_and_b32 v4, 3, v1'); a('v_lshl_add_u32 v3, v4, 4, v3')
        a('v_lshlrev_b32 v2, 4, v1')
        a('s_mov_b32 s85, s83')
        a('s_waitcnt lgkmcnt(0)')
        KB, VB = 32, 96
        issued = [0]
        def thr(d):
            if self.ydeep < 11 and issued[0] >= d:
                l = self.lab('LJ')
                a(f's_cmp_ge_u32 s3, {self.ydeep}'); a(f's_cbranch_scc1 {l}'); a(f's_waitcnt vmcnt({d-1})'); a(f'{l}:'); a(f's_waitcnt vmcnt({d})')
            elif issued[0] >= d: a(f's_waitcnt vmcnt({d-1})')
        for t in range(16):
            ng = sum(t < self.nfirst - self.nstep * g for g in range(3))
            if 0 < ng < 3 and issued[0] >= self.thr0:
                l = self.lab('LI')
                a(f's_cmp_ge_u32 s3, {4*ng}'); a(f's_cbranch_scc1 {l}'); a(f's_waitcnt vmcnt({self.thr0-1})'); a(f'{l}:'); thr(self.thr)
            else: thr(1 if t < self.n1st else self.thr0 if ng else self.thr)
            a(f'buffer_load_dwordx4 {v(KB+4*t,4)}, v3, {K_}, s85 offen {self.kvpol}')
            if t < 15: a('s_add_u32 s85, s85, s84')
            issued[0] += 1
            if t == 0: self.stamp(10)
            if t == 7: self.stamp(7)
            if t == 15: self.stamp(8)
            if t == (0 if self.n1st else min(self.thr, self.thr0) - 1):
                self.consts()
                a('v_and_b32 v28, 3, v1'); a('v_lshlrev_b32 v29, 8, v28'); a('v_lshrrev_b32 v30, 2, v1'); a('v_lshl_add_u32 v29, v30, 4, v29')
                a('s_lshl_b32 s5, s3, 5'); a('v_lshl_add_u32 v28, v28, 3, s5')
                a(f'v_mov_b32 v27, {AF}')
                a('s_mov_b32 s86, 0x3db504f3'); a('s_mov_b32 s92, 0'); a('s_mov_b64 s[94:95], -1')
                a(f's_cmp_ge_u32 s3, {self.ydeep}'); a(f's_cselect_b32 s88, {self.thr+1}, {self.thr}')
                a('s_barrier')
        vorder = [8 * bk + x for bk in range(2) for x in (0, 4, 1, 5, 2, 6, 3, 7)]
        for i in range(16):
            if i >= self.thr + (self.ydeep < 11): a('s_call_b64 s[90:91], L_att_chk')
            else: thr(self.thr)
            a(f's_mul_i32 s85, s84, {vorder[i]}'); a('s_add_u32 s85, s85, s83')
            a(f'buffer_load_dwordx4 {v(VB+4*i,4)}, v2, {V_}, s85 offen {self.kvpol}')
            if i == 7: self.stamp(9)
        self.stamp(1)
        a('s_cmp_lt_i32 s92, 0'); a('s_cbranch_scc1 L_att_pv')
        self.lspin(27, 0, 1, 26)
        a('s_call_b64 s[90:91], L_att_qk')
        a('L_att_pv:')
        a('s_lshl_b32 s5, s3, 11'); a(f's_add_u32 s5, s5, {PART}'); a('v_add_u32 v3, s5, v2')
        a('s_cmp_lg_u32 s3, 0'); a('s_cbranch_scc1 L_att_pv2')
        self.att_red_addr(0)
        self.att_factors()
        a('L_att_pv2:')
        for p in range(8):
            raw = VB + 8 * p; T = 64 + 8 * (p & 3)
            a(f's_waitcnt vmcnt({14 - 2*p})')
            for m in range(8):
                a(f'v_perm_b32 v{T+m}, v{raw+4+(m>>1)}, v{raw+(m>>1)}, {SEL[m&1]}')
                if m == 5: a(f'v_mfma_f32_16x16x32_bf16 v[160:163], {v(T,4)}, {v(KB+4*p,4)}, {"v[160:163]" if p else 0}')
            if p == 7: self.stamp(4)
            a(f'v_mfma_f32_16x16x32_bf16 v[164:167], {v(T+4,4)}, {v(KB+4*p,4)}, {"v[164:167]" if p else 0}')
        a('ds_write_b128 v3, v[160:163]'); a('ds_write_b128 v3, v[164:167] offset:1024')
        a('s_waitcnt lgkmcnt(0)')
        a('s_cbranch_execz L_att_red')
        a('s_cmp_eq_u32 s3, 0'); a('s_cbranch_scc1 L_att_red')
        a('s_barrier')
        self.end()
        a('L_att_chk:')
        a('s_cmp_lt_i32 s92, 0'); a('s_cbranch_scc1 L_att_w2')
        a('s_cmp_gt_i32 s92, 0'); a('s_cbranch_scc1 L_att_cd')
        a('s_mov_b32 s93, 0')
        a('L_att_sp:')
        a('ds_read_b32 v26, v27'); a('s_waitcnt lgkmcnt(0)'); a('v_readfirstlane_b32 s5, v26')
        a('s_cmp_lg_u32 s5, 0'); a('s_cbranch_scc1 L_att_fl')
        if self.ibsts:
            a('s_getreg_b32 s5, hwreg(HW_REG_IB_STS, 0, 4)'); a('s_cmp_lt_u32 s5, s88'); a('s_cbranch_scc1 L_att_wt')
            a('s_add_u32 s93, s93, 1'); a('s_cmp_lt_u32 s93, 24'); a('s_cbranch_scc1 L_att_sp')
        a('L_att_wt:')
        thr(self.thr)
        a('s_setpc_b64 s[90:91]')
        a('L_att_w2:')
        thr(self.thr2)
        a('s_setpc_b64 s[90:91]')
        a('L_att_fl:')
        if self.vgrad: a('s_lshr_b32 s92, s3, 2'); a(f's_mul_i32 s92, s92, {self.vgrad}'); a('s_lshr_b32 s92, s92, 1'); a(f's_add_u32 s92, s92, {self.vextra + 1}')
        else: a(f's_mov_b32 s92, {self.vextra + 1}')
        a('L_att_cd:')
        a('s_sub_u32 s92, s92, 1'); a('s_cmp_eq_u32 s92, 0'); a('s_cbranch_scc1 L_att_qk')
        a('s_setpc_b64 s[90:91]')
        a('L_att_qk:')
        self.stamp(2)
        a(f'ds_read_b128 v[4:7], v29 offset:{QL}')
        a('s_mov_b32 s92, -1')
        a('s_waitcnt lgkmcnt(0)')
        Dr = lambda t: 12 + 4 * t if t < 3 else KB + 4 * (t - 3)
        def dpp(dst, s0, s1, n, bm=0xf): a(f'v_add_f32_dpp v{dst}, v{s0}, v{s1} row_ror:{n} row_mask:0xf bank_mask:{bm:#x}')
        def lvl1(t):
            u = t & 3; D = Dr(t)
            dpp(D + u, D + ((u + 1) & 3), D + u, 12); dpp(D + ((u + 2) & 3), D + ((u + 3) & 3), D + ((u + 2) & 3), 12)
        def lvl2(t):
            u = t & 3; D = Dr(t)
            dpp(8 + (t >> 2), D + ((u + 2) & 3), D + u, 8, 1 << u)
        for t in range(21):
            if t < 16: a(f'v_mfma_f32_16x16x32_bf16 {v(Dr(t),4)}, {v(KB+4*t,4)}, v[4:7], 0')
            if 4 <= t < 20: lvl1(t - 4)
            if t >= 5: lvl2(t - 5)
        def rnd4():
            a('v_cvt_pk_bf16_f32 v12, v8, v9'); a('v_cvt_pk_bf16_f32 v13, v10, v11')
            a('v_lshlrev_b32 v8, 16, v12'); a(f'v_and_b32 v9, {HIM}, v12'); a('v_lshlrev_b32 v10, 16, v13'); a(f'v_and_b32 v11, {HIM}, v13')
        rnd4()
        for i in range(4): a(f'v_mul_f32 v{8+i}, s86, v{8+i}')
        rnd4()
        a('v_max3_f32 v12, v8, v9, v10'); a('v_max_f32 v12, v12, v11')
        a('v_max_f32_dpp v12, v12, v12 row_ror:4 row_mask:0xf bank_mask:0xf')
        a('v_max_f32_dpp v12, v12, v12 row_ror:8 row_mask:0xf bank_mask:0xf')
        self.xrows(12, 13, 'max')
        a(f'v_mul_f32 v14, {LOG2E}, v12')
        for i in range(4): a(f'v_fma_f32 v{8+i}, v{8+i}, {LOG2E}, -v14')
        for i in range(4): a(f'v_exp_f32 v{8+i}, v{8+i}')
        for u in range(4): a(f'v_cndmask_b32 v{20+u}, 0, -1, {BM[u]}')
        a('v_cvt_pk_bf16_f32 v16, v8, v9'); a('v_add_f32 v13, v8, v9'); a('v_cvt_pk_bf16_f32 v17, v10, v11'); a('v_add_f32 v18, v10, v11')
        chain = ['v_add_f32 v13, v13, v18', 'v_add_f32_dpp v13, v13, v13 row_ror:4 row_mask:0xf bank_mask:0xf',
                 'v_add_f32_dpp v13, v13, v13 row_ror:8 row_mask:0xf bank_mask:0xf', 'v_mov_b32 v18, v13', 'v_permlane16_swap_b32 v13, v18',
                 'v_add_f32 v13, v13, v18', 'v_mov_b32 v18, v13', 'v_permlane32_swap_b32 v13, v18', 'v_add_f32 v13, v13, v18', 'v_mov_b32 v14, 1']
        cnt = 0
        for u in range(4):
            for bk in range(2):
                for jj in range(4):
                    n = (4 * (u - jj)) % 16
                    c = f'row_ror:{n}' if n else 'quad_perm:[0,1,2,3]'
                    a(f'v_and_b32_dpp v{KB+16*bk+4*jj+u}, v{16+bk}, v{20+u} {c} row_mask:0xf bank_mask:0xf')
                    cnt += 1
                    if cnt % 3 == 0 and chain: a(chain.pop(0))
        self.ex(0xf, 0); a(f'ds_write_b64 v28, v[12:13] offset:{MW}')
        self.ex(1, 0); a('ds_add_u32 v27, v14 offset:4'); self.exfull()
        self.stamp(3)
        a('s_setpc_b64 s[90:91]')
        a('L_att_ctl:')
        a('s_setprio 3')
        a('v_lshlrev_b32 v2, 4, v1')
        a('v_mov_b32 v16, 0xff800000'); a('v_mov_b32 v17, 0'); a('v_lshlrev_b32 v6, 3, v1'); a(f'ds_write_b64 v6, v[16:17] offset:{MW}')
        for i in range(4): a(f'v_mov_b32 v{8+i}, -1'); a(f'v_mov_b32 v{12+i}, 0')
        a(f'v_mov_b32 v27, {AF}'); a('ds_write_b128 v27, v[12:15]')
        a(f'ds_write_b128 v2, v[12:15] offset:{PART+10*2048}'); a(f'ds_write_b128 v2, v[12:15] offset:{PART+10*2048+1024}')
        a('s_waitcnt lgkmcnt(0)')
        a('s_barrier')
        self.tag_load()
        self.att_red_addr(1)
        a('s_and_b32 s84, s80, 7'); a('s_lshl_b32 s84, s84, 2'); a(f's_mul_i32 s84, s84, {ASTR}'); a(f's_add_u32 s84, s84, {AUXREG}')
        a('s_lshr_b32 s85, s80, 3')
        a(f'buffer_store_dwordx4 v[8:11], v2, {WS}, s87 offen sc1'); a(f'buffer_store_dwordx4 v[8:11], v2, {WS}, s87 offen offset:1024 sc1')
        if self.vtouch:
            a('s_min_u32 s5, s81, 8'); a('s_mul_i32 s6, s81, 10'); a('s_add_u32 s5, s5, s6'); a('s_lshl_b32 s5, s5, 14'); a('s_lshl_b32 s6, s80, 21'); a('s_add_u32 s5, s5, s6')
            a(f'v_mul_u32_u24 v40, {self.vtouch}, v1'); a(f's_mov_b64 exec, {(1 << min(63, 180224 // self.vtouch + 1)) - 1:#x}' if 180224 // self.vtouch + 1 < 31 else 's_nop 0')
            a(f'buffer_load_dword v41, v40, {V_}, s5 offen nt'); a('s_mov_b64 exec, -1')
        a('s_lshl_b32 s93, s4, 7'); a(f's_add_u32 s93, s93, {MS_BASE}')
        a('s_mov_b64 exec, 3'); a(f'buffer_store_dwordx4 v[8:11], v2, {WS}, s93 offen sc1'); a('s_mov_b64 exec, -1')
        if self.warm:
            a('v_mov_b32 v29, 0'); a('v_mov_b32 v28, 0'); a('v_mov_b32 v3, 0')
            a('s_mov_b64 s[94:95], 0'); a('s_mov_b64 exec, 0')
            a('s_call_b64 s[90:91], L_att_qk')
            a('s_branch L_att_pv2')
            a('L_att_wd:')
            a('s_mov_b64 exec, -1')
        a('s_mov_b64 s[94:95], -1')
        a('v_mov_b32 v12, 0'); a('v_lshlrev_b32 v6, 3, v1'); a(f'v_mov_b32 v27, {AF}')
        a('v_lshrrev_b32 v7, 5, v1'); a(f'v_mul_u32_u24 v24, {ASTR}, v7'); a('v_and_b32 v16, 31, v1'); a('v_lshl_add_u32 v24, v16, 4, v24')
        a('v_lshlrev_b32 v25, 8, v7'); a('v_lshl_add_u32 v25, v16, 3, v25')
        a('s_lshl_b32 s5, s85, 9'); a('s_add_u32 s86, s84, s5'); a(f's_add_u32 s86, s86, {Q_OFF}'); a(f's_add_u32 s83, s86, {2*ASTR}')
        a(f's_mov_b32 {LOG2E}, {LOG2E_F:#x}')
        self.tag_make()
        if self.qdelay: a(f's_sleep {self.qdelay}')
        self.stamp(1)
        if not self.fakeq: self.tpoll_pipe(lambda b: [f'buffer_load_dwordx4 {v(b,4)}, v24, {WS}, s86 offen sc1', f'buffer_load_dwordx4 {v(b+4,4)}, v24, {WS}, s83 offen sc1'],
                        2, 80, 16, self.qsets, self.qsleep)
        a('v_mov_b32 v26, 1')
        a(f'ds_write_b64 v25, v[16:17] offset:{QL}'); a(f'ds_write_b64 v25, v[18:19] offset:{QL+512}')
        a('ds_write_b32 v27, v26')
        self.stamp(2)
        a('s_mov_b64 exec, 1')
        self.poll([f'buffer_load_dword v16, v12, {DBG}, 0 offen offset:128 sc1'], [16], 17, zero=True, sleep=2)
        a('s_mov_b64 exec, -1')
        a('v_and_b32 v3, 3, v1'); a(f'v_mul_u32_u24 v7, {ASTR}, v3')
        a('s_mul_i32 s5, s85, 12'); a('s_add_u32 s5, s5, s81'); a('s_lshl_b32 s5, s5, 3'); a('s_add_u32 s5, s5, s84'); a(f's_add_u32 s86, s5, {ST_OFF}')
        a('v_mov_b32 v13, 0'); a('s_mov_b64 exec, 0xf'); a(f'buffer_store_dwordx2 v[12:13], v7, {WS}, s86 offen sc1'); a('s_mov_b64 exec, -1')
        a('v_lshlrev_b32 v7, 3, v3')
        self.lspin(27, 4, 's82', 26)
        a(f'ds_read_b64 v[18:19], v6 offset:{MW}'); a('s_waitcnt lgkmcnt(0)')
        a('v_max_f32_dpp v16, v18, v18 row_ror:4 row_mask:0xf bank_mask:0xf')
        a('v_max_f32_dpp v16, v16, v16 row_ror:8 row_mask:0xf bank_mask:0xf')
        self.xrows(16, 17, 'max')
        a('v_sub_f32 v18, v18, v16'); a(f'v_mul_f32 v18, {LOG2E}, v18'); a('v_exp_f32 v18, v18')
        a('v_lshlrev_b32 v6, 2, v1'); a('v_mul_f32 v17, v18, v19')
        a(f'ds_write_b32 v6, v18 offset:{FW}'); a('v_mov_b32 v26, 1'); a('ds_write_b32 v27, v26 offset:8')
        a('v_add_f32_dpp v17, v17, v17 row_ror:4 row_mask:0xf bank_mask:0xf')
        a('v_add_f32_dpp v17, v17, v17 row_ror:8 row_mask:0xf bank_mask:0xf')
        self.xrows(17, 18)
        self.sanitize(16, 2)
        a('s_mov_b64 exec, 0xf'); a(f'buffer_store_dwordx2 v[16:17], v7, {WS}, s93 offen sc1'); a('s_mov_b64 exec, -1')
        self.stamp(3)
        self.att_factors()
        a('L_att_red:')
        self.bar()
        self.stamp(5)
        for w in range(11): a(f'ds_read_b128 {v(32+4*w,4)}, v31 offset:{2048*w}')
        for w in range(11):
            a(f's_waitcnt lgkmcnt({10-w})')
            f = v(12 + (w & ~1), 2); sel = 'op_sel:[0,1,0] op_sel_hi:[1,1,1]' if w & 1 else 'op_sel_hi:[1,0,1]'
            for h in range(2):
                if w == 0: a(f'v_pk_mul_f32 {v(32+2*h,2)}, {v(32+2*h,2)}, {f} op_sel_hi:[1,0]')
                else: a(f'v_pk_fma_f32 {v(32+2*h,2)}, {v(32+4*w+2*h,2)}, {f}, {v(32+2*h,2)} {sel}')
        self.sanitize(32, 4)
        a(f'buffer_store_dwordx4 v[32:35], v30, {WS}, s87 offen sc1')
        if self.warm: a('s_cbranch_execz L_att_wd')
        self.stamp(6)
        if self.dbg: a('s_waitcnt vmcnt(0)')
        self.end()

    def lspin(self, va, off, target, t):
        a = self.a; lp = self.lab('LY'); ld = self.lab('LZ')
        a(f's_mov_b32 {POLLC}, 0'); a(f'{lp}:')
        a(f'ds_read_b32 v{t}, v{va} offset:{off}'); a('s_waitcnt lgkmcnt(0)'); a(f'v_readfirstlane_b32 {STMP}, v{t}')
        a(f's_cmp_ge_u32 {STMP}, {target}'); a(f's_cbranch_scc1 {ld}')
        a('s_sleep 1'); a(f's_add_u32 {POLLC}, {POLLC}, 1'); a(f's_cmp_lt_u32 {POLLC}, {POLL_MAX*8}'); a(f's_cbranch_scc1 {lp}')
        a(f'{ld}:')

    def att_factors(self):
        a = self.a
        self.lspin(27, 8, 1, 26)
        a('v_and_b32 v26, 3, v1'); a('v_lshlrev_b32 v26, 2, v26')
        for w in range(11): a(f'ds_read_b32 v{12+w}, v26 offset:{FW+16*w}')
        a('s_waitcnt lgkmcnt(0)')

    def code_touch(self, hi, nbytes, t):
        a = self.a; here = self.lab('LH')
        a('s_getpc_b64 s[92:93]'); a(f'{here}:')
        a(f's_mov_b32 s94, {hi}-{here}'); a('s_mov_b32 s95, 0x20000')
        a(f'v_lshlrev_b32 v{t}, 6, v1')
        for i in range(0, nbytes, 4096):
            a(f's_mov_b32 s5, {i}'); a(f'buffer_load_dword v{t+1}, v{t}, s[92:95], s5 offen')

    def code_touch2(self, lo, hi, t):
        a = self.a; here = self.lab('LH')
        a('s_getpc_b64 s[92:93]'); a(f'{here}:')
        a(f's_mov_b32 s94, {hi}-{here}'); a('s_mov_b32 s95, 0x20000'); a(f's_mov_b32 s5, {lo}-{here}')
        a(f'v_lshlrev_b32 v{t}, 6, v1')
        a(f'buffer_load_dword v{t+1}, v{t}, s[92:95], s5 offen')

    def att_red_addr(self, e):
        a = self.a
        a('s_lshl_b32 s87, s4, 11'); a(f's_add_u32 s87, s87, {MO_BASE}')
        a('v_and_b32 v30, 3, v1'); a('v_lshlrev_b32 v30, 9, v30'); a('v_lshrrev_b32 v31, 2, v1'); a('v_lshl_add_u32 v30, v31, 4, v30')
        if e: a(f'v_add_u32 v30, {256*e}, v30')
        a(f'v_add_u32 v31, {PART + 1024*e}, v2')

    def xcc_inc(self, dst):
        a = self.a
        a('s_getreg_b32 s5, hwreg(HW_REG_XCC_ID)'); a('s_and_b32 s5, s5, 7')
        a('s_mul_i32 s6, s5, s5'); a('s_lshl_b32 s6, s6, 16'); a('s_lshl_b32 s5, s5, 8'); a('s_add_u32 s5, s5, s6'); a(f's_add_u32 {dst}, s5, 1')

    def lds_init(self):
        a = self.a
        a('v_mov_b32 v8, 0'); a('v_lshlrev_b32 v9, 2, v1'); a(f'v_add_u32 v10, {ZR}, v9'); a('ds_write_b32 v10, v8')
        a(f'v_add_u32 v10, {CNT}, v9'); a('s_mov_b64 exec, 0xffff'); a('ds_write_b32 v10, v8'); a('s_mov_b64 exec, -1')

    def reduce_parts(self, base, n, dst=96):
        a = self.a
        a(f'v_add_u32 v3, {base}, v2')
        for w in range(n): a(f'ds_read_b128 {v(dst+4*w,4)}, v3 offset:{1024*w}')
        a('s_waitcnt lgkmcnt(0)')
        for w in range(1, n):
            for r in range(4): a(f'v_add_f32 v{dst+r}, v{dst+r}, v{dst+4*w+r}')

    def ln_x(self):
        a = self.a
        for i in range(4): a(f'v_lshlrev_b32 v{12+2*i}, 16, v{40+i}'); a(f'v_and_b32 v{13+2*i}, {HIM}, v{40+i}')
        a('v_add_f32 v20, v12, v13')
        for i in range(2, 8): a(f'v_add_f32 v20, v20, v{12+i}')
        self.wavesum(20, 21)
        a('v_mul_f32 v20, 0x3b000000, v20')
        a('v_mov_b32 v22, 0')
        for i in range(8): a(f'v_sub_f32 v21, v{12+i}, v20'); a('v_fmac_f32 v22, v21, v21')
        self.wavesum(22, 21)
        a('v_mul_f32 v22, 0x3b000000, v22')
        self.rnd2(20, 22, 21)
        a('v_add_f32 v22, 0x3727c5ac, v22'); self.rnd2(22, 23, 21)
        a('v_sqrt_f32 v22, v22'); self.rnd2(22, 23, 21)
        a('v_rcp_f32 v23, v22')
        for i in range(8): a(f'v_sub_f32 v{12+i}, v{12+i}, v20')
        for i in range(4): self.rnd2(12 + 2 * i, 13 + 2 * i, 21)
        for i in range(8):
            a(f'v_mul_f32 v24, v{12+i}, v23'); a(f'v_fma_f32 v25, -v24, v22, v{12+i}'); a(f'v_fma_f32 v{12+i}, v25, v23, v24')
        for i in range(4): self.rnd2(12 + 2 * i, 13 + 2 * i, 21)
        a('v_lshlrev_b32 v21, 5, v1'); a('s_lshl_b32 s5, s81, 1'); a(f's_add_u32 s5, s5, {LNX}'); a('v_add_u32 v21, s5, v21')
        a('ds_write_b128 v21, v[12:15]'); a('ds_write_b128 v21, v[16:19] offset:16')
        self.arrive(C_LN, 8, 9)

    def head(self):
        a = self.a
        a(f's_mul_i32 s80, s4, {ASTR}'); a(f's_add_u32 s80, s80, {AUXREG}')
        a('v_lshlrev_b32 v2, 4, v1')
        self.srd(['WM', 'C']); self.consts()
        self.wvoff(5, 6144, 4); self.xvoff(6, 1024, 0, 4)
        a('s_and_b32 s5, s4, 1'); a('s_lshl_b32 s5, s5, 8'); a('s_lshl_b32 s6, s3, 6'); a('s_add_u32 s85, s5, s6')
        a('s_mul_i32 s5, s85, 6144'); a('s_lshr_b32 s6, s4, 1'); a('s_lshl_b32 s6, s6, 8'); a('s_add_u32 s86, s5, s6'); a('s_add_u32 s86, s86, 2048')
        a('s_lshl_b32 s85, s85, 1')
        for i in range(4): a(f'v_mov_b32 v{8+i}, -1')
        a(f's_add_u32 s5, s80, {MR_OFF}')
        a('s_waitcnt lgkmcnt(0)')
        a('s_cmp_lg_u32 s3, 0'); a('s_cbranch_scc1 L_h_nc')
        a(f'buffer_store_dwordx4 v[8:11], v2, {WS}, s5 offen sc1')
        self.tag_load()
        a('L_h_nc:')
        a(f'buffer_load_dwordx4 v[160:163], v6, {C_}, s85 offen'); a(f'buffer_load_dwordx4 v[164:167], v6, {C_}, s85 offen offset:64')
        a('s_cmp_lg_u32 s3, 3'); a('s_cbranch_scc1 L_h_ni')
        self.lds_init(); a('s_waitcnt lgkmcnt(0)')
        a('L_h_ni:')
        a('s_barrier')
        a('s_cmp_lg_u32 s3, 0'); a('s_cbranch_scc1 L_h_wh')
        a('v_mov_b32 v12, 1'); a('v_mov_b32 v13, 0')
        a('v_lshrrev_b32 v3, 3, v1'); a(f'v_mul_u32_u24 v4, {ASTR}, v3'); a('v_and_b32 v7, 7, v1'); a('v_lshl_add_u32 v4, v7, 4, v4')
        a('v_lshlrev_b32 v3, 5, v3'); a('v_bfe_u32 v7, v1, 2, 1'); a(f'v_mul_u32_u24 v7, {HSTR}, v7'); a('v_add_u32 v3, v3, v7'); a('v_and_b32 v7, 3, v1'); a('v_lshl_add_u32 v3, v7, 3, v3')
        a(f'v_add_u32 v3, {H_}, v3')
        self.tag_make()
        a('s_waitcnt vmcnt(2)')
        if not self.nohello: a('s_mov_b64 exec, 1'); a(f'buffer_atomic_add v12, v13, {DBG}, 0 offen sc1'); a('s_mov_b64 exec, -1')
        self.stamp(1)
        for i in range(4): a(f's_mov_b32 s{81+i}, {AUXREG+H_OFF+8*i*ASTR}')
        self.tpoll_pipe(lambda b: [f'buffer_load_dwordx4 {v(b+4*i,4)}, v4, {WS}, s{81+i} offen sc1' for i in range(4)], 4, 32, 16, self.hsets, self.hsleep)
        for i in range(4): a(f'ds_write_b64 v3, {v(16+2*i,2)} offset:{256*i}')
        self.arrive(C_H, 8, 9)
        self.stamp(3)
        a('L_h_wh:')
        a('s_waitcnt vmcnt(0)')
        self.silu4(160, 8); self.silu4(164, 8)
        if self.mrearly: self.waitc(C_LN, 8, 8, 9)
        else: self.waitc(C_W1, 1, 8, 9)
        self.unit_loads(96, 5, WM, 's86', 6144, depth=self.dwo, prior=0)
        a(f's_add_u32 s86, s86, {32*6144}'); self.unit_loads(64, 5, WM, 's86', 6144, depth=self.dwo, prior=8)
        a('s_waitcnt vmcnt(8)')
        self.gemv_fly(96, 160, True)
        a('s_waitcnt vmcnt(0)')
        self.gemv_fly(64, 164, False)
        a('s_lshl_b32 s5, s3, 10'); a(f's_add_u32 s5, s5, {RP}'); a('v_add_u32 v3, s5, v2')
        self.merge(20); a('ds_write_b128 v3, v[20:23]')
        self.arrive(C_MR, 8, 9)
        a('s_cmp_lg_u32 s3, 1'); a('s_cbranch_scc1 L_h_end')
        self.waitc(C_MR, 4, 8, 9); self.reduce_parts(RP, 4); self.sanitize(96, 4)
        a(f's_add_u32 s5, s80, {MR_OFF}'); a(f'buffer_store_dwordx4 v[96:99], v2, {WS}, s5 offen sc1')
        self.stamp(8)
        a('L_h_end:')
        self.end()
        a('L_h_q:')
        a('s_cmp_lt_u32 s3, 4'); a('s_cbranch_scc1 L_head')
        self.srd(['WQ'])
        a('v_lshrrev_b32 v3, 4, v1'); a('v_lshlrev_b32 v3, 14, v3'); a('v_and_b32 v4, 15, v1'); a('v_lshl_add_u32 v3, v4, 4, v3')
        qrows = [8 * (j & 3) + (j >> 2) for j in range(8)]
        a('s_sub_u32 s81, s3, 4')
        a('s_lshl_b32 s5, s81, 19'); a('s_lshl_b32 s6, s4, 8'); a('s_add_u32 s82, s5, s6')
        a('s_waitcnt lgkmcnt(0)')
        self.tag_load()
        self.stamp(1)
        self.unit_loads(32, 3, WQ, 's82', 8192, qrows, pol=self.qpol, depth=self.dq, prior=0, hook=(self.dq - 1, 's_barrier'))
        a(f's_add_u32 s82, s82, {32*8192}'); self.unit_loads(64, 3, WQ, 's82', 8192, qrows, pol=self.qpol, depth=self.dq, prior=8)
        self.consts()
        a(f's_mul_i32 s80, s4, {ASTR}'); a(f's_add_u32 s80, s80, {AUXREG}'); a('v_lshlrev_b32 v2, 4, v1')
        self.stamp(2)
        a('s_waitcnt vmcnt(8)'); self.transpose(32, 96)
        a('s_waitcnt vmcnt(0)')
        if self.mrearly: self.arrive(C_LN, 8, 9)
        self.transpose(64, 128)
        self.stamp(3)
        self.xvoff(28, HSTR, H_, 29)
        a('s_lshl_b32 s6, s81, 7'); a('v_add_u32 v28, s6, v28'); a(f'v_mov_b32 v29, {ZR}')
        for u in range(4): a(f'v_cndmask_b32 v{24+u}, v29, v28, {BM[u]}')
        a('s_lshl_b32 s5, s81, 10'); a(f's_add_u32 s5, s5, {QP}'); a('v_add_u32 v3, s5, v2')
        self.waitc(C_H, 1, 8, 9)
        self.stamp(4)
        self.gemv2(24, 32, 96, 64)
        self.merge(64); a('ds_write_b128 v3, v[64:67]')
        self.arrive(C_Q, 8, 9)
        a('s_cmp_lg_u32 s3, 4'); a('s_cbranch_scc1 L_h_end')
        a('v_lshrrev_b32 v10, 4, v1'); a('v_lshlrev_b32 v10, 5, v10'); a('v_bfe_u32 v11, v1, 1, 3'); a('v_add_u32 v10, v10, v11')
        a('v_and_b32 v11, 1, v1'); a('v_lshl_add_u32 v10, v11, 7, v10'); a('v_lshlrev_b32 v10, 1, v10'); a(f'v_add_u32 v10, {QT}, v10')
        a('v_lshlrev_b32 v11, 3, v1'); a(f'v_add_u32 v11, {QT}, v11')
        self.tag_make()
        self.waitc(C_Q, 8, 8, 9); self.reduce_parts(QP, 8)
        a('v_cvt_pk_bf16_f32 v96, v96, v97'); a('v_cvt_pk_bf16_f32 v98, v98, v99')
        a('ds_write_b16 v10, v96'); a('ds_write_b16_d16_hi v10, v96 offset:16')
        a('ds_write_b16 v10, v98 offset:32'); a('ds_write_b16_d16_hi v10, v98 offset:48')
        a('s_waitcnt lgkmcnt(0)'); a('ds_read_b64 v[100:101], v11')
        a(f'v_mov_b32 v97, {TAG}'); a(f'v_mov_b32 v99, {TAG}')
        a(f's_add_u32 s5, s80, {Q_OFF}')
        a('s_waitcnt lgkmcnt(0)')
        a('v_mov_b32 v96, v100'); a('v_mov_b32 v98, v101')
        a(f'buffer_store_dwordx4 v[96:99], v2, {WS}, s5 offen sc1')
        self.arrive(C_W1, 8, 9)
        self.stamp(5)
        self.end()

    def pollcnt(self, off):
        a = self.a; lp = self.lab('LC'); ld = self.lab('LE')
        a(f's_mov_b32 {POLLC}, 0'); a(f'{lp}:')
        a(f'buffer_load_dword v14, v13, {DBG}, 0 offen offset:{off} sc1'); a('s_waitcnt vmcnt(0)')
        a('v_and_b32 v15, 63, v14'); a('v_cmp_gt_u32 vcc, 32, v15'); a(f's_cbranch_vccz {ld}')
        a('s_sleep 1'); a(f's_add_u32 {POLLC}, {POLLC}, 1'); a(f's_cmp_lt_u32 {POLLC}, {POLL_MAX}'); a(f's_cbranch_scc1 {lp}')
        a(f'{ld}:')

    def gemv2(self, xa, xr, T, acc):
        a = self.a
        for kb in range(2):
            for u in range(4): a(f'ds_read_b128 {v(xr+16*kb+4*u,4)}, v{xa+u} offset:{64*kb}')
        for kb in range(2):
            for m in range(8):
                if m % 2 == 0: a(f's_waitcnt lgkmcnt({7 - 4*kb - m//2})')
                c = '0' if (kb == 0 and m < 2) else v(acc + 4 * (m & 1), 4)
                a(f'v_mfma_f32_16x16x32_bf16 {v(acc+4*(m&1),4)}, {v(T+32*kb+4*m,4)}, {v(xr+16*kb+4*(m>>1),4)}, {c}')

    def getmode(self):
        self.waitc(C_MODE, 1, 8, 9, SMODE)

    def tail(self):
        a = self.a
        a(f's_mul_i32 s80, s4, {ASTR}'); a(f's_add_u32 s80, s80, {AUXREG}')
        a('v_lshlrev_b32 v2, 4, v1')
        a('s_cmp_ge_u32 s3, 4'); a('s_cbranch_scc1 L_tail_b')
        self.tail_a()
        if self.lighth: self.h1()
        self.tail_b(); self.tail_c()

    def tail_a(self):
        a = self.a
        self.srd(['WO', 'OUT', 'X']); self.consts()
        a('s_sub_u32 s5, s3, 1'); a('s_and_b32 s5, s5, 1'); a('s_lshl_b32 s81, s5, 10')
        a('s_waitcnt lgkmcnt(0)')
        a(f'buffer_load_dwordx4 v[40:43], v2, {X_}, s81 offen')
        self.tag_load()
        if self.touch2:
            a('s_cmp_lg_u32 s3, 3'); a('s_cbranch_scc1 L_a_t2')
            self.code_touch2('L_tail_c', 'L_c_w1', 32); self.code_touch2(*(('L_h1', 'L_tail_b') if self.lighth else ('L_a_h1', 'L_a_wo')), 32)
            a('L_a_t2:')
        a('s_barrier')
        rows = [8 * (j & 3) + (j >> 2) for j in range(8)]
        a('v_lshrrev_b32 v3, 5, v1'); a('v_lshlrev_b32 v3, 15, v3'); a('v_bfe_u32 v4, v1, 4, 1'); a('v_lshl_add_u32 v3, v4, 11, v3')
        a('v_and_b32 v4, 15, v1'); a('v_lshl_add_u32 v35, v4, 4, v3')
        a('s_lshl_b32 s5, s4, 17'); a('s_lshl_b32 s6, s3, 8'); a('s_add_u32 s87, s5, s6')
        if self.early:
            a(f's_add_u32 s82, s87, {(64 + 4)*1024}')
            self.unit_loads(136, 35, WO, 's82', 1024, rows)
        if self.lighth:
            a('s_cmp_lt_u32 s4, 28'); a('s_cbranch_scc1 L_a_wo')
            a('s_cmp_eq_u32 s3, 0'); a('s_cbranch_scc1 L_a_h1'); a('s_cmp_eq_u32 s3, 3'); a('s_cbranch_scc1 L_a_h1')
            a(f's_waitcnt vmcnt({8 if self.early else 0})')
            self.ln_x()
        else:
            a('s_cmp_eq_u32 s3, 0'); a('s_cbranch_scc1 L_a_h1'); a('s_cmp_eq_u32 s3, 3'); a('s_cbranch_scc1 L_a_wo')
            a(f's_waitcnt vmcnt({8 if self.early else 0})')
            self.ln_x()
            a('s_branch L_a_wo')
        if self.lighth:
            a('L_a_h1:')
            a('s_call_b64 s[90:91], L_h1')
            self.waitc(C_H, 9, 8, 9)
        else:
            a('L_a_h1:'); a('s_mov_b32 s93, s4')
            self.h1_body()
        a('L_a_wo:')
        if self.wo_wait: self.waitc(C_H, 1, 8, 9)
        if self.touch:
            a('s_cmp_lg_u32 s3, 3'); a('s_cbranch_scc1 L_a_nt')
            self.code_touch('L_exit', 12288, 32)
            a('L_a_nt:')
        for kb in ([0, 1, 2] if self.early else [3, 0, 1, 2]):
            a(f's_add_u32 s82, s87, {(64*(kb&1) + 4*(kb>>1))*1024}')
            S = [8, 12, 72, 76, 136]
            self.unit_loads(S[kb + 1], 35, WO, 's82', 1024, rows, depth=self.dl0, prior=0 if kb == 3 else 99, qs=4 if kb == 3 else 8)
        if self.w1pf or self.hold: self.arrive(C_CLR, 8, 9)
        for kb in range(4):
            if kb < 3: a(f's_waitcnt vmcnt({16 - 8*kb})')
            self.transpose(S[kb + 1], S[kb], rs=4 if kb == 3 else 8, ds=8)
        self.stamp(1)
        self.sxaddr(164, OSTR, OB, 165)
        a(f'v_mov_b32 v165, {ZR}')
        for u in range(4): a(f'v_cndmask_b32 v{160+u}, v165, v164, {BM[u]}')
        self.sidx(164)
        for i in range(8): a(f'v_mov_b32 v{152+i}, 0')
        a('s_lshl_b32 s5, s3, 10'); a('s_add_u32 s81, s80, s5')
        self.waitc(C_MODE, 1, 166, 167, SMODE)
        a('s_cmp_eq_u32 s3, 0'); a('s_cbranch_scc0 L_a_pt')
        a('v_lshrrev_b32 v3, 3, v1'); a(f'v_mul_u32_u24 v3, {ASTR}, v3'); a('v_and_b32 v4, 7, v1'); a('v_lshl_add_u32 v3, v4, 4, v3')
        a('v_lshrrev_b32 v5, 4, v1'); a('v_lshlrev_b32 v5, 2, v5'); a('v_lshl_add_u32 v4, v4, 4, v5')
        a(f'v_add_u32 v7, {SMALL}, v4')
        a('s_lshl_b32 s5, s4, 7')
        for i in range(4): a(f's_add_u32 s{82+i}, s5, {AUXREG + 8*i*ASTR + A_OFF}'); a(f's_add_u32 s{86+i}, s5, {AUXREG + 8*i*ASTR + P2_OFF}')
        a('s_and_b32 s5, s4, 0x18'); a('s_and_b32 s6, s4, 1'); a('s_lshl_b32 s6, s6, 2'); a('s_add_u32 s5, s5, s6'); a('s_bfe_u32 s6, s4, 0x10002'); a('s_add_u32 s5, s5, s6')
        a('s_lshl_b32 s5, s5, 6'); a('s_and_b32 s6, s4, 2'); a('s_lshl_b32 s6, s6, 4'); a('s_add_u32 s5, s5, s6'); a(f's_add_u32 s90, s5, {X1G}')
        a('v_bfe_u32 v4, v1, 2, 1'); a('v_lshlrev_b32 v4, 7, v4'); a('v_lshrrev_b32 v5, 5, v1'); a('v_lshl_add_u32 v4, v5, 4, v4')
        a('v_and_b32 v6, 3, v1'); a('v_lshl_add_u32 v4, v6, 2, v4'); a('v_lshrrev_b32 v5, 4, v1'); a('v_and_b32 v6, 1, v5'); a('v_lshl_add_u32 v4, v6, 11, v4')
        self.own_n('s91')
        a('v_and_b32 v6, 7, v1'); a('v_lshlrev_b32 v6, 3, v6'); a('v_lshrrev_b32 v165, 5, v1'); a('v_add_u32 v6, v6, v165')
        a('v_and_b32 v5, 1, v5'); a('v_lshl_add_u32 v5, v5, 9, v6'); a('v_lshlrev_b32 v5, 1, v5')
        a(f's_add_u32 s5, {EPO}, 1'); a('v_mov_b32 v166, s5'); a('v_mov_b32 v167, 0')
        for i in range(8): a(f'buffer_load_dwordx4 v[136:139], v3, {WS}, s{82+i} offen sc1')
        a('s_branch L_a_pu')
        a('L_a_pt:')
        a('s_sub_u32 s5, s3, 1'); a('s_and_b32 s5, s5, 1'); a('s_lshl_b32 s6, s5, 4'); a('v_mov_b32 v5, v2')
        a('s_lshl_b32 s82, s5, 11'); a(f's_add_u32 s82, s82, {X1G}'); a('s_add_u32 s83, s82, 1024')
        a('v_lshlrev_b32 v6, 5, v1'); a(f's_add_u32 s6, s6, {IMA}'); a('v_add_u32 v6, s6, v6')
        a('v_lshrrev_b32 v7, 4, v1'); a('v_lshlrev_b32 v7, 7, v7'); a('v_and_b32 v4, 15, v1'); a('v_lshl_add_u32 v7, v4, 2, v7'); a(f's_mul_i32 s5, s5, {YSTR}'); a(f's_add_u32 s5, s5, {YB}'); a('v_add_u32 v7, s5, v7')
        a('s_mov_b32 s84, 0x3b000000'); a('v_mov_b32 v3, 0x3727c5ac')
        for i in range(2): a(f'buffer_load_dwordx4 v[136:139], v5, {WS}, s{82+i} offen sc1')
        a('L_a_pu:')
        a('s_waitcnt vmcnt(0)')
        self.stamp(2)
        self.dry_begin('L_a_go')
        if self.ta_cnt:
            a(f'v_mov_b32 v164, {CNT + C_Q}'); a(f's_mov_b32 {POLLC}, 0'); a('L_a_sp:')
            a('ds_read_b32 v165, v164'); a('s_waitcnt lgkmcnt(0)'); a('v_cmp_gt_u32 vcc, 4, v165'); a('s_cbranch_vccz L_a_sq')
            a(f's_add_u32 {POLLC}, {POLLC}, 1'); a(f's_cmp_lt_u32 {POLLC}, {POLL_MAX*16}'); a('s_cbranch_scc1 L_a_sp'); a('L_a_sq:')
        else: self.bar()
        self.stamp(3)
        X = [136, 8]
        def xread(p):
            for u in range(4): a(f'ds_read_b128 {v(X[p]+4*u,4)}, v{160+u} offset:{128*p}')
        xread(0)
        for p in range(2):
            for m in range(8):
                if m % 2 == 0: a(f's_waitcnt lgkmcnt({3 - m//2 + (4 if p == 0 and m else 0)})')
                a(f'v_smfmac_f32_16x16x64_bf16 {v(152+4*(m&1),4)}, {v(X[p]+4*(m>>1),4)}, {v(8+64*p+8*m,8)}, v164')
                if p == 0 and m == 1: xread(1)
        self.pub_pre()
        a('v_pk_add_f32 v[152:153], v[152:153], v[154:155]'); a('v_pk_add_f32 v[154:155], v[156:157], v[158:159]')
        self.pub(f'buffer_store_dwordx4 v[152:155], v2, {WS}, s81 offen')
        self.stamp(4)
        a('s_cmp_lg_u32 s3, 0'); a('s_cbranch_scc1 L_a_ln')
        if self.ta_cnt: self.waitc(C_MR, 3, 164, 165)
        for k in range(4): a(f'ds_read_b32 v{72+k}, v7 offset:{128*k}')
        def rs(s0, last_half):
            def mk(b):
                L = [f'buffer_load_dwordx4 {v(b+4*i,4)}, v3, {WS}, s{s0+i} offen sc1' for i in range(4)]
                if last_half: L = L[:3] + ['s_mov_b32 exec_hi, 0', L[3], 's_mov_b32 exec_hi, s95']
                return L
            b = 8 if not last_half else 80
            def consume(b=b):
                a(f'v_pk_add_f32 v[156:157], {v(b,2)}, {v(b+4,2)}'); a(f'v_pk_add_f32 v[158:159], {v(b+2,2)}, {v(b+6,2)}')
                a(f'v_pk_add_f32 v[152:153], {v(b+8,2)}, {v(b+12,2)}'); a(f'v_pk_add_f32 v[154:155], {v(b+10,2)}, {v(b+14,2)}')
                a('v_pk_add_f32 v[156:157], v[156:157], v[152:153]'); a('v_pk_add_f32 v[158:159], v[158:159], v[154:155]')
            if self.pipe: self.npoll2(mk, 4, [b, b + 16], 16, 165, consume, 156)
            else: self.npoll(mk(b), range(b, b + 16), 165, consume, 156)
            self.red4rows(156)
            a('v_add_f32_dpp v156, v156, v156 row_ror:8 row_mask:0xf bank_mask:0xf')
        rs(82, False)
        a('s_waitcnt lgkmcnt(0)')
        self.ex(0x00ff00ff, 0x00ff00ff); self.pub_pre()
        a('v_fma_f32 v76, v72, v156, v73')
        self.pub(f'buffer_store_dword v76, v4, {WS}, s90 offen')
        self.exfull()
        self.stamp(5)
        for r in range(4): a(f'v_mov_b32 v{92+r}, 0'); a(f'v_mov_b32 v{108+r}, 0')
        a('v_fmac_f32 v76, v74, v75')
        self.bar(); self.bar()
        self.stamp(6)
        rs(86, True)
        self.ex(0x00ff00ff, 0x00ff00ff)
        a('v_fmac_f32 v76, v74, v156'); a('v_cvt_pk_bf16_f32 v76, v76, v76')
        a(f'buffer_store_short v76, v5, {OUT}, s91 offen')
        a('s_cmp_lg_u32 s4, 0'); a('s_cbranch_scc1 L_a_end')
        self.ex(1, 0); a(f'buffer_store_dword v166, v167, {WS}, 0 offen sc1')
        if self.padto:
            a('L_pad:'); a('s_memrealtime s[6:7]'); a('s_waitcnt lgkmcnt(0)'); a('s_sub_u32 s6, s6, s100'); a(f's_cmp_lt_u32 s6, {self.padto}'); a('s_cbranch_scc1 L_pad')
        a('L_a_end:')
        self.dry_end('L_a_go')
        self.end()
        a('L_a_ln:')
        a('s_cmp_eq_u32 s3, 3'); a('s_cbranch_scc1 L_a_end')
        a('s_cmp_ge_u32 s4, 28'); a('s_cbranch_scc1 L_a_end')
        if self.ta_cnt: self.waitc(C_MR, 3, 164, 165)
        a('ds_read_b128 v[72:75], v6'); a('ds_read_b128 v[76:79], v6 offset:2048')
        a(f'ds_read_b128 v[80:83], v6 offset:{IMS-IMA}'); a(f'ds_read_b128 v[84:87], v6 offset:{IMS-IMA+2048}')
        def shift(b):
            a(f'v_readfirstlane_b32 s6, v{b}')
            for i in range(4): a(f'v_pk_add_f32 {v(88+2*i,2)}, {v(b+2*i,2)}, s[6:7] op_sel_hi:[1,0] neg_lo:[0,1] neg_hi:[0,1]')
        self.ppoll(lambda b: [f'buffer_load_dwordx4 {v(b,4)}, v5, {WS}, s82 offen sc1', f'buffer_load_dwordx4 {v(b+4,4)}, v5, {WS}, s83 offen sc1'],
                   2, 8, [8, 16], 165, shift, delay=self.agdelay)
        self.stamp(5)
        def stats():
            a('v_pk_mul_f32 v[98:99], v[88:89], v[88:89]'); a('v_pk_add_f32 v[96:97], v[88:89], v[90:91]')
            a('v_pk_fma_f32 v[98:99], v[90:91], v[90:91], v[98:99]'); a('v_pk_add_f32 v[100:101], v[92:93], v[94:95]')
            a('v_pk_fma_f32 v[98:99], v[92:93], v[92:93], v[98:99]'); a('v_pk_add_f32 v[96:97], v[96:97], v[100:101]')
            a('v_pk_fma_f32 v[98:99], v[94:95], v[94:95], v[98:99]')
            a('v_add_f32 v156, v96, v97'); a('v_add_f32 v157, v98, v99')
            a('v_permlane32_swap_b32 v156, v157'); a('v_add_f32 v156, v156, v157')
            a('v_mov_b32 v157, v156'); a('v_permlane16_swap_b32 v156, v157'); a('v_add_f32 v156, v156, v157')
            self.rowsum(156)
            a('v_readlane_b32 s6, v156, 0'); a('v_readlane_b32 s5, v156, 32')
            a('v_mov_b32 v159, s84')
            a('v_mul_f32 v156, s6, v159'); a('v_fma_f32 v158, s5, v159, v3')
            a('v_fma_f32 v158, -v156, v156, v158'); a('v_max_f32 v158, v158, v3'); a('v_rsq_f32 v158, v158')
            for i in range(4): a(f'v_pk_add_f32 {v(88+2*i,2)}, {v(88+2*i,2)}, v[156:157] op_sel_hi:[1,0] neg_lo:[0,1] neg_hi:[0,1]')
        stats()
        a('s_waitcnt lgkmcnt(0)')
        for i in range(4): a(f'v_pk_mul_f32 {v(88+2*i,2)}, {v(88+2*i,2)}, {v(72+2*i,2)}')
        for i in range(4): a(f'v_pk_fma_f32 {v(88+2*i,2)}, {v(88+2*i,2)}, v[158:159], {v(80+2*i,2)} op_sel_hi:[1,0,1]')
        stats()
        for i in range(4): a(f'v_pk_mul_f32 {v(88+2*i,2)}, {v(88+2*i,2)}, v[158:159] op_sel_hi:[1,0]')
        for i in range(4): a(f'v_cvt_pk_bf16_f32 v{88+i}, v{88+2*i}, v{89+2*i}')
        a('ds_write2_b32 v7, v88, v89 offset1:16'); a('ds_write2_b32 v7, v90, v91 offset0:128 offset1:144')
        a('s_waitcnt lgkmcnt(0)')
        self.stamp(6)
        self.bar()
        a('s_branch L_a_end')
        self.flush_late()

    def h1_body(self):
        a = self.a
        a('v_lshrrev_b32 v3, 5, v1'); a('v_lshlrev_b32 v3, 4, v3'); a('v_bfe_u32 v4, v1, 3, 2'); a('v_add_u32 v3, v3, v4'); a(f'v_mul_u32_u24 v3, {ASTR}, v3')
        a('v_and_b32 v4, 7, v1'); a('v_lshl_add_u32 v3, v4, 4, v3')
        a('s_lshr_b32 s5, s93, 3'); a(f's_mul_i32 s5, s5, {4*ASTR}'); a('s_and_b32 s6, s93, 7'); a('s_lshl_b32 s6, s6, 7'); a('s_add_u32 s5, s5, s6')
        a(f's_add_u32 s82, s5, {AUXREG+MC_OFF}')
        a('s_lshr_b32 s5, s93, 1'); a('s_lshl_b32 s5, s5, 5'); a('s_and_b32 s6, s93, 1'); a('s_lshl_b32 s6, s6, 2'); a('s_add_u32 s5, s5, s6'); a('s_lshl_b32 s5, s5, 2')
        a(f's_add_u32 s5, s5, {LNX}')
        a('v_bfe_u32 v5, v1, 1, 2'); a('v_and_b32 v6, 1, v1'); a('v_lshlrev_b32 v7, 4, v5'); a('v_lshl_add_u32 v7, v6, 6, v7')
        a('v_lshl_add_u32 v5, v6, 9, v5'); a('v_lshlrev_b32 v5, 2, v5'); a('v_add_u32 v5, s5, v5')
        a(f's_mul_i32 s83, s93, {ASTR}'); a(f's_add_u32 s83, s83, {AUXREG+H_OFF}')
        self.waitc(C_LN, 2, 8, 9)
        for r in range(4): a(f'ds_read_b32 v{24+r}, v5 offset:{32*r}')
        self.tag_make()
        self.stamp(7)
        a(f's_mov_b32 {POLLC}, 0'); a('L_a_mp:')
        a(f's_and_b32 s5, {POLLC}, 63'); a('s_cmp_eq_u32 s5, 63'); a('s_cselect_b32 s5, 2048, 0'); a('s_add_u32 s5, s5, s82')
        a(f'buffer_load_dwordx4 v[16:19], v3, {WS}, s5 offen sc1'); a(f'buffer_load_dwordx4 v[20:23], v3, {WS}, s5 offen offset:1024 sc1')
        a('s_waitcnt vmcnt(0)')
        for i, r in enumerate([17, 19, 21, 23]):
            if i == 0: a(f'v_cmp_ne_u32 vcc, {TAG}, v{r}')
            else: a(f'v_cmp_ne_u32 s[88:89], {TAG}, v{r}'); a('s_or_b64 vcc, vcc, s[88:89]')
        a('s_cmp_eq_u64 vcc, 0'); a('s_cbranch_scc1 L_a_mq')
        a(f's_add_u32 {POLLC}, {POLLC}, 1'); a(f's_cmp_lt_u32 {POLLC}, {POLL_MAX}'); a('s_cbranch_scc1 L_a_mp')
        a('L_a_mq:')
        self.stamp(8)
        for r in range(4): a(f'v_add_f32_dpp v{12+r}, v{16+2*r}, v{16+2*r} row_ror:8 row_mask:0xf bank_mask:0xf')
        for r in range(4): a(f'v_mov_b32 v{16+r}, v{12+r}')
        for r in range(4): a(f'v_permlane16_swap_b32 v{12+r}, v{16+r}')
        for r in range(4): a(f'v_add_f32 v{12+r}, v{12+r}, v{16+r}')
        for r in range(4): a(f'v_mov_b32 v{16+r}, v{12+r}')
        for r in range(4): a(f'v_permlane32_swap_b32 v{12+r}, v{16+r}')
        for p in (12, 14, 16, 18): self.rnd2(p, p + 1, 8)
        for r in range(4): a(f'v_add_f32 v{16+r}, 1.0, v{16+r}')
        self.rnd2(16, 17, 8); self.rnd2(18, 19, 8)
        for r in range(4): a(f'v_mul_f32 v{24+r}, v{24+r}, v{16+r}')
        self.rnd2(24, 25, 8); self.rnd2(26, 27, 8)
        for r in range(4): a(f'v_add_f32 v{24+r}, v{24+r}, v{12+r}')
        a('v_cvt_pk_bf16_f32 v24, v24, v25'); a('v_cvt_pk_bf16_f32 v26, v26, v27'); a(f'v_mov_b32 v25, {TAG}'); a(f'v_mov_b32 v27, {TAG}')
        a('s_mov_b64 exec, 0xff'); a(f'buffer_store_dwordx4 v[24:27], v7, {WS}, s83 offen sc1'); a('s_mov_b64 exec, -1')
        self.arrive(C_H, 8, 9)
        self.stamp(9)

    def h1(self):
        a = self.a
        a('L_h1:')
        a('s_sub_u32 s93, s4, 28'); a('s_lshl_b32 s93, s93, 3'); a('s_add_u32 s93, s93, s3')
        self.h1_body()
        a('s_setpc_b64 s[90:91]')

    def own_n(self, dst):
        a = self.a
        a('s_and_b32 s5, s4, 0x18'); a('s_lshl_b32 s5, s5, 5'); a('s_and_b32 s6, s4, 1'); a('s_lshl_b32 s6, s6, 7'); a('s_add_u32 s5, s5, s6')
        a('s_and_b32 s6, s4, 6'); a('s_lshl_b32 s6, s6, 1'); a(f's_add_u32 {dst}, s5, s6')

    def tail_b(self):
        a = self.a
        a('L_tail_b:')
        self.srd(['W2']); self.consts()
        a('s_sub_u32 s81, s3, 4')
        self.wvoff(3, 1024, 4)
        a('s_lshl_b32 s5, s4, 16'); a('s_lshl_b32 s6, s81, 8'); a('s_add_u32 s82, s5, s6')
        a('s_waitcnt lgkmcnt(0)')
        if self.lighth: self.tag_load()
        a('s_cmp_eq_u32 s3, 5'); a('s_cbranch_scc0 L_b_ni')
        self.lds_init(); a('s_waitcnt lgkmcnt(0)')
        a('L_b_ni:')
        a('s_cmp_eq_u32 s3, 4'); a('s_cbranch_scc0 L_b_nc')
        for i in range(4): a(f'v_mov_b32 v{8+i}, -1')
        for i in range(8):
            if i % 4 == 0: a(f's_add_u32 s5, s80, {(i//4)*4096}')
            a(f'buffer_store_dwordx4 v[8:11], v2, {WS}, s5 offen offset:{(i%4)*1024} sc1')
        a(f's_add_u32 s5, s80, {ST_OFF}'); a('s_lshl_b32 s6, s4, 7'); a(f's_add_u32 s6, s6, {X1G}')
        a('s_mov_b64 exec, 0xffff'); a(f'buffer_store_dwordx4 v[8:11], v2, {WS}, s5 offen sc1')
        a('s_mov_b64 exec, 0xff'); a(f'buffer_store_dwordx4 v[8:11], v2, {WS}, s6 offen sc1'); a('s_mov_b64 exec, -1')
        a('s_barrier')
        self.xcc_inc('s85')
        a('v_mov_b32 v12, s85'); a('v_mov_b32 v13, 0')
        a('s_waitcnt vmcnt(0)')
        if not self.nohello: a('s_mov_b64 exec, 1'); a(f'buffer_atomic_add v12, v13, {DBG}, 0 offen offset:4 sc1'); a('s_mov_b64 exec, -1')
        self.stamp(1)
        if self.lighth:
            a('s_cmp_lt_u32 s4, 28'); a('s_cbranch_scc1 L_b_nh')
            a('s_call_b64 s[90:91], L_h1')
            a('v_mov_b32 v13, 0')
            a('L_b_nh:')
        a('s_branch L_b_w2')
        a('L_b_nc:')
        a('s_barrier')
        if self.lighth:
            a('s_cmp_lt_u32 s4, 28'); a('s_cbranch_scc1 L_b_w2')
            a('s_call_b64 s[90:91], L_h1')
        a('L_b_w2:')
        if self.prio: a('s_setprio 2')
        a('s_cmp_ge_u32 s4, 28'); a('s_cbranch_scc1 L_b_now2')
        if self.early2:
            self.unit_loads(32, 3, W2, 's82', 1024)
            self.waitc(C_H, 1, 8, 9)
        else:
            self.waitc(C_H, 1, 8, 9)
            self.unit_loads(32, 3, W2, 's82', 1024, depth=self.dl, prior=1)
        a(f's_add_u32 s82, s82, {32*1024}'); self.unit_loads(64, 3, W2, 's82', 1024, depth=self.dl)
        a('s_waitcnt vmcnt(0)')
        self.transpose(32, 96, ds=8); self.transpose(64, 100, ds=8)
        a('L_b_now2:')
        self.stamp(2)
        self.getmode()
        a('s_lshr_b32 s82, s81, 1')
        a('v_lshrrev_b32 v4, 4, v1')
        for i in range(3): a(f'v_add_u32 v{8+i}, {4*i}, v4')
        for i in range(3): a(f'v_lshlrev_b32 v{17+i}, 3, v{8+i}')
        a('s_mul_i32 s5, s82, 96'); a('s_add_u32 s85, s80, s5'); a(f's_add_u32 s85, s85, {ST_OFF}')
        a('v_and_b32 v5, 15, v1')
        for i in range(3): a(f'v_lshlrev_b32 v{12+i}, 11, v{8+i}'); a(f'v_lshl_add_u32 v{12+i}, v5, 4, v{12+i}')
        a('s_lshl_b32 s5, s82, 3'); a('s_lshr_b32 s6, s4, 2'); a('s_add_u32 s5, s5, s6'); a(f's_mul_i32 s5, s5, {12*2048}')
        a('s_and_b32 s6, s4, 3'); a('s_lshl_b32 s6, s6, 9'); a('s_add_u32 s5, s5, s6')
        a('s_and_b32 s6, s81, 1'); a('s_lshl_b32 s6, s6, 8'); a('s_add_u32 s5, s5, s6'); a(f's_add_u32 s83, s5, {MO_BASE}')
        a('v_and_b32 v6, 1, v4'); a('v_lshl_add_u32 v6, v5, 1, v6'); a('v_lshlrev_b32 v6, 1, v6'); a('v_lshrrev_b32 v7, 1, v4'); a('v_lshl_add_u32 v6, v7, 6, v6'); a('s_and_b32 s5, s81, 1'); a('s_lshl_b32 s5, s5, 7'); a(f's_mul_i32 s6, s82, {OSTR}'); a('s_add_u32 s5, s5, s6'); a(f's_add_u32 s5, s5, {OB}'); a('v_add_u32 v6, s5, v6')
        self.sxaddr(20, OSTR, HB, 21); a(f'v_mov_b32 v21, {ZR}')
        for u in range(4): a(f'v_cndmask_b32 v{24+u}, v21, v20, {BM[u]}')
        self.sidx(20)
        for i in range(8): a(f'v_mov_b32 v{84+i}, 0')
        a('s_lshl_b32 s5, s81, 10'); a('s_add_u32 s84, s80, s5'); a(f's_add_u32 s84, s84, {P2_OFF}')
        a(f'v_mov_b32 v22, {CNT + C_Q}'); a('v_mov_b32 v23, 1')
        t1 = [f'buffer_load_dwordx4 {v(32+4*i,4)}, v{12+i}, {WS}, s83 offen sc1' for i in range(3)]
        if self.hold: self.waitc(C_CLR, self.hold, 44, 45)
        self.poll([f'buffer_load_dwordx2 {v(52+2*i,2)}, v{17+i}, {WS}, s85 offen sc1' for i in range(3)], range(52, 58), 16, sleep=self.ssleep)
        for i in range(3): a(f'v_lshlrev_b32 v{17+i}, 7, v{8+i}')
        a('s_lshl_b32 s5, s82, 3'); a('s_lshr_b32 s6, s4, 2'); a('s_add_u32 s5, s5, s6'); a(f's_mul_i32 s5, s5, {12*128}')
        a('s_and_b32 s6, s4, 3'); a('s_lshl_b32 s6, s6, 3'); a('s_add_u32 s5, s5, s6'); a(f's_add_u32 s85, s5, {MS_BASE}')
        self.stamp(3)
        self.poll([f'buffer_load_dwordx2 {v(52+2*i,2)}, v{17+i}, {WS}, s85 offen sc1' for i in range(3)], range(52, 58), 16, sleep=self.ss2)
        for s_ in t1: a(s_)
        self.stamp(4)
        a('v_max3_f32 v16, v52, v54, v56'); self.xrows(16, 17, 'max')
        for i in range(3): a(f'v_sub_f32 v{48+i}, v{52+2*i}, v16')
        for i in range(3): a(f'v_mul_f32 v{48+i}, {LOG2E}, v{48+i}')
        for i in range(3): a(f'v_exp_f32 v{48+i}, v{48+i}')
        a('v_mul_f32 v16, v48, v53')
        for i in range(1, 3): a(f'v_fmac_f32 v16, v{48+i}, v{53+2*i}')
        self.xrows(16, 17)
        a('v_rcp_f32 v16, v16')
        for i in range(3): a(f'v_mul_f32 v{48+i}, v{48+i}, v16')
        a('s_mov_b64 s[94:95], -1')
        def comb(b=32):
            for h in range(2): a(f'v_pk_mul_f32 {v(28+2*h,2)}, {v(b+2*h,2)}, v[48:49] op_sel_hi:[1,0]')
            for h in range(2): a(f'v_pk_fma_f32 {v(28+2*h,2)}, {v(b+4+2*h,2)}, v[48:49], {v(28+2*h,2)} op_sel:[0,1,0] op_sel_hi:[1,1,1]')
            for h in range(2): a(f'v_pk_fma_f32 {v(28+2*h,2)}, {v(b+8+2*h,2)}, v[50:51], {v(28+2*h,2)} op_sel_hi:[1,0,1]')
        if self.pipet1:
            self.npoll2(lambda b: [f'buffer_load_dwordx4 {v(b+4*i,4)}, v{12+i}, {WS}, s83 offen sc1' for i in range(3)], 3, [32, 60], 12, 16, comb, 28, pre=True)
        else: self.npoll(t1, range(32, 44), 16, comb, 28, pre=True)
        self.stamp(5)
        self.red4rows(28)
        a('v_cvt_pk_bf16_f32 v28, v28, v28'); a('ds_write_b16 v6, v28')
        if self.ta_cnt: a('s_mov_b64 exec, 1'); a('ds_add_u32 v22, v23'); a('s_mov_b64 exec, -1')
        else: a('s_waitcnt lgkmcnt(0)'); a('s_barrier')
        a('s_cmp_ge_u32 s4, 28'); a('s_cbranch_scc1 L_b_end')
        a('s_waitcnt vmcnt(0)')
        a('s_barrier'); a('s_barrier')
        for u in range(4): a(f'ds_read_b128 {v(60+4*u,4)}, v{24+u}')
        for m in range(8):
            if m % 2 == 0: a(f's_waitcnt lgkmcnt({3 - m//2})')
            a(f'v_smfmac_f32_16x16x64_bf16 {v(84+4*(m&1),4)}, {v(60+4*(m>>1),4)}, {v(96+8*m,8)}, v20')
        self.pub_pre()
        a('v_pk_add_f32 v[84:85], v[84:85], v[86:87]'); a('v_pk_add_f32 v[86:87], v[88:89], v[90:91]')
        self.pub(f'buffer_store_dwordx4 v[84:87], v2, {WS}, s84 offen')
        self.stamp(6)
        a('L_b_end:')
        self.end()
        self.flush_late()

    def tail_c(self):
        a = self.a
        a('L_tail_c:')
        self.srd(['WM', 'C'])
        a('s_sub_u32 s81, s3, 8')
        self.wvoff(5, 6144, 4); self.xvoff(6, 1024, 0, 4)
        a('s_and_b32 s5, s4, 3'); a('s_lshl_b32 s5, s5, 7'); a('s_lshl_b32 s6, s81, 5'); a('s_add_u32 s83, s5, s6')
        a('s_mul_i32 s5, s83, 6144'); a('s_lshr_b32 s6, s4, 2'); a('s_lshl_b32 s6, s6, 8'); a('s_add_u32 s84, s5, s6')
        a('s_lshl_b32 s83, s83, 1')
        a('s_waitcnt lgkmcnt(0)')
        a(f'buffer_load_dwordx4 v[156:159], v6, {C_}, s83 offen')
        self.unit_loads(96, 5, WM, 's84', 6144, pol=self.mcpol)
        self.stamp(4)
        a('s_barrier')
        self.srd(['W1', 'B1', 'X', 'B2']); self.consts()
        a(f's_mul_i32 s80, s4, {ASTR}'); a(f's_add_u32 s80, s80, {AUXREG}'); a('v_lshlrev_b32 v2, 4, v1')
        self.tag_load()
        a('s_waitcnt vmcnt(8)')
        self.silu4(156, 8)
        a('s_waitcnt vmcnt(0)')
        self.stamp(5)
        self.gemv_fly(96, 156, True)
        a('s_lshl_b32 s5, s81, 10'); a(f's_add_u32 s5, s5, {MP}'); a('v_add_u32 v4, s5, v2')
        self.merge(20); a('ds_write_b128 v4, v[20:23]')
        self.arrive(C_MC, 8, 9)
        a('s_cmp_lg_u32 s3, 8'); a('s_cbranch_scc1 L_c_w1')
        self.tag_make()
        for i in range(4): a(f'v_mov_b32 v{33+2*i}, {TAG}')
        self.waitc(C_MC, 4, 8, 9); self.reduce_parts(MP, 4)
        for i in range(4): a(f'v_mov_b32 v{32+2*i}, v{96+i}')
        a(f's_add_u32 s5, s80, {MC_OFF}')
        a(f'buffer_store_dwordx4 v[32:35], v2, {WS}, s5 offen'); a(f'buffer_store_dwordx4 v[36:39], v2, {WS}, s5 offen offset:1024')
        a(f'buffer_store_dwordx4 v[32:35], v2, {WS}, s5 offen offset:2048 sc1'); a(f'buffer_store_dwordx4 v[36:39], v2, {WS}, s5 offen offset:3072 sc1')
        if self.lighth: self.arrive(C_H, 8, 9)
        self.stamp(6)
        a('L_c_w1:')
        if self.prio: a('s_setprio 1')
        self.waitc(C_H, 1, 8, 9)
        if self.w1pf:
            a('s_cmp_eq_u32 s3, 8'); a('s_cbranch_scc1 L_c_pw')
            a('s_setprio 3')
            a(f's_mul_i32 s5, s4, {16*3584}'); a('s_sub_u32 s6, s3, 9'); a('s_lshl_b32 s6, s6, 10'); a('s_add_u32 s5, s5, s6')
            for i in range(19):
                if i == 18: a('s_cmp_eq_u32 s3, 11'); a('s_cbranch_scc1 L_c_pd')
                if i >= self.w1pf: a(f's_waitcnt vmcnt({self.w1pf-1})')
                a(f'buffer_load_dwordx4 v[32:35], v2, {W1}, s5 offen'); a('s_add_u32 s5, s5, 3072')
            a('L_c_pd:')
            a('s_branch L_c_gm')
            a('L_c_pw:')
            self.waitc(C_CLR, 4, 8, 9)
            a('s_branch L_c_fin')
            a('L_c_gm:')
        else:
            a('s_cmp_eq_u32 s3, 8'); a('s_cbranch_scc1 L_c_fin')
        a('s_cmp_lg_u32 s3, 10'); a('s_cbranch_scc1 L_c_nf')
        self.xcc_inc('s85'); a('v_mov_b32 v13, 0')
        a('s_mov_b64 exec, 1')
        a('s_cmp_lg_u32 s4, 0'); a('s_cbranch_scc1 L_b_fl')
        if self.nohello: a('s_mov_b32 s85, 2'); a('s_sleep 64')
        else:
            self.pollcnt(4)
            a('v_readfirstlane_b32 s6, v14')
            a('s_lshl_b32 s85, s85, 5'); a('s_cmp_eq_u32 s85, s6'); a(f's_cselect_b32 s85, {1 if self.force_slow else 2}, 1')
            self.pollcnt(0)
        a('v_mov_b32 v16, s85'); a(f'buffer_store_dword v16, v13, {DBG}, 0 offen offset:128 sc1')
        a('s_branch L_b_fm')
        a('L_b_fl:')
        self.poll([f'buffer_load_dword v16, v13, {DBG}, 0 offen offset:128 sc1'], [16], 17, zero=True, sleep=8)
        a('L_b_fm:')
        a('v_readfirstlane_b32 s5, v16'); a('s_mov_b64 exec, -1')
        self.arrive(C_MODE, 8, 9, 's5')
        self.stamp(9)
        a('L_c_nf:')
        self.getmode()
        if self.hold: self.waitc(C_CLR, self.hold, 8, 9)
        self.stamp(1)
        a('s_cmp_lg_u32 s3, 9'); a('s_cbranch_scc1 L_c_img')
        a('v_and_b32 v4, 7, v1'); a('v_lshrrev_b32 v5, 4, v1')
        self.own_n('s84')
        a('v_lshlrev_b32 v6, 3, v4'); a('v_lshrrev_b32 v7, 1, v5'); a('v_add_u32 v6, v6, v7'); a('v_lshlrev_b32 v6, 1, v6')
        a('v_and_b32 v7, 1, v5'); a('v_lshl_add_u32 v7, v7, 10, v6')
        a(f'buffer_load_ushort v113, v7, {X_}, s84 offen'); a(f'buffer_load_ushort v115, v6, {B2}, s84 offen')
        a('v_lshrrev_b32 v6, 2, v4'); a('v_lshlrev_b32 v6, 8, v6'); a('v_lshl_add_u32 v6, v5, 4, v6'); a('v_and_b32 v7, 3, v4'); a('v_lshl_add_u32 v6, v7, 2, v6')
        a('s_lshr_b32 s5, s4, 3'); a(f's_mul_i32 s5, s5, {2*ASTR}'); a('s_and_b32 s6, s4, 1'); a('s_lshl_b32 s6, s6, 9'); a('s_add_u32 s5, s5, s6')
        a('s_and_b32 s6, s4, 6'); a('s_lshl_b32 s6, s6, 5'); a('s_add_u32 s5, s5, s6'); a(f's_add_u32 s85, s5, {AUXREG+MR_OFF}')
        loads = []
        for q in range(2):
            for ks in range(2):
                loads.append(f's_add_u32 s6, s85, {(24*q+ks)*ASTR}')
                loads.append(f'buffer_load_dword v{96+2*q+ks}, v6, {WS}, s6 offen sc1')
        self.poll(loads, range(96, 100), 8, sleep=self.psleep)
        a('v_add_f32 v112, v96, v97'); a('v_add_f32 v114, v98, v99')
        self.rnd2(112, 114, 8)
        a('v_lshlrev_b32 v113, 16, v113'); a('v_lshlrev_b32 v115, 16, v115')
        a('v_lshlrev_b32 v5, 2, v5'); a('v_lshl_add_u32 v5, v4, 4, v5'); a(f'v_add_u32 v5, {SMALL}, v5')
        for k in range(4): a(f'ds_write_b32 v5, v{112+k} offset:{128*k}')
        a('s_branch L_c_fa' if self.ta_cnt else 's_branch L_c_fin')
        a('L_c_img:')
        a('s_sub_u32 s5, s3, 10'); a('s_lshl_b32 s5, s5, 4')
        a('v_and_b32 v4, 31, v1'); a('v_lshlrev_b32 v4, 5, v4'); a('v_lshrrev_b32 v5, 5, v1'); a(f'v_mul_u32_u24 v5, {2*ASTR}, v5'); a('v_add_u32 v4, v4, v5'); a('v_add_u32 v4, s5, v4')
        a('v_lshlrev_b32 v5, 5, v1'); a('v_add_u32 v5, s5, v5'); a(f'v_add_u32 v5, {IMA}, v5')
        loads = []
        for q in range(2):
            for i in range(2):
                for ks in range(2):
                    loads.append(f's_mov_b32 s6, {AUXREG + MR_OFF + ((4+4*q+2*i)*2+ks)*ASTR}')
                    loads.append(f'buffer_load_dwordx4 {v(96+16*q+8*i+4*ks,4)}, v4, {WS}, s6 offen sc1')
        self.poll(loads, range(96, 128), 8, sleep=self.psleep)
        for q in range(2):
            for i in range(2):
                for r in range(4): a(f'v_add_f32 v{128+8*q+4*i+r}, v{96+16*q+8*i+r}, v{100+16*q+8*i+r}')
        for p in range(128, 144, 2): self.rnd2(p, p + 1, 8)
        for i in range(8): a(f'v_add_f32 v{136+i}, 1.0, v{136+i}')
        for p in range(136, 144, 2): self.rnd2(p, p + 1, 8)
        a('v_add_f32 v10, v128, v129')
        for i in range(2, 8): a(f'v_add_f32 v10, v10, v{128+i}')
        self.wavesum(10, 11); a('v_mul_f32 v10, 0x3b000000, v10')
        for i in range(8): a(f'v_sub_f32 v{128+i}, v{128+i}, v10')
        a('ds_write_b128 v5, v[136:139]'); a('ds_write_b128 v5, v[140:143] offset:2048')
        a(f'ds_write_b128 v5, v[128:131] offset:{IMS-IMA}'); a(f'ds_write_b128 v5, v[132:135] offset:{IMS-IMA+2048}')
        if self.ta_cnt:
            a('L_c_fa:'); self.arrive(C_MR, 8, 9)
        a('L_c_fin:')
        self.stamp(7)
        a('s_cmp_ge_u32 s4, 28'); a('s_cbranch_scc1 L_c_last')
        a('v_bfe_u32 v3, v1, 3, 2'); a('v_lshlrev_b32 v3, 3, v3'); a('v_lshrrev_b32 v4, 5, v1'); a('v_add_u32 v3, v3, v4')
        a('v_mul_u32_u24 v3, 3584, v3'); a('v_and_b32 v4, 7, v1'); a('v_lshl_add_u32 v3, v4, 4, v3')
        a('s_cmp_lg_u32 s3, 8'); a('s_cbranch_scc1 L_c_b1')
        a('s_lshl_b32 s82, s4, 7'); a('s_mov_b32 s83, 0')
        a('L_c_dma:')
        for i in range(4):
            if i: a(f's_add_u32 s5, s82, {2*i*3584}')
            a(f's_add_u32 m0, s83, {1024*i}')
            a(f's_waitcnt vmcnt({self.dw1-1})')
            a(f'buffer_load_dwordx4 v3, {W1}, {"s5" if i else "s82"} offen {"" if self.w1pf else self.wpol} lds')
        a(f's_add_u32 s82, s82, {32*3584}'); a('s_add_u32 s83, s83, 4096'); a('s_cmp_lt_u32 s83, 65536'); a('s_cbranch_scc1 L_c_dma')
        if self.hold: self.arrive(C_CLR, 8, 9)
        a('L_c_b1:')
        a('v_and_b32 v4, 15, v1'); a('v_lshlrev_b32 v4, 1, v4'); a('s_lshl_b32 s5, s4, 7'); a('s_lshl_b32 s6, s81, 5'); a('s_add_u32 s5, s5, s6')
        a(f'buffer_load_ushort v24, v4, {B1}, s5 offen')
        a('s_waitcnt lgkmcnt(0)')
        self.stamp(2)
        if not self.ta_cnt: a('s_barrier')
        a('s_waitcnt vmcnt(0)')
        self.arrive(C_W1, 8, 9); self.waitc(C_W1, 4, 8, 9)
        a('v_lshrrev_b32 v3, 4, v1'); a('v_lshlrev_b32 v3, 10, v3'); a('v_bfe_u32 v4, v1, 2, 2'); a('v_lshl_add_u32 v3, v4, 7, v3')
        a('v_and_b32 v4, 3, v1'); a('v_lshl_add_u32 v3, v4, 3, v3'); a('s_lshl_b32 s5, s81, 5'); a('v_add_u32 v3, s5, v3')
        for kb in range(16):
            a(f'ds_read_b64_tr_b16 {v(32+4*kb,2)}, v3 offset:{4096*kb}'); a(f'ds_read_b64_tr_b16 {v(34+4*kb,2)}, v3 offset:{4096*kb+512}')
            if kb % 4 == 3: a('s_waitcnt lgkmcnt(0)')
        a('v_lshlrev_b32 v20, 16, v24'); a('v_mov_b32 v21, v20'); a('v_mov_b32 v22, 0'); a('v_mov_b32 v23, 0')
        for i in range(4): a(f'v_mov_b32 v{24+i}, 0')
        self.sxaddr(3, YSTR, YB, 4); self.sidx(6)
        a('v_bfe_u32 v4, v1, 1, 1'); a('v_lshlrev_b32 v4, 6, v4'); a('v_bfe_u32 v5, v1, 2, 2'); a('v_lshl_add_u32 v4, v5, 2, v4'); a('v_and_b32 v5, 1, v1'); a('v_lshl_add_u32 v4, v5, 1, v4')
        a('s_lshl_b32 s5, s81, 4'); a(f's_add_u32 s5, s5, {HB}'); a('v_add_u32 v4, s5, v4')
        c0 = -2.0 * 1.4426950408889634 * 0.7978845608028654
        import struct
        f2u = lambda x: struct.unpack('<I', struct.pack('<f', x))[0]
        a(f's_mov_b32 s82, {f2u(c0):#x}'); a(f'v_mov_b32 v5, {f2u(c0*0.044715):#x}')
        self.stamp(8)
        self.dry_begin('L_c_go')
        self.bar()
        for kb in range(8): a(f'ds_read_b128 {v(96+4*kb,4)}, v3 offset:{128*kb}')
        for kb in range(8):
            a(f's_waitcnt lgkmcnt({7-kb})')
            a(f'v_smfmac_f32_16x16x64_bf16 v[20:23], {v(96+4*kb,4)}, {v(32+8*kb,8)}, v6')
        self.ex(0xffff, 0)
        a('v_pk_add_f32 v[20:21], v[20:21], v[22:23]')
        for r in range(2): a(f'v_mul_f32 v{8+r}, v{20+r}, v{20+r}')
        for r in range(2): a(f'v_fma_f32 v{8+r}, v{8+r}, v5, s82')
        for r in range(2): a(f'v_mul_f32 v{8+r}, v{8+r}, v{20+r}')
        for r in range(2): a(f'v_exp_f32 v{8+r}, v{8+r}')
        for r in range(2): a(f'v_add_f32 v{8+r}, 1.0, v{8+r}')
        for r in range(2): a(f'v_rcp_f32 v{8+r}, v{8+r}')
        for r in range(2): a(f'v_mul_f32 v{8+r}, v{8+r}, v{20+r}')
        a('v_cvt_pk_bf16_f32 v8, v8, v9')
        a('ds_write_b16 v4, v8'); a(f'ds_write_b16_d16_hi v4, v8 offset:{OSTR}')
        a('s_waitcnt lgkmcnt(0)')
        self.stamp(3)
        self.bar()
        self.dry_end('L_c_go')
        self.end()
        a('L_c_last:')
        if self.hold:
            a('s_cmp_lg_u32 s3, 8'); a('s_cbranch_scc1 L_c_l2'); self.arrive(C_CLR, 8, 9); a('L_c_l2:')
        if not self.ta_cnt: a('s_waitcnt lgkmcnt(0)'); a('s_barrier')
        self.end()

    def build(self):
        a = self.a
        for l in HEADER.strip().split('\n'): a.L.append(l)
        a(f'; @launch grid=(256,1,1) block=(768,1,1) lds={LDS_BYTES}')
        a('.amdgcn_target "amdgcn-amd-amdhsa--gfx950"'); a('.text'); a(f'.globl {KNAME}'); a('.p2align 8'); a(f'.type {KNAME},@function'); a(f'{KNAME}:')
        a('s_cmp_ge_u32 s2, 256'); a('s_cbranch_scc1 L_exit')
        self.srd(['K', 'V', 'WS', 'DBG'])
        if self.hoist:
            for nm in ('WM', 'C', 'WQ'): a(f's_load_dwordx2 s[{SRDN[nm]}:{SRDN[nm]+1}], s[0:1], {KOFF[nm]}')
            self.preloaded = {'WM', 'C', 'WQ'}
        a('v_lshrrev_b32 v2, 6, v0'); a('v_and_b32 v1, 63, v0'); a('v_readfirstlane_b32 s3, v2')
        self.stamp_init()
        if self.padto: a('s_memrealtime s[100:101]')
        a('s_and_b32 s5, s2, 7'); a('s_lshr_b32 s4, s2, 3')
        a('s_lshl_b32 s6, s5, 4'); a('s_sub_u32 s6, s3, s6'); a('s_cmp_ge_i32 s6, 8'); a('s_cbranch_scc1 L_tail_c')
        a('s_cmp_eq_u32 s5, 0'); a('s_cbranch_scc1 L_tail')
        a('s_mul_i32 s6, s4, 37'); a('s_lshr_b32 s6, s6, 8'); a('s_mul_i32 s6, s6, 7'); a('s_sub_u32 s6, s4, s6'); a('s_add_u32 s6, s6, 1')
        a('s_cmp_eq_u32 s5, s6'); a('s_cbranch_scc1 L_h_q')
        a('s_cmp_gt_u32 s5, s6'); a('s_cselect_b32 s6, 2, 1')
        a('s_mul_i32 s4, s4, 6'); a('s_add_u32 s4, s4, s5'); a('s_sub_u32 s4, s4, s6')
        self.attention()
        a('L_head:')
        self.head()
        a('L_tail:')
        self.tail()
        a('L_exit:'); a('s_endpgm')
        nn = a.fix()
        a('.section .rodata,"a"'); a('.p2align 6'); a(f'.amdhsa_kernel {KNAME}')
        for l in ['next_free_vgpr 168', 'next_free_sgpr 102', 'accum_offset 168', 'group_segment_fixed_size 0', 'kernarg_size 120',
                  'user_sgpr_count 2', 'user_sgpr_kernarg_segment_ptr 1', 'system_sgpr_workgroup_id_x 1']:
            a.L.append(f'  .amdhsa_{l}')
        a('.end_amdhsa_kernel')
        return a.text(), nn

if __name__ == '__main__':
    import argparse
    p = argparse.ArgumentParser()
    p.add_argument('-o', default='k.s'); p.add_argument('--dbg', action='store_true'); p.add_argument('--slow', action='store_true')
    p.add_argument('--thr', type=int, default=3); p.add_argument('--vpre', type=int, default=6); p.add_argument('--vextra', type=int, default=0)
    p.add_argument('--dq', type=int, default=4); p.add_argument('--dwo', type=int, default=16); p.add_argument('--dl', type=int, default=2)
    p.add_argument('--n1', type=int, default=2); p.add_argument('--n2', type=int, default=2); p.add_argument('--qsleep', type=int, default=0); p.add_argument('--qdelay', type=int, default=0); p.add_argument('--mcpol', default='nt'); p.add_argument('--dl0', type=int, default=4); p.add_argument('--wowait', type=int, default=1); p.add_argument('--thr2', type=int, default=4); p.add_argument('--nlast', type=int, default=0); p.add_argument('--early', type=int, default=0); p.add_argument('--dw1', type=int, default=12); p.add_argument('--qsets', type=int, default=1); p.add_argument('--hsets', type=int, default=1); p.add_argument('--hsleep', type=int, default=1); p.add_argument('--prio', type=int, default=0); p.add_argument('--early2', type=int, default=1); p.add_argument('--fakeq', type=int, default=0); p.add_argument('--dbg2', default=None); p.add_argument('--lite', type=int, default=0); p.add_argument('--touch', type=int, default=1); p.add_argument('--dry', type=int, default=0); p.add_argument('--pipe', type=int, default=1); p.add_argument('--thr0', type=int, default=2); p.add_argument('--nfirst', type=int, default=6); p.add_argument('--ibsts', type=int, default=1); p.add_argument('--warm', type=int, default=0); p.add_argument('--nohello', type=int, default=0); p.add_argument('--vgrad', type=int, default=2); p.add_argument('--touch2', type=int, default=1); p.add_argument('--psleep', type=int, default=16); p.add_argument('--ssleep', type=int, default=8); p.add_argument('--mrearly', type=int, default=0); p.add_argument('--n1st', type=int, default=0); p.add_argument('--w1pf', type=int, default=0); p.add_argument('--tsleep', type=int, default=0); p.add_argument('--agdelay', type=int, default=0); p.add_argument('--rsdelay', type=int, default=0); p.add_argument('--ydeep', type=int, default=99); p.add_argument('--nstep', type=int, default=0); p.add_argument('--tacnt', type=int, default=0); p.add_argument('--lighth', type=int, default=1); p.add_argument('--pipet1', type=int, default=0); p.add_argument('--qpol', default='nt'); p.add_argument('--ss2', type=int, default=1); p.add_argument('--hold', type=int, default=5); p.add_argument('--padto', type=int, default=0); p.add_argument('--vtouch', type=int, default=0); p.add_argument('--hoist', type=int, default=1); p.add_argument('--wperm', type=lambda x: int(x, 16), default=0)
    p.add_argument('--wpol', default='nt'); p.add_argument('--kvpol', default='nt')
    g = p.parse_args()
    t, nn = Gen(dbg=g.dbg, thr=g.thr, vpre=g.vpre, vextra=g.vextra, force_slow=g.slow, wpol=g.wpol, kvpol=g.kvpol, dq=g.dq, dwo=g.dwo, dl=g.dl, n1=g.n1, n2=g.n2, qsleep=g.qsleep, qdelay=g.qdelay, mcpol=g.mcpol, dl0=g.dl0, wo_wait=g.wowait, thr2=g.thr2, nlast=g.nlast, early=g.early, dw1=g.dw1, qsets=g.qsets, hsets=g.hsets, hsleep=g.hsleep, prio=g.prio, early2=g.early2, fakeq=g.fakeq, dbg2=tuple(map(int, g.dbg2.split(','))) if g.dbg2 else None, lite=g.lite, touch=g.touch, dry=g.dry, pipe=g.pipe, thr0=g.thr0, nfirst=g.nfirst, ibsts=g.ibsts, warm=g.warm, nohello=g.nohello, vgrad=g.vgrad, touch2=g.touch2, psleep=g.psleep, ssleep=g.ssleep, mrearly=g.mrearly, n1st=g.n1st, w1pf=g.w1pf, tsleep=g.tsleep, agdelay=g.agdelay, rsdelay=g.rsdelay, ydeep=g.ydeep, nstep=g.nstep, ta_cnt=g.tacnt, lighth=g.lighth, pipet1=g.pipet1, qpol=g.qpol, ss2=g.ss2, hold=g.hold, padto=g.padto, vtouch=g.vtouch, hoist=g.hoist, wperm=g.wperm).build()
    open(g.o, 'w').write(t)
    print('wrote', g.o, 'lines', t.count('\n'), 'nop states', nn)
```

```python
import sys
KNAME = 'adaLN_cond__gqa_block_cached__mixer_channel_mlp__decode_kernel'
HDR = lambda grid, blk, lds: [f'; @launch grid=({grid},1,1) block=({blk},1,1) lds={lds}',
    '.amdgcn_target "amdgcn-amd-amdhsa--gfx950"', '.text', f'.globl {KNAME}', '.p2align 8', f'.type {KNAME},@function', f'{KNAME}:']
def FTR(nv, ns=100):
    return ['.section .rodata,"a"', '.p2align 6', f'.amdhsa_kernel {KNAME}', f'  .amdhsa_next_free_vgpr {nv}', f'  .amdhsa_next_free_sgpr {ns}',
     f'  .amdhsa_accum_offset {(nv+3)//4*4}', '  .amdhsa_group_segment_fixed_size 0', '  .amdhsa_kernarg_size 120', '  .amdhsa_user_sgpr_count 2',
     '  .amdhsa_user_sgpr_kernarg_segment_ptr 1', '  .amdhsa_system_sgpr_workgroup_id_x 1', '.end_amdhsa_kernel']

def gen(NA=32, S=14, st='sc1', ld='sc1', sleep=0, three=False):
    L = HDR(256, 512, 100000); A = L.append
    NT = 16 * S
    MA = 0x100000
    MB = 0x200000
    MC = 0x300000
    MD = 0x400000
    ME = 0x500000
    TS = 0
    lab = [0]
    def poll(loads, regbase):
        lab[0] += 1; n = lab[0]
        A('s_mov_b32 s40, 0')
        A(f'L_poll{n}:')
        r = regbase; regs = []
        for (va, so, imm, ndw) in loads:
            sfx = {1: 'dword', 2: 'dwordx2', 4: 'dwordx4'}[ndw]
            dst = f'v{r}' if ndw == 1 else f'v[{r}:{r+ndw-1}]'
            A(f'buffer_load_{sfx} {dst}, {va}, s[16:19], {so} offen offset:{imm} {ld}')
            regs += list(range(r, r + ndw)); r += (ndw + 3) // 4 * 4
        A('s_waitcnt vmcnt(0)')
        A(f'v_mov_b32 v7, v{regs[0]}')
        rest = regs[1:]
        while rest:
            if len(rest) >= 2:
                A(f'v_max3_u32 v7, v7, v{rest[0]}, v{rest[1]}'); rest = rest[2:]
            else:
                A(f'v_max_u32 v7, v7, v{rest[0]}'); rest = rest[1:]
        A('v_cmp_eq_u32 vcc, -1, v7')
        A(f's_cbranch_vccz L_pd{n}')
        if sleep: A(f's_sleep {sleep}')
        A('s_add_u32 s40, s40, 1')
        A('s_cmp_lt_u32 s40, 20000')
        A(f's_cbranch_scc1 L_poll{n}')
        A(f'L_pd{n}:')
        A(f's_add_u32 s41, s41, s40')
    def stamp(i):
        A(f's_memrealtime s[{50+2*i}:{51+2*i}]')
    A('s_cmp_ge_u32 s2, 256'); A('s_cbranch_scc1 L_end')
    A('s_load_dwordx2 s[16:17], s[0:1], 112')
    A('s_load_dwordx2 s[12:13], s[0:1], 104')
    A('v_lshrrev_b32 v1, 6, v0'); A('v_and_b32 v2, 63, v0'); A('s_nop 0'); A('v_readfirstlane_b32 s3, v1')
    A('s_mov_b32 s41, 0')
    A('s_waitcnt lgkmcnt(0)')
    A('s_mov_b32 s18, 0x10000000'); A('s_mov_b32 s19, 0x20000')
    A('s_mov_b32 s14, 256'); A('s_mov_b32 s15, 0x20000')
    for i in range(8): A(f's_mov_b64 s[{50+2*i}:{51+2*i}], 0')
    A('v_lshlrev_b32 v3, 4, v0')
    A('v_mov_b32 v8, -1'); A('v_mov_b32 v9, -1'); A('v_mov_b32 v10, -1'); A('v_mov_b32 v11, -1')
    A('s_mul_i32 s20, s2, 24576'); A(f's_add_u32 s20, s20, {MA}')
    for i in range(3):
        A(f'buffer_store_dwordx4 v[8:11], v3, s[16:19], s20 offen sc0 sc1')
        A('s_add_u32 s20, s20, 8192')
    A('s_waitcnt vmcnt(0)')
    A('s_barrier')
    A('v_mov_b32 v4, 0'); A('v_mov_b32 v5, 1')
    A('v_cmp_eq_u32 vcc, 0, v0'); A('s_and_saveexec_b64 s[30:31], vcc'); A('s_cbranch_execz L_gb_done')
    A('buffer_atomic_add v5, v4, s[12:15], 0 offen sc1')
    A('s_mov_b32 s40, 0')
    A('L_gb:')
    A('buffer_load_dword v6, v4, s[12:15], 0 offen sc0 sc1')
    A('s_waitcnt vmcnt(0)')
    A('v_cmp_gt_u32 vcc, 256, v6'); A('s_cbranch_vccz L_gb_done')
    A('s_sleep 2'); A('s_add_u32 s40, s40, 1'); A('s_cmp_lt_u32 s40, 100000'); A('s_cbranch_scc1 L_gb')
    A('L_gb_done:')
    A('s_mov_b64 exec, -1')
    A('s_barrier')
    A('s_memrealtime s[20:21]'); A('s_waitcnt lgkmcnt(0)')
    A('s_lshr_b32 s22, s20, 9'); A('s_add_u32 s22, s22, 2'); A('s_lshl_b32 s22, s22, 9')
    A(f's_cmp_lt_u32 s2, {NA}'); A('s_cbranch_scc1 L_aux')
    A('L_w:'); A('s_memrealtime s[20:21]'); A('s_waitcnt lgkmcnt(0)'); A('s_sub_u32 s23, s20, s22'); A('s_cmp_lt_i32 s23, 0'); A('s_cbranch_scc1 L_w')
    stamp(0)
    A(f's_sub_u32 s24, s2, {NA}')
    A(f's_cmp_ge_u32 s24, {NT}'); A('s_cbranch_scc1 L_fin')
    A('s_cmp_ge_u32 s3, 3'); A('s_cbranch_scc1 L_fin')
    A('v_mov_b32 v8, 1.0'); A('v_mov_b32 v9, 1.0'); A('v_mov_b32 v10, 1.0'); A('v_mov_b32 v11, 1.0')
    A('s_mul_i32 s25, s24, 2176'); A(f's_add_u32 s25, s25, {MA}')
    A('v_cmp_gt_u32 vcc, 130, v0'); A('s_and_saveexec_b64 s[30:31], vcc'); A('s_cbranch_execz L_fin')
    A(f'buffer_store_dwordx4 v[8:11], v3, s[16:19], s25 offen {st}')
    A('s_waitcnt vmcnt(0)')
    stamp(1)
    A('s_branch L_fin')
    A('L_aux:')
    hp = 32 * 512 // NA
    nseg = 2 * S
    lanes_per_seg = hp // 16
    segs_per_round = 512 // lanes_per_seg
    rounds = -(-nseg // segs_per_round)
    per = 2048 // hp
    A(f's_and_b32 s26, s2, {per-1}'); A(f's_mul_i32 s26, s26, {hp}')
    A(f's_lshr_b32 s27, s2, {per.bit_length()-1}')
    loads = []
    for k in range(rounds):
        A(f'v_lshrrev_b32 v12, {lanes_per_seg.bit_length()-1}, v0'); A(f'v_add_u32 v12, {k*segs_per_round}, v12')
        A(f'v_min_u32 v12, {nseg-1}, v12')
        A(f'v_cmp_le_u32 vcc, {S}, v12'); A(f'v_mov_b32 v13, {7*S}'); A('v_cndmask_b32 v13, 0, v13, vcc'); A('v_add_u32 v12, v12, v13')
        A(f's_mul_i32 s28, s27, {S}'); A('v_add_u32 v12, s28, v12')
        A('v_mul_u32_u24 v12, 2176, v12')
        A(f'v_and_b32 v13, {lanes_per_seg-1}, v0'); A('v_lshlrev_b32 v13, 4, v13')
        A(f'v_add_u32 v{20+2*k}, v12, v13'); A(f'v_add_u32 v{20+2*k}, s26, v{20+2*k}')
        A(f'v_add_u32 v{21+2*k}, 2048, v12')
        loads.append((f'v{20+2*k}', 's29', 0, 4)); loads.append((f'v{21+2*k}', 's29', 0, 2))
    A(f's_mov_b32 s29, {MA}')
    poll(loads, 32)
    stamp(2)
    A('s_barrier')
    A('v_mov_b32 v8, 1.0'); A('v_mov_b32 v9, 1.0'); A('v_mov_b32 v10, 1.0'); A('v_mov_b32 v11, 1.0')
    def publish4k(base):
        A(f's_lshl_b32 s25, s2, 12'); A(f's_add_u32 s25, s25, {base}')
        lab[0] += 1; n = lab[0]
        A(f's_cmp_ge_u32 s3, 4'); A(f's_cbranch_scc1 L_sk{n}')
        A(f'buffer_store_dwordx4 v[8:11], v3, s[16:19], s25 offen {st}')
        A(f'L_sk{n}:')
    def reduce_read(base):
        seg = 4096 // NA; lp = seg // 16
        lab[0] += 1; n = lab[0]
        A(f's_cmp_ge_u32 s3, 4'); A(f's_cbranch_scc1 L_sk{n}')
        A(f'v_lshrrev_b32 v12, {lp.bit_length()-1}, v0'); A('v_lshlrev_b32 v12, 12, v12')
        A(f'v_and_b32 v13, {lp-1}, v0'); A('v_lshlrev_b32 v13, 4, v13'); A('v_add_u32 v20, v12, v13')
        A(f's_mul_i32 s29, s2, {seg}'); A(f's_add_u32 s29, s29, {base}')
        poll([('v20', 's29', 0, 4)], 32)
        A(f'L_sk{n}:')
    publish4k(MB)
    if three:
        A(f's_mov_b32 s29, {MB}')
        A('s_add_u32 s42, s29, 8192'); A('s_add_u32 s43, s29, 16384'); A('s_add_u32 s44, s29, 24576')
        poll([('v3', 's29', 0, 4), ('v3', 's42', 0, 4), ('v3', 's43', 0, 4), ('v3', 's44', 0, 4)], 32)
        stamp(3)
        A('s_barrier')
        stamp(4)
    else:
        reduce_read(MB)
        stamp(3)
        A('s_barrier')
        seg = 4096 // NA
        A(f'v_cmp_gt_u32 vcc, {seg//16}, v0'); A('s_and_saveexec_b64 s[30:31], vcc'); A('s_cbranch_execz L_x1')
        A(f's_mul_i32 s25, s2, {seg}'); A(f's_add_u32 s25, s25, {MC}')
        A(f'buffer_store_dwordx4 v[8:11], v3, s[16:19], s25 offen {st}')
        A('L_x1:'); A('s_mov_b64 exec, -1')
        A(f's_cmp_ge_u32 s3, 4'); A(f's_cbranch_scc1 L_x2')
        A(f's_mov_b32 s29, {MC}')
        poll([('v3', 's29', 0, 4)], 32)
        A('L_x2:')
        stamp(4)
        A('s_barrier')
    publish4k(MD)
    reduce_read(MD)
    stamp(5)
    A('s_barrier')
    A('L_fin:')
    A('s_mov_b64 exec, -1')
    A('s_waitcnt lgkmcnt(0) vmcnt(0)')
    A('s_cmp_lg_u32 s3, 0'); A('s_cbranch_scc1 L_end')
    for i in range(6): A(f'v_mov_b32 v{8+i}, s{50+2*i}')
    A('v_mov_b32 v14, s41'); A('s_getreg_b32 s31, hwreg(HW_REG_XCC_ID)'); A('v_mov_b32 v15, s31')
    A('s_lshl_b32 s30, s2, 6'); A('v_mov_b32 v1, 0')
    A('v_cmp_eq_u32 vcc, 0, v2'); A('s_and_saveexec_b64 s[32:33], vcc')
    A('buffer_store_dwordx4 v[8:11], v1, s[16:19], s30 offen')
    A('buffer_store_dwordx4 v[12:15], v1, s[16:19], s30 offen offset:16')
    A('s_waitcnt vmcnt(0)')
    A('L_end:'); A('s_endpgm')
    L += FTR(64)
    return '\n'.join(L) + '\n'
if __name__ == '__main__':
    cfgs = {
      'a32': dict(),
      'a32_sys': dict(st='sc0 sc1', ld='sc0 sc1'),
      'a32_ntld': dict(st='sc1', ld='nt sc1'),
      'a32_sl1': dict(sleep=1),
      'a64': dict(NA=64, S=12),
      'a32_three': dict(three=True),
    }
    for n, kw in cfgs.items():
        open(f'mb2_{n}.s', 'w').write(gen(**kw))
    print(' '.join(f'mb2_{n}.s' for n in cfgs))
```

```python
from gen_mb2 import HDR, FTR
from asmlib import Asm
def gen(kfirst=0, bal=0, thr=3, tdelay=40, tail_kb=22, thr_end=None, hk=4):
    a = Asm()
    for l in HDR(256, 768, 100000): a(l)
    a(f'''s_cmp_ge_u32 s2, 256
s_cbranch_scc1 L_end
s_memrealtime s[20:21]
s_load_dwordx4 s[4:7], s[0:1], 8
s_load_dwordx2 s[16:17], s[0:1], 112
v_lshrrev_b32 v1, 6, v0
v_and_b32 v2, 63, v0
v_readfirstlane_b32 s3, v1
s_waitcnt lgkmcnt(0)
s_mov_b32 s8, s4
s_mov_b32 s9, s5
s_mov_b32 s10, 0x2000000
s_mov_b32 s11, 0x20000
s_mov_b32 s12, s6
s_mov_b32 s13, s7
s_mov_b32 s14, 0x2000000
s_mov_b32 s15, 0x20000
s_mov_b32 s18, 0x10000000
s_mov_b32 s19, 0x20000
v_lshlrev_b32 v3, 4, v2
s_and_b32 s5, s2, 7
s_lshr_b32 s4, s2, 3
s_mul_i32 s6, s4, 37
s_lshr_b32 s6, s6, 8
s_mul_i32 s6, s6, 7
s_sub_u32 s6, s4, s6
s_add_u32 s6, s6, 1
s_mov_b32 s44, 0
s_cmp_eq_u32 s5, 0
s_cbranch_scc1 L_tail
s_cmp_eq_u32 s5, s6
s_cbranch_scc1 L_head
s_cmp_gt_u32 s5, s6
s_cselect_b32 s6, 2, 1
s_mul_i32 s4, s4, 6
s_add_u32 s4, s4, s5
s_sub_u32 s4, s4, s6
s_mov_b32 s7, 0x15555556
s_mul_hi_u32 s40, s4, s7
s_mul_i32 s7, s40, 12
s_sub_u32 s41, s4, s7
''')
    if bal:
        a('s_mov_b32 s42, 10'); a('s_mul_i32 s5, s41, 10')
    else:
        a('s_cmp_lt_u32 s41, 8'); a('s_cselect_b32 s42, 11, 10'); a('s_min_u32 s5, s41, 8'); a('s_mul_i32 s6, s41, 10'); a('s_add_u32 s5, s5, s6')
    a('s_mov_b32 s45, s3')
    a('L_kv:')
    a('s_cmp_ge_u32 s45, s42'); a('s_cbranch_scc1 L_end')
    a('s_lshl_b32 s5, s5, 14'); a('s_lshl_b32 s6, s40, 21'); a('s_add_u32 s5, s5, s6'); a('s_lshl_b32 s6, s45, 10'); a('s_add_u32 s22, s5, s6'); a('s_lshl_b32 s23, s42, 10')
    a('s_mov_b32 s44, 1')
    for t in range(32):
        srd = 's[8:11]' if t < 16 else 's[12:15]'
        d = thr if (thr_end is None or t < 24) else thr_end
        if t >= d: a(f's_waitcnt vmcnt({d-1})')
        a(f's_mul_i32 s25, s23, {t%16}'); a('s_add_u32 s25, s25, s22')
        a(f'buffer_load_dwordx4 v[{8+4*t}:{11+4*t}], v3, {srd}, s25 offen nt')
    a('s_branch L_done')
    a('L_head:')
    a('s_mul_i32 s22, s2, 0x40000'); a('s_lshl_b32 s23, s3, 10'); a('s_add_u32 s22, s22, s23'); a('s_add_u32 s22, s22, 0x1000000')
    a('s_cmp_lt_u32 s3, 4'); a('s_cbranch_scc1 L_h2')
    a('s_load_dwordx2 s[36:37], s[0:1], 24'); a('s_mov_b32 s38, 0x400000'); a('s_mov_b32 s39, 0x20000')
    a('v_lshrrev_b32 v4, 4, v2'); a('v_lshlrev_b32 v4, 14, v4'); a('v_and_b32 v5, 15, v2'); a('v_lshl_add_u32 v4, v5, 4, v4')
    a('s_sub_u32 s26, s3, 4'); a('s_lshl_b32 s26, s26, 19'); a('s_lshl_b32 s27, s4, 8'); a('s_add_u32 s26, s26, s27'); a('s_waitcnt lgkmcnt(0)')
    for t in range(16):
        if t >= 4: a('s_waitcnt vmcnt(3)')
        j = t % 8
        a(f's_add_u32 s25, s26, {((t//8)*32 + 8*(j&3) + (j>>2))*8192}'); a(f'buffer_load_dwordx4 v[{8+4*t}:{11+4*t}], v4, s[36:39], s25 offen nt')
    a('s_waitcnt vmcnt(0)'); a('s_memrealtime s[46:47]')
    a('s_barrier')
    a('s_cmp_ge_u32 s3, 8'); a('s_cbranch_scc1 L_done')
    for t in range(16):
        if t >= 4: a('s_waitcnt vmcnt(3)')
        a(f's_add_u32 s25, s22, {(16+t)*12*1024 % 0x40000}'); a(f'buffer_load_dwordx4 v[{8+4*t}:{11+4*t}], v3, s[16:19], s25 offen nt')
    a('s_branch L_done')
    a('L_h2:')
    a('s_barrier')
    if not bal: a('s_branch L_end')
    a('s_lshr_b32 s40, s4, 1'); a('s_and_b32 s5, s4, 1'); a('s_lshl_b32 s5, s5, 2'); a('s_add_u32 s5, s5, 120'); a('s_mov_b32 s42, 4'); a('s_mov_b32 s45, s3')
    a('s_lshl_b32 s5, s5, 14'); a('s_lshl_b32 s6, s40, 21'); a('s_add_u32 s5, s5, s6'); a('s_lshl_b32 s6, s45, 10'); a('s_add_u32 s22, s5, s6'); a('s_lshl_b32 s23, s42, 10')
    a('s_mov_b32 s44, 1')
    for t in range(32):
        srd = 's[8:11]' if t < 16 else 's[12:15]'
        if t >= 2 * hk: a(f's_waitcnt vmcnt({2*hk-1})')
        a(f's_mul_i32 s25, s23, {t%16}'); a('s_add_u32 s25, s25, s22')
        a(f'buffer_load_dwordx4 v[{8+4*t}:{11+4*t}], v3, {srd}, s25 offen nt')
    a('s_branch L_done')
    a('L_tail:')
    a('s_mul_i32 s22, s2, 0x40000'); a('s_lshl_b32 s23, s3, 10'); a('s_add_u32 s22, s22, s23'); a('s_add_u32 s22, s22, 0x1000000')
    for t in range(tail_kb + 3):
        if t == 3: a('s_waitcnt vmcnt(0)'); a(f's_sleep {tdelay}')
        if t >= 7: a('s_waitcnt vmcnt(3)')
        a(f's_add_u32 s25, s22, {t*12*1024}'); a(f'buffer_load_dwordx4 v[{8+4*t}:{11+4*t}], v3, s[16:19], s25 offen nt')
    a('L_done:')
    a('''s_waitcnt vmcnt(0)
s_memrealtime s[32:33]
s_waitcnt lgkmcnt(0)
s_lshl_b32 s30, s2, 4
s_add_u32 s30, s30, s3
s_lshl_b32 s30, s30, 5
v_mov_b32 v8, s20
v_mov_b32 v9, s32
v_mov_b32 v10, s44
v_mov_b32 v11, s46
v_mov_b32 v1, 0
s_mov_b64 exec, 1
buffer_store_dwordx4 v[8:11], v1, s[16:19], s30 offen
L_end:
s_endpgm''')
    a.fix()
    for l in FTR(136, 50): a(l)
    return a.text()
cfgs = {'cur': dict(tdelay=16), 'cur_e4': dict(tdelay=16, thr_end=4), 'bal_t4': dict(bal=1, thr=4, tdelay=16, hk=5), 'bal_t3': dict(bal=1, thr=3, tdelay=16, hk=5), 'bal_t3e4': dict(bal=1, thr=3, thr_end=4, tdelay=16, hk=4)}
for n, kw in cfgs.items(): open(f'mb14_{n}.s', 'w').write(gen(**kw))
print(' '.join(f'mb14_{n}.s' for n in cfgs)); print(', '.join(f'"work/mb14_{n}.s"' for n in cfgs))
```
